```python
import torch

def _softmax(x, axis=-1):
    return torch.softmax(x, dim=axis)
def _gelu(x):
    return torch.nn.functional.gelu(x, approximate="tanh")
def _silu(x):
    return torch.nn.functional.silu(x)
def _sigmoid(x):
    return torch.sigmoid(x)
def _layernorm(x, axis=-1, eps=1e-5):
    m = x.mean(dim=axis, keepdim=True)
    v = x.var(dim=axis, keepdim=True, unbiased=False)
    return (x - m) / torch.sqrt(v + eps)
def _scatter_add(tgt, idx, src, axis=0):
    return tgt.clone().index_add_(axis, idx, src)
def _segment_sum(src, seg, n):
    out = torch.zeros((n,) + src.shape[1:], dtype=src.dtype)
    return out.index_add_(0, seg, src)
def _pad(x, pw):
    flat = tuple(v for pair in reversed(pw) for v in pair)
    return torch.nn.functional.pad(x, flat)

kernel_name = 'standalone__linear_kernel_rfa__prompt'

def setup_inputs():

    _w = (lambda a: (lambda t: t.to(torch.bfloat16) if t.is_floating_point() else t)(torch.as_tensor(a)))
    B, H, Sq, Sk, D, M = 1, 16, 2048, 2048, 256, 64
    return {
        "q": _w((lambda *s: torch.randn(*s, dtype=torch.bfloat16) * 0.05)(B, H, Sq, D)),
        "k": _w((lambda *s: torch.randn(*s, dtype=torch.bfloat16) * 0.8)(B, H, Sk, D)),
        "v": _w((lambda *s: torch.randn(*s, dtype=torch.bfloat16) * 0.8)(B, H, Sk, D)),
        "omega": _w((lambda *s: torch.randn(*s, dtype=torch.bfloat16) * 0.8)(M, D)),
    }

def reference(q, k, v, omega):
    d = q.shape[-1]
    m = omega.shape[0]
    scale = float(d) ** -0.25
    qs = q * scale
    ks = k * scale
    q_proj = torch.einsum("bhsd,md->bhsm", qs, omega)
    k_proj = torch.einsum("bhsd,md->bhsm", ks, omega)
    q_sq = 0.5 * torch.einsum("bhsd,bhsd->bhs", qs, qs)[..., None]
    k_sq = 0.5 * torch.einsum("bhsd,bhsd->bhs", ks, ks)[..., None]
    inv_sqrt_m = float(m) ** -0.5
    phi_q = torch.exp(q_proj - q_sq) * inv_sqrt_m + 1e-6
    phi_k = torch.exp(k_proj - k_sq) * inv_sqrt_m + 1e-6
    kv = torch.einsum("bhsm,bhsd->bhmd", phi_k, v)
    z  = torch.einsum("bhsm->bhm", phi_k)
    num = torch.einsum("bhqm,bhmd->bhqd", phi_q, kv)
    den = torch.einsum("bhqm,bhm->bhq", phi_q, z)[..., None] + 1e-6
    return num / den
```

```python
import re

TRANS = ("v_exp_f32", "v_log_f32", "v_rcp_f32", "v_rsq_f32", "v_sqrt_f32", "v_sin_f32", "v_cos_f32")

def regs_of(tok):
    tok = tok.strip()
    tok = tok.lstrip("-").strip("|")
    m = re.fullmatch(r"([vsa])(\d+)", tok)
    if m: return [(m.group(1), int(m.group(2)))]
    m = re.fullmatch(r"([vsa])\[(\d+):(\d+)\]", tok)
    if m: return [(m.group(1), i) for i in range(int(m.group(2)), int(m.group(3)) + 1)]
    if tok == "vcc": return [("s", 106), ("s", 107)]
    if tok == "vcc_lo": return [("s", 106)]
    if tok == "vcc_hi": return [("s", 107)]
    if tok == "m0": return [("s", 124)]
    if tok == "exec": return [("s", 126), ("s", 127)]
    return []

def split_ops(s):
    ops, depth, cur = [], 0, ""
    for ch in s + ",":
        if ch in "[(": depth += 1
        elif ch in "])": depth -= 1
        if ch == "," and depth == 0:
            ops.append(cur.strip()); cur = ""
        else: cur += ch
    return [o for o in ops if o]

class Ins:
    def __init__(self, text):
        self.text = text
        t = text.split(";")[0].strip()
        parts = t.split(None, 1)
        self.mn = parts[0]
        rest = parts[1] if len(parts) > 1 else ""
        ops = split_ops(rest)
        self.mods = []
        clean = []
        for o in ops:
            p = o.split()
            clean.append(p[0]); self.mods += p[1:]
        self.ops = clean
        mn = self.mn
        self.kind = None
        self.defs, self.uses = [], []
        self.passes = 0
        self.srcC = []
        self.srcAB = []
        if mn.startswith("v_mfma"):
            self.kind = "mfma"
            self.passes = 8 if "32x32x16" in mn else (4 if "16x16x32" in mn else 16)
            self.defs = regs_of(clean[0]); self.srcAB = regs_of(clean[1]) + regs_of(clean[2]); self.srcC = regs_of(clean[3])
            self.uses = self.srcAB + self.srcC
        elif mn.startswith("v_"):
            self.kind = "valu"
            if mn.startswith("v_cmp"):
                self.defs = regs_of(clean[0]); self.uses = sum([regs_of(o) for o in clean[1:]], [])
            elif mn.startswith("v_permlane") and "swap" in mn:
                self.defs = regs_of(clean[0]) + regs_of(clean[1]); self.uses = list(self.defs)
            elif mn.startswith(("v_add_co", "v_sub_co", "v_addc_co", "v_subb_co")):
                self.defs = regs_of(clean[0]) + regs_of(clean[1]); self.uses = sum([regs_of(o) for o in clean[2:]], [])
            else:
                self.defs = regs_of(clean[0]); self.uses = sum([regs_of(o) for o in clean[1:]], [])
                if mn.startswith(("v_dot2c", "v_fmac", "v_writelane")): self.uses += regs_of(clean[0])
                if mn.startswith("v_cndmask") and len(clean) == 3: self.uses += regs_of("vcc")
        elif mn.startswith("ds_"):
            self.kind = "ds"
            if mn.startswith("ds_read") or "_rtn" in mn or mn.startswith(("ds_bpermute", "ds_permute", "ds_swizzle")):
                self.defs = regs_of(clean[0]); self.uses = sum([regs_of(o) for o in clean[1:]], [])
            else:
                self.uses = sum([regs_of(o) for o in clean], [])
        elif mn.startswith(("buffer_", "global_")):
            self.kind = "vmem"
            lds = "lds" in self.mods or "_lds_" in mn
            allr = [regs_of(o) for o in clean]
            if mn in ("buffer_wbl2", "buffer_inv"):
                pass
            elif "load" in mn and not lds:
                self.defs = allr[0]; self.uses = sum(allr[1:], [])
            elif "atomic" in mn and "sc0" in self.mods:
                self.defs = allr[0]; self.uses = sum(allr[0:], []) if mn.startswith("buffer") else sum(allr[1:], [])
            else:
                self.uses = sum(allr, [])
            if lds: self.uses += [("s", 124)]
            self.is_store_wide = ("store" in mn and ("x3" in mn or "x4" in mn))
            if self.is_store_wide:
                self.store_data = allr[0] if mn.startswith("buffer") else allr[1]
        elif mn.startswith("s_"):
            self.kind = "salu"
            if mn.startswith(("s_cmp", "s_cbranch", "s_branch", "s_waitcnt", "s_nop", "s_barrier", "s_sleep", "s_endpgm", "s_setprio", "s_bitcmp")):
                self.uses = sum([regs_of(o) for o in clean], [])
            else:
                self.defs = regs_of(clean[0]) if clean else []
                self.uses = sum([regs_of(o) for o in clean[1:]], [])
        else:
            raise ValueError("unknown instr " + text)
    def states(self):
        if self.mn == "s_nop": return int(self.ops[0], 0) + 1
        return 1

def is_trans(i): return i.mn.replace("_e32", "").replace("_e64", "") in TRANS

def need(prod, cons):
    n = 0
    pd, cd, cu = set(prod.defs), set(cons.defs), set(cons.uses)
    if prod.kind == "valu":
        vd = {r for r in pd if r[0] in "va"}
        sd = {r for r in pd if r[0] == "s"}
        if cons.kind == "mfma" and vd & cu: n = max(n, 2)
        if cons.kind == "valu":
            if is_trans(prod) and not is_trans(cons) and vd & cu: n = max(n, 1)
            if is_trans(prod) and is_trans(cons) and vd & cu: n = max(n, 1)
            if cons.mn.startswith("v_permlane") and vd & cu: n = max(n, 2)
            if cons.mn.startswith(("v_readfirstlane", "v_readlane")) and vd & cu: n = max(n, 1)
            if "dpp" in cons.text and vd & cu: n = max(n, 2)
            if "sdwa" in prod.text and vd & (cu | cd): n = max(n, 1)
            if sd & cu: n = max(n, 4 if cons.mn.startswith(("v_readlane", "v_writelane")) else 2)
        if cons.kind == "vmem" and sd & cu: n = max(n, 5)
        if cons.kind == "salu" and sd & cu: n = max(n, 3)
        if cons.kind in ("vmem", "ds") and is_trans(prod) and vd & cu: n = max(n, 1)
        if prod.mn.startswith("v_dot2"):
            if cons.mn == prod.mn:
                ab = set(regs_of(cons.ops[1]) + regs_of(cons.ops[2]))
                if vd & ab: n = max(n, 3)
            elif vd & (cu | cd): n = max(n, 3)
    if prod.kind == "mfma":
        p = prod.passes
        raw = {2: 5, 4: 8, 8: 12, 16: 20}[p]
        if cons.kind == "mfma":
            if pd & set(cons.srcAB): n = max(n, raw)
            if pd & set(cons.srcC):
                if set(cons.srcC) == pd and cons.passes == p: pass
                else: n = max(n, {2: 4, 4: 6, 8: 10, 16: 18}[p])
            elif pd & cd:
                n = max(n, raw)
        else:
            if pd & (cu | cd): n = max(n, raw)
            if cons.kind == "valu" and set(prod.srcC) & cd: n = max(n, {2: 1, 4: 3, 8: 7, 16: 15}[p])
            if cons.kind in ("ds", "vmem") and set(prod.srcC) & cd: n = max(n, {2: 1, 4: 3, 8: 7, 16: 15}[p])
    if prod.kind == "salu":
        if ("s", 124) in pd and ("s", 124) in cu and cons.kind in ("vmem", "ds"): n = max(n, 1)
    if prod.kind == "vmem" and getattr(prod, "is_store_wide", False):
        if set(prod.store_data) & cd: n = max(n, 2)
    return n

class Asm:
    def __init__(self):
        self.items = []
    def I(self, s):
        for ln in s.strip().split("\n"):
            ln = ln.strip()
            if not ln or ln.startswith(";"):
                if ln: self.items.append(("t", "    " + ln))
                continue
            self.items.append(("i", Ins(ln)))
    def L(self, name): self.items.append(("l", name))
    def LN(self, name): self.items.append(("ln", name))
    def T(self, text): self.items.append(("t", text))
    def C(self, text): self.items.append(("t", "    ; " + text))
    def render(self):
        out = []
        hist = []
        nops = 0
        for kind, x in self.items:
            if kind == "t": out.append(x); continue
            if kind == "ln": out.append(x + ":"); continue
            if kind == "l":
                k = self._fence(hist)
                if k:
                    out.append(self._nop(k)); nops += k
                hist = []
                out.append(x + ":"); continue
            ins = x
            req = 0
            dist = 0
            for p in reversed(hist):
                nd = need(p, ins) - dist
                if nd > req: req = nd
                dist += p.states()
                if dist > 24: break
            if ins.mn.startswith(("s_cbranch", "s_branch")) and "nofence" not in ins.text:
                req = max(req, self._fence(hist))
            if req > 0:
                out.append(self._nop(req)); nops += req
                hist.append(Ins("s_nop %d" % (req - 1)) if req <= 16 else Ins("s_nop 15"))
                if req > 16: hist.append(Ins("s_nop %d" % (req - 17)))
            out.append("    " + ins.text)
            hist.append(ins)
            if len(hist) > 40: hist = hist[-40:]
        self.nops = nops
        return "\n".join(out) + "\n"
    def _nop(self, k):
        s = []
        while k > 0:
            c = min(k, 16); s.append("    s_nop %d" % (c - 1)); k -= c
        return "\n".join(s)
    def _fence(self, hist):
        req = 0; dist = 0
        for p in reversed(hist):
            w = 0
            if p.kind == "mfma": w = {2: 5, 4: 8, 8: 12, 16: 20}[p.passes]
            elif p.kind == "valu":
                w = 5 if any(r[0] == "s" for r in p.defs) else (3 if p.mn.startswith("v_dot2") else 2)
            elif p.kind == "salu" and ("s", 124) in p.defs: w = 1
            elif p.kind == "vmem" and getattr(p, "is_store_wide", False): w = 2
            if w - dist > req: req = w - dist
            dist += p.states()
            if dist > 24: break
        return req

class Regs:
    def __init__(self, start=0, limit=256):
        self.next = start; self.limit = limit; self.names = {}
    def alloc(self, name, n=1, align=1):
        b = (self.next + align - 1) // align * align
        assert b + n <= self.limit, "out of regs for " + name
        self.names[name] = (b, n); self.next = b + n
        return b
def v(b, n=1):
    return "v%d" % b if n == 1 else "v[%d:%d]" % (b, b + n - 1)
def s(b, n=1):
    return "s%d" % b if n == 1 else "s[%d:%d]" % (b, b + n - 1)
```

```python
import sys
from asmlib import *

NAME = "standalone__linear_kernel_rfa__prompt_kernel"
class O: pass
opt = O()
opt.debug_stage = 0
opt.spin_limit = 400000

KQ = 0
VR = 65536
WR = 131072
PHI = WR
ZB = WR + 16384
ZF = WR + 17408
FLG = WR + 17664
KVF = VR
LDS_BYTES = 163840
WS_PART = 0
WS_Z = 16 << 20
WS_F = 17 << 20

sQp, sKp, sVp, sWp, sOp, sDp, sSp = 4, 6, 8, 10, 12, 14, 16
sHEAD, sCH = 18, 19
rK, rV, rQ, rW, rO, rP, rZ, rF, rD = 20, 24, 28, 32, 36, 40, 44, 48, 52
sWAVE, sTI = 56, 57
sT0, sT1, sT2, sT3 = 58, 59, 60, 61
sEX = 62
sC025L, sC025H, sLOG2E, sC0125, sMASKH, sONES = 64, 65, 66, 67, 68, 69
sSPIN = 70
sSOFF = 71
sEPS = 72
sM132 = 73

A = Asm()
I, L, C = A.I, A.L, A.C

def srd(r, ptr, off_s, size):
    if off_s is None:
        I(f"s_mov_b32 {s(r)}, {s(ptr)}")
        I(f"s_and_b32 {s(r+1)}, {s(ptr+1)}, 0xffff")
    else:
        I(f"s_add_u32 {s(r)}, {s(ptr)}, {s(off_s)}")
        I(f"s_addc_u32 {s(r+1)}, {s(ptr+1)}, 0")
        I(f"s_and_b32 {s(r+1)}, {s(r+1)}, 0xffff")
    I(f"s_mov_b32 {s(r+2)}, {size}")
    I(f"s_mov_b32 {s(r+3)}, 0x20000")

vLANE = 0
vA = 2
vD = 10
vL16 = 11
vT = 12
vW = 128
def W(mt, t): return vW + mt * 64 + t * 4

def prologue():
    I(f"s_cmp_ge_u32 s2, 256")
    I(f"s_cbranch_scc1 L_end")
    I(f"s_load_dwordx4 s[4:7], s[0:1], 0")
    I(f"s_load_dwordx4 s[8:11], s[0:1], 16")
    I(f"s_load_dwordx4 s[12:15], s[0:1], 32")
    I(f"s_load_dwordx2 s[16:17], s[0:1], 48")
    I(f"v_lshrrev_b32 v1, 6, v0")
    I(f"v_and_b32 {v(vLANE)}, 63, v0")
    I(f"v_readfirstlane_b32 {s(sWAVE)}, v1")
    I(f"s_and_b32 {s(sT0)}, s2, 7")
    I(f"s_lshr_b32 {s(sT1)}, s2, 3")
    I(f"s_lshr_b32 {s(sHEAD)}, {s(sT1)}, 4")
    I(f"s_lshl_b32 {s(sT0)}, {s(sT0)}, 1")
    I(f"s_add_u32 {s(sHEAD)}, {s(sHEAD)}, {s(sT0)}")
    I(f"s_and_b32 {s(sCH)}, {s(sT1)}, 15")
    I(f"s_and_b32 {s(sTI)}, {s(sWAVE)}, 3")
    I(f"v_lshrrev_b32 {v(vT)}, 5, {v(vLANE)}")
    I(f"v_and_b32 {v(vT+1)}, 31, {v(vLANE)}")
    I(f"v_xor_b32 {v(vT+1)}, {v(vT+1)}, {v(vT)}")
    I(f"v_lshlrev_b32 {v(vT+1)}, 4, {v(vT+1)}")
    I(f"v_lshl_add_u32 {v(vD)}, {v(vT)}, 9, {v(vT+1)}")
    I(f"v_lshlrev_b32 {v(vL16)}, 4, {v(vLANE)}")
    I(f"s_lshl_b32 {s(sT0)}, {s(sHEAD)}, 20")
    I(f"s_lshl_b32 {s(sT1)}, {s(sCH)}, 16")
    I(f"s_add_u32 {s(sT0)}, {s(sT0)}, {s(sT1)}")
    I(f"s_waitcnt lgkmcnt(0)")
    srd(rW, sWp, None, 32768)
    srd(rK, sKp, sT0, 65536)
    srd(rV, sVp, sT0, 65536)

def dma_omega():
    C("omega -> LDS W region, 4 instructions per wave, rows 8w..8w+7")
    I(f"s_and_b32 {s(sT1)}, {s(sWAVE)}, 1")
    I(f"s_lshl_b32 {s(sT1)}, {s(sT1)}, 7")
    I(f"s_lshl_b32 {s(sSOFF)}, {s(sWAVE)}, 12")
    I(f"s_add_u32 m0, {s(sSOFF)}, {WR}")
    for i in range(4):
        I(f"s_add_u32 {s(sT2)}, {s(sT1)}, {32*i}")
        I(f"v_xor_b32 {v(vT)}, {s(sT2)}, {v(vD)}")
        I(f"buffer_load_dwordx4 {v(vT)}, {s(rW,4)}, {s(sSOFF)} offen offset:{1024*i} lds")

def dma_tile(r, base_lds):
    I(f"s_lshl_b32 {s(sSOFF)}, {s(sTI)}, 14")
    for i in range(16):
        if i % 4 == 0:
            if i: I(f"s_add_u32 {s(sSOFF)}, {s(sSOFF)}, 4096")
            I(f"s_add_u32 m0, {s(sSOFF)}, {base_lds}")
        if i & 7:
            I(f"v_xor_b32 {v(vT)}, {32*(i&7)}, {v(vD)}")
            I(f"buffer_load_dwordx4 {v(vT)}, {s(r,4)}, {s(sSOFF)} offen offset:{1024*(i%4)} lds")
        else:
            I(f"buffer_load_dwordx4 {v(vD)}, {s(r,4)}, {s(sSOFF)} offen offset:{1024*(i%4)} lds")

def dma_v():
    C("V slice (128 rows x 128 B) of team-A wave a -> LDS VR + a*16384")
    I(f"v_lshrrev_b32 {v(vT)}, 4, {v(vLANE)}")
    I(f"v_and_b32 {v(vT)}, 1, {v(vT)}")
    I(f"v_lshlrev_b32 {v(vT)}, 2, {v(vT)}")
    I(f"v_and_b32 {v(vT+1)}, 7, {v(vLANE)}")
    I(f"v_xor_b32 {v(vT)}, {v(vT)}, {v(vT+1)}")
    I(f"v_lshlrev_b32 {v(vT)}, 4, {v(vT)}")
    I(f"v_lshrrev_b32 {v(vT+1)}, 3, {v(vLANE)}")
    I(f"v_lshl_add_u32 {v(vT)}, {v(vT+1)}, 9, {v(vT)}")
    I(f"s_lshl_b32 {s(sT1)}, {s(sTI)}, 7")
    I(f"v_add_u32 {v(vT)}, {s(sT1)}, {v(vT)}")
    I(f"s_lshl_b32 {s(sT1)}, {s(sTI)}, 14")
    I(f"s_add_u32 {s(sT1)}, {s(sT1)}, {VR}")
    I(f"s_mov_b32 {s(sSOFF)}, 0")
    for i in range(16):
        I(f"s_add_u32 m0, {s(sT1)}, {1024*i}")
        if i: I(f"s_add_u32 {s(sSOFF)}, {s(sSOFF)}, 4096")
        I(f"buffer_load_dwordx4 {v(vT)}, {s(rV,4)}, {s(sSOFF)} offen lds")

def tile_addrs():
    C("vA[x] = j*512 + (((h ^ (j&15))*16) ^ 32x) + WR   (j = lane&31, h = lane>>5)")
    I(f"v_and_b32 {v(vT)}, 31, {v(vLANE)}")
    I(f"v_lshrrev_b32 {v(vT+1)}, 5, {v(vLANE)}")
    I(f"v_and_b32 {v(vT+2)}, 15, {v(vLANE)}")
    I(f"v_xor_b32 {v(vT+2)}, {v(vT+2)}, {v(vT+1)}")
    I(f"v_lshlrev_b32 {v(vT+2)}, 4, {v(vT+2)}")
    I(f"v_lshl_add_u32 {v(vT+2)}, {v(vT)}, 9, {v(vT+2)}")
    for x in range(8):
        if x: I(f"v_xor_b32 {v(vA+x)}, {32*x}, {v(vT+2)}")
        else: I(f"v_mov_b32 {v(vA)}, {v(vT+2)}")
    for x in range(8):
        I(f"v_add_u32 {v(vA+x)}, {WR}, {v(vA+x)}")

def read_omega():
    C("omega fragments -> registers")
    n = 0
    for t in range(16):
        for mt in range(2):
            I(f"ds_read_b128 {v(W(mt,t),4)}, {v(vA+(t&7))} offset:{(t>>3)*256 + mt*16384}")
    C("rebase the fragment addresses onto this wave's tile in the KQ region")
    I(f"s_lshl_b32 {s(sT1)}, {s(sTI)}, 14")
    I(f"s_sub_u32 {s(sT1)}, {s(sT1)}, {WR - KQ}")
    for x in range(8):
        I(f"v_add_u32 {v(vA+x)}, {s(sT1)}, {v(vA+x)}")

def consts():
    I(f"s_mov_b32 {s(sC025L)}, 0x00003e80")
    I(f"s_mov_b32 {s(sC025H)}, 0x3e800000")
    I(f"s_mov_b32 {s(sLOG2E)}, 0x3fb8aa3b")
    I(f"s_mov_b32 {s(sC0125)}, 0x3e000000")
    I(f"s_mov_b32 {s(sMASKH)}, 0xffff0000")
    I(f"s_mov_b32 {s(sONES)}, 0x3f803f80")
    I(f"s_mov_b32 {s(sEPS)}, 0x358637bd")
    I(f"s_mov_b32 {s(sM132)}, 0xbd000000")

vKF = 32
vA1 = 48
vNQ = 80
vNK = 96
vONE = 100
vSS = 104
vP1 = 108
vTT = 112
vEPS = 120
vZP = 121
vP4 = 28
vP4 = 12

def gemm1(a_is_tile):
    for t in range(4):
        I(f"ds_read_b128 {v(vKF+4*t,4)}, {v(vA+(t&7))} offset:{(t>>3)*256}")
    for i in range(4): I(f"v_mov_b32 {v(vSS+i)}, 0")
    for t in range(16):
        rem = min(3, 15 - t)
        I(f"s_waitcnt lgkmcnt({rem})")
        f = vKF + 4 * (t % 4)
        for mt in range(2):
            c = "0" if t == 0 else v(vA1 + 16*mt, 16)
            if a_is_tile: I(f"v_mfma_f32_32x32x16_bf16 {v(vA1+16*mt,16)}, {v(f,4)}, {v(W(mt,t),4)}, {c}")
            else:         I(f"v_mfma_f32_32x32x16_bf16 {v(vA1+16*mt,16)}, {v(W(mt,t),4)}, {v(f,4)}, {c}")
        for i in range(4):
            I(f"v_dot2c_f32_bf16 {v(vSS+i)}, {v(f+i)}, {v(f+i)}")
        if t + 4 < 16:
            tn = t + 4
            I(f"ds_read_b128 {v(f,4)}, {v(vA+(tn&7))} offset:{(tn>>3)*256}")
    C("row sum of squares: both halves")
    I(f"v_add_f32 {v(vSS)}, {v(vSS)}, {v(vSS+1)}")
    I(f"v_add_f32 {v(vSS+2)}, {v(vSS+2)}, {v(vSS+3)}")
    I(f"v_add_f32 {v(vSS)}, {v(vSS)}, {v(vSS+2)}")
    I(f"v_mov_b32 {v(vSS+1)}, {v(vSS)}")
    I(f"v_permlane32_swap_b32 {v(vSS)}, {v(vSS+1)}")
    I(f"v_add_f32 {v(vSS)}, {v(vSS)}, {v(vSS+1)}")

def pipeline(mt, nq_of, p4base):
    for g in range(2):
        prs = [4*g + i for i in range(4)]
        acc = lambda r: vA1 + 16*mt + r
        for i, p in enumerate(prs): I(f"v_cvt_pk_bf16_f32 {v(vP1+i)}, {v(acc(2*p))}, {v(acc(2*p+1))}")
        for i, p in enumerate(prs):
            I(f"v_dot2_f32_bf16 {v(vTT+2*i)}, {v(vP1+i)}, {s(sC025L)}, {v(nq_of(2*p))}")
            I(f"v_dot2_f32_bf16 {v(vTT+2*i+1)}, {v(vP1+i)}, {s(sC025H)}, {v(nq_of(2*p+1))}")
        for i, p in enumerate(prs): I(f"v_cvt_pk_bf16_f32 {v(vP1+i)}, {v(vTT+2*i)}, {v(vTT+2*i+1)}")
        for i, p in enumerate(prs):
            I(f"v_lshlrev_b32 {v(vTT+2*i)}, 16, {v(vP1+i)}")
            I(f"v_and_b32 {v(vTT+2*i+1)}, {s(sMASKH)}, {v(vP1+i)}")
        for i in range(8): I(f"v_mul_f32 {v(vTT+i)}, {s(sLOG2E)}, {v(vTT+i)}")
        for i in range(8): I(f"v_exp_f32 {v(vTT+i)}, {v(vTT+i)}")
        for i in range(8): I(f"v_fma_f32 {v(vTT+i)}, {v(vTT+i)}, {s(sC0125)}, {v(vEPS)}")
        for i, p in enumerate(prs): I(f"v_cvt_pk_bf16_f32 {v(p4base+p)}, {v(vTT+2*i)}, {v(vTT+2*i+1)}")

def spin_global(cnt_off, target, tag):
    I(f"s_mov_b32 {s(sSPIN)}, 0")
    I(f"v_mov_b32 {v(vT)}, {s(sHEAD)}")
    I(f"v_lshlrev_b32 {v(vT)}, 2, {v(vT)}")
    L(f"L_spin_{tag}")
    I(f"buffer_load_dword {v(vT+1)}, {v(vT)}, {s(rD,4)}, 0 offen offset:{cnt_off} sc1")
    I(f"s_waitcnt vmcnt(0)")
    I(f"v_readfirstlane_b32 {s(sT1)}, {v(vT+1)}")
    I(f"s_cmp_ge_u32 {s(sT1)}, {target}")
    I(f"s_cbranch_scc1 L_spun_{tag}")
    I(f"s_sleep 1")
    I(f"s_add_u32 {s(sSPIN)}, {s(sSPIN)}, 1")
    I(f"s_cmp_lt_u32 {s(sSPIN)}, {opt.spin_limit}")
    I(f"s_cbranch_scc1 L_spin_{tag}")
    L(f"L_spun_{tag}")

def spin_lds(addr, tag):
    I(f"s_mov_b32 {s(sSPIN)}, 0")
    I(f"v_mov_b32 {v(vT)}, {addr}")
    L(f"L_lspin_{tag}")
    I(f"ds_read_b32 {v(vT+1)}, {v(vT)}")
    I(f"s_waitcnt lgkmcnt(0)")
    I(f"v_readfirstlane_b32 {s(sT1)}, {v(vT+1)}")
    I(f"s_cmp_lg_u32 {s(sT1)}, 0")
    I(f"s_cbranch_scc1 L_lspun_{tag}")
    I(f"s_sleep 1")
    I(f"s_add_u32 {s(sSPIN)}, {s(sSPIN)}, 1")
    I(f"s_cmp_lt_u32 {s(sSPIN)}, {opt.spin_limit*8}")
    I(f"s_cbranch_scc1 L_lspin_{tag}")
    L(f"L_lspun_{tag}")

def signal(lds_cnt, cnt_off, tag):
    I(f"s_waitcnt vmcnt(0)")
    I(f"s_mov_b64 exec, 1")
    I(f"v_mov_b32 {v(vT)}, {lds_cnt}")
    I(f"v_mov_b32 {v(vT+1)}, 1")
    I(f"ds_add_rtn_u32 {v(vT+2)}, {v(vT)}, {v(vT+1)}")
    I(f"s_waitcnt lgkmcnt(0)")
    I(f"v_readfirstlane_b32 {s(sT1)}, {v(vT+2)}")
    I(f"s_cmp_eq_u32 {s(sT1)}, 3")
    I(f"s_cbranch_scc0 L_nosig_{tag}")
    I(f"v_mov_b32 {v(vT)}, {s(sHEAD)}")
    I(f"v_lshlrev_b32 {v(vT)}, 2, {v(vT)}")
    I(f"buffer_atomic_add {v(vT+1)}, {v(vT)}, {s(rD,4)}, 0 offen offset:{cnt_off} sc1")
    L(f"L_nosig_{tag}")
    I(f"s_mov_b64 exec, -1")

def wait_hop(cnt_off, flag_addr, tag):
    I(f"s_cmp_eq_u32 {s(sTI)}, 0")
    I(f"s_cbranch_scc0 L_follow_{tag}")
    spin_global(cnt_off, 16, tag)
    I(f"v_mov_b32 {v(vT)}, {flag_addr}")
    I(f"v_mov_b32 {v(vT+1)}, 1")
    I(f"ds_write_b32 {v(vT)}, {v(vT+1)}")
    I(f"s_branch L_hop_{tag}")
    L(f"L_follow_{tag}")
    spin_lds(flag_addr, tag)
    L(f"L_hop_{tag}")

def team_a():
    C("================= team A =================")
    dma_tile(rK, KQ)
    dma_v()
    tile_addrs()
    consts()
    I(f"s_lshl_b32 {s(sT0)}, {s(sHEAD)}, 20")
    srd(rP, sSp, sT0, 16*65536)
    I(f"s_lshl_b32 {s(sT0)}, {s(sHEAD)}, 12")
    I(f"s_add_u32 {s(sT0)}, {s(sT0)}, {WS_Z}")
    srd(rZ, sSp, sT0, 4096)
    I(f"s_lshl_b32 {s(sT0)}, {s(sHEAD)}, 15")
    I(f"s_add_u32 {s(sT0)}, {s(sT0)}, {WS_F}")
    srd(rF, sSp, sT0, 32768)
    srd(rD, sDp, None, 256)
    I(f"s_waitcnt vmcnt(32)")
    I(f"s_barrier")
    read_omega()
    I(f"v_mov_b32 {v(vEPS)}, {s(sEPS)}")
    I(f"v_mov_b32 {v(vONE)}, 0x3f80")
    for i in range(1, 4):
        I(f"v_mov_b32 {v(vONE+i)}, 0")
        I(f"v_mov_b32 {v(vNK+i)}, 0")
    I(f"s_waitcnt lgkmcnt(0)")
    I(f"s_barrier")
    C("zero the LDS flags (wave 0 of team A; visible after B3)")
    I(f"v_mov_b32 {v(vT)}, {FLG}")
    I(f"v_mov_b32 {v(vT+2)}, 0")
    I(f"v_mov_b32 {v(vT+3)}, 0")
    I(f"v_mov_b32 {v(vT+4)}, 0")
    I(f"v_mov_b32 {v(vT+5)}, 0")
    I(f"ds_write_b128 {v(vT)}, {v(vT+2,4)}")
    I(f"s_waitcnt vmcnt(16)")
    gemm1(True)
    C("-0.5*bf16(|ks|^2) broadcast along the columns through one MFMA")
    I(f"v_lshrrev_b32 {v(vSS+1)}, 5, {v(vLANE)}")
    I(f"v_cmp_eq_u32 vcc, 0, {v(vSS+1)}")
    I(f"v_mul_f32 {v(vSS)}, {s(sM132)}, {v(vSS)}")
    I(f"v_cndmask_b32 {v(vSS)}, 0, {v(vSS)}, vcc")
    I(f"v_cvt_pk_bf16_f32 {v(vNK)}, {v(vSS)}, 0")
    I(f"v_mfma_f32_32x32x16_bf16 {v(vNQ,16)}, {v(vNK,4)}, {v(vONE,4)}, 0")
    I(f"v_lshl_add_u32 {v(vKF)}, {s(sTI)}, 12, {v(vL16)}")
    I(f"v_add_u32 {v(vKF)}, {PHI}, {v(vKF)}")
    for mt in range(2):
        pipeline(mt, lambda r: vNQ + r, vP4 + 8*mt)
        for u in range(2):
            I(f"ds_write_b128 {v(vKF)}, {v(vP4+8*mt+4*u,4)} offset:{u*2048 + mt*1024}")
        I(f"v_mov_b32 {v(vZP+mt)}, 0")
        for i in range(8):
            I(f"v_dot2c_f32_bf16 {v(vZP+mt)}, {s(sONES)}, {v(vP4+8*mt+i)}")
    C("z partial: both halves, -> ZB[a][mt*32 + (l&31)]")
    for mt in range(2):
        I(f"v_mov_b32 {v(vKF+1+mt)}, {v(vZP+mt)}")
    for mt in range(2):
        I(f"v_permlane32_swap_b32 {v(vZP+mt)}, {v(vKF+1+mt)}")
    for mt in range(2):
        I(f"v_add_f32 {v(vZP+mt)}, {v(vZP+mt)}, {v(vKF+1+mt)}")
    I(f"v_and_b32 {v(vKF+1)}, 31, {v(vLANE)}")
    I(f"v_lshlrev_b32 {v(vKF+1)}, 2, {v(vKF+1)}")
    I(f"s_lshl_b32 {s(sT1)}, {s(sTI)}, 8")
    I(f"s_add_u32 {s(sT1)}, {s(sT1)}, {ZB}")
    I(f"v_add_u32 {v(vKF+1)}, {s(sT1)}, {v(vKF+1)}")
    I(f"ds_write_b32 {v(vKF+1)}, {v(vZP)}")
    I(f"ds_write_b32 {v(vKF+1)}, {v(vZP+1)} offset:128")
    I(f"s_waitcnt lgkmcnt(0)")
    I(f"s_barrier")
    vPH = 128
    vAC = 48
    vVB = 112
    vVA = 28
    vPA = 30
    I(f"v_add_u32 {v(vPA)}, {PHI}, {v(vL16)}")
    for f in range(16):
        I(f"ds_read_b128 {v(vPH+4*f,4)}, {v(vPA)} offset:{1024*f}")
    C("transposing-read address: (4h+r)*128 + (dl^(r>>1))*64 + (G&1)*32 + (i&3)*8")
    I(f"v_lshrrev_b32 {v(vT)}, 5, {v(vLANE)}")
    I(f"v_lshlrev_b32 {v(vT)}, 2, {v(vT)}")
    I(f"v_bfe_u32 {v(vT+1)}, {v(vLANE)}, 2, 2")
    I(f"v_add_u32 {v(vT)}, {v(vT)}, {v(vT+1)}")
    I(f"v_lshlrev_b32 {v(vT)}, 7, {v(vT)}")
    I(f"v_lshrrev_b32 {v(vT+1)}, 1, {v(vT+1)}")
    I(f"v_lshl_add_u32 {v(vT)}, {v(vT+1)}, 6, {v(vT)}")
    I(f"v_bfe_u32 {v(vT+1)}, {v(vLANE)}, 4, 1")
    I(f"v_lshl_add_u32 {v(vT)}, {v(vT+1)}, 5, {v(vT)}")
    I(f"v_and_b32 {v(vT+1)}, 3, {v(vLANE)}")
    I(f"v_lshl_add_u32 {v(vT)}, {v(vT+1)}, 3, {v(vT)}")
    I(f"s_lshl_b32 {s(sT1)}, {s(sTI)}, 14")
    I(f"s_add_u32 {s(sT1)}, {s(sT1)}, {VR}")
    I(f"v_add_u32 {v(vVA)}, {s(sT1)}, {v(vT)}")
    I(f"v_xor_b32 {v(vVA+1)}, 64, {v(vVA)}")
    def vread(kk):
        b = vVB + 8*(kk % 2)
        for dl in range(2):
            for ap in range(2):
                I(f"ds_read_b64_tr_b16 {v(b+4*dl+2*ap,2)}, {v(vVA+dl)} offset:{kk*2048 + ap*1024}")
    I(f"s_waitcnt vmcnt(14)")
    vread(0)
    for kk in range(8):
        if kk + 1 < 8:
            I(f"s_waitcnt vmcnt({14 - 2*(kk+1)})")
            vread(kk + 1)
            I(f"s_waitcnt lgkmcnt(4)")
        else:
            I(f"s_waitcnt lgkmcnt(0)")
        b = vVB + 8*(kk % 2)
        for dl in range(2):
            for mt in range(2):
                acc = vAC + (dl*2 + mt)*16
                c = "0" if kk == 0 else v(acc, 16)
                I(f"v_mfma_f32_32x32x16_bf16 {v(acc,16)}, {v(vPH+4*(kk*2+mt),4)}, {v(b+4*dl,4)}, {c}")
    C("publish the partial kv tiles (f32, fragment order, write-through)")
    I(f"s_lshl_b32 {s(sT1)}, {s(sTI)}, 14")
    I(f"v_add_u32 {v(vT)}, {s(sT1)}, {v(vL16)}")
    I(f"s_lshl_b32 {s(sSOFF)}, {s(sCH)}, 16")
    for j in range(4):
        for q in range(4):
            I(f"buffer_store_dwordx4 {v(vAC+j*16+q*4,4)}, {v(vT)}, {s(rP,4)}, {s(sSOFF)} offen offset:{q*1024} sc1")
        if j < 3: I(f"s_add_u32 {s(sSOFF)}, {s(sSOFF)}, 4096")
    C("z partial of the workgroup (wave 0)")
    I(f"s_cmp_eq_u32 {s(sTI)}, 0")
    I(f"s_cbranch_scc0 L_noz")
    I(f"v_lshlrev_b32 {v(vT+1)}, 2, {v(vLANE)}")
    I(f"v_add_u32 {v(vT+2)}, {ZB}, {v(vT+1)}")
    for a in range(4):
        I(f"ds_read_b32 {v(vT+4+a)}, {v(vT+2)} offset:{256*a}")
    I(f"s_waitcnt lgkmcnt(0)")
    I(f"v_add_f32 {v(vT+4)}, {v(vT+4)}, {v(vT+5)}")
    I(f"v_add_f32 {v(vT+6)}, {v(vT+6)}, {v(vT+7)}")
    I(f"v_add_f32 {v(vT+4)}, {v(vT+4)}, {v(vT+6)}")
    I(f"s_lshl_b32 {s(sSOFF)}, {s(sCH)}, 8")
    I(f"buffer_store_dword {v(vT+4)}, {v(vT+1)}, {s(rZ,4)}, {s(sSOFF)} offen sc1")
    L("L_noz")
    signal(FLG, 0, "h1")
    wait_hop(0, FLG + 4, "h1")
    C("reduce tile 'chunk', quad a, over the 16 partials of the head")
    vR = 128
    I(f"s_lshl_b32 {s(sT1)}, {s(sTI)}, 10")
    I(f"s_lshl_b32 {s(sT2)}, {s(sCH)}, 12")
    I(f"s_add_u32 {s(sT1)}, {s(sT1)}, {s(sT2)}")
    I(f"v_add_u32 {v(vT)}, {s(sT1)}, {v(vL16)}")
    I(f"s_mov_b32 {s(sSOFF)}, 0")
    for c in range(16):
        I(f"buffer_load_dwordx4 {v(vR+4*c,4)}, {v(vT)}, {s(rP,4)}, {s(sSOFF)} offen sc1")
        if c < 15: I(f"s_add_u32 {s(sSOFF)}, {s(sSOFF)}, 65536")
    C("z: wave 3 sums the 16 z partials")
    vZ = 192
    I(f"s_cmp_eq_u32 {s(sTI)}, 3")
    I(f"s_cbranch_scc0 L_noz2")
    I(f"v_lshlrev_b32 {v(vT+1)}, 2, {v(vLANE)}")
    I(f"s_mov_b32 {s(sSOFF)}, 0")
    for c in range(16):
        I(f"buffer_load_dword {v(vZ+c)}, {v(vT+1)}, {s(rZ,4)}, {s(sSOFF)} offen sc1")
        if c < 15: I(f"s_add_u32 {s(sSOFF)}, {s(sSOFF)}, 256")
    I(f"s_waitcnt vmcnt(0)")
    for st in (1, 2, 4, 8):
        for c in range(0, 16, 2*st):
            I(f"v_add_f32 {v(vZ+c)}, {v(vZ+c)}, {v(vZ+c+st)}")
    I(f"v_cvt_pk_bf16_f32 {v(vZ)}, {v(vZ)}, {v(vZ)}")
    I(f"v_lshlrev_b32 {v(vT+1)}, 1, {v(vLANE)}")
    I(f"v_add_u32 {v(vT+1)}, {ZF}, {v(vT+1)}")
    I(f"ds_write_b16 {v(vT+1)}, {v(vZ)}")
    L("L_noz2")
    I(f"s_waitcnt vmcnt(0)")
    for st in (1, 2, 4, 8):
        for c in range(0, 16, 2*st):
            for i in range(4):
                I(f"v_add_f32 {v(vR+4*c+i)}, {v(vR+4*c+i)}, {v(vR+4*(c+st)+i)}")
    I(f"v_cvt_pk_bf16_f32 {v(vR)}, {v(vR)}, {v(vR+1)}")
    I(f"v_cvt_pk_bf16_f32 {v(vR+1)}, {v(vR+2)}, {v(vR+3)}")
    I(f"s_lshr_b32 {s(sT1)}, {s(sCH)}, 1")
    I(f"s_lshl_b32 {s(sT1)}, {s(sT1)}, 2")
    I(f"s_and_b32 {s(sT2)}, {s(sCH)}, 1")
    I(f"s_lshl_b32 {s(sT2)}, {s(sT2)}, 1")
    I(f"s_add_u32 {s(sT1)}, {s(sT1)}, {s(sT2)}")
    I(f"s_lshr_b32 {s(sT2)}, {s(sTI)}, 1")
    I(f"s_add_u32 {s(sT1)}, {s(sT1)}, {s(sT2)}")
    I(f"s_lshl_b32 {s(sT1)}, {s(sT1)}, 10")
    I(f"s_and_b32 {s(sT2)}, {s(sTI)}, 1")
    I(f"s_lshl_b32 {s(sT2)}, {s(sT2)}, 3")
    I(f"s_add_u32 {s(sT1)}, {s(sT1)}, {s(sT2)}")
    I(f"buffer_store_dwordx2 {v(vR,2)}, {v(vL16)}, {s(rF,4)}, {s(sT1)} offen sc1")
    signal(FLG + 8, 64, "h2")
    wait_hop(64, FLG + 12, "h2")
    C("gather the final kv fragments dt = 2a, 2a+1 into LDS")
    I(f"s_lshl_b32 {s(sT1)}, {s(sTI)}, 13")
    I(f"v_add_u32 {v(vT)}, {s(sT1)}, {v(vL16)}")
    I(f"s_mov_b32 {s(sSOFF)}, 4096")
    for f in range(8):
        so = "0" if f < 4 else s(sSOFF)
        I(f"buffer_load_dwordx4 {v(vR+4*f,4)}, {v(vT)}, {s(rF,4)}, {so} offen offset:{(f%4)*1024} sc1")
    I(f"v_add_u32 {v(vT+1)}, {KVF}, {v(vT)}")
    for f in range(8):
        I(f"s_waitcnt vmcnt({7-f})")
        I(f"ds_write_b128 {v(vT+1)}, {v(vR+4*f,4)} offset:{f*1024}")
    I(f"s_waitcnt lgkmcnt(0)")
    I(f"s_barrier")
    C("team A picks up phi_q of its q tile")
    I(f"s_lshl_b32 {s(sT1)}, {s(sTI)}, 14")
    I(f"v_add_u32 {v(vT)}, {s(sT1)}, {v(vL16)}")
    for t in range(4):
        I(f"ds_read_b128 {v(vPQ+4*t,4)}, {v(vT)} offset:{t*1024}")
    I(f"s_mov_b32 {s(sT3)}, 4")
    I(f"s_branch L_final")

vPQ = 32

def team_b():
    C("================= team B =================")
    L("L_team_b")
    tile_addrs()
    consts()
    I(f"s_lshl_b32 {s(sT0)}, {s(sHEAD)}, 20")
    I(f"s_lshl_b32 {s(sT1)}, {s(sCH)}, 16")
    I(f"s_add_u32 {s(sT0)}, {s(sT0)}, {s(sT1)}")
    srd(rQ, sQp, sT0, 65536)
    I(f"s_waitcnt vmcnt(0)")
    I(f"s_barrier")
    read_omega()
    I(f"v_mov_b32 {v(vEPS)}, {s(sEPS)}")
    I(f"s_waitcnt lgkmcnt(0)")
    I(f"s_barrier")
    I(f"s_barrier")
    dma_tile(rQ, KQ)
    I(f"s_waitcnt vmcnt(0)")
    gemm1(False)
    C("per-lane -0.5*bf16(|qs|^2)")
    I(f"v_mul_f32 {v(vSS)}, {s(sM132)}, {v(vSS)}")
    I(f"v_cvt_pk_bf16_f32 {v(vSS)}, {v(vSS)}, 0")
    I(f"v_lshlrev_b32 {v(vNQ)}, 16, {v(vSS)}")
    for mt in range(2):
        pipeline(mt, lambda r: vNQ, vP4 + 8*mt)
    C("phi_q fragments: k step t = 2mt+u -> registers and LDS (own Q tile area)")
    I(f"s_lshl_b32 {s(sT1)}, {s(sTI)}, 14")
    I(f"v_add_u32 {v(vKF+15)}, {s(sT1)}, {v(vL16)}")
    I(f"v_mov_b32 {v(vNQ+1)}, {v(vKF+15)}")
    for t in range(4):
        I(f"ds_write_b128 {v(vNQ+1)}, {v(vP4+4*t,4)} offset:{t*1024}")
    for i in range(16):
        I(f"v_mov_b32 {v(vPQ+i)}, {v(vP4+i)}")
    I(f"s_waitcnt lgkmcnt(0)")
    I(f"s_barrier")
    I(f"s_mov_b32 {s(sT3)}, 0")

def final():
    L("L_final")
    C("================= final: out = (phi_q kv) / (phi_q z) =================")
    I(f"s_lshl_b32 {s(sT0)}, {s(sHEAD)}, 20")
    I(f"s_lshl_b32 {s(sT1)}, {s(sCH)}, 16")
    I(f"s_add_u32 {s(sT0)}, {s(sT0)}, {s(sT1)}")
    srd(rO, sOp, sT0, 65536)
    vZF = 48
    vKA = 64
    vAC = 96
    vU = 128
    vOP = 144
    vRD, vDEN, vOA, vKAa = 160, 161, 163, 164
    I(f"s_mov_b32 {s(sMASKH)}, 0xffff0000")
    I(f"s_mov_b32 {s(sEPS)}, 0x358637bd")
    C("z fragments (broadcast per half)")
    I(f"v_lshrrev_b32 {v(vU)}, 5, {v(vLANE)}")
    I(f"v_lshlrev_b32 {v(vU)}, 3, {v(vU)}")
    I(f"v_add_u32 {v(vU)}, {ZF}, {v(vU)}")
    for t in range(4):
        I(f"ds_read2_b64 {v(vZF+4*t,4)}, {v(vU)} offset0:{4*t} offset1:{4*t+2}")
    C("A fragment address with the row permutation pi(i) = 16*((i>>2)&1) + 4*(i>>3) + (i&3)")
    I(f"v_bfe_u32 {v(vU+1)}, {v(vLANE)}, 2, 1")
    I(f"v_lshlrev_b32 {v(vU+1)}, 4, {v(vU+1)}")
    I(f"v_bfe_u32 {v(vU+2)}, {v(vLANE)}, 3, 2")
    I(f"v_lshl_add_u32 {v(vU+1)}, {v(vU+2)}, 2, {v(vU+1)}")
    I(f"v_and_b32 {v(vU+2)}, 3, {v(vLANE)}")
    I(f"v_add_u32 {v(vU+1)}, {v(vU+1)}, {v(vU+2)}")
    I(f"v_and_b32 {v(vU+2)}, 32, {v(vLANE)}")
    I(f"v_add_u32 {v(vU+1)}, {v(vU+1)}, {v(vU+2)}")
    I(f"v_lshlrev_b32 {v(vU+1)}, 4, {v(vU+1)}")
    I(f"s_lshl_b32 {s(sT1)}, {s(sT3)}, 12")
    I(f"s_add_u32 {s(sT1)}, {s(sT1)}, {KVF}")
    I(f"v_add_u32 {v(vKAa)}, {s(sT1)}, {v(vU+1)}")
    C("output offset: (32*i + q)*512 + h*32 + dt0*64")
    I(f"v_and_b32 {v(vU+1)}, 31, {v(vLANE)}")
    I(f"v_lshlrev_b32 {v(vU+1)}, 9, {v(vU+1)}")
    I(f"v_and_b32 {v(vU+2)}, 32, {v(vLANE)}")
    I(f"v_add_u32 {v(vU+1)}, {v(vU+1)}, {v(vU+2)}")
    I(f"s_lshl_b32 {s(sT1)}, {s(sTI)}, 14")
    I(f"s_lshl_b32 {s(sT2)}, {s(sT3)}, 6")
    I(f"s_add_u32 {s(sT1)}, {s(sT1)}, {s(sT2)}")
    I(f"v_add_u32 {v(vOA)}, {s(sT1)}, {v(vU+1)}")
    def aread(d):
        for t in range(4):
            I(f"ds_read_b128 {v(vKA+16*(d%2)+4*t,4)}, {v(vKAa)} offset:{(d*4+t)*1024}")
    aread(0)
    aread(1)
    I(f"s_waitcnt lgkmcnt(8)")
    C("den")
    I(f"v_mov_b32 {v(vDEN)}, 0")
    I(f"v_mov_b32 {v(vDEN+1)}, 0")
    for i in range(16):
        I(f"v_dot2c_f32_bf16 {v(vDEN+(i&1))}, {v(vPQ+i)}, {v(vZF+i)}")
    I(f"v_add_f32 {v(vDEN)}, {v(vDEN)}, {v(vDEN+1)}")
    I(f"v_mov_b32 {v(vDEN+1)}, {v(vDEN)}")
    I(f"v_permlane32_swap_b32 {v(vDEN)}, {v(vDEN+1)}")
    I(f"v_add_f32 {v(vDEN)}, {v(vDEN)}, {v(vDEN+1)}")
    I(f"v_cvt_pk_bf16_f32 {v(vDEN)}, {v(vDEN)}, {v(vDEN)}")
    I(f"v_lshlrev_b32 {v(vDEN)}, 16, {v(vDEN)}")
    I(f"v_add_f32 {v(vDEN)}, {s(sEPS)}, {v(vDEN)}")
    I(f"v_cvt_pk_bf16_f32 {v(vDEN)}, {v(vDEN)}, {v(vDEN)}")
    I(f"v_lshlrev_b32 {v(vDEN)}, 16, {v(vDEN)}")
    I(f"v_rcp_f32 {v(vRD)}, {v(vDEN)}")
    C("one Newton step on the reciprocal")
    I(f"v_fma_f32 {v(vDEN+1)}, -{v(vDEN)}, {v(vRD)}, 1.0")
    I(f"v_fma_f32 {v(vRD)}, {v(vDEN+1)}, {v(vRD)}, {v(vRD)}")
    def mm(d):
        for t in range(4):
            acc = vAC + 16*(d % 2)
            c = "0" if t == 0 else v(acc, 16)
            I(f"v_mfma_f32_32x32x16_bf16 {v(acc,16)}, {v(vKA+16*(d%2)+4*t,4)}, {v(vPQ+4*t,4)}, {c}")
    def epi(d):
        acc = vAC + 16*(d % 2); op = vOP + 8*(d % 2)
        for i in range(8): I(f"v_cvt_pk_bf16_f32 {v(op+i)}, {v(acc+2*i)}, {v(acc+2*i+1)}")
        for i in range(8):
            I(f"v_lshlrev_b32 {v(vU+2*i)}, 16, {v(op+i)}")
            I(f"v_and_b32 {v(vU+2*i+1)}, {s(sMASKH)}, {v(op+i)}")
        for i in range(16): I(f"v_mul_f32 {v(vU+i)}, {v(vRD)}, {v(vU+i)}")
        for i in range(8): I(f"v_cvt_pk_bf16_f32 {v(op+i)}, {v(vU+2*i)}, {v(vU+2*i+1)}")
        I(f"buffer_store_dwordx4 {v(op,4)}, {v(vOA)}, {s(rO,4)}, 0 offen offset:{d*64}")
        I(f"buffer_store_dwordx4 {v(op+4,4)}, {v(vOA)}, {s(rO,4)}, 0 offen offset:{d*64+16}")
    I(f"s_waitcnt lgkmcnt(4)")
    mm(0)
    I(f"s_waitcnt lgkmcnt(0)")
    mm(1)
    aread(2)
    epi(0)
    I(f"s_waitcnt lgkmcnt(0)")
    mm(2)
    aread(3)
    epi(1)
    I(f"s_waitcnt lgkmcnt(0)")
    mm(3)
    epi(2)
    epi(3)

def build():
    prologue()
    dma_omega()
    I(f"s_cmp_ge_u32 {s(sWAVE)}, 4")
    I(f"s_cbranch_scc1 L_team_b")
    team_a()
    team_b()
    final()
    L("L_end")
    I("s_endpgm")
    body = A.render()
    hdr = f"""; fused RFA linear attention: 256 workgroups (one per CU) x 8 waves
; @launch grid=(256,1,1) block=(512,1,1) lds={LDS_BYTES}
.amdgcn_target "amdgcn-amd-amdhsa--gfx950"
.text
.globl {NAME}
.p2align 8
.type {NAME},@function
{NAME}:
"""
    ftr = f"""
.section .rodata,"a"
.p2align 6
.amdhsa_kernel {NAME}
  .amdhsa_next_free_vgpr 256
  .amdhsa_next_free_sgpr 96
  .amdhsa_accum_offset 256
  .amdhsa_group_segment_fixed_size 0
  .amdhsa_kernarg_size 56
  .amdhsa_user_sgpr_count 2
  .amdhsa_user_sgpr_kernarg_segment_ptr 1
  .amdhsa_system_sgpr_workgroup_id_x 1
  .amdhsa_float_denorm_mode_32 3
.end_amdhsa_kernel
"""
    return hdr + body + ftr

if __name__ == "__main__":
    out = sys.argv[1] if len(sys.argv) > 1 else "k1.s"
    txt = build()
    open(out, "w").write(txt)
    print("wrote", out, "nops inserted:", A.nops, "lines", txt.count("\n"))
```

```python
import sys, json
from asmlib import *

NAME = "standalone__linear_kernel_rfa__prompt_kernel"
class O: pass
opt = O()
opt.spin_limit = 300000
opt.stamps = False
opt.nt = True
opt.fast = False
opt.perturb = None

KQ = 0
VR = 65536
WR = 131072
PHI = WR
ZB = WR + 16384
ZF = WR + 17408
FLG = WR + 17664
KVF = VR
OSA = VR + 32768
LDS_BYTES = 163840
WS_PART = 0
WS_Z = 16 << 20
WS_F = 17 << 20
WS_FL = 18 << 20
FL_STRIDE = 4352
WS_ST = 20 << 20

sQp, sKp, sVp, sWp, sOp, sDp, sSp = 4, 6, 8, 10, 12, 14, 16
sHEAD, sCH = 18, 19
rK, rV, rQ, rW, rO, rP, rZ, rF, rL = 20, 24, 28, 32, 36, 40, 44, 48, 52
sWAVE, sTI = 56, 57
sT0, sT1, sT2, sT3 = 58, 59, 60, 61
sNONCE = 62
sFAST = 63
sC025L, sC025H, sLOG2E, sC0125, sMASKH, sONES = 64, 65, 66, 67, 68, 69
sSPIN, sSOFF, sEPS, sM132 = 70, 71, 72, 73
sEPA = 96

A = Asm()
I, L, C = A.I, A.L, A.C
STI = [0]; STN = []
def stamp(name=""):
    if not opt.stamps: return
    C("stamp %s" % name)
    I("s_memrealtime s[98:99]")
    I("s_waitcnt lgkmcnt(0)")
    I("s_mov_b32 s%d, s98" % (74 + STI[0]))
    STN.append((STI[0], name)); STI[0] += 1
def stamps_flush(tag):
    if not opt.stamps: return
    I("s_and_b32 s97, s56, 3"); I("s_cmp_eq_u32 s97, 0"); I("s_cbranch_scc0 L_nost_%s" % tag)
    I("s_lshr_b32 s97, s56, 2"); I("s_lshl_b32 s96, s2, 1"); I("s_add_u32 s96, s96, s97"); I("s_lshl_b32 s96, s96, 7")
    I("s_add_u32 s96, s96, %d" % WS_ST)
    I("s_add_u32 s40, s16, s96"); I("s_addc_u32 s41, s17, 0"); I("s_and_b32 s41, s41, 0xffff"); I("s_mov_b32 s42, 128"); I("s_mov_b32 s43, 0x20000")
    I("s_mov_b64 exec, 1"); I("v_mov_b32 v1, 0")
    for i in range(22):
        I("v_mov_b32 v2, s%d" % (74 + i)); I("buffer_store_dword v2, v1, s[40:43], 0 offen offset:%d" % (4 * i))
    I("s_waitcnt vmcnt(0)"); I("s_mov_b64 exec, -1")
    L("L_nost_%s" % tag)

def srd(r, ptr, off_s, size):
    if off_s is None:
        I(f"s_mov_b32 {s(r)}, {s(ptr)}")
        I(f"s_and_b32 {s(r+1)}, {s(ptr+1)}, 0xffff")
    else:
        I(f"s_add_u32 {s(r)}, {s(ptr)}, {s(off_s)}")
        I(f"s_addc_u32 {s(r+1)}, {s(ptr+1)}, 0")
        I(f"s_and_b32 {s(r+1)}, {s(r+1)}, 0xffff")
    I(f"s_mov_b32 {s(r+2)}, {size}")
    I(f"s_mov_b32 {s(r+3)}, 0x20000")

NT = lambda: " nt" if opt.nt else ""
vLANE = 0
vA = 2
vD = 10
vL16 = 11
vT = 12
vW = 128
def W(mt, t): return vW + mt * 64 + t * 4
vKF = 32
vA1 = 96
vP4 = 12
vNQ = 32
vNK = 48
vONE = 52
vSS = 28
vP1 = 56
vTT = 60
vEPS = 68
vZP = 69
vX = 72

def prologue():
    I(f"s_cmp_ge_u32 s2, 256")
    I(f"s_cbranch_scc1 L_end")
    I(f"s_load_dwordx4 s[4:7], s[0:1], 0")
    I(f"s_load_dwordx4 s[8:11], s[0:1], 16")
    I(f"s_load_dwordx4 s[12:15], s[0:1], 32")
    I(f"s_load_dwordx2 s[16:17], s[0:1], 48")
    I(f"v_lshrrev_b32 v1, 6, v0")
    I(f"v_and_b32 {v(vLANE)}, 63, v0")
    I(f"v_readfirstlane_b32 {s(sWAVE)}, v1")
    I(f"s_and_b32 {s(sT0)}, s2, 7")
    I(f"s_lshr_b32 {s(sT1)}, s2, 3")
    I(f"s_lshr_b32 {s(sHEAD)}, {s(sT1)}, 4")
    I(f"s_lshl_b32 {s(sT0)}, {s(sT0)}, 1")
    I(f"s_add_u32 {s(sHEAD)}, {s(sHEAD)}, {s(sT0)}")
    I(f"s_and_b32 {s(sCH)}, {s(sT1)}, 15")
    I(f"s_and_b32 {s(sTI)}, {s(sWAVE)}, 3")
    I(f"v_lshrrev_b32 {v(vT)}, 5, {v(vLANE)}")
    I(f"v_and_b32 {v(vT+1)}, 31, {v(vLANE)}")
    I(f"v_xor_b32 {v(vT+1)}, {v(vT+1)}, {v(vT)}")
    I(f"v_lshlrev_b32 {v(vT+1)}, 4, {v(vT+1)}")
    I(f"v_lshl_add_u32 {v(vD)}, {v(vT)}, 9, {v(vT+1)}")
    I(f"v_lshlrev_b32 {v(vL16)}, 4, {v(vLANE)}")
    I(f"s_lshl_b32 {s(sT0)}, {s(sHEAD)}, 20")
    I(f"s_lshl_b32 {s(sT1)}, {s(sCH)}, 16")
    I(f"s_add_u32 {s(sT0)}, {s(sT0)}, {s(sT1)}")
    I(f"s_waitcnt lgkmcnt(0)")
    srd(rW, sWp, None, 32768)
    srd(rK, sKp, sT0, 65536)
    srd(rV, sVp, sT0, 65536)

def dma_omega():
    C("omega -> LDS W region, 4 instructions per wave, rows 8w..8w+7")
    I(f"s_and_b32 {s(sT1)}, {s(sWAVE)}, 1")
    I(f"s_lshl_b32 {s(sT1)}, {s(sT1)}, 7")
    I(f"s_lshl_b32 {s(sSOFF)}, {s(sWAVE)}, 12")
    I(f"s_add_u32 m0, {s(sSOFF)}, {WR}")
    for i in range(4):
        I(f"s_add_u32 {s(sT2)}, {s(sT1)}, {32*i}")
        I(f"v_xor_b32 {v(vT)}, {s(sT2)}, {v(vD)}")
        I(f"buffer_load_dwordx4 {v(vT)}, {s(rW,4)}, {s(sSOFF)} offen offset:{1024*i} lds")

def dma_rows(r, base_lds, n, shift):
    for i in range(n):
        if i % 4 == 0:
            if i: I(f"s_add_u32 {s(sSOFF)}, {s(sSOFF)}, 4096")
            I(f"s_add_u32 m0, {s(sSOFF)}, {base_lds}")
        if i & 7:
            I(f"v_xor_b32 {v(vT)}, {32*(i&7)}, {v(vD)}")
            I(f"buffer_load_dwordx4 {v(vT)}, {s(r,4)}, {s(sSOFF)} offen offset:{1024*(i%4)}{NT()} lds")
        else:
            I(f"buffer_load_dwordx4 {v(vD)}, {s(r,4)}, {s(sSOFF)} offen offset:{1024*(i%4)}{NT()} lds")

def dma_k():
    C("K rows 16w..16w+15 (8 instructions)")
    I(f"s_lshl_b32 {s(sSOFF)}, {s(sWAVE)}, 13")
    dma_rows(rK, KQ, 8, 13)

def dma_v():
    C("V: instruction i = k step i; slice a = w&3, rows 16i + 8*(w>>2) .. +8")
    I(f"v_lshrrev_b32 {v(vT)}, 4, {v(vLANE)}")
    I(f"v_and_b32 {v(vT)}, 1, {v(vT)}")
    I(f"v_lshlrev_b32 {v(vT)}, 2, {v(vT)}")
    I(f"v_and_b32 {v(vT+1)}, 7, {v(vLANE)}")
    I(f"v_xor_b32 {v(vT)}, {v(vT)}, {v(vT+1)}")
    I(f"v_lshlrev_b32 {v(vT)}, 4, {v(vT)}")
    I(f"v_lshrrev_b32 {v(vT+1)}, 3, {v(vLANE)}")
    I(f"v_lshl_add_u32 {v(vT)}, {v(vT+1)}, 9, {v(vT)}")
    I(f"s_lshl_b32 {s(sT1)}, {s(sTI)}, 7")
    I(f"s_lshr_b32 {s(sT2)}, {s(sWAVE)}, 2")
    I(f"s_lshl_b32 {s(sSOFF)}, {s(sT2)}, 12")
    I(f"s_add_u32 {s(sSOFF)}, {s(sSOFF)}, {s(sT1)}")
    I(f"s_lshl_b32 {s(sT1)}, {s(sTI)}, 14")
    I(f"s_lshl_b32 {s(sT2)}, {s(sT2)}, 10")
    I(f"s_add_u32 {s(sT1)}, {s(sT1)}, {s(sT2)}")
    I(f"s_add_u32 {s(sT1)}, {s(sT1)}, {VR}")
    for i in range(8):
        I(f"s_add_u32 m0, {s(sT1)}, {2048*i}")
        if i: I(f"s_add_u32 {s(sSOFF)}, {s(sSOFF)}, 8192")
        I(f"buffer_load_dwordx4 {v(vT)}, {s(rV,4)}, {s(sSOFF)} offen{NT()} lds")

def tile_addrs():
    I(f"v_and_b32 {v(vT)}, 31, {v(vLANE)}")
    I(f"v_lshrrev_b32 {v(vT+1)}, 5, {v(vLANE)}")
    I(f"v_and_b32 {v(vT+2)}, 15, {v(vLANE)}")
    I(f"v_xor_b32 {v(vT+2)}, {v(vT+2)}, {v(vT+1)}")
    I(f"v_lshlrev_b32 {v(vT+2)}, 4, {v(vT+2)}")
    I(f"v_lshl_add_u32 {v(vT+2)}, {v(vT)}, 9, {v(vT+2)}")
    I(f"v_add_u32 {v(vA)}, {WR}, {v(vT+2)}")
    for x in range(1, 8):
        I(f"v_xor_b32 {v(vA+x)}, {32*x}, {v(vA)}")

def read_omega():
    for t in range(16):
        for mt in range(2):
            I(f"ds_read_b128 {v(W(mt,t),4)}, {v(vA+(t&7))} offset:{(t>>3)*256 + mt*16384}")
    I(f"s_lshl_b32 {s(sT1)}, {s(sTI)}, 14")
    I(f"s_sub_u32 {s(sT1)}, {s(sT1)}, {WR - KQ}")
    for x in range(8):
        I(f"v_add_u32 {v(vA+x)}, {s(sT1)}, {v(vA+x)}")

def setup_rest():
    I(f"s_mov_b32 {s(sC025L)}, 0x00003e80")
    I(f"s_mov_b32 {s(sC025H)}, 0x3e800000")
    I(f"s_mov_b32 {s(sLOG2E)}, 0x3fb8aa3b")
    I(f"s_mov_b32 {s(sC0125)}, 0x3e000000")
    I(f"s_mov_b32 {s(sMASKH)}, 0xffff0000")
    I(f"s_mov_b32 {s(sONES)}, 0x3f803f80")
    I(f"s_mov_b32 {s(sEPS)}, 0x358637bd")
    I(f"s_mov_b32 {s(sM132)}, 0xbd000000")
    I(f"s_lshl_b32 {s(sT0)}, {s(sHEAD)}, 19")
    srd(rP, sSp, sT0, 16*32768)
    I(f"s_lshl_b32 {s(sT0)}, {s(sHEAD)}, 12")
    I(f"s_add_u32 {s(sT0)}, {s(sT0)}, {WS_Z}")
    srd(rZ, sSp, sT0, 4096)
    I(f"s_lshl_b32 {s(sT0)}, {s(sHEAD)}, 15")
    I(f"s_add_u32 {s(sT0)}, {s(sT0)}, {WS_F}")
    srd(rF, sSp, sT0, 32768)
    I(f"s_mul_i32 {s(sT0)}, {s(sHEAD)}, {FL_STRIDE}")
    I(f"s_add_u32 {s(sT0)}, {s(sT0)}, {WS_FL}")
    srd(rL, sSp, sT0, 512)
    I(f"s_add_u32 {s(sEPA)}, {s(sSp)}, {s(sT0)}")
    I(f"s_addc_u32 {s(sEPA+1)}, {s(sSp+1)}, 0")
    I(f"s_load_dword {s(sNONCE)}, {s(sEPA,2)}, 0")
    I(f"s_lshl_b32 {s(sT0)}, {s(sHEAD)}, 20")
    I(f"s_lshl_b32 {s(sT1)}, {s(sCH)}, 16")
    I(f"s_add_u32 {s(sT0)}, {s(sT0)}, {s(sT1)}")
    srd(rQ, sQp, sT0, 65536)
    srd(rO, sOp, sT0, 65536)
    I(f"s_waitcnt lgkmcnt(0)")
    I(f"s_add_u32 {s(sNONCE)}, {s(sNONCE)}, 1")

def gemm1(a_is_tile):
    for t in range(16):
        I(f"ds_read_b128 {v(vKF+4*t,4)}, {v(vA+(t&7))} offset:{(t>>3)*256}")
    for i in range(4): I(f"v_mov_b32 {v(vSS+i)}, 0")
    for t in range(16):
        if t % 2 == 0: I(f"s_waitcnt lgkmcnt({max(0, 14 - t)})")
        for i in range(4):
            I(f"v_dot2c_f32_bf16 {v(vSS+i)}, {v(vKF+4*t+i)}, {v(vKF+4*t+i)}")
    for t in range(16):
        f = vKF + 4*t
        for mt in range(2):
            c = "0" if t == 0 else v(vA1 + 16*mt, 16)
            if a_is_tile: I(f"v_mfma_f32_32x32x16_bf16 {v(vA1+16*mt,16)}, {v(f,4)}, {v(W(mt,t),4)}, {c}")
            else:         I(f"v_mfma_f32_32x32x16_bf16 {v(vA1+16*mt,16)}, {v(W(mt,t),4)}, {v(f,4)}, {c}")
        if t == 2:
            I(f"v_add_f32 {v(vSS)}, {v(vSS)}, {v(vSS+1)}")
            I(f"v_add_f32 {v(vSS+2)}, {v(vSS+2)}, {v(vSS+3)}")
        if t == 3:
            I(f"v_add_f32 {v(vSS)}, {v(vSS)}, {v(vSS+2)}")
        if t == 4:
            I(f"v_mov_b32 {v(vSS+1)}, {v(vSS)}")
        if t == 5:
            I(f"v_permlane32_swap_b32 {v(vSS)}, {v(vSS+1)}")
        if t == 6:
            I(f"v_add_f32 {v(vSS)}, {v(vSS)}, {v(vSS+1)}")
            I(f"v_mul_f32 {v(vSS)}, {s(sM132)}, {v(vSS)}")

def pipeline(mt, nq_of, p4base):
    for g in range(2):
        prs = [4*g + i for i in range(4)]
        acc = lambda r: vA1 + 16*mt + r
        for i, p in enumerate(prs): I(f"v_cvt_pk_bf16_f32 {v(vP1+i)}, {v(acc(2*p))}, {v(acc(2*p+1))}")
        for i, p in enumerate(prs):
            I(f"v_dot2_f32_bf16 {v(vTT+2*i)}, {v(vP1+i)}, {s(sC025L)}, {v(nq_of(2*p))}")
            I(f"v_dot2_f32_bf16 {v(vTT+2*i+1)}, {v(vP1+i)}, {s(sC025H)}, {v(nq_of(2*p+1))}")
        for i, p in enumerate(prs): I(f"v_cvt_pk_bf16_f32 {v(vP1+i)}, {v(vTT+2*i)}, {v(vTT+2*i+1)}")
        for i, p in enumerate(prs):
            I(f"v_lshlrev_b32 {v(vTT+2*i)}, 16, {v(vP1+i)}")
            I(f"v_and_b32 {v(vTT+2*i+1)}, {s(sMASKH)}, {v(vP1+i)}")
        for i in range(8): I(f"v_mul_f32 {v(vTT+i)}, {s(sLOG2E)}, {v(vTT+i)}")
        for i in range(8): I(f"v_exp_f32 {v(vTT+i)}, {v(vTT+i)}")
        for i in range(8): I(f"v_fma_f32 {v(vTT+i)}, {v(vTT+i)}, {s(sC0125)}, {v(vEPS)}")
        for i, p in enumerate(prs): I(f"v_cvt_pk_bf16_f32 {v(p4base+p)}, {v(vTT+2*i)}, {v(vTT+2*i+1)}")

def pol(): return " sc1"

def arrive(lds_cnt, total, flag_off, tag):
    I(f"s_mov_b64 exec, 1")
    I(f"v_mov_b32 {v(vT)}, {lds_cnt}")
    I(f"v_mov_b32 {v(vT+1)}, 1")
    I(f"ds_add_rtn_u32 {v(vT+2)}, {v(vT)}, {v(vT+1)}")
    I(f"s_waitcnt lgkmcnt(0)")
    I(f"v_readfirstlane_b32 {s(sT1)}, {v(vT+2)}")
    I(f"s_cmp_eq_u32 {s(sT1)}, {total-1}")
    I(f"s_cbranch_scc0 L_nosig_{tag}")
    I(f"s_lshl_b32 {s(sT1)}, {s(sCH)}, 2")
    I(f"v_mov_b32 {v(vT)}, {s(sT1)}")
    I(f"v_mov_b32 {v(vT+1)}, {s(sNONCE)}")
    I(f"buffer_store_dword {v(vT+1)}, {v(vT)}, {s(rL,4)}, 0 offen offset:{flag_off} sc1")
    L(f"L_nosig_{tag}")
    I(f"s_mov_b64 exec, -1")

def wait_hop(flag_off, lds_flag, tag):
    I(f"s_cmp_eq_u32 {s(sTI)}, 0")
    I(f"s_cbranch_scc0 L_follow_{tag}")
    I(f"s_mov_b32 {s(sSPIN)}, 0")
    I(f"v_and_b32 {v(vT)}, 15, {v(vLANE)}")
    I(f"v_lshlrev_b32 {v(vT)}, 2, {v(vT)}")
    L(f"L_spin_{tag}")
    I(f"buffer_load_dword {v(vT+1)}, {v(vT)}, {s(rL,4)}, 0 offen offset:{flag_off} sc1")
    I(f"s_waitcnt vmcnt(0)")
    I(f"v_cmp_ne_u32 vcc, {s(sNONCE)}, {v(vT+1)}")
    I(f"s_cbranch_vccz L_spun_{tag}")
    I(f"s_sleep 1")
    I(f"s_add_u32 {s(sSPIN)}, {s(sSPIN)}, 1")
    I(f"s_cmp_lt_u32 {s(sSPIN)}, {opt.spin_limit}")
    I(f"s_cbranch_scc1 L_spin_{tag}")
    L(f"L_spun_{tag}")
    I(f"v_mov_b32 {v(vT)}, {lds_flag}")
    I(f"v_mov_b32 {v(vT+1)}, 1")
    I(f"ds_write_b32 {v(vT)}, {v(vT+1)}")
    I(f"s_branch L_hop_{tag}")
    L(f"L_follow_{tag}")
    I(f"s_mov_b32 {s(sSPIN)}, 0")
    I(f"v_mov_b32 {v(vT)}, {lds_flag}")
    L(f"L_lspin_{tag}")
    I(f"ds_read_b32 {v(vT+1)}, {v(vT)}")
    I(f"s_waitcnt lgkmcnt(0)")
    I(f"v_readfirstlane_b32 {s(sT1)}, {v(vT+1)}")
    I(f"s_cmp_lg_u32 {s(sT1)}, 0")
    I(f"s_cbranch_scc1 L_hop_{tag}")
    I(f"s_add_u32 {s(sSPIN)}, {s(sSPIN)}, 1")
    I(f"s_cmp_lt_u32 {s(sSPIN)}, {opt.spin_limit*16}")
    I(f"s_cbranch_scc1 L_lspin_{tag}")
    L(f"L_hop_{tag}")

vPQ = 32

def common_start():
    prologue()
    stamp("start")
    dma_omega()
    dma_k()
    dma_v()
    tile_addrs()
    setup_rest()
    stamp("dma issued")
    I(f"s_waitcnt vmcnt(16)")
    I(f"s_barrier")
    read_omega()
    I(f"s_waitcnt vmcnt(8) lgkmcnt(0)")
    I(f"s_barrier")
    stamp("B1 K landed")

def gemm2():
    vPH = 64; vAC = 96; vVB = 32; vVA = 28; vPA = 29
    I(f"v_add_u32 {v(vPA)}, {PHI}, {v(vL16)}")
    def pread(kk):
        for mt in range(2):
            I(f"ds_read_b128 {v(vPH+8*(kk%4)+4*mt,4)}, {v(vPA)} offset:{1024*(kk*2+mt)}")
    for kk in range(4): pread(kk)
    I(f"v_lshrrev_b32 {v(vT)}, 5, {v(vLANE)}")
    I(f"v_lshlrev_b32 {v(vT)}, 2, {v(vT)}")
    I(f"v_bfe_u32 {v(vT+1)}, {v(vLANE)}, 2, 2")
    I(f"v_add_u32 {v(vT)}, {v(vT)}, {v(vT+1)}")
    I(f"v_lshlrev_b32 {v(vT)}, 7, {v(vT)}")
    I(f"v_lshrrev_b32 {v(vT+1)}, 1, {v(vT+1)}")
    I(f"s_and_b32 {s(sT2)}, {s(sWAVE)}, 1")
    I(f"v_xor_b32 {v(vT+1)}, {s(sT2)}, {v(vT+1)}")
    I(f"v_lshl_add_u32 {v(vT)}, {v(vT+1)}, 6, {v(vT)}")
    I(f"v_bfe_u32 {v(vT+1)}, {v(vLANE)}, 4, 1")
    I(f"v_lshl_add_u32 {v(vT)}, {v(vT+1)}, 5, {v(vT)}")
    I(f"v_and_b32 {v(vT+1)}, 3, {v(vLANE)}")
    I(f"v_lshl_add_u32 {v(vT)}, {v(vT+1)}, 3, {v(vT)}")
    I(f"s_lshr_b32 {s(sT1)}, {s(sWAVE)}, 1")
    I(f"s_lshl_b32 {s(sT1)}, {s(sT1)}, 14")
    I(f"s_add_u32 {s(sT1)}, {s(sT1)}, {VR}")
    I(f"v_add_u32 {v(vVA)}, {s(sT1)}, {v(vT)}")
    def vread(kk):
        for ap in range(2):
            I(f"ds_read_b64_tr_b16 {v(vVB+4*kk+2*ap,2)}, {v(vVA)} offset:{kk*2048 + ap*1024}")
    def mm(kk):
        for mt in range(2):
            acc = vAC + mt*16
            c = "0" if kk == 0 else v(acc, 16)
            I(f"v_mfma_f32_32x32x16_bf16 {v(acc,16)}, {v(vPH+8*(kk%4)+4*mt,4)}, {v(vVB+4*kk,4)}, {c}")
    for kk in range(4): vread(kk)
    C("first half of the k steps while the second half of V lands")
    for kk in range(4):
        I(f"s_waitcnt lgkmcnt({6 - 2*kk + 2*kk if kk == 0 else 6})")
        mm(kk)
        pread(kk + 4)
    I(f"s_waitcnt vmcnt(0)")
    I(f"s_barrier")
    for kk in range(4, 8): vread(kk)
    for kk in range(4, 8):
        I(f"s_waitcnt lgkmcnt({2*(7-kk)})")
        mm(kk)
    stamp("gemm2 done")
    C("partial kv: bf16 A-fragments (dt = w, t = 0..3)")
    vPK = 32
    for mt in range(2):
        for i in range(8):
            I(f"v_cvt_pk_bf16_f32 {v(vPK+8*mt+i)}, {v(vAC+16*mt+2*i)}, {v(vAC+16*mt+2*i+1)}")
    I(f"s_lshl_b32 {s(sT1)}, {s(sWAVE)}, 12")
    I(f"v_add_u32 {v(vT)}, {s(sT1)}, {v(vL16)}")
    I(f"s_lshl_b32 {s(sSOFF)}, {s(sCH)}, 15")
    for t in range(4):
        I(f"buffer_store_dwordx4 {v(vPK+4*t,4)}, {v(vT)}, {s(rP,4)}, {s(sSOFF)} offen offset:{t*1024}{pol()}")

def team_a():
    C("================= team A =================")
    I(f"v_mov_b32 {v(vT)}, {FLG}")
    for i in range(4): I(f"v_mov_b32 {v(vT+2+i)}, 0")
    I(f"ds_write_b128 {v(vT)}, {v(vT+2,4)}")
    gemm1(True)
    stamp("A gemm1 done")
    I(f"v_lshrrev_b32 {v(vSS+1)}, 5, {v(vLANE)}")
    I(f"v_cmp_eq_u32 vcc, 0, {v(vSS+1)}")
    I(f"v_mov_b32 {v(vEPS)}, {s(sEPS)}")
    I(f"v_mov_b32 {v(vONE)}, 0x3f80")
    for i in range(1, 4):
        I(f"v_mov_b32 {v(vONE+i)}, 0")
        I(f"v_mov_b32 {v(vNK+i)}, 0")
    I(f"v_cndmask_b32 {v(vSS)}, 0, {v(vSS)}, vcc")
    I(f"v_cvt_pk_bf16_f32 {v(vNK)}, {v(vSS)}, 0")
    I(f"v_mfma_f32_32x32x16_bf16 {v(vNQ,16)}, {v(vNK,4)}, {v(vONE,4)}, 0")
    I(f"v_lshl_add_u32 {v(vX)}, {s(sTI)}, 12, {v(vL16)}")
    I(f"v_add_u32 {v(vX)}, {PHI}, {v(vX)}")
    for mt in range(2):
        pipeline(mt, lambda r: vNQ + r, vP4 + 8*mt)
        for u in range(2):
            I(f"ds_write_b128 {v(vX)}, {v(vP4+8*mt+4*u,4)} offset:{u*2048 + mt*1024}")
        I(f"v_mov_b32 {v(vZP+mt)}, 0")
        for i in range(8):
            I(f"v_dot2c_f32_bf16 {v(vZP+mt)}, {s(sONES)}, {v(vP4+8*mt+i)}")
    for mt in range(2): I(f"v_mov_b32 {v(vX+1+mt)}, {v(vZP+mt)}")
    for mt in range(2): I(f"v_permlane32_swap_b32 {v(vZP+mt)}, {v(vX+1+mt)}")
    for mt in range(2): I(f"v_add_f32 {v(vZP+mt)}, {v(vZP+mt)}, {v(vX+1+mt)}")
    I(f"v_and_b32 {v(vX+1)}, 31, {v(vLANE)}")
    I(f"v_lshlrev_b32 {v(vX+1)}, 2, {v(vX+1)}")
    I(f"s_lshl_b32 {s(sT1)}, {s(sTI)}, 8")
    I(f"s_add_u32 {s(sT1)}, {s(sT1)}, {ZB}")
    I(f"v_add_u32 {v(vX+1)}, {s(sT1)}, {v(vX+1)}")
    I(f"ds_write_b32 {v(vX+1)}, {v(vZP)}")
    I(f"ds_write_b32 {v(vX+1)}, {v(vZP+1)} offset:128")
    stamp("A phi written")
    I(f"s_waitcnt vmcnt(4) lgkmcnt(0)")
    I(f"s_barrier")
    stamp("A B3")
    gemm2()
    C("z partial of the workgroup (wave 0)")
    I(f"s_cmp_eq_u32 {s(sTI)}, 0")
    I(f"s_cbranch_scc0 L_noz")
    I(f"v_lshlrev_b32 {v(vT+1)}, 2, {v(vLANE)}")
    I(f"v_add_u32 {v(vT+2)}, {ZB}, {v(vT+1)}")
    for a in range(4): I(f"ds_read_b32 {v(vT+4+a)}, {v(vT+2)} offset:{256*a}")
    I(f"s_waitcnt lgkmcnt(0)")
    I(f"v_add_f32 {v(vT+4)}, {v(vT+4)}, {v(vT+5)}")
    I(f"v_add_f32 {v(vT+6)}, {v(vT+6)}, {v(vT+7)}")
    I(f"v_add_f32 {v(vT+4)}, {v(vT+4)}, {v(vT+6)}")
    I(f"s_lshl_b32 {s(sSOFF)}, {s(sCH)}, 8")
    I(f"buffer_store_dword {v(vT+4)}, {v(vT+1)}, {s(rZ,4)}, {s(sSOFF)} offen{pol()}")
    L("L_noz")
    I(f"s_waitcnt vmcnt(0)")
    stamp("A part drained")
    arrive(FLG, 8, 256, "h1a")
    wait_hop(256, FLG + 4, "h1")
    stamp("A hop1")
    C("reduce fragment f = 2*chunk + (a>>1), half a&1, over the 16 partials")
    vR = 128
    I(f"s_lshl_b32 {s(sT1)}, {s(sCH)}, 11")
    I(f"s_lshr_b32 {s(sT2)}, {s(sTI)}, 1")
    I(f"s_lshl_b32 {s(sT2)}, {s(sT2)}, 10")
    I(f"s_add_u32 {s(sT1)}, {s(sT1)}, {s(sT2)}")
    I(f"s_and_b32 {s(sT2)}, {s(sTI)}, 1")
    I(f"s_lshl_b32 {s(sT2)}, {s(sT2)}, 3")
    I(f"s_add_u32 {s(sT3)}, {s(sT1)}, {s(sT2)}")
    I(f"v_add_u32 {v(vX)}, {s(sT3)}, {v(vL16)}")
    I(f"s_mov_b32 {s(sSOFF)}, 0")
    for c in range(16):
        I(f"buffer_load_dwordx2 {v(vR+2*c,2)}, {v(vX)}, {s(rP,4)}, {s(sSOFF)} offen sc1")
        if c < 15: I(f"s_add_u32 {s(sSOFF)}, {s(sSOFF)}, 32768")
    vZ = 192
    I(f"s_cmp_eq_u32 {s(sTI)}, 3")
    I(f"s_cbranch_scc0 L_noz2")
    I(f"v_lshlrev_b32 {v(vT+1)}, 2, {v(vLANE)}")
    I(f"s_mov_b32 {s(sSOFF)}, 0")
    for c in range(16):
        I(f"buffer_load_dword {v(vZ+c)}, {v(vT+1)}, {s(rZ,4)}, {s(sSOFF)} offen sc1")
        if c < 15: I(f"s_add_u32 {s(sSOFF)}, {s(sSOFF)}, 256")
    I(f"s_waitcnt vmcnt(0)")
    for st in (1, 2, 4, 8):
        for c in range(0, 16, 2*st):
            I(f"v_add_f32 {v(vZ+c)}, {v(vZ+c)}, {v(vZ+c+st)}")
    I(f"v_cvt_pk_bf16_f32 {v(vZ)}, {v(vZ)}, {v(vZ)}")
    I(f"v_lshlrev_b32 {v(vT+1)}, 1, {v(vLANE)}")
    I(f"v_add_u32 {v(vT+1)}, {ZF}, {v(vT+1)}")
    I(f"ds_write_b16 {v(vT+1)}, {v(vZ)}")
    L("L_noz2")
    vS = 176
    I(f"s_mov_b32 {s(sT1)}, 0x3f80")
    I(f"s_mov_b32 {s(sT2)}, 0x3f800000")
    for i in range(4): I(f"v_mov_b32 {v(vS+i)}, 0")
    for c in range(16):
        I(f"s_waitcnt vmcnt({15-c})")
        I(f"v_dot2_f32_bf16 {v(vS)}, {v(vR+2*c)}, {s(sT1)}, {v(vS)}")
        I(f"v_dot2_f32_bf16 {v(vS+1)}, {v(vR+2*c)}, {s(sT2)}, {v(vS+1)}")
        I(f"v_dot2_f32_bf16 {v(vS+2)}, {v(vR+2*c+1)}, {s(sT1)}, {v(vS+2)}")
        I(f"v_dot2_f32_bf16 {v(vS+3)}, {v(vR+2*c+1)}, {s(sT2)}, {v(vS+3)}")
    I(f"v_cvt_pk_bf16_f32 {v(vS)}, {v(vS)}, {v(vS+1)}")
    I(f"v_cvt_pk_bf16_f32 {v(vS+1)}, {v(vS+2)}, {v(vS+3)}")
    I(f"buffer_store_dwordx2 {v(vS,2)}, {v(vX)}, {s(rF,4)}, 0 offen{pol()}")
    I(f"s_waitcnt vmcnt(0)")
    stamp("A reduced+drained")
    arrive(FLG + 8, 4, 384, "h2")
    C("chunk 0 advances the epoch (all 16 workgroups of the head have read it)")
    I(f"s_cmp_eq_u32 {s(sCH)}, 0")
    I(f"s_cbranch_scc0 L_noep")
    I(f"s_cmp_eq_u32 {s(sTI)}, 1")
    I(f"s_cbranch_scc0 L_noep")
    I(f"s_mov_b64 exec, 1")
    I(f"v_mov_b32 {v(vT)}, 0")
    I(f"v_mov_b32 {v(vT+1)}, {s(sNONCE)}")
    I(f"buffer_store_dword {v(vT+1)}, {v(vT)}, {s(rL,4)}, 0 offen sc1")
    I(f"s_mov_b64 exec, -1")
    L("L_noep")
    wait_hop(384, FLG + 12, "h2")
    stamp("A hop2")
    C("gather the final kv fragments dt = 2a, 2a+1 into LDS")
    I(f"s_lshl_b32 {s(sT1)}, {s(sTI)}, 13")
    I(f"v_add_u32 {v(vX)}, {s(sT1)}, {v(vL16)}")
    I(f"s_mov_b32 {s(sSOFF)}, 4096")
    for f in range(8):
        so = "0" if f < 4 else s(sSOFF)
        I(f"buffer_load_dwordx4 {v(vR+4*f,4)}, {v(vX)}, {s(rF,4)}, {so} offen offset:{(f%4)*1024} sc1")
    I(f"v_add_u32 {v(vX+1)}, {KVF}, {v(vX)}")
    for f in range(8):
        I(f"s_waitcnt vmcnt({7-f})")
        I(f"ds_write_b128 {v(vX+1)}, {v(vR+4*f,4)} offset:{f*1024}")
    I(f"s_waitcnt lgkmcnt(0)")
    stamp("A kvf in lds")
    I(f"s_barrier")
    stamp("A B4")
    STI[0] = 18
    I(f"s_lshl_b32 {s(sT1)}, {s(sTI)}, 14")
    I(f"v_add_u32 {v(vT)}, {s(sT1)}, {v(vL16)}")
    for t in range(4):
        I(f"ds_read_b128 {v(vPQ+4*t,4)}, {v(vT)} offset:{t*1024}")
    I(f"s_mov_b32 {s(sT3)}, 4")
    I(f"s_lshl_b32 {s(sT2)}, {s(sTI)}, 13")
    I(f"s_add_u32 {s(sT2)}, {s(sT2)}, {OSA}")
    I(f"s_branch L_final")

def team_b():
    C("================= team B =================")
    L("L_team_b")
    STI[0] = 3
    I(f"s_waitcnt vmcnt(4)")
    I(f"s_barrier")
    stamp("B B3")
    gemm2()
    C("Q tile (own 32 rows) after the partial stores")
    I(f"s_lshl_b32 {s(sSOFF)}, {s(sTI)}, 14")
    dma_rows(rQ, KQ, 16, 14)
    stamp("B q issued")
    I(f"s_waitcnt vmcnt(16)")
    arrive(FLG, 8, 256, "h1b")
    I(f"s_waitcnt vmcnt(0)")
    stamp("B q landed")
    gemm1(False)
    stamp("B gemm1 done")
    I(f"v_mov_b32 {v(vEPS)}, {s(sEPS)}")
    I(f"v_cvt_pk_bf16_f32 {v(vSS)}, {v(vSS)}, 0")
    I(f"v_lshlrev_b32 {v(vNQ)}, 16, {v(vSS)}")
    for mt in range(2):
        pipeline(mt, lambda r: vNQ, vP4 + 8*mt)
    I(f"s_lshl_b32 {s(sT1)}, {s(sTI)}, 14")
    I(f"v_add_u32 {v(vX)}, {s(sT1)}, {v(vL16)}")
    for t in range(4):
        I(f"ds_write_b128 {v(vX)}, {v(vP4+4*t,4)} offset:{t*1024}")
    for i in range(16):
        I(f"v_mov_b32 {v(vPQ+i)}, {v(vP4+i)}")
    I(f"s_waitcnt lgkmcnt(0)")
    stamp("B phiq done")
    I(f"s_barrier")
    stamp("B B4")
    STI[0] = 18
    I(f"s_mov_b32 {s(sT3)}, 0")
    I(f"s_lshl_b32 {s(sT2)}, {s(sTI)}, 14")
    I(f"s_add_u32 {s(sT2)}, {s(sT2)}, 4096")

def final():
    L("L_final")
    C("================= final =================")
    vZF = 48; vKA = 64; vAC = 96; vU = 128; vOP = 144
    vRD, vDEN, vOA, vKAa, vSW, vSR = 160, 161, 163, 164, 165, 166
    vST = 176
    I(f"v_lshrrev_b32 {v(vU)}, 5, {v(vLANE)}")
    I(f"v_lshlrev_b32 {v(vU)}, 3, {v(vU)}")
    I(f"v_add_u32 {v(vU)}, {ZF}, {v(vU)}")
    for t in range(4):
        I(f"ds_read2_b64 {v(vZF+4*t,4)}, {v(vU)} offset0:{4*t} offset1:{4*t+2}")
    I(f"v_bfe_u32 {v(vU+1)}, {v(vLANE)}, 2, 1")
    I(f"v_lshlrev_b32 {v(vU+1)}, 4, {v(vU+1)}")
    I(f"v_bfe_u32 {v(vU+2)}, {v(vLANE)}, 3, 2")
    I(f"v_lshl_add_u32 {v(vU+1)}, {v(vU+2)}, 2, {v(vU+1)}")
    I(f"v_and_b32 {v(vU+2)}, 3, {v(vLANE)}")
    I(f"v_add_u32 {v(vU+1)}, {v(vU+1)}, {v(vU+2)}")
    I(f"v_and_b32 {v(vU+2)}, 32, {v(vLANE)}")
    I(f"v_add_u32 {v(vU+1)}, {v(vU+1)}, {v(vU+2)}")
    I(f"v_lshlrev_b32 {v(vU+1)}, 4, {v(vU+1)}")
    I(f"s_lshl_b32 {s(sT1)}, {s(sT3)}, 12")
    I(f"s_add_u32 {s(sT1)}, {s(sT1)}, {KVF}")
    I(f"v_add_u32 {v(vKAa)}, {s(sT1)}, {v(vU+1)}")
    def aread(d):
        for t in range(4):
            I(f"ds_read_b128 {v(vKA+16*(d%2)+4*t,4)}, {v(vKAa)} offset:{(d*4+t)*1024}")
    aread(0)
    aread(1)
    C("staging write address: row q*256 + ((piece ^ (q&15))*16), piece = 4d + 2h + {0,1}; base = q*256 + ((2h ^ (q&15))*16)")
    I(f"v_and_b32 {v(vU+1)}, 31, {v(vLANE)}")
    I(f"v_and_b32 {v(vU+2)}, 15, {v(vLANE)}")
    I(f"v_lshrrev_b32 {v(vU+3)}, 5, {v(vLANE)}")
    I(f"v_lshlrev_b32 {v(vU+3)}, 1, {v(vU+3)}")
    I(f"v_xor_b32 {v(vU+2)}, {v(vU+2)}, {v(vU+3)}")
    I(f"v_lshlrev_b32 {v(vU+2)}, 4, {v(vU+2)}")
    I(f"v_lshl_add_u32 {v(vSW)}, {v(vU+1)}, 8, {v(vU+2)}")
    I(f"v_add_u32 {v(vSW)}, {s(sT2)}, {v(vSW)}")
    C("staging read address: row (l>>4) + 4i, slot (l&15) ^ (row&15)  -> base for i = 0; row&15 = (l>>4) + 4*(i&3)")
    I(f"v_lshrrev_b32 {v(vU+1)}, 4, {v(vLANE)}")
    I(f"v_and_b32 {v(vU+2)}, 15, {v(vLANE)}")
    I(f"v_xor_b32 {v(vU+2)}, {v(vU+2)}, {v(vU+1)}")
    I(f"v_lshlrev_b32 {v(vU+2)}, 4, {v(vU+2)}")
    I(f"v_lshl_add_u32 {v(vSR)}, {v(vU+1)}, 8, {v(vU+2)}")
    I(f"v_add_u32 {v(vSR)}, {s(sT2)}, {v(vSR)}")
    C("global store offset: (32*i + (l>>4))*512 + dh*256 + (l&15)*16")
    I(f"v_and_b32 {v(vU+2)}, 15, {v(vLANE)}")
    I(f"v_lshlrev_b32 {v(vU+2)}, 4, {v(vU+2)}")
    I(f"v_lshl_add_u32 {v(vOA)}, {v(vU+1)}, 9, {v(vU+2)}")
    I(f"s_lshl_b32 {s(sT1)}, {s(sTI)}, 14")
    I(f"s_lshl_b32 {s(sT2)}, {s(sT3)}, 6")
    I(f"s_add_u32 {s(sT1)}, {s(sT1)}, {s(sT2)}")
    I(f"v_add_u32 {v(vOA)}, {s(sT1)}, {v(vOA)}")
    I(f"s_waitcnt lgkmcnt(8)")
    I(f"v_mov_b32 {v(vDEN)}, 0")
    I(f"v_mov_b32 {v(vDEN+1)}, 0")
    for i in range(16):
        I(f"v_dot2c_f32_bf16 {v(vDEN+(i&1))}, {v(vPQ+i)}, {v(vZF+i)}")
    I(f"v_add_f32 {v(vDEN)}, {v(vDEN)}, {v(vDEN+1)}")
    I(f"v_mov_b32 {v(vDEN+1)}, {v(vDEN)}")
    I(f"v_permlane32_swap_b32 {v(vDEN)}, {v(vDEN+1)}")
    I(f"v_add_f32 {v(vDEN)}, {v(vDEN)}, {v(vDEN+1)}")
    I(f"v_cvt_pk_bf16_f32 {v(vDEN)}, {v(vDEN)}, {v(vDEN)}")
    I(f"v_lshlrev_b32 {v(vDEN)}, 16, {v(vDEN)}")
    I(f"v_add_f32 {v(vDEN)}, {s(sEPS)}, {v(vDEN)}")
    I(f"v_cvt_pk_bf16_f32 {v(vDEN)}, {v(vDEN)}, {v(vDEN)}")
    I(f"v_lshlrev_b32 {v(vDEN)}, 16, {v(vDEN)}")
    I(f"v_rcp_f32 {v(vRD)}, {v(vDEN)}")
    I(f"v_fma_f32 {v(vDEN+1)}, -{v(vDEN)}, {v(vRD)}, 1.0")
    I(f"v_fma_f32 {v(vRD)}, {v(vDEN+1)}, {v(vRD)}, {v(vRD)}")
    if opt.perturb is not None:
        import struct
        I(f"v_mul_f32 {v(vRD)}, 0x{struct.unpack('<I', struct.pack('<f', opt.perturb))[0]:08x}, {v(vRD)}")
    def mm(d):
        for t in range(4):
            acc = vAC + 16*(d % 2)
            c = "0" if t == 0 else v(acc, 16)
            I(f"v_mfma_f32_32x32x16_bf16 {v(acc,16)}, {v(vKA+16*(d%2)+4*t,4)}, {v(vPQ+4*t,4)}, {c}")
    def epi(d):
        acc = vAC + 16*(d % 2); op = vOP + 8*(d % 2)
        for i in range(8): I(f"v_cvt_pk_bf16_f32 {v(op+i)}, {v(acc+2*i)}, {v(acc+2*i+1)}")
        for i in range(8):
            I(f"v_lshlrev_b32 {v(vU+2*i)}, 16, {v(op+i)}")
            I(f"v_and_b32 {v(vU+2*i+1)}, {s(sMASKH)}, {v(op+i)}")
        for i in range(8): I(f"v_pk_mul_f32 {v(vU+2*i,2)}, {v(vU+2*i,2)}, {v(vRD,2)} op_sel_hi:[1,0]")
        for i in range(8): I(f"v_cvt_pk_bf16_f32 {v(op+i)}, {v(vU+2*i)}, {v(vU+2*i+1)}")
        for u in range(2):
            x = 64*d + 16*u
            if x:
                I(f"v_xor_b32 {v(vU)}, {x}, {v(vSW)}")
                I(f"ds_write_b128 {v(vU)}, {v(op+4*u,4)}")
            else:
                I(f"ds_write_b128 {v(vSW)}, {v(op+4*u,4)}")
    I(f"s_waitcnt lgkmcnt(4)")
    mm(0)
    I(f"s_waitcnt lgkmcnt(0)")
    mm(1)
    aread(2)
    epi(0)
    I(f"s_waitcnt lgkmcnt(2)")
    mm(2)
    aread(3)
    epi(1)
    I(f"s_waitcnt lgkmcnt(2)")
    mm(3)
    epi(2)
    epi(3)
    I(f"s_waitcnt lgkmcnt(0)")
    for i in range(8):
        x = 64*(i & 3)
        off = 1024*i
        if x:
            I(f"v_xor_b32 {v(vU+i)}, {x}, {v(vSR)}")
            I(f"ds_read_b128 {v(vST+4*i,4)}, {v(vU+i)} offset:{off}")
        else:
            I(f"ds_read_b128 {v(vST+4*i,4)}, {v(vSR)} offset:{off}")
    I(f"s_mov_b32 {s(sSOFF)}, 0")
    for i in range(8):
        I(f"s_waitcnt lgkmcnt({7-i})")
        if i % 2 == 0 and i: I(f"s_add_u32 {s(sSOFF)}, {s(sSOFF)}, 4096")
        I(f"buffer_store_dwordx4 {v(vST+4*i,4)}, {v(vOA)}, {s(rO,4)}, {s(sSOFF)} offen offset:{2048*(i%2)}")
    stamp("stores issued")
    if opt.stamps:
        I("s_waitcnt vmcnt(0)")
    stamp("stores done")
    stamps_flush("f")

def build():
    common_start()
    I(f"s_cmp_ge_u32 {s(sWAVE)}, 4")
    I(f"s_cbranch_scc1 L_team_b")
    team_a()
    team_b()
    final()
    L("L_end")
    I("s_endpgm")
    body = A.render()
    hdr = f"""; fused RFA linear attention: 256 workgroups (one per CU) x 8 waves
; @launch grid=(256,1,1) block=(512,1,1) lds={LDS_BYTES}
.amdgcn_target "amdgcn-amd-amdhsa--gfx950"
.text
.globl {NAME}
.p2align 8
.type {NAME},@function
{NAME}:
"""
    ftr = f"""
.section .rodata,"a"
.p2align 6
.amdhsa_kernel {NAME}
  .amdhsa_next_free_vgpr 256
  .amdhsa_next_free_sgpr 102
  .amdhsa_accum_offset 256
  .amdhsa_group_segment_fixed_size 0
  .amdhsa_kernarg_size 56
  .amdhsa_user_sgpr_count 2
  .amdhsa_user_sgpr_kernarg_segment_ptr 1
  .amdhsa_system_sgpr_workgroup_id_x 1
  .amdhsa_float_denorm_mode_32 3
.end_amdhsa_kernel
"""
    return hdr + body + ftr

if __name__ == "__main__":
    out = sys.argv[1]
    for a in sys.argv[2:]:
        if a == "stamps": opt.stamps = True
        elif a == "nont": opt.nt = False
        elif a.startswith("perturb="): opt.perturb = float(a.split("=")[1])
    txt = build()
    open(out, "w").write(txt)
    if opt.stamps: json.dump(STN, open(out + ".stamps.json", "w"))
    print("wrote", out, "nops inserted:", A.nops, "lines", txt.count("\n"))
```

```python
import sys, json
from asmlib import *

NAME = "standalone__linear_kernel_rfa__prompt_kernel"
class O: pass
opt = O()
opt.spin_limit = 300000
opt.stamps = False
opt.nt = True
opt.fast = False
opt.dbgwg = None
opt.dbgwave = 0
opt.perturb = None

KQ = 0
VR = 65536
WR = 131072
PHI = WR
ZB = WR + 16384
ZF = WR + 17408
FLG = WR + 17664
KVF = VR
OSA = VR + 32768
LDS_BYTES = 163840
WS_PART = 0
WS_Z = 16 << 20
WS_F = 17 << 20
WS_FL = 18 << 20
FL_STRIDE = 4352
WS_ST = 20 << 20

sQp, sKp, sVp, sWp, sOp, sDp, sSp = 4, 6, 8, 10, 12, 14, 16
sHEAD, sCH = 18, 19
rK, rV, rQ, rW, rO, rP, rZ, rF, rL = 20, 24, 28, 32, 36, 40, 44, 48, 52
sWAVE, sTI = 56, 57
sT0, sT1, sT2, sT3 = 58, 59, 60, 61
sNONCE = 62
sFAST = 63
sC025L, sC025H, sLOG2E, sC0125, sMASKH, sONES = 64, 65, 66, 67, 68, 69
sSPIN, sSOFF, sEPS, sM132 = 70, 71, 72, 73
sEPA = 96

A = Asm()
I, L, C = A.I, A.L, A.C
STI = [0]; STN = []
def stamp(name=""):
    if not opt.stamps: return
    C("stamp %s" % name)
    I("s_memrealtime s[98:99]")
    I("s_waitcnt lgkmcnt(0)")
    I("s_mov_b32 s%d, s98" % (74 + STI[0]))
    STN.append((STI[0], name)); STI[0] += 1
def stamps_flush(tag):
    if not opt.stamps: return
    I("s_and_b32 s97, s56, 3"); I("s_cmp_eq_u32 s97, 0"); I("s_cbranch_scc0 L_nost_%s" % tag)
    I("s_lshr_b32 s97, s56, 2"); I("s_lshl_b32 s96, s2, 1"); I("s_add_u32 s96, s96, s97"); I("s_lshl_b32 s96, s96, 7")
    I("s_add_u32 s96, s96, %d" % WS_ST)
    I("s_add_u32 s40, s16, s96"); I("s_addc_u32 s41, s17, 0"); I("s_and_b32 s41, s41, 0xffff"); I("s_mov_b32 s42, 128"); I("s_mov_b32 s43, 0x20000")
    I("s_mov_b64 exec, 1"); I("v_mov_b32 v1, 0")
    for i in range(22):
        I("v_mov_b32 v2, s%d" % (74 + i)); I("buffer_store_dword v2, v1, s[40:43], 0 offen offset:%d" % (4 * i))
    I("s_waitcnt vmcnt(0)")
    if opt.dbgwg is not None:
        I("s_cmp_eq_u32 s2, %d" % opt.dbgwg); I("s_cbranch_scc0 L_nodbg")
        I("s_cmp_eq_u32 s56, %d" % opt.dbgwave); I("s_cbranch_scc0 L_nodbg")
        I("s_mov_b32 s40, s14"); I("s_and_b32 s41, s15, 0xffff"); I("s_mov_b32 s42, 256")
        idx = [i for i in range(1, 14)] + [18, 19]
        for j, i in enumerate(idx):
            I("s_sub_u32 s97, s%d, s74" % (74 + i)); I("v_mov_b32 v2, s97"); I("buffer_store_dword v2, v1, s[40:43], 0 offen offset:%d" % (4 * j))
        I("s_waitcnt vmcnt(0)")
        L("L_nodbg")
    I("s_mov_b64 exec, -1")
    L("L_nost_%s" % tag)

def srd(r, ptr, off_s, size):
    if off_s is None:
        I(f"s_mov_b32 {s(r)}, {s(ptr)}")
        I(f"s_and_b32 {s(r+1)}, {s(ptr+1)}, 0xffff")
    else:
        I(f"s_add_u32 {s(r)}, {s(ptr)}, {s(off_s)}")
        I(f"s_addc_u32 {s(r+1)}, {s(ptr+1)}, 0")
        I(f"s_and_b32 {s(r+1)}, {s(r+1)}, 0xffff")
    I(f"s_mov_b32 {s(r+2)}, {size}")
    I(f"s_mov_b32 {s(r+3)}, 0x20000")

NT = lambda: " nt" if opt.nt else ""
vLANE = 0
vA = 2
vD = 10
vL16 = 11
vT = 12
vW = 128
def W(mt, t): return vW + mt * 64 + t * 4
vKF = 32
vA1 = 96
vP4 = 12
vNQ = 32
vNK = 48
vONE = 52
vSS = 28
vP1 = 56
vTT = 60
vEPS = 68
vZP = 69
vX = 72

def prologue():
    I(f"s_cmp_ge_u32 s2, 256")
    I(f"s_cbranch_scc1 L_end")
    I(f"s_load_dwordx4 s[4:7], s[0:1], 0")
    I(f"s_load_dwordx4 s[8:11], s[0:1], 16")
    I(f"s_load_dwordx4 s[12:15], s[0:1], 32")
    I(f"s_load_dwordx2 s[16:17], s[0:1], 48")
    I(f"v_lshrrev_b32 v1, 6, v0")
    I(f"v_and_b32 {v(vLANE)}, 63, v0")
    I(f"v_readfirstlane_b32 {s(sWAVE)}, v1")
    I(f"s_and_b32 {s(sT0)}, s2, 7")
    I(f"s_lshr_b32 {s(sT1)}, s2, 3")
    I(f"s_lshr_b32 {s(sHEAD)}, {s(sT1)}, 4")
    I(f"s_lshl_b32 {s(sT0)}, {s(sT0)}, 1")
    I(f"s_add_u32 {s(sHEAD)}, {s(sHEAD)}, {s(sT0)}")
    I(f"s_and_b32 {s(sCH)}, {s(sT1)}, 15")
    I(f"s_and_b32 {s(sTI)}, {s(sWAVE)}, 3")
    I(f"v_lshrrev_b32 {v(vT)}, 5, {v(vLANE)}")
    I(f"v_and_b32 {v(vT+1)}, 31, {v(vLANE)}")
    I(f"v_xor_b32 {v(vT+1)}, {v(vT+1)}, {v(vT)}")
    I(f"v_lshlrev_b32 {v(vT+1)}, 4, {v(vT+1)}")
    I(f"v_lshl_add_u32 {v(vD)}, {v(vT)}, 9, {v(vT+1)}")
    I(f"v_lshlrev_b32 {v(vL16)}, 4, {v(vLANE)}")
    I(f"s_lshl_b32 {s(sT0)}, {s(sHEAD)}, 20")
    I(f"s_lshl_b32 {s(sT1)}, {s(sCH)}, 16")
    I(f"s_add_u32 {s(sT0)}, {s(sT0)}, {s(sT1)}")
    I(f"s_waitcnt lgkmcnt(0)")
    srd(rW, sWp, None, 32768)
    srd(rK, sKp, sT0, 65536)
    srd(rV, sVp, sT0, 65536)

def dma_omega():
    C("omega -> LDS W region, 4 instructions per wave, rows 8w..8w+7")
    I(f"s_and_b32 {s(sT1)}, {s(sWAVE)}, 1")
    I(f"s_lshl_b32 {s(sT1)}, {s(sT1)}, 7")
    I(f"s_lshl_b32 {s(sSOFF)}, {s(sWAVE)}, 12")
    I(f"s_add_u32 m0, {s(sSOFF)}, {WR}")
    for i in range(4):
        I(f"s_add_u32 {s(sT2)}, {s(sT1)}, {32*i}")
        I(f"v_xor_b32 {v(vT)}, {s(sT2)}, {v(vD)}")
        I(f"buffer_load_dwordx4 {v(vT)}, {s(rW,4)}, {s(sSOFF)} offen offset:{1024*i} lds")

def dma_rows(r, base_lds, n, shift):
    for i in range(n):
        if i % 4 == 0:
            if i: I(f"s_add_u32 {s(sSOFF)}, {s(sSOFF)}, 4096")
            I(f"s_add_u32 m0, {s(sSOFF)}, {base_lds}")
        if i & 7:
            I(f"v_xor_b32 {v(vT)}, {32*(i&7)}, {v(vD)}")
            I(f"buffer_load_dwordx4 {v(vT)}, {s(r,4)}, {s(sSOFF)} offen offset:{1024*(i%4)}{NT()} lds")
        else:
            I(f"buffer_load_dwordx4 {v(vD)}, {s(r,4)}, {s(sSOFF)} offen offset:{1024*(i%4)}{NT()} lds")

def dma_k():
    C("K rows 16w..16w+15 (8 instructions)")
    I(f"s_lshl_b32 {s(sSOFF)}, {s(sWAVE)}, 13")
    dma_rows(rK, KQ, 8, 13)

def dma_v():
    C("V: instruction i = k step i; slice a = w&3, rows 16i + 8*(w>>2) .. +8")
    I(f"v_lshrrev_b32 {v(vT)}, 4, {v(vLANE)}")
    I(f"v_and_b32 {v(vT)}, 1, {v(vT)}")
    I(f"v_lshlrev_b32 {v(vT)}, 2, {v(vT)}")
    I(f"v_and_b32 {v(vT+1)}, 7, {v(vLANE)}")
    I(f"v_xor_b32 {v(vT)}, {v(vT)}, {v(vT+1)}")
    I(f"v_lshlrev_b32 {v(vT)}, 4, {v(vT)}")
    I(f"v_lshrrev_b32 {v(vT+1)}, 3, {v(vLANE)}")
    I(f"v_lshl_add_u32 {v(vT)}, {v(vT+1)}, 9, {v(vT)}")
    I(f"s_lshl_b32 {s(sT1)}, {s(sTI)}, 7")
    I(f"s_lshr_b32 {s(sT2)}, {s(sWAVE)}, 2")
    I(f"s_lshl_b32 {s(sSOFF)}, {s(sT2)}, 12")
    I(f"s_add_u32 {s(sSOFF)}, {s(sSOFF)}, {s(sT1)}")
    I(f"s_lshl_b32 {s(sT1)}, {s(sTI)}, 14")
    I(f"s_lshl_b32 {s(sT2)}, {s(sT2)}, 10")
    I(f"s_add_u32 {s(sT1)}, {s(sT1)}, {s(sT2)}")
    I(f"s_add_u32 {s(sT1)}, {s(sT1)}, {VR}")
    for i in range(8):
        I(f"s_add_u32 m0, {s(sT1)}, {2048*i}")
        if i: I(f"s_add_u32 {s(sSOFF)}, {s(sSOFF)}, 8192")
        I(f"buffer_load_dwordx4 {v(vT)}, {s(rV,4)}, {s(sSOFF)} offen{NT()} lds")

def tile_addrs():
    I(f"v_and_b32 {v(vT)}, 31, {v(vLANE)}")
    I(f"v_lshrrev_b32 {v(vT+1)}, 5, {v(vLANE)}")
    I(f"v_and_b32 {v(vT+2)}, 15, {v(vLANE)}")
    I(f"v_xor_b32 {v(vT+2)}, {v(vT+2)}, {v(vT+1)}")
    I(f"v_lshlrev_b32 {v(vT+2)}, 4, {v(vT+2)}")
    I(f"v_lshl_add_u32 {v(vT+2)}, {v(vT)}, 9, {v(vT+2)}")
    I(f"v_add_u32 {v(vA)}, {WR}, {v(vT+2)}")
    for x in range(1, 8):
        I(f"v_xor_b32 {v(vA+x)}, {32*x}, {v(vA)}")

def read_omega():
    for t in range(16):
        for mt in range(2):
            I(f"ds_read_b128 {v(W(mt,t),4)}, {v(vA+(t&7))} offset:{(t>>3)*256 + mt*16384}")
    I(f"s_lshl_b32 {s(sT1)}, {s(sTI)}, 14")
    I(f"s_sub_u32 {s(sT1)}, {s(sT1)}, {WR - KQ}")
    for x in range(8):
        I(f"v_add_u32 {v(vA+x)}, {s(sT1)}, {v(vA+x)}")

def setup_rest():
    I(f"s_mov_b32 {s(sC025L)}, 0x00003e80")
    I(f"s_mov_b32 {s(sC025H)}, 0x3e800000")
    I(f"s_mov_b32 {s(sLOG2E)}, 0x3fb8aa3b")
    I(f"s_mov_b32 {s(sC0125)}, 0x3e000000")
    I(f"s_mov_b32 {s(sMASKH)}, 0xffff0000")
    I(f"s_mov_b32 {s(sONES)}, 0x3f803f80")
    I(f"s_mov_b32 {s(sEPS)}, 0x358637bd")
    I(f"s_mov_b32 {s(sM132)}, 0xbd000000")
    I(f"s_lshl_b32 {s(sT0)}, {s(sHEAD)}, 19")
    srd(rP, sSp, sT0, 16*32768)
    I(f"s_lshl_b32 {s(sT0)}, {s(sHEAD)}, 12")
    I(f"s_add_u32 {s(sT0)}, {s(sT0)}, {WS_Z}")
    srd(rZ, sSp, sT0, 4096)
    I(f"s_lshl_b32 {s(sT0)}, {s(sHEAD)}, 15")
    I(f"s_add_u32 {s(sT0)}, {s(sT0)}, {WS_F}")
    srd(rF, sSp, sT0, 32768)
    I(f"s_mul_i32 {s(sT0)}, {s(sHEAD)}, {FL_STRIDE}")
    I(f"s_add_u32 {s(sT0)}, {s(sT0)}, {WS_FL}")
    srd(rL, sSp, sT0, 512)
    I(f"s_add_u32 {s(sEPA)}, {s(sSp)}, {s(sT0)}")
    I(f"s_addc_u32 {s(sEPA+1)}, {s(sSp+1)}, 0")
    I(f"s_load_dword {s(sNONCE)}, {s(sEPA,2)}, 0")
    I(f"s_lshl_b32 {s(sT0)}, {s(sHEAD)}, 20")
    I(f"s_lshl_b32 {s(sT1)}, {s(sCH)}, 16")
    I(f"s_add_u32 {s(sT0)}, {s(sT0)}, {s(sT1)}")
    srd(rQ, sQp, sT0, 65536)
    srd(rO, sOp, sT0, 65536)
    I(f"s_waitcnt lgkmcnt(0)")
    I(f"s_add_u32 {s(sNONCE)}, {s(sNONCE)}, 1")

def gemm1(a_is_tile):
    for t in range(16):
        I(f"ds_read_b128 {v(vKF+4*t,4)}, {v(vA+(t&7))} offset:{(t>>3)*256}")
    for i in range(4): I(f"v_mov_b32 {v(vSS+i)}, 0")
    for t in range(16):
        if t % 2 == 0: I(f"s_waitcnt lgkmcnt({max(0, 14 - t)})")
        for i in range(4):
            I(f"v_dot2c_f32_bf16 {v(vSS+i)}, {v(vKF+4*t+i)}, {v(vKF+4*t+i)}")
    for t in range(16):
        f = vKF + 4*t
        for mt in range(2):
            c = "0" if t == 0 else v(vA1 + 16*mt, 16)
            if a_is_tile: I(f"v_mfma_f32_32x32x16_bf16 {v(vA1+16*mt,16)}, {v(f,4)}, {v(W(mt,t),4)}, {c}")
            else:         I(f"v_mfma_f32_32x32x16_bf16 {v(vA1+16*mt,16)}, {v(W(mt,t),4)}, {v(f,4)}, {c}")
        if t == 2:
            I(f"v_add_f32 {v(vSS)}, {v(vSS)}, {v(vSS+1)}")
            I(f"v_add_f32 {v(vSS+2)}, {v(vSS+2)}, {v(vSS+3)}")
        if t == 3:
            I(f"v_add_f32 {v(vSS)}, {v(vSS)}, {v(vSS+2)}")
        if t == 4:
            I(f"v_mov_b32 {v(vSS+1)}, {v(vSS)}")
        if t == 5:
            I(f"v_permlane32_swap_b32 {v(vSS)}, {v(vSS+1)}")
        if t == 6:
            I(f"v_add_f32 {v(vSS)}, {v(vSS)}, {v(vSS+1)}")
            I(f"v_mul_f32 {v(vSS)}, {s(sM132)}, {v(vSS)}")

def pipeline(mt, nq_of, p4base):
    for g in range(2):
        prs = [4*g + i for i in range(4)]
        acc = lambda r: vA1 + 16*mt + r
        for i, p in enumerate(prs): I(f"v_cvt_pk_bf16_f32 {v(vP1+i)}, {v(acc(2*p))}, {v(acc(2*p+1))}")
        for i, p in enumerate(prs):
            I(f"v_dot2_f32_bf16 {v(vTT+2*i)}, {v(vP1+i)}, {s(sC025L)}, {v(nq_of(2*p))}")
            I(f"v_dot2_f32_bf16 {v(vTT+2*i+1)}, {v(vP1+i)}, {s(sC025H)}, {v(nq_of(2*p+1))}")
        for i, p in enumerate(prs): I(f"v_cvt_pk_bf16_f32 {v(vP1+i)}, {v(vTT+2*i)}, {v(vTT+2*i+1)}")
        for i, p in enumerate(prs):
            I(f"v_lshlrev_b32 {v(vTT+2*i)}, 16, {v(vP1+i)}")
            I(f"v_and_b32 {v(vTT+2*i+1)}, {s(sMASKH)}, {v(vP1+i)}")
        for i in range(8): I(f"v_mul_f32 {v(vTT+i)}, {s(sLOG2E)}, {v(vTT+i)}")
        for i in range(8): I(f"v_exp_f32 {v(vTT+i)}, {v(vTT+i)}")
        for i in range(8): I(f"v_fma_f32 {v(vTT+i)}, {v(vTT+i)}, {s(sC0125)}, {v(vEPS)}")
        for i, p in enumerate(prs): I(f"v_cvt_pk_bf16_f32 {v(p4base+p)}, {v(vTT+2*i)}, {v(vTT+2*i+1)}")

def pol(): return " sc1"

def arrive(lds_cnt, total, flag_off, tag):
    I(f"s_mov_b64 exec, 1")
    I(f"v_mov_b32 {v(vT)}, {lds_cnt}")
    I(f"v_mov_b32 {v(vT+1)}, 1")
    I(f"ds_add_rtn_u32 {v(vT+2)}, {v(vT)}, {v(vT+1)}")
    I(f"s_waitcnt lgkmcnt(0)")
    I(f"v_readfirstlane_b32 {s(sT1)}, {v(vT+2)}")
    I(f"s_cmp_eq_u32 {s(sT1)}, {total-1}")
    I(f"s_cbranch_scc0 L_nosig_{tag}")
    I(f"s_lshl_b32 {s(sT1)}, {s(sCH)}, 2")
    I(f"v_mov_b32 {v(vT)}, {s(sT1)}")
    I(f"v_mov_b32 {v(vT+1)}, {s(sNONCE)}")
    I(f"buffer_store_dword {v(vT+1)}, {v(vT)}, {s(rL,4)}, 0 offen offset:{flag_off} sc1")
    L(f"L_nosig_{tag}")
    I(f"s_mov_b64 exec, -1")

def wait_hop(flag_off, lds_flag, tag):
    I(f"s_cmp_eq_u32 {s(sTI)}, 0")
    I(f"s_cbranch_scc0 L_follow_{tag}")
    I(f"s_mov_b32 {s(sSPIN)}, 0")
    I(f"v_and_b32 {v(vT)}, 15, {v(vLANE)}")
    I(f"v_lshlrev_b32 {v(vT)}, 2, {v(vT)}")
    L(f"L_spin_{tag}")
    I(f"buffer_load_dword {v(vT+1)}, {v(vT)}, {s(rL,4)}, 0 offen offset:{flag_off} sc1")
    I(f"s_waitcnt vmcnt(0)")
    I(f"v_cmp_ne_u32 vcc, {s(sNONCE)}, {v(vT+1)}")
    I(f"s_cbranch_vccz L_spun_{tag}")
    I(f"s_sleep 1")
    I(f"s_add_u32 {s(sSPIN)}, {s(sSPIN)}, 1")
    I(f"s_cmp_lt_u32 {s(sSPIN)}, {opt.spin_limit}")
    I(f"s_cbranch_scc1 L_spin_{tag}")
    L(f"L_spun_{tag}")
    I(f"v_mov_b32 {v(vT)}, {lds_flag}")
    I(f"v_mov_b32 {v(vT+1)}, 1")
    I(f"ds_write_b32 {v(vT)}, {v(vT+1)}")
    I(f"s_branch L_hop_{tag}")
    L(f"L_follow_{tag}")
    I(f"s_mov_b32 {s(sSPIN)}, 0")
    I(f"v_mov_b32 {v(vT)}, {lds_flag}")
    L(f"L_lspin_{tag}")
    I(f"ds_read_b32 {v(vT+1)}, {v(vT)}")
    I(f"s_waitcnt lgkmcnt(0)")
    I(f"v_readfirstlane_b32 {s(sT1)}, {v(vT+1)}")
    I(f"s_cmp_lg_u32 {s(sT1)}, 0")
    I(f"s_cbranch_scc1 L_hop_{tag}")
    I(f"s_add_u32 {s(sSPIN)}, {s(sSPIN)}, 1")
    I(f"s_cmp_lt_u32 {s(sSPIN)}, {opt.spin_limit*16}")
    I(f"s_cbranch_scc1 L_lspin_{tag}")
    L(f"L_hop_{tag}")

vPQ = 32

def common_start():
    prologue()
    stamp("start")
    dma_omega()
    dma_k()
    dma_v()
    tile_addrs()
    setup_rest()
    stamp("dma issued")
    I(f"s_waitcnt vmcnt(16)")
    I(f"s_barrier")
    read_omega()
    I(f"s_waitcnt vmcnt(8) lgkmcnt(0)")
    I(f"s_barrier")
    stamp("B1 K landed")

def gemm2():
    vPH = 64; vAC = 96; vVB = 32; vVA = 28; vPA = 29
    I(f"v_add_u32 {v(vPA)}, {PHI}, {v(vL16)}")
    def pread(kk):
        for mt in range(2):
            I(f"ds_read_b128 {v(vPH+8*(kk%4)+4*mt,4)}, {v(vPA)} offset:{1024*(kk*2+mt)}")
    for kk in range(4): pread(kk)
    I(f"v_lshrrev_b32 {v(vT)}, 5, {v(vLANE)}")
    I(f"v_lshlrev_b32 {v(vT)}, 2, {v(vT)}")
    I(f"v_bfe_u32 {v(vT+1)}, {v(vLANE)}, 2, 2")
    I(f"v_add_u32 {v(vT)}, {v(vT)}, {v(vT+1)}")
    I(f"v_lshlrev_b32 {v(vT)}, 7, {v(vT)}")
    I(f"v_lshrrev_b32 {v(vT+1)}, 1, {v(vT+1)}")
    I(f"s_and_b32 {s(sT2)}, {s(sWAVE)}, 1")
    I(f"v_xor_b32 {v(vT+1)}, {s(sT2)}, {v(vT+1)}")
    I(f"v_lshl_add_u32 {v(vT)}, {v(vT+1)}, 6, {v(vT)}")
    I(f"v_bfe_u32 {v(vT+1)}, {v(vLANE)}, 4, 1")
    I(f"v_lshl_add_u32 {v(vT)}, {v(vT+1)}, 5, {v(vT)}")
    I(f"v_and_b32 {v(vT+1)}, 3, {v(vLANE)}")
    I(f"v_lshl_add_u32 {v(vT)}, {v(vT+1)}, 3, {v(vT)}")
    I(f"s_lshr_b32 {s(sT1)}, {s(sWAVE)}, 1")
    I(f"s_lshl_b32 {s(sT1)}, {s(sT1)}, 14")
    I(f"s_add_u32 {s(sT1)}, {s(sT1)}, {VR}")
    I(f"v_add_u32 {v(vVA)}, {s(sT1)}, {v(vT)}")
    def vread(kk):
        for ap in range(2):
            I(f"ds_read_b64_tr_b16 {v(vVB+4*kk+2*ap,2)}, {v(vVA)} offset:{kk*2048 + ap*1024}")
    def mm(kk):
        for mt in range(2):
            acc = vAC + mt*16
            c = "0" if kk == 0 else v(acc, 16)
            I(f"v_mfma_f32_32x32x16_bf16 {v(acc,16)}, {v(vPH+8*(kk%4)+4*mt,4)}, {v(vVB+4*kk,4)}, {c}")
    for kk in range(4): vread(kk)
    C("first half of the k steps while the second half of V lands")
    for kk in range(4):
        I(f"s_waitcnt lgkmcnt({6 - 2*kk + 2*kk if kk == 0 else 6})")
        mm(kk)
        pread(kk + 4)
    I(f"s_waitcnt vmcnt(0)")
    I(f"s_barrier")
    for kk in range(4, 8): vread(kk)
    for kk in range(4, 8):
        I(f"s_waitcnt lgkmcnt({2*(7-kk)})")
        mm(kk)
    stamp("gemm2 done")
    C("partial kv: bf16 A-fragments (dt = w, t = 0..3)")
    vPK = 32
    for mt in range(2):
        for i in range(8):
            I(f"v_cvt_pk_bf16_f32 {v(vPK+8*mt+i)}, {v(vAC+16*mt+2*i)}, {v(vAC+16*mt+2*i+1)}")
    I(f"s_lshl_b32 {s(sT1)}, {s(sWAVE)}, 12")
    I(f"v_add_u32 {v(vT)}, {s(sT1)}, {v(vL16)}")
    I(f"s_lshl_b32 {s(sSOFF)}, {s(sCH)}, 15")
    for t in range(4):
        I(f"buffer_store_dwordx4 {v(vPK+4*t,4)}, {v(vT)}, {s(rP,4)}, {s(sSOFF)} offen offset:{t*1024}{pol()}")

def team_a():
    C("================= team A =================")
    I(f"v_mov_b32 {v(vT)}, {FLG}")
    for i in range(4): I(f"v_mov_b32 {v(vT+2+i)}, 0")
    I(f"ds_write_b128 {v(vT)}, {v(vT+2,4)}")
    gemm1(True)
    stamp("A gemm1 done")
    I(f"v_lshrrev_b32 {v(vSS+1)}, 5, {v(vLANE)}")
    I(f"v_cmp_eq_u32 vcc, 0, {v(vSS+1)}")
    I(f"v_mov_b32 {v(vEPS)}, {s(sEPS)}")
    I(f"v_mov_b32 {v(vONE)}, 0x3f80")
    for i in range(1, 4):
        I(f"v_mov_b32 {v(vONE+i)}, 0")
        I(f"v_mov_b32 {v(vNK+i)}, 0")
    I(f"v_cndmask_b32 {v(vSS)}, 0, {v(vSS)}, vcc")
    I(f"v_cvt_pk_bf16_f32 {v(vNK)}, {v(vSS)}, 0")
    I(f"v_mfma_f32_32x32x16_bf16 {v(vNQ,16)}, {v(vNK,4)}, {v(vONE,4)}, 0")
    I(f"v_lshl_add_u32 {v(vX)}, {s(sTI)}, 12, {v(vL16)}")
    I(f"v_add_u32 {v(vX)}, {PHI}, {v(vX)}")
    for mt in range(2):
        pipeline(mt, lambda r: vNQ + r, vP4 + 8*mt)
        for u in range(2):
            I(f"ds_write_b128 {v(vX)}, {v(vP4+8*mt+4*u,4)} offset:{u*2048 + mt*1024}")
        I(f"v_mov_b32 {v(vZP+mt)}, 0")
        for i in range(8):
            I(f"v_dot2c_f32_bf16 {v(vZP+mt)}, {s(sONES)}, {v(vP4+8*mt+i)}")
    for mt in range(2): I(f"v_mov_b32 {v(vX+1+mt)}, {v(vZP+mt)}")
    for mt in range(2): I(f"v_permlane32_swap_b32 {v(vZP+mt)}, {v(vX+1+mt)}")
    for mt in range(2): I(f"v_add_f32 {v(vZP+mt)}, {v(vZP+mt)}, {v(vX+1+mt)}")
    I(f"v_and_b32 {v(vX+1)}, 31, {v(vLANE)}")
    I(f"v_lshlrev_b32 {v(vX+1)}, 2, {v(vX+1)}")
    I(f"s_lshl_b32 {s(sT1)}, {s(sTI)}, 8")
    I(f"s_add_u32 {s(sT1)}, {s(sT1)}, {ZB}")
    I(f"v_add_u32 {v(vX+1)}, {s(sT1)}, {v(vX+1)}")
    I(f"ds_write_b32 {v(vX+1)}, {v(vZP)}")
    I(f"ds_write_b32 {v(vX+1)}, {v(vZP+1)} offset:128")
    stamp("A phi written")
    I(f"s_waitcnt vmcnt(4) lgkmcnt(0)")
    I(f"s_barrier")
    stamp("A B3")
    gemm2()
    C("z partial of the workgroup (wave 0)")
    I(f"s_cmp_eq_u32 {s(sTI)}, 0")
    I(f"s_cbranch_scc0 L_noz")
    I(f"v_lshlrev_b32 {v(vT+1)}, 2, {v(vLANE)}")
    I(f"v_add_u32 {v(vT+2)}, {ZB}, {v(vT+1)}")
    for a in range(4): I(f"ds_read_b32 {v(vT+4+a)}, {v(vT+2)} offset:{256*a}")
    I(f"s_waitcnt lgkmcnt(0)")
    I(f"v_add_f32 {v(vT+4)}, {v(vT+4)}, {v(vT+5)}")
    I(f"v_add_f32 {v(vT+6)}, {v(vT+6)}, {v(vT+7)}")
    I(f"v_add_f32 {v(vT+4)}, {v(vT+4)}, {v(vT+6)}")
    I(f"s_lshl_b32 {s(sSOFF)}, {s(sCH)}, 8")
    I(f"buffer_store_dword {v(vT+4)}, {v(vT+1)}, {s(rZ,4)}, {s(sSOFF)} offen{pol()}")
    L("L_noz")
    I(f"s_waitcnt vmcnt(0)")
    stamp("A part drained")
    arrive(FLG, 8, 256, "h1a")
    wait_hop(256, FLG + 4, "h1")
    stamp("A hop1")
    C("reduce fragment f = 2*chunk + (a>>1), half a&1, over the 16 partials")
    vR = 128
    I(f"s_lshl_b32 {s(sT1)}, {s(sCH)}, 11")
    I(f"s_lshr_b32 {s(sT2)}, {s(sTI)}, 1")
    I(f"s_lshl_b32 {s(sT2)}, {s(sT2)}, 10")
    I(f"s_add_u32 {s(sT1)}, {s(sT1)}, {s(sT2)}")
    I(f"s_and_b32 {s(sT2)}, {s(sTI)}, 1")
    I(f"s_lshl_b32 {s(sT2)}, {s(sT2)}, 3")
    I(f"s_add_u32 {s(sT3)}, {s(sT1)}, {s(sT2)}")
    I(f"v_add_u32 {v(vX)}, {s(sT3)}, {v(vL16)}")
    I(f"s_mov_b32 {s(sSOFF)}, 0")
    for c in range(16):
        I(f"buffer_load_dwordx2 {v(vR+2*c,2)}, {v(vX)}, {s(rP,4)}, {s(sSOFF)} offen sc1")
        if c < 15: I(f"s_add_u32 {s(sSOFF)}, {s(sSOFF)}, 32768")
    vZ = 192
    I(f"s_cmp_eq_u32 {s(sTI)}, 3")
    I(f"s_cbranch_scc0 L_noz2")
    I(f"v_lshlrev_b32 {v(vT+1)}, 2, {v(vLANE)}")
    I(f"s_mov_b32 {s(sSOFF)}, 0")
    for c in range(16):
        I(f"buffer_load_dword {v(vZ+c)}, {v(vT+1)}, {s(rZ,4)}, {s(sSOFF)} offen sc1")
        if c < 15: I(f"s_add_u32 {s(sSOFF)}, {s(sSOFF)}, 256")
    I(f"s_waitcnt vmcnt(0)")
    for st in (1, 2, 4, 8):
        for c in range(0, 16, 2*st):
            I(f"v_add_f32 {v(vZ+c)}, {v(vZ+c)}, {v(vZ+c+st)}")
    I(f"v_cvt_pk_bf16_f32 {v(vZ)}, {v(vZ)}, {v(vZ)}")
    I(f"v_lshlrev_b32 {v(vT+1)}, 1, {v(vLANE)}")
    I(f"v_add_u32 {v(vT+1)}, {ZF}, {v(vT+1)}")
    I(f"ds_write_b16 {v(vT+1)}, {v(vZ)}")
    L("L_noz2")
    vS = 176
    I(f"s_mov_b32 {s(sT1)}, 0x3f80")
    I(f"s_mov_b32 {s(sT2)}, 0x3f800000")
    for i in range(4): I(f"v_mov_b32 {v(vS+i)}, 0")
    for c in range(16):
        I(f"s_waitcnt vmcnt({15-c})")
        I(f"v_dot2_f32_bf16 {v(vS)}, {v(vR+2*c)}, {s(sT1)}, {v(vS)}")
        I(f"v_dot2_f32_bf16 {v(vS+1)}, {v(vR+2*c)}, {s(sT2)}, {v(vS+1)}")
        I(f"v_dot2_f32_bf16 {v(vS+2)}, {v(vR+2*c+1)}, {s(sT1)}, {v(vS+2)}")
        I(f"v_dot2_f32_bf16 {v(vS+3)}, {v(vR+2*c+1)}, {s(sT2)}, {v(vS+3)}")
    I(f"v_cvt_pk_bf16_f32 {v(vS)}, {v(vS)}, {v(vS+1)}")
    I(f"v_cvt_pk_bf16_f32 {v(vS+1)}, {v(vS+2)}, {v(vS+3)}")
    I(f"buffer_store_dwordx2 {v(vS,2)}, {v(vX)}, {s(rF,4)}, 0 offen{pol()}")
    I(f"s_waitcnt vmcnt(0)")
    stamp("A reduced+drained")
    arrive(FLG + 8, 4, 384, "h2")
    C("chunk 0 advances the epoch (all 16 workgroups of the head have read it)")
    I(f"s_cmp_eq_u32 {s(sCH)}, 0")
    I(f"s_cbranch_scc0 L_noep")
    I(f"s_cmp_eq_u32 {s(sTI)}, 1")
    I(f"s_cbranch_scc0 L_noep")
    I(f"s_mov_b64 exec, 1")
    I(f"v_mov_b32 {v(vT)}, 0")
    I(f"v_mov_b32 {v(vT+1)}, {s(sNONCE)}")
    I(f"buffer_store_dword {v(vT+1)}, {v(vT)}, {s(rL,4)}, 0 offen sc1")
    I(f"s_mov_b64 exec, -1")
    L("L_noep")
    wait_hop(384, FLG + 12, "h2")
    stamp("A hop2")
    C("gather the final kv fragments dt = 2a, 2a+1 into LDS")
    I(f"s_lshl_b32 {s(sT1)}, {s(sTI)}, 13")
    I(f"v_add_u32 {v(vX)}, {s(sT1)}, {v(vL16)}")
    I(f"s_mov_b32 {s(sSOFF)}, 4096")
    for f in range(8):
        so = "0" if f < 4 else s(sSOFF)
        I(f"buffer_load_dwordx4 {v(vR+4*f,4)}, {v(vX)}, {s(rF,4)}, {so} offen offset:{(f%4)*1024} sc1")
    I(f"v_add_u32 {v(vX+1)}, {KVF}, {v(vX)}")
    for f in range(8):
        I(f"s_waitcnt vmcnt({7-f})")
        I(f"ds_write_b128 {v(vX+1)}, {v(vR+4*f,4)} offset:{f*1024}")
    I(f"s_waitcnt lgkmcnt(0)")
    stamp("A kvf in lds")
    I(f"s_barrier")
    stamp("A B4")
    STI[0] = 18
    I(f"s_lshl_b32 {s(sT1)}, {s(sTI)}, 14")
    I(f"v_add_u32 {v(vT)}, {s(sT1)}, {v(vL16)}")
    for t in range(4):
        I(f"ds_read_b128 {v(vPQ+4*t,4)}, {v(vT)} offset:{t*1024}")
    I(f"s_mov_b32 {s(sT3)}, 4")
    I(f"s_lshl_b32 {s(sT2)}, {s(sTI)}, 13")
    I(f"s_add_u32 {s(sT2)}, {s(sT2)}, {OSA}")
    I(f"s_branch L_final")

def team_b():
    C("================= team B =================")
    L("L_team_b")
    STI[0] = 3
    I(f"s_waitcnt vmcnt(4)")
    I(f"s_barrier")
    stamp("B B3")
    gemm2()
    C("Q tile (own 32 rows) after the partial stores")
    I(f"s_lshl_b32 {s(sSOFF)}, {s(sTI)}, 14")
    dma_rows(rQ, KQ, 16, 14)
    stamp("B q issued")
    I(f"s_waitcnt vmcnt(16)")
    arrive(FLG, 8, 256, "h1b")
    I(f"s_waitcnt vmcnt(0)")
    stamp("B q landed")
    gemm1(False)
    stamp("B gemm1 done")
    I(f"v_mov_b32 {v(vEPS)}, {s(sEPS)}")
    I(f"v_cvt_pk_bf16_f32 {v(vSS)}, {v(vSS)}, 0")
    I(f"v_lshlrev_b32 {v(vNQ)}, 16, {v(vSS)}")
    for mt in range(2):
        pipeline(mt, lambda r: vNQ, vP4 + 8*mt)
    I(f"s_lshl_b32 {s(sT1)}, {s(sTI)}, 14")
    I(f"v_add_u32 {v(vX)}, {s(sT1)}, {v(vL16)}")
    for t in range(4):
        I(f"ds_write_b128 {v(vX)}, {v(vP4+4*t,4)} offset:{t*1024}")
    for i in range(16):
        I(f"v_mov_b32 {v(vPQ+i)}, {v(vP4+i)}")
    I(f"s_waitcnt lgkmcnt(0)")
    stamp("B phiq done")
    I(f"s_barrier")
    stamp("B B4")
    STI[0] = 18
    I(f"s_mov_b32 {s(sT3)}, 0")
    I(f"s_lshl_b32 {s(sT2)}, {s(sTI)}, 14")
    I(f"s_add_u32 {s(sT2)}, {s(sT2)}, 4096")

def final():
    L("L_final")
    C("================= final =================")
    vZF = 48; vKA = 64; vAC = 96; vU = 128; vOP = 144
    vRD, vDEN, vOA, vKAa, vSW, vSR = 160, 161, 163, 164, 165, 166
    vST = 176
    I(f"v_lshrrev_b32 {v(vU)}, 5, {v(vLANE)}")
    I(f"v_lshlrev_b32 {v(vU)}, 3, {v(vU)}")
    I(f"v_add_u32 {v(vU)}, {ZF}, {v(vU)}")
    for t in range(4):
        I(f"ds_read2_b64 {v(vZF+4*t,4)}, {v(vU)} offset0:{4*t} offset1:{4*t+2}")
    I(f"v_bfe_u32 {v(vU+1)}, {v(vLANE)}, 2, 1")
    I(f"v_lshlrev_b32 {v(vU+1)}, 4, {v(vU+1)}")
    I(f"v_bfe_u32 {v(vU+2)}, {v(vLANE)}, 3, 2")
    I(f"v_lshl_add_u32 {v(vU+1)}, {v(vU+2)}, 2, {v(vU+1)}")
    I(f"v_and_b32 {v(vU+2)}, 3, {v(vLANE)}")
    I(f"v_add_u32 {v(vU+1)}, {v(vU+1)}, {v(vU+2)}")
    I(f"v_and_b32 {v(vU+2)}, 32, {v(vLANE)}")
    I(f"v_add_u32 {v(vU+1)}, {v(vU+1)}, {v(vU+2)}")
    I(f"v_lshlrev_b32 {v(vU+1)}, 4, {v(vU+1)}")
    I(f"s_lshl_b32 {s(sT1)}, {s(sT3)}, 12")
    I(f"s_add_u32 {s(sT1)}, {s(sT1)}, {KVF}")
    I(f"v_add_u32 {v(vKAa)}, {s(sT1)}, {v(vU+1)}")
    def aread(d):
        for t in range(4):
            I(f"ds_read_b128 {v(vKA+16*(d%2)+4*t,4)}, {v(vKAa)} offset:{(d*4+t)*1024}")
    aread(0)
    aread(1)
    C("staging write address: row q*256 + ((piece ^ (q&15))*16), piece = 4d + 2h + {0,1}; base = q*256 + ((2h ^ (q&15))*16)")
    I(f"v_and_b32 {v(vU+1)}, 31, {v(vLANE)}")
    I(f"v_and_b32 {v(vU+2)}, 15, {v(vLANE)}")
    I(f"v_lshrrev_b32 {v(vU+3)}, 5, {v(vLANE)}")
    I(f"v_lshlrev_b32 {v(vU+3)}, 1, {v(vU+3)}")
    I(f"v_xor_b32 {v(vU+2)}, {v(vU+2)}, {v(vU+3)}")
    I(f"v_lshlrev_b32 {v(vU+2)}, 4, {v(vU+2)}")
    I(f"v_lshl_add_u32 {v(vSW)}, {v(vU+1)}, 8, {v(vU+2)}")
    I(f"v_add_u32 {v(vSW)}, {s(sT2)}, {v(vSW)}")
    C("staging read address: row (l>>4) + 4i, slot (l&15) ^ (row&15)  -> base for i = 0; row&15 = (l>>4) + 4*(i&3)")
    I(f"v_lshrrev_b32 {v(vU+1)}, 4, {v(vLANE)}")
    I(f"v_and_b32 {v(vU+2)}, 15, {v(vLANE)}")
    I(f"v_xor_b32 {v(vU+2)}, {v(vU+2)}, {v(vU+1)}")
    I(f"v_lshlrev_b32 {v(vU+2)}, 4, {v(vU+2)}")
    I(f"v_lshl_add_u32 {v(vSR)}, {v(vU+1)}, 8, {v(vU+2)}")
    I(f"v_add_u32 {v(vSR)}, {s(sT2)}, {v(vSR)}")
    C("global store offset: (32*i + (l>>4))*512 + dh*256 + (l&15)*16")
    I(f"v_and_b32 {v(vU+2)}, 15, {v(vLANE)}")
    I(f"v_lshlrev_b32 {v(vU+2)}, 4, {v(vU+2)}")
    I(f"v_lshl_add_u32 {v(vOA)}, {v(vU+1)}, 9, {v(vU+2)}")
    I(f"s_lshl_b32 {s(sT1)}, {s(sTI)}, 14")
    I(f"s_lshl_b32 {s(sT2)}, {s(sT3)}, 6")
    I(f"s_add_u32 {s(sT1)}, {s(sT1)}, {s(sT2)}")
    I(f"v_add_u32 {v(vOA)}, {s(sT1)}, {v(vOA)}")
    I(f"s_waitcnt lgkmcnt(8)")
    I(f"v_mov_b32 {v(vDEN)}, 0")
    I(f"v_mov_b32 {v(vDEN+1)}, 0")
    for i in range(16):
        I(f"v_dot2c_f32_bf16 {v(vDEN+(i&1))}, {v(vPQ+i)}, {v(vZF+i)}")
    I(f"v_add_f32 {v(vDEN)}, {v(vDEN)}, {v(vDEN+1)}")
    I(f"v_mov_b32 {v(vDEN+1)}, {v(vDEN)}")
    I(f"v_permlane32_swap_b32 {v(vDEN)}, {v(vDEN+1)}")
    I(f"v_add_f32 {v(vDEN)}, {v(vDEN)}, {v(vDEN+1)}")
    I(f"v_cvt_pk_bf16_f32 {v(vDEN)}, {v(vDEN)}, {v(vDEN)}")
    I(f"v_lshlrev_b32 {v(vDEN)}, 16, {v(vDEN)}")
    I(f"v_add_f32 {v(vDEN)}, {s(sEPS)}, {v(vDEN)}")
    I(f"v_cvt_pk_bf16_f32 {v(vDEN)}, {v(vDEN)}, {v(vDEN)}")
    I(f"v_lshlrev_b32 {v(vDEN)}, 16, {v(vDEN)}")
    I(f"v_rcp_f32 {v(vRD)}, {v(vDEN)}")
    I(f"v_fma_f32 {v(vDEN+1)}, -{v(vDEN)}, {v(vRD)}, 1.0")
    I(f"v_fma_f32 {v(vRD)}, {v(vDEN+1)}, {v(vRD)}, {v(vRD)}")
    if opt.perturb is not None:
        import struct
        I(f"v_mul_f32 {v(vRD)}, 0x{struct.unpack('<I', struct.pack('<f', opt.perturb))[0]:08x}, {v(vRD)}")
    def mm(d):
        for t in range(4):
            acc = vAC + 16*(d % 2)
            c = "0" if t == 0 else v(acc, 16)
            I(f"v_mfma_f32_32x32x16_bf16 {v(acc,16)}, {v(vKA+16*(d%2)+4*t,4)}, {v(vPQ+4*t,4)}, {c}")
    def epi(d):
        acc = vAC + 16*(d % 2); op = vOP + 8*(d % 2)
        for i in range(8): I(f"v_cvt_pk_bf16_f32 {v(op+i)}, {v(acc+2*i)}, {v(acc+2*i+1)}")
        for i in range(8):
            I(f"v_lshlrev_b32 {v(vU+2*i)}, 16, {v(op+i)}")
            I(f"v_and_b32 {v(vU+2*i+1)}, {s(sMASKH)}, {v(op+i)}")
        for i in range(8): I(f"v_pk_mul_f32 {v(vU+2*i,2)}, {v(vU+2*i,2)}, {v(vRD,2)} op_sel_hi:[1,0]")
        for i in range(8): I(f"v_cvt_pk_bf16_f32 {v(op+i)}, {v(vU+2*i)}, {v(vU+2*i+1)}")
        for u in range(2):
            x = 64*d + 16*u
            if x:
                I(f"v_xor_b32 {v(vU)}, {x}, {v(vSW)}")
                I(f"ds_write_b128 {v(vU)}, {v(op+4*u,4)}")
            else:
                I(f"ds_write_b128 {v(vSW)}, {v(op+4*u,4)}")
    I(f"s_waitcnt lgkmcnt(4)")
    mm(0)
    I(f"s_waitcnt lgkmcnt(0)")
    mm(1)
    aread(2)
    epi(0)
    I(f"s_waitcnt lgkmcnt(2)")
    mm(2)
    aread(3)
    epi(1)
    I(f"s_waitcnt lgkmcnt(2)")
    mm(3)
    epi(2)
    epi(3)
    I(f"s_waitcnt lgkmcnt(0)")
    for i in range(8):
        x = 64*(i & 3)
        off = 1024*i
        if x:
            I(f"v_xor_b32 {v(vU+i)}, {x}, {v(vSR)}")
            I(f"ds_read_b128 {v(vST+4*i,4)}, {v(vU+i)} offset:{off}")
        else:
            I(f"ds_read_b128 {v(vST+4*i,4)}, {v(vSR)} offset:{off}")
    I(f"s_mov_b32 {s(sSOFF)}, 0")
    for i in range(8):
        I(f"s_waitcnt lgkmcnt({7-i})")
        if i % 2 == 0 and i: I(f"s_add_u32 {s(sSOFF)}, {s(sSOFF)}, 4096")
        I(f"buffer_store_dwordx4 {v(vST+4*i,4)}, {v(vOA)}, {s(rO,4)}, {s(sSOFF)} offen offset:{2048*(i%2)}")
    stamp("stores issued")
    if opt.stamps:
        I("s_waitcnt vmcnt(0)")
    stamp("stores done")
    stamps_flush("f")

def build():
    common_start()
    I(f"s_cmp_ge_u32 {s(sWAVE)}, 4")
    I(f"s_cbranch_scc1 L_team_b")
    team_a()
    team_b()
    final()
    L("L_end")
    I("s_endpgm")
    body = A.render()
    hdr = f"""; fused RFA linear attention: 256 workgroups (one per CU) x 8 waves
; @launch grid=(256,1,1) block=(512,1,1) lds={LDS_BYTES}
.amdgcn_target "amdgcn-amd-amdhsa--gfx950"
.text
.globl {NAME}
.p2align 8
.type {NAME},@function
{NAME}:
"""
    ftr = f"""
.section .rodata,"a"
.p2align 6
.amdhsa_kernel {NAME}
  .amdhsa_next_free_vgpr 256
  .amdhsa_next_free_sgpr 102
  .amdhsa_accum_offset 256
  .amdhsa_group_segment_fixed_size 0
  .amdhsa_kernarg_size 56
  .amdhsa_user_sgpr_count 2
  .amdhsa_user_sgpr_kernarg_segment_ptr 1
  .amdhsa_system_sgpr_workgroup_id_x 1
  .amdhsa_float_denorm_mode_32 3
.end_amdhsa_kernel
"""
    return hdr + body + ftr

if __name__ == "__main__":
    out = sys.argv[1]
    for a in sys.argv[2:]:
        if a == "stamps": opt.stamps = True
        elif a == "nont": opt.nt = False
        elif a.startswith("dbgwg="): opt.dbgwg = int(a.split("=")[1])
        elif a.startswith("dbgwave="): opt.dbgwave = int(a.split("=")[1])
        elif a.startswith("perturb="): opt.perturb = float(a.split("=")[1])
    txt = build()
    open(out, "w").write(txt)
    if opt.stamps: json.dump(STN, open(out + ".stamps.json", "w"))
    print("wrote", out, "nops inserted:", A.nops, "lines", txt.count("\n"))
```

```python
import sys, json
from asmlib import *

NAME = "standalone__linear_kernel_rfa__prompt_kernel"
class O: pass
opt = O()
opt.spin_limit = 300000
opt.stamps = False
opt.nt = True
opt.fast = False
opt.dbgwg = None
opt.dbgwave = 0
opt.kfirst = True
opt.qlate = True
opt.fstamps = False
opt.ost = ''
opt.forceslow = False
opt.dbgmode = False
opt.perturb = None

KQ = 0
VR = 65536
WR = 131072
PHI = WR
ZB = WR + 16384
ZF = WR + 17408
FLG = WR + 17664
KVF = VR
OSA = VR + 32768
LDS_BYTES = 163840
WS_PART = 0
WS_Z = 16 << 20
WS_F = 17 << 20
WS_FL = 18 << 20
FL_STRIDE = 4352
WS_ST = 20 << 20

sQp, sKp, sVp, sWp, sOp, sDp, sSp = 4, 6, 8, 10, 12, 14, 16
sHEAD, sCH = 18, 19
rK, rV, rQ, rW, rO, rP, rZ, rF, rL = 20, 24, 28, 32, 36, 40, 44, 48, 52
sWAVE, sTI = 56, 57
sT0, sT1, sT2, sT3 = 58, 59, 60, 61
sNONCE = 62
sFAST = 63
sC025L, sC025H, sLOG2E, sC0125, sMASKH, sONES = 64, 65, 66, 67, 68, 69
sSPIN, sSOFF, sEPS, sM132 = 70, 71, 72, 73
sEPA = 96
sXCC, sPRES = 94, 95
sPW = 40

A = Asm()
I, L, C = A.I, A.L, A.C
STI = [0]; STN = []
def stamp(name=""):
    if not opt.stamps: return
    C("stamp %s" % name)
    I("s_memrealtime s[98:99]")
    I("s_waitcnt lgkmcnt(0)")
    I("s_mov_b32 s%d, s98" % (74 + STI[0]))
    STN.append((STI[0], name)); STI[0] += 1
def stamps_flush(tag):
    if not opt.stamps: return
    I("s_and_b32 s97, s56, 3"); I("s_cmp_eq_u32 s97, 0"); I("s_cbranch_scc0 L_nost_%s" % tag)
    I("s_lshr_b32 s97, s56, 2"); I("s_lshl_b32 s96, s2, 1"); I("s_add_u32 s96, s96, s97"); I("s_lshl_b32 s96, s96, 7")
    I("s_add_u32 s96, s96, %d" % WS_ST)
    I("s_add_u32 s40, s16, s96"); I("s_addc_u32 s41, s17, 0"); I("s_and_b32 s41, s41, 0xffff"); I("s_mov_b32 s42, 128"); I("s_mov_b32 s43, 0x20000")
    I("s_mov_b64 exec, 1"); I("v_mov_b32 v1, 0")
    for i in range(22):
        I("v_mov_b32 v2, s%d" % (74 + i)); I("buffer_store_dword v2, v1, s[40:43], 0 offen offset:%d" % (4 * i))
    I("s_waitcnt vmcnt(0)")
    if opt.dbgwg is not None:
        I("s_cmp_eq_u32 s2, %d" % opt.dbgwg); I("s_cbranch_scc0 L_nodbg")
        I("s_cmp_eq_u32 s56, %d" % opt.dbgwave); I("s_cbranch_scc0 L_nodbg")
        I("s_mov_b32 s40, s14"); I("s_and_b32 s41, s15, 0xffff"); I("s_mov_b32 s42, 256")
        idx = [i for i in range(1, 14)] + [18, 19]
        for j, i in enumerate(idx):
            I("s_sub_u32 s97, s%d, s74" % (74 + i)); I("v_mov_b32 v2, s97"); I("buffer_store_dword v2, v1, s[40:43], 0 offen offset:%d" % (4 * j))
        I("s_waitcnt vmcnt(0)")
        L("L_nodbg")
    I("s_mov_b64 exec, -1")
    L("L_nost_%s" % tag)

def srd(r, ptr, off_s, size):
    if off_s is None:
        I(f"s_mov_b32 {s(r)}, {s(ptr)}")
        I(f"s_and_b32 {s(r+1)}, {s(ptr+1)}, 0xffff")
    else:
        I(f"s_add_u32 {s(r)}, {s(ptr)}, {s(off_s)}")
        I(f"s_addc_u32 {s(r+1)}, {s(ptr+1)}, 0")
        I(f"s_and_b32 {s(r+1)}, {s(r+1)}, 0xffff")
    I(f"s_mov_b32 {s(r+2)}, {size}")
    I(f"s_mov_b32 {s(r+3)}, 0x20000")

NT = lambda: " nt" if opt.nt else ""
vLANE = 0
vA = 2
vD = 10
vL16 = 11
vT = 12
vW = 128
def W(mt, t): return vW + mt * 64 + t * 4
vKF = 32
vA1 = 96
vP4 = 12
vNQ = 32
vNK = 48
vONE = 52
vSS = 28
vP1 = 56
vTT = 60
vEPS = 68
vZP = 69
vX = 72

def prologue():
    I(f"s_cmp_ge_u32 s2, 256")
    I(f"s_cbranch_scc1 L_end")
    I(f"s_load_dwordx4 s[4:7], s[0:1], 0")
    I(f"s_load_dwordx4 s[8:11], s[0:1], 16")
    I(f"s_load_dwordx4 s[12:15], s[0:1], 32")
    I(f"s_load_dwordx2 s[16:17], s[0:1], 48")
    I(f"v_lshrrev_b32 v1, 6, v0")
    I(f"v_and_b32 {v(vLANE)}, 63, v0")
    I(f"v_readfirstlane_b32 {s(sWAVE)}, v1")
    I(f"s_and_b32 {s(sT0)}, s2, 7")
    I(f"s_lshr_b32 {s(sT1)}, s2, 3")
    I(f"s_lshr_b32 {s(sHEAD)}, {s(sT1)}, 4")
    I(f"s_lshl_b32 {s(sT0)}, {s(sT0)}, 1")
    I(f"s_add_u32 {s(sHEAD)}, {s(sHEAD)}, {s(sT0)}")
    I(f"s_and_b32 {s(sCH)}, {s(sT1)}, 15")
    I(f"s_and_b32 {s(sTI)}, {s(sWAVE)}, 3")
    I(f"v_lshrrev_b32 {v(vT)}, 5, {v(vLANE)}")
    I(f"v_and_b32 {v(vT+1)}, 31, {v(vLANE)}")
    I(f"v_xor_b32 {v(vT+1)}, {v(vT+1)}, {v(vT)}")
    I(f"v_lshlrev_b32 {v(vT+1)}, 4, {v(vT+1)}")
    I(f"v_lshl_add_u32 {v(vD)}, {v(vT)}, 9, {v(vT+1)}")
    I(f"v_lshlrev_b32 {v(vL16)}, 4, {v(vLANE)}")
    I(f"s_lshl_b32 {s(sT0)}, {s(sHEAD)}, 20")
    I(f"s_lshl_b32 {s(sT1)}, {s(sCH)}, 16")
    I(f"s_add_u32 {s(sT0)}, {s(sT0)}, {s(sT1)}")
    I(f"s_waitcnt lgkmcnt(0)")
    srd(rW, sWp, None, 32768)
    srd(rK, sKp, sT0, 65536)
    srd(rV, sVp, sT0, 65536)

def dma_omega():
    C("omega -> LDS W region, 4 instructions per wave, rows 8w..8w+7")
    I(f"s_and_b32 {s(sT1)}, {s(sWAVE)}, 1")
    I(f"s_lshl_b32 {s(sT1)}, {s(sT1)}, 7")
    I(f"s_lshl_b32 {s(sSOFF)}, {s(sWAVE)}, 12")
    I(f"s_add_u32 m0, {s(sSOFF)}, {WR}")
    for i in range(4):
        I(f"s_add_u32 {s(sT2)}, {s(sT1)}, {32*i}")
        I(f"v_xor_b32 {v(vT)}, {s(sT2)}, {v(vD)}")
        I(f"buffer_load_dwordx4 {v(vT)}, {s(rW,4)}, {s(sSOFF)} offen offset:{1024*i} lds")

def dma_rows(r, base_lds, n, shift):
    for i in range(n):
        if i % 4 == 0:
            if i: I(f"s_add_u32 {s(sSOFF)}, {s(sSOFF)}, 4096")
            I(f"s_add_u32 m0, {s(sSOFF)}, {base_lds}")
        if i & 7:
            I(f"v_xor_b32 {v(vT)}, {32*(i&7)}, {v(vD)}")
            I(f"buffer_load_dwordx4 {v(vT)}, {s(r,4)}, {s(sSOFF)} offen offset:{1024*(i%4)}{NT()} lds")
        else:
            I(f"buffer_load_dwordx4 {v(vD)}, {s(r,4)}, {s(sSOFF)} offen offset:{1024*(i%4)}{NT()} lds")

def dma_k():
    C("K rows 16w..16w+15 (8 instructions)")
    I(f"s_lshl_b32 {s(sSOFF)}, {s(sWAVE)}, 13")
    dma_rows(rK, KQ, 8, 13)

def dma_v():
    C("V slice a = w&3 (128 B columns): team B loads rows 0..63, team A rows 64..127 (8 instructions of 8 rows)")
    I(f"v_lshrrev_b32 {v(vT)}, 4, {v(vLANE)}")
    I(f"v_and_b32 {v(vT)}, 1, {v(vT)}")
    I(f"v_lshlrev_b32 {v(vT)}, 2, {v(vT)}")
    I(f"v_and_b32 {v(vT+1)}, 7, {v(vLANE)}")
    I(f"v_xor_b32 {v(vT)}, {v(vT)}, {v(vT+1)}")
    I(f"v_lshlrev_b32 {v(vT)}, 4, {v(vT)}")
    I(f"v_lshrrev_b32 {v(vT+1)}, 3, {v(vLANE)}")
    I(f"v_lshl_add_u32 {v(vT)}, {v(vT+1)}, 9, {v(vT)}")
    I(f"s_lshr_b32 {s(sT2)}, {s(sWAVE)}, 2")
    I(f"s_xor_b32 {s(sT2)}, {s(sT2)}, 1")
    I(f"s_lshl_b32 {s(sT1)}, {s(sTI)}, 7")
    I(f"s_lshl_b32 {s(sSOFF)}, {s(sT2)}, 15")
    I(f"s_add_u32 {s(sSOFF)}, {s(sSOFF)}, {s(sT1)}")
    I(f"s_lshl_b32 {s(sT1)}, {s(sTI)}, 14")
    I(f"s_lshl_b32 {s(sT2)}, {s(sT2)}, 13")
    I(f"s_add_u32 {s(sT1)}, {s(sT1)}, {s(sT2)}")
    I(f"s_add_u32 {s(sT1)}, {s(sT1)}, {VR}")
    for i in range(8):
        I(f"s_add_u32 m0, {s(sT1)}, {1024*i}")
        if i: I(f"s_add_u32 {s(sSOFF)}, {s(sSOFF)}, 4096")
        I(f"buffer_load_dwordx4 {v(vT)}, {s(rV,4)}, {s(sSOFF)} offen{NT()} lds")

def tile_addrs():
    I(f"v_and_b32 {v(vT)}, 31, {v(vLANE)}")
    I(f"v_lshrrev_b32 {v(vT+1)}, 5, {v(vLANE)}")
    I(f"v_and_b32 {v(vT+2)}, 15, {v(vLANE)}")
    I(f"v_xor_b32 {v(vT+2)}, {v(vT+2)}, {v(vT+1)}")
    I(f"v_lshlrev_b32 {v(vT+2)}, 4, {v(vT+2)}")
    I(f"v_lshl_add_u32 {v(vT+2)}, {v(vT)}, 9, {v(vT+2)}")
    I(f"v_add_u32 {v(vA)}, {WR}, {v(vT+2)}")
    for x in range(1, 8):
        I(f"v_xor_b32 {v(vA+x)}, {32*x}, {v(vA)}")

def read_omega():
    for t in range(16):
        for mt in range(2):
            I(f"ds_read_b128 {v(W(mt,t),4)}, {v(vA+(t&7))} offset:{(t>>3)*256 + mt*16384}")
    I(f"s_lshl_b32 {s(sT1)}, {s(sTI)}, 14")
    I(f"s_sub_u32 {s(sT1)}, {s(sT1)}, {WR - KQ}")
    for x in range(8):
        I(f"v_add_u32 {v(vA+x)}, {s(sT1)}, {v(vA+x)}")

def setup_rest():
    I(f"s_mov_b32 {s(sC025L)}, 0x00003e80")
    I(f"s_mov_b32 {s(sC025H)}, 0x3e800000")
    I(f"s_mov_b32 {s(sLOG2E)}, 0x3fb8aa3b")
    I(f"s_mov_b32 {s(sC0125)}, 0x3e000000")
    I(f"s_mov_b32 {s(sMASKH)}, 0xffff0000")
    I(f"s_mov_b32 {s(sONES)}, 0x3f803f80")
    I(f"s_mov_b32 {s(sEPS)}, 0x358637bd")
    I(f"s_mov_b32 {s(sM132)}, 0xbd000000")
    I(f"s_lshl_b32 {s(sT0)}, {s(sHEAD)}, 19")
    srd(rP, sSp, sT0, 16*32768)
    I(f"s_lshl_b32 {s(sT0)}, {s(sHEAD)}, 12")
    I(f"s_add_u32 {s(sT0)}, {s(sT0)}, {WS_Z}")
    srd(rZ, sSp, sT0, 4096)
    I(f"s_lshl_b32 {s(sT0)}, {s(sHEAD)}, 15")
    I(f"s_add_u32 {s(sT0)}, {s(sT0)}, {WS_F}")
    srd(rF, sSp, sT0, 32768)
    I(f"s_mul_i32 {s(sT0)}, {s(sHEAD)}, {FL_STRIDE}")
    I(f"s_add_u32 {s(sT0)}, {s(sT0)}, {WS_FL}")
    srd(rL, sSp, sT0, 512)
    I(f"s_lshl_b32 {s(sT0)}, {s(sHEAD)}, 20")
    I(f"s_lshl_b32 {s(sT1)}, {s(sCH)}, 16")
    I(f"s_add_u32 {s(sT0)}, {s(sT0)}, {s(sT1)}")
    srd(rQ, sQp, sT0, 65536)
    srd(rO, sOp, sT0, 65536)

def gemm1(a_is_tile):
    for t in range(16):
        I(f"ds_read_b128 {v(vKF+4*t,4)}, {v(vA+(t&7))} offset:{(t>>3)*256}")
    for i in range(4): I(f"v_mov_b32 {v(vSS+i)}, 0")
    if a_is_tile:
        I(f"s_waitcnt lgkmcnt(0)")
        I(f"s_barrier")
    for t in range(16):
        if t % 2 == 0 and not a_is_tile: I(f"s_waitcnt lgkmcnt({max(0, 14 - t)})")
        for i in range(4):
            I(f"v_dot2c_f32_bf16 {v(vSS+i)}, {v(vKF+4*t+i)}, {v(vKF+4*t+i)}")
    for t in range(16):
        f = vKF + 4*t
        for mt in range(2):
            c = "0" if t == 0 else v(vA1 + 16*mt, 16)
            if a_is_tile: I(f"v_mfma_f32_32x32x16_bf16 {v(vA1+16*mt,16)}, {v(f,4)}, {v(W(mt,t),4)}, {c}")
            else:         I(f"v_mfma_f32_32x32x16_bf16 {v(vA1+16*mt,16)}, {v(W(mt,t),4)}, {v(f,4)}, {c}")
        if t == 2:
            I(f"v_add_f32 {v(vSS)}, {v(vSS)}, {v(vSS+1)}")
            I(f"v_add_f32 {v(vSS+2)}, {v(vSS+2)}, {v(vSS+3)}")
        if t == 3:
            I(f"v_add_f32 {v(vSS)}, {v(vSS)}, {v(vSS+2)}")
        if t == 4:
            I(f"v_mov_b32 {v(vSS+1)}, {v(vSS)}")
        if t == 5:
            I(f"v_permlane32_swap_b32 {v(vSS)}, {v(vSS+1)}")
        if t == 6:
            I(f"v_add_f32 {v(vSS)}, {v(vSS)}, {v(vSS+1)}")
            I(f"v_mul_f32 {v(vSS)}, {s(sM132)}, {v(vSS)}")

def pipeline(mt, nq_of, p4base):
    for g in range(2):
        prs = [4*g + i for i in range(4)]
        acc = lambda r: vA1 + 16*mt + r
        for i, p in enumerate(prs): I(f"v_cvt_pk_bf16_f32 {v(vP1+i)}, {v(acc(2*p))}, {v(acc(2*p+1))}")
        for i, p in enumerate(prs):
            I(f"v_dot2_f32_bf16 {v(vTT+2*i)}, {v(vP1+i)}, {s(sC025L)}, {v(nq_of(2*p))}")
            I(f"v_dot2_f32_bf16 {v(vTT+2*i+1)}, {v(vP1+i)}, {s(sC025H)}, {v(nq_of(2*p+1))}")
        for i, p in enumerate(prs): I(f"v_cvt_pk_bf16_f32 {v(vP1+i)}, {v(vTT+2*i)}, {v(vTT+2*i+1)}")
        for i, p in enumerate(prs):
            I(f"v_lshlrev_b32 {v(vTT+2*i)}, 16, {v(vP1+i)}")
            I(f"v_and_b32 {v(vTT+2*i+1)}, {s(sMASKH)}, {v(vP1+i)}")
        for i in range(8): I(f"v_mul_f32 {v(vTT+i)}, {s(sLOG2E)}, {v(vTT+i)}")
        for i in range(8): I(f"v_exp_f32 {v(vTT+i)}, {v(vTT+i)}")
        for i in range(8): I(f"v_fma_f32 {v(vTT+i)}, {v(vTT+i)}, {s(sC0125)}, {v(vEPS)}")
        for i, p in enumerate(prs): I(f"v_cvt_pk_bf16_f32 {v(p4base+p)}, {v(vTT+2*i)}, {v(vTT+2*i+1)}")

POL = [" sc1"]
def pol(): return POL[0]
DUAL = [0]
def dual(fn):
    if not opt.fast:
        POL[0] = " sc1"; fn(); return
    DUAL[0] += 1; n = DUAL[0]
    I(f"s_cmp_lg_u32 {s(sFAST)}, 0")
    I(f"s_cbranch_scc1 L_fast{n}")
    POL[0] = " sc1"; fn()
    I(f"s_branch L_join{n}")
    L(f"L_fast{n}")
    POL[0] = ""; fn()
    L(f"L_join{n}")
    POL[0] = " sc1"

def arrive(lds_cnt, total, flag_off, tag):
    I(f"s_mov_b64 exec, 1")
    I(f"v_mov_b32 {v(vT)}, {lds_cnt}")
    I(f"v_mov_b32 {v(vT+1)}, 1")
    I(f"ds_add_rtn_u32 {v(vT+2)}, {v(vT)}, {v(vT+1)}")
    I(f"s_waitcnt lgkmcnt(0)")
    I(f"v_readfirstlane_b32 {s(sT1)}, {v(vT+2)}")
    I(f"s_cmp_eq_u32 {s(sT1)}, {total-1}")
    I(f"s_cbranch_scc0 L_nosig_{tag}")
    I(f"s_lshl_b32 {s(sT1)}, {s(sCH)}, 2")
    I(f"v_mov_b32 {v(vT)}, {s(sT1)}")
    I(f"v_mov_b32 {v(vT+1)}, {s(sNONCE)}")
    dual(lambda: I(f"buffer_store_dword {v(vT+1)}, {v(vT)}, {s(rL,4)}, 0 offen offset:{flag_off}{pol()}"))
    L(f"L_nosig_{tag}")
    I(f"s_mov_b64 exec, -1")

def wait_hop(flag_off, lds_flag, tag):
    I(f"s_cmp_eq_u32 {s(sTI)}, 0")
    I(f"s_cbranch_scc0 L_follow_{tag}")
    I(f"s_mov_b32 {s(sSPIN)}, 0")
    I(f"v_and_b32 {v(vT)}, 15, {v(vLANE)}")
    I(f"v_lshlrev_b32 {v(vT)}, 2, {v(vT)}")
    L(f"L_spin_{tag}")
    I(f"buffer_load_dword {v(vT+1)}, {v(vT)}, {s(rL,4)}, 0 offen offset:{flag_off} sc1")
    I(f"s_waitcnt vmcnt(0)")
    I(f"v_cmp_ne_u32 vcc, {s(sNONCE)}, {v(vT+1)}")
    I(f"s_cbranch_vccz L_spun_{tag}")
    I(f"s_sleep 1")
    I(f"s_add_u32 {s(sSPIN)}, {s(sSPIN)}, 1")
    I(f"s_cmp_lt_u32 {s(sSPIN)}, {opt.spin_limit}")
    I(f"s_cbranch_scc1 L_spin_{tag}")
    L(f"L_spun_{tag}")
    I(f"v_mov_b32 {v(vT)}, {lds_flag}")
    I(f"v_mov_b32 {v(vT+1)}, 1")
    I(f"ds_write_b32 {v(vT)}, {v(vT+1)}")
    I(f"s_branch L_hop_{tag}")
    L(f"L_follow_{tag}")
    I(f"s_mov_b32 {s(sSPIN)}, 0")
    I(f"v_mov_b32 {v(vT)}, {lds_flag}")
    L(f"L_lspin_{tag}")
    I(f"ds_read_b32 {v(vT+1)}, {v(vT)}")
    I(f"s_waitcnt lgkmcnt(0)")
    I(f"v_readfirstlane_b32 {s(sT1)}, {v(vT+1)}")
    I(f"s_cmp_lg_u32 {s(sT1)}, 0")
    I(f"s_cbranch_scc1 L_hop_{tag}")
    I(f"s_add_u32 {s(sSPIN)}, {s(sSPIN)}, 1")
    I(f"s_cmp_lt_u32 {s(sSPIN)}, {opt.spin_limit*16}")
    I(f"s_cbranch_scc1 L_lspin_{tag}")
    L(f"L_hop_{tag}")

def lds_spin(addr_expr_s, target, tag):
    I(f"s_mov_b32 {s(sSPIN)}, 0")
    I(f"v_mov_b32 {v(vX+4)}, {addr_expr_s}")
    L(f"L_ls_{tag}")
    I(f"ds_read_b32 {v(vX+5)}, {v(vX+4)}")
    I(f"s_waitcnt lgkmcnt(0)")
    I(f"v_readfirstlane_b32 {s(sT1)}, {v(vX+5)}")
    I(f"s_cmp_ge_u32 {s(sT1)}, {target}")
    I(f"s_cbranch_scc1 L_lsd_{tag}")
    I(f"s_add_u32 {s(sSPIN)}, {s(sSPIN)}, 1")
    I(f"s_cmp_lt_u32 {s(sSPIN)}, {opt.spin_limit*16}")
    I(f"s_cbranch_scc1 L_ls_{tag}")
    L(f"L_lsd_{tag}")

def lds_add1(addr_expr_s):
    I(f"s_mov_b64 exec, 1")
    I(f"v_mov_b32 {v(vX+4)}, {addr_expr_s}")
    I(f"v_mov_b32 {v(vX+5)}, 1")
    I(f"ds_add_u32 {v(vX+4)}, {v(vX+5)}")
    I(f"s_mov_b64 exec, -1")

vPQ = 32

def common_start():
    prologue()
    stamp("start")
    dma_omega()
    dma_k()
    C("epoch word of this head (scalar load; waited for before B1)")
    I(f"s_mul_i32 {s(sT0)}, {s(sHEAD)}, {FL_STRIDE}")
    I(f"s_add_u32 {s(sT0)}, {s(sT0)}, {WS_FL}")
    I(f"s_add_u32 {s(sEPA)}, {s(sSp)}, {s(sT0)}")
    I(f"s_addc_u32 {s(sEPA+1)}, {s(sSp+1)}, 0")
    I(f"s_load_dword {s(sNONCE)}, {s(sEPA,2)}, 0")
    tile_addrs()
    setup_rest()
    stamp("K issued")
    I(f"s_waitcnt vmcnt(8) lgkmcnt(0)")
    I(f"s_add_u32 {s(sNONCE)}, {s(sNONCE)}, 1")
    if opt.fast:
        C("presence word: nonce*16 + XCC id (wave 0)")
        I(f"s_getreg_b32 {s(sXCC)}, hwreg(HW_REG_XCC_ID, 0, 4)")
        I(f"s_lshl_b32 {s(sPRES)}, {s(sNONCE)}, 4")
        I(f"s_add_u32 {s(sPRES)}, {s(sPRES)}, {s(sXCC)}")
        I(f"s_cmp_eq_u32 {s(sWAVE)}, 0")
        I(f"s_cbranch_scc0 L_nopres")
        I(f"s_mov_b64 exec, 1")
        I(f"s_lshl_b32 {s(sT1)}, {s(sCH)}, 2")
        I(f"v_mov_b32 {v(vT)}, {s(sT1)}")
        I(f"v_mov_b32 {v(vT+1)}, {s(sPRES)}")
        I(f"buffer_store_dword {v(vT+1)}, {v(vT)}, {s(rL,4)}, 0 offen offset:128 sc1")
        I(f"s_mov_b64 exec, -1")
        L("L_nopres")
    I(f"s_barrier")
    read_omega()
    dma_v()
    I(f"s_waitcnt vmcnt(8) lgkmcnt(0)")
    I(f"s_barrier")
    stamp("B1 K landed")

def gemm2():
    vPH = 128; vAC = 48; vVB = 112; vVA = 28; vPA = 30
    I(f"v_add_u32 {v(vPA)}, {PHI}, {v(vL16)}")
    for f in range(16):
        I(f"ds_read_b128 {v(vPH+4*f,4)}, {v(vPA)} offset:{1024*f}")
    I(f"v_lshrrev_b32 {v(vT)}, 5, {v(vLANE)}")
    I(f"v_lshlrev_b32 {v(vT)}, 2, {v(vT)}")
    I(f"v_bfe_u32 {v(vT+1)}, {v(vLANE)}, 2, 2")
    I(f"v_add_u32 {v(vT)}, {v(vT)}, {v(vT+1)}")
    I(f"v_lshlrev_b32 {v(vT)}, 7, {v(vT)}")
    I(f"v_lshrrev_b32 {v(vT+1)}, 1, {v(vT+1)}")
    I(f"v_lshl_add_u32 {v(vT)}, {v(vT+1)}, 6, {v(vT)}")
    I(f"v_bfe_u32 {v(vT+1)}, {v(vLANE)}, 4, 1")
    I(f"v_lshl_add_u32 {v(vT)}, {v(vT+1)}, 5, {v(vT)}")
    I(f"v_and_b32 {v(vT+1)}, 3, {v(vLANE)}")
    I(f"v_lshl_add_u32 {v(vT)}, {v(vT+1)}, 3, {v(vT)}")
    I(f"s_lshl_b32 {s(sT1)}, {s(sTI)}, 14")
    I(f"s_add_u32 {s(sT1)}, {s(sT1)}, {VR}")
    I(f"v_add_u32 {v(vVA)}, {s(sT1)}, {v(vT)}")
    I(f"v_xor_b32 {v(vVA+1)}, 64, {v(vVA)}")
    def vread(kk):
        b = vVB + 8*(kk % 2)
        for dl in range(2):
            for ap in range(2):
                I(f"ds_read_b64_tr_b16 {v(b+4*dl+2*ap,2)}, {v(vVA+dl)} offset:{kk*2048 + ap*1024}")
    def mm(kk, first):
        b = vVB + 8*(kk % 2)
        for dl in range(2):
            for mt in range(2):
                acc = vAC + (dl*2 + mt)*16
                c = "0" if first else v(acc, 16)
                I(f"v_mfma_f32_32x32x16_bf16 {v(acc,16)}, {v(vPH+4*(kk*2+mt),4)}, {v(b+4*dl,4)}, {c}")
    C("k steps 0..3: rows loaded by the partner wave of team B")
    I(f"s_lshl_b32 {s(sT2)}, {s(sTI)}, 2")
    I(f"s_add_u32 {s(sT2)}, {s(sT2)}, {FLG + 32}")
    lds_spin(s(sT2), 1, "v1")
    stamp("A V1 ready")
    order = list(range(8))
    vread(0)
    for n, kk in enumerate(order):
        if n + 1 < 8:
            kn = order[n + 1]
            if kn >= 4: I(f"s_waitcnt vmcnt({6 - 2*(kn-4)})")
            vread(kn)
            I(f"s_waitcnt lgkmcnt(4)")
        else:
            I(f"s_waitcnt lgkmcnt(0)")
        mm(kk, n == 0)
    stamp("gemm2 done")
    C("partial kv: bf16 A-fragments (dt = 2a+dl, t = 0..3)")
    vPK = 128
    for j in range(4):
        for i in range(8):
            I(f"v_cvt_pk_bf16_f32 {v(vPK+8*j+i)}, {v(vAC+16*j+2*i)}, {v(vAC+16*j+2*i+1)}")
    I(f"s_lshl_b32 {s(sT1)}, {s(sTI)}, 13")
    I(f"v_add_u32 {v(vT)}, {s(sT1)}, {v(vL16)}")
    I(f"s_lshl_b32 {s(sSOFF)}, {s(sCH)}, 15")
    I(f"s_add_u32 {s(sT2)}, {s(sSOFF)}, 4096")
    if opt.fast:
        C("mode word written by wave B0")
        I(f"v_mov_b32 {v(vT+1)}, {FLG + 20}")
        I(f"ds_read_b32 {v(vT+2)}, {v(vT+1)}")
        I(f"s_waitcnt lgkmcnt(0)")
        I(f"v_readfirstlane_b32 {s(sFAST)}, {v(vT+2)}")
    def st():
        for f in range(8):
            so = s(sSOFF) if f < 4 else s(sT2)
            I(f"buffer_store_dwordx4 {v(vPK+4*f,4)}, {v(vT)}, {s(rP,4)}, {so} offen offset:{(f%4)*1024}{pol()}")
    dual(st)

def team_a():
    C("================= team A =================")
    I(f"v_mov_b32 {v(vT)}, {FLG}")
    for i in range(4): I(f"v_mov_b32 {v(vT+2+i)}, 0")
    I(f"ds_write_b128 {v(vT)}, {v(vT+2,4)}")
    I(f"ds_write_b128 {v(vT)}, {v(vT+2,4)} offset:16")
    I(f"ds_write_b128 {v(vT)}, {v(vT+2,4)} offset:32")
    gemm1(True)
    stamp("A gemm1 done")
    I(f"v_lshrrev_b32 {v(vSS+1)}, 5, {v(vLANE)}")
    I(f"v_cmp_eq_u32 vcc, 0, {v(vSS+1)}")
    I(f"v_mov_b32 {v(vEPS)}, {s(sEPS)}")
    I(f"v_mov_b32 {v(vONE)}, 0x3f80")
    for i in range(1, 4):
        I(f"v_mov_b32 {v(vONE+i)}, 0")
        I(f"v_mov_b32 {v(vNK+i)}, 0")
    I(f"v_cndmask_b32 {v(vSS)}, 0, {v(vSS)}, vcc")
    I(f"v_cvt_pk_bf16_f32 {v(vNK)}, {v(vSS)}, 0")
    I(f"v_mfma_f32_32x32x16_bf16 {v(vNQ,16)}, {v(vNK,4)}, {v(vONE,4)}, 0")
    I(f"v_lshl_add_u32 {v(vX)}, {s(sTI)}, 12, {v(vL16)}")
    I(f"v_add_u32 {v(vX)}, {PHI}, {v(vX)}")
    for mt in range(2):
        pipeline(mt, lambda r: vNQ + r, vP4 + 8*mt)
        for u in range(2):
            I(f"ds_write_b128 {v(vX)}, {v(vP4+8*mt+4*u,4)} offset:{u*2048 + mt*1024}")
        I(f"v_mov_b32 {v(vZP+mt)}, 0")
        for i in range(8):
            I(f"v_dot2c_f32_bf16 {v(vZP+mt)}, {s(sONES)}, {v(vP4+8*mt+i)}")
    for mt in range(2): I(f"v_mov_b32 {v(vX+1+mt)}, {v(vZP+mt)}")
    for mt in range(2): I(f"v_permlane32_swap_b32 {v(vZP+mt)}, {v(vX+1+mt)}")
    for mt in range(2): I(f"v_add_f32 {v(vZP+mt)}, {v(vZP+mt)}, {v(vX+1+mt)}")
    I(f"v_and_b32 {v(vX+1)}, 31, {v(vLANE)}")
    I(f"v_lshlrev_b32 {v(vX+1)}, 2, {v(vX+1)}")
    I(f"s_lshl_b32 {s(sT1)}, {s(sTI)}, 8")
    I(f"s_add_u32 {s(sT1)}, {s(sT1)}, {ZB}")
    I(f"v_add_u32 {v(vX+1)}, {s(sT1)}, {v(vX+1)}")
    I(f"ds_write_b32 {v(vX+1)}, {v(vZP)}")
    I(f"ds_write_b32 {v(vX+1)}, {v(vZP+1)} offset:128")
    I(f"s_waitcnt lgkmcnt(0)")
    stamp("A phi written")
    lds_add1(str(FLG + 16))
    lds_spin(str(FLG + 16), 4, "phi")
    stamp("A phi all")
    gemm2()
    C("z partial of the workgroup (wave 0)")
    I(f"s_cmp_eq_u32 {s(sTI)}, 0")
    I(f"s_cbranch_scc0 L_noz")
    I(f"v_lshlrev_b32 {v(vT+1)}, 2, {v(vLANE)}")
    I(f"v_add_u32 {v(vT+2)}, {ZB}, {v(vT+1)}")
    for a in range(4): I(f"ds_read_b32 {v(vT+4+a)}, {v(vT+2)} offset:{256*a}")
    I(f"s_waitcnt lgkmcnt(0)")
    I(f"v_add_f32 {v(vT+4)}, {v(vT+4)}, {v(vT+5)}")
    I(f"v_add_f32 {v(vT+6)}, {v(vT+6)}, {v(vT+7)}")
    I(f"v_add_f32 {v(vT+4)}, {v(vT+4)}, {v(vT+6)}")
    I(f"s_lshl_b32 {s(sSOFF)}, {s(sCH)}, 8")
    dual(lambda: I(f"buffer_store_dword {v(vT+4)}, {v(vT+1)}, {s(rZ,4)}, {s(sSOFF)} offen{pol()}"))
    L("L_noz")
    I(f"s_waitcnt vmcnt(0)")
    stamp("A part drained")
    arrive(FLG, 4, 256, "h1a")
    wait_hop(256, FLG + 4, "h1")
    stamp("A hop1")
    C("reduce fragment f = 2*chunk + (a>>1), half a&1, over the 16 partials")
    vR = 128
    I(f"s_lshl_b32 {s(sT1)}, {s(sCH)}, 11")
    I(f"s_lshr_b32 {s(sT2)}, {s(sTI)}, 1")
    I(f"s_lshl_b32 {s(sT2)}, {s(sT2)}, 10")
    I(f"s_add_u32 {s(sT1)}, {s(sT1)}, {s(sT2)}")
    I(f"s_and_b32 {s(sT2)}, {s(sTI)}, 1")
    I(f"s_lshl_b32 {s(sT2)}, {s(sT2)}, 3")
    I(f"s_add_u32 {s(sT3)}, {s(sT1)}, {s(sT2)}")
    I(f"v_add_u32 {v(vX)}, {s(sT3)}, {v(vL16)}")
    I(f"s_mov_b32 {s(sSOFF)}, 0")
    for c in range(16):
        I(f"buffer_load_dwordx2 {v(vR+2*c,2)}, {v(vX)}, {s(rP,4)}, {s(sSOFF)} offen sc1")
        if c < 15: I(f"s_add_u32 {s(sSOFF)}, {s(sSOFF)}, 32768")
    vZ = 192
    I(f"s_cmp_eq_u32 {s(sTI)}, 3")
    I(f"s_cbranch_scc0 L_noz2")
    I(f"v_lshlrev_b32 {v(vT+1)}, 2, {v(vLANE)}")
    I(f"s_mov_b32 {s(sSOFF)}, 0")
    for c in range(16):
        I(f"buffer_load_dword {v(vZ+c)}, {v(vT+1)}, {s(rZ,4)}, {s(sSOFF)} offen sc1")
        if c < 15: I(f"s_add_u32 {s(sSOFF)}, {s(sSOFF)}, 256")
    I(f"s_waitcnt vmcnt(0)")
    for st in (1, 2, 4, 8):
        for c in range(0, 16, 2*st):
            I(f"v_add_f32 {v(vZ+c)}, {v(vZ+c)}, {v(vZ+c+st)}")
    I(f"v_cvt_pk_bf16_f32 {v(vZ)}, {v(vZ)}, {v(vZ)}")
    I(f"v_lshlrev_b32 {v(vT+1)}, 1, {v(vLANE)}")
    I(f"v_add_u32 {v(vT+1)}, {ZF}, {v(vT+1)}")
    I(f"ds_write_b16 {v(vT+1)}, {v(vZ)}")
    L("L_noz2")
    vS = 176
    I(f"s_mov_b32 {s(sT1)}, 0x3f80")
    I(f"s_mov_b32 {s(sT2)}, 0x3f800000")
    for i in range(4): I(f"v_mov_b32 {v(vS+i)}, 0")
    for c in range(16):
        I(f"s_waitcnt vmcnt({15-c})")
        I(f"v_dot2_f32_bf16 {v(vS)}, {v(vR+2*c)}, {s(sT1)}, {v(vS)}")
        I(f"v_dot2_f32_bf16 {v(vS+1)}, {v(vR+2*c)}, {s(sT2)}, {v(vS+1)}")
        I(f"v_dot2_f32_bf16 {v(vS+2)}, {v(vR+2*c+1)}, {s(sT1)}, {v(vS+2)}")
        I(f"v_dot2_f32_bf16 {v(vS+3)}, {v(vR+2*c+1)}, {s(sT2)}, {v(vS+3)}")
    I(f"v_cvt_pk_bf16_f32 {v(vS)}, {v(vS)}, {v(vS+1)}")
    I(f"v_cvt_pk_bf16_f32 {v(vS+1)}, {v(vS+2)}, {v(vS+3)}")
    dual(lambda: I(f"buffer_store_dwordx2 {v(vS,2)}, {v(vX)}, {s(rF,4)}, 0 offen{pol()}"))
    I(f"s_waitcnt vmcnt(0)")
    stamp("A reduced+drained")
    arrive(FLG + 8, 4, 384, "h2")
    C("chunk 0 advances the epoch (all 16 workgroups of the head have read it)")
    I(f"s_cmp_eq_u32 {s(sCH)}, 0")
    I(f"s_cbranch_scc0 L_noep")
    I(f"s_cmp_eq_u32 {s(sTI)}, 1")
    I(f"s_cbranch_scc0 L_noep")
    I(f"s_mov_b64 exec, 1")
    I(f"v_mov_b32 {v(vT)}, 0")
    I(f"v_mov_b32 {v(vT+1)}, {s(sNONCE)}")
    I(f"buffer_store_dword {v(vT+1)}, {v(vT)}, {s(rL,4)}, 0 offen sc1")
    I(f"s_mov_b64 exec, -1")
    L("L_noep")
    wait_hop(384, FLG + 12, "h2")
    stamp("A hop2")
    C("gather the final kv fragments dt = 2a, 2a+1 into LDS")
    I(f"s_lshl_b32 {s(sT1)}, {s(sTI)}, 13")
    I(f"v_add_u32 {v(vX)}, {s(sT1)}, {v(vL16)}")
    I(f"s_mov_b32 {s(sSOFF)}, 4096")
    for f in range(8):
        so = "0" if f < 4 else s(sSOFF)
        I(f"buffer_load_dwordx4 {v(vR+4*f,4)}, {v(vX)}, {s(rF,4)}, {so} offen offset:{(f%4)*1024} sc1")
    I(f"v_add_u32 {v(vX+1)}, {KVF}, {v(vX)}")
    for f in range(8):
        I(f"s_waitcnt vmcnt({7-f})")
        I(f"ds_write_b128 {v(vX+1)}, {v(vR+4*f,4)} offset:{f*1024}")
    I(f"s_waitcnt lgkmcnt(0)")
    stamp("A kvf in lds")
    I(f"s_barrier")
    stamp("A B4")
    STI[0] = 18
    I(f"s_lshl_b32 {s(sT1)}, {s(sTI)}, 14")
    I(f"v_add_u32 {v(vT)}, {s(sT1)}, {v(vL16)}")
    for t in range(4):
        I(f"ds_read_b128 {v(vPQ+4*t,4)}, {v(vT)} offset:{t*1024}")
    I(f"s_mov_b32 {s(sT3)}, 4")
    I(f"s_lshl_b32 {s(sT2)}, {s(sTI)}, 13")
    I(f"s_add_u32 {s(sT2)}, {s(sT2)}, {OSA}")
    I(f"s_branch L_final")

def team_b():
    C("================= team B =================")
    L("L_team_b")
    STI[0] = 3
    I(f"s_barrier")
    if opt.fast:
        I(f"s_cmp_eq_u32 {s(sTI)}, 0")
        I(f"s_cbranch_scc0 L_nochk0")
        I(f"s_load_dwordx16 {s(sPW,16)}, {s(sEPA,2)}, 128 glc")
        L("L_nochk0")
    C("Q tile (own 32 rows); once the 9th load has been issued the V rows of this wave have landed")
    I(f"s_lshl_b32 {s(sSOFF)}, {s(sTI)}, 14")
    for i in range(16):
        if i % 4 == 0:
            if i: I(f"s_add_u32 {s(sSOFF)}, {s(sSOFF)}, 4096")
            I(f"s_add_u32 m0, {s(sSOFF)}, {KQ}")
        if i & 7:
            I(f"v_xor_b32 {v(vT)}, {32*(i&7)}, {v(vD)}")
            I(f"buffer_load_dwordx4 {v(vT)}, {s(rQ,4)}, {s(sSOFF)} offen offset:{1024*(i%4)}{NT()} lds")
        else:
            I(f"buffer_load_dwordx4 {v(vD)}, {s(rQ,4)}, {s(sSOFF)} offen offset:{1024*(i%4)}{NT()} lds")
        if i == 7:
            I(f"s_waitcnt vmcnt(8)")
            I(f"s_lshl_b32 {s(sT2)}, {s(sTI)}, 2")
            I(f"s_add_u32 {s(sT2)}, {s(sT2)}, {FLG + 32}")
            if opt.fast:
                I(f"s_cmp_eq_u32 {s(sTI)}, 0")
                I(f"s_cbranch_scc0 L_nochk1")
                I(f"s_waitcnt lgkmcnt(0)")
                I(f"s_mov_b32 {s(sT1)}, 1")
                for j in range(16):
                    I(f"s_cmp_eq_u32 {s(sPW+j)}, {s(sPRES)}")
                    I(f"s_cselect_b32 {s(sT1)}, {s(sT1)}, 0")
                if opt.forceslow: I(f"s_mov_b32 {s(sT1)}, 0")
                I(f"v_mov_b32 {v(vX+4)}, {FLG + 20}")
                I(f"v_mov_b32 {v(vX+5)}, {s(sT1)}")
                I(f"ds_write_b32 {v(vX+4)}, {v(vX+5)}")
                if opt.dbgmode:
                    I(f"s_mov_b32 s100, {s(sT1)}")
                I(f"s_waitcnt lgkmcnt(0)")
                L("L_nochk1")
            lds_add1(s(sT2))
            stamp("B V1 landed")
    stamp("B q issued")
    I(f"s_waitcnt vmcnt(0)")
    stamp("B q landed")
    gemm1(False)
    stamp("B gemm1 done")
    I(f"v_mov_b32 {v(vEPS)}, {s(sEPS)}")
    I(f"v_cvt_pk_bf16_f32 {v(vSS)}, {v(vSS)}, 0")
    I(f"v_lshlrev_b32 {v(vNQ)}, 16, {v(vSS)}")
    for mt in range(2):
        pipeline(mt, lambda r: vNQ, vP4 + 8*mt)
    I(f"s_lshl_b32 {s(sT1)}, {s(sTI)}, 14")
    I(f"v_add_u32 {v(vX)}, {s(sT1)}, {v(vL16)}")
    for t in range(4):
        I(f"ds_write_b128 {v(vX)}, {v(vP4+4*t,4)} offset:{t*1024}")
    for i in range(16):
        I(f"v_mov_b32 {v(vPQ+i)}, {v(vP4+i)}")
    I(f"s_waitcnt lgkmcnt(0)")
    stamp("B phiq done")
    I(f"s_barrier")
    stamp("B B4")
    STI[0] = 18
    I(f"s_mov_b32 {s(sT3)}, 0")
    I(f"s_lshl_b32 {s(sT2)}, {s(sTI)}, 14")
    I(f"s_add_u32 {s(sT2)}, {s(sT2)}, 4096")

def final():
    L("L_final")
    C("================= final =================")
    vZF = 48; vKA = 64; vAC = 96; vU = 128; vOP = 144
    vRD, vDEN, vOA, vKAa, vSW, vSR = 160, 161, 163, 164, 165, 166
    vST = 176
    I(f"v_lshrrev_b32 {v(vU)}, 5, {v(vLANE)}")
    I(f"v_lshlrev_b32 {v(vU)}, 3, {v(vU)}")
    I(f"v_add_u32 {v(vU)}, {ZF}, {v(vU)}")
    for t in range(4):
        I(f"ds_read2_b64 {v(vZF+4*t,4)}, {v(vU)} offset0:{4*t} offset1:{4*t+2}")
    I(f"v_bfe_u32 {v(vU+1)}, {v(vLANE)}, 2, 1")
    I(f"v_lshlrev_b32 {v(vU+1)}, 4, {v(vU+1)}")
    I(f"v_bfe_u32 {v(vU+2)}, {v(vLANE)}, 3, 2")
    I(f"v_lshl_add_u32 {v(vU+1)}, {v(vU+2)}, 2, {v(vU+1)}")
    I(f"v_and_b32 {v(vU+2)}, 3, {v(vLANE)}")
    I(f"v_add_u32 {v(vU+1)}, {v(vU+1)}, {v(vU+2)}")
    I(f"v_and_b32 {v(vU+2)}, 32, {v(vLANE)}")
    I(f"v_add_u32 {v(vU+1)}, {v(vU+1)}, {v(vU+2)}")
    I(f"v_lshlrev_b32 {v(vU+1)}, 4, {v(vU+1)}")
    I(f"s_lshl_b32 {s(sT1)}, {s(sT3)}, 12")
    I(f"s_add_u32 {s(sT1)}, {s(sT1)}, {KVF}")
    I(f"v_add_u32 {v(vKAa)}, {s(sT1)}, {v(vU+1)}")
    def aread(d):
        for t in range(4):
            I(f"ds_read_b128 {v(vKA+16*(d%2)+4*t,4)}, {v(vKAa)} offset:{(d*4+t)*1024}")
    aread(0)
    aread(1)
    C("staging write address: row q*256 + ((piece ^ (q&15))*16), piece = 4d + 2h + {0,1}; base = q*256 + ((2h ^ (q&15))*16)")
    I(f"v_and_b32 {v(vU+1)}, 31, {v(vLANE)}")
    I(f"v_and_b32 {v(vU+2)}, 15, {v(vLANE)}")
    I(f"v_lshrrev_b32 {v(vU+3)}, 5, {v(vLANE)}")
    I(f"v_lshlrev_b32 {v(vU+3)}, 1, {v(vU+3)}")
    I(f"v_xor_b32 {v(vU+2)}, {v(vU+2)}, {v(vU+3)}")
    I(f"v_lshlrev_b32 {v(vU+2)}, 4, {v(vU+2)}")
    I(f"v_lshl_add_u32 {v(vSW)}, {v(vU+1)}, 8, {v(vU+2)}")
    I(f"v_add_u32 {v(vSW)}, {s(sT2)}, {v(vSW)}")
    C("staging read address: row (l>>4) + 4i, slot (l&15) ^ (row&15)  -> base for i = 0; row&15 = (l>>4) + 4*(i&3)")
    I(f"v_lshrrev_b32 {v(vU+1)}, 4, {v(vLANE)}")
    I(f"v_and_b32 {v(vU+2)}, 15, {v(vLANE)}")
    I(f"v_xor_b32 {v(vU+2)}, {v(vU+2)}, {v(vU+1)}")
    I(f"v_lshlrev_b32 {v(vU+2)}, 4, {v(vU+2)}")
    I(f"v_lshl_add_u32 {v(vSR)}, {v(vU+1)}, 8, {v(vU+2)}")
    I(f"v_add_u32 {v(vSR)}, {s(sT2)}, {v(vSR)}")
    C("global store offset: (32*i + (l>>4))*512 + dh*256 + (l&15)*16")
    I(f"v_and_b32 {v(vU+2)}, 15, {v(vLANE)}")
    I(f"v_lshlrev_b32 {v(vU+2)}, 4, {v(vU+2)}")
    I(f"v_lshl_add_u32 {v(vOA)}, {v(vU+1)}, 9, {v(vU+2)}")
    I(f"s_lshl_b32 {s(sT1)}, {s(sTI)}, 14")
    I(f"s_lshl_b32 {s(sT2)}, {s(sT3)}, 6")
    I(f"s_add_u32 {s(sT1)}, {s(sT1)}, {s(sT2)}")
    I(f"v_add_u32 {v(vOA)}, {s(sT1)}, {v(vOA)}")
    I(f"s_waitcnt lgkmcnt(8)")
    I(f"v_mov_b32 {v(vDEN)}, 0")
    I(f"v_mov_b32 {v(vDEN+1)}, 0")
    for i in range(16):
        I(f"v_dot2c_f32_bf16 {v(vDEN+(i&1))}, {v(vPQ+i)}, {v(vZF+i)}")
    I(f"v_add_f32 {v(vDEN)}, {v(vDEN)}, {v(vDEN+1)}")
    I(f"v_mov_b32 {v(vDEN+1)}, {v(vDEN)}")
    I(f"v_permlane32_swap_b32 {v(vDEN)}, {v(vDEN+1)}")
    I(f"v_add_f32 {v(vDEN)}, {v(vDEN)}, {v(vDEN+1)}")
    I(f"v_cvt_pk_bf16_f32 {v(vDEN)}, {v(vDEN)}, {v(vDEN)}")
    I(f"v_lshlrev_b32 {v(vDEN)}, 16, {v(vDEN)}")
    I(f"v_add_f32 {v(vDEN)}, {s(sEPS)}, {v(vDEN)}")
    I(f"v_cvt_pk_bf16_f32 {v(vDEN)}, {v(vDEN)}, {v(vDEN)}")
    I(f"v_lshlrev_b32 {v(vDEN)}, 16, {v(vDEN)}")
    I(f"v_rcp_f32 {v(vRD)}, {v(vDEN)}")
    I(f"v_fma_f32 {v(vDEN+1)}, -{v(vDEN)}, {v(vRD)}, 1.0")
    I(f"v_fma_f32 {v(vRD)}, {v(vDEN+1)}, {v(vRD)}, {v(vRD)}")
    if opt.perturb is not None:
        import struct
        I(f"v_mul_f32 {v(vRD)}, 0x{struct.unpack('<I', struct.pack('<f', opt.perturb))[0]:08x}, {v(vRD)}")
    def mm(d):
        for t in range(4):
            acc = vAC + 16*(d % 2)
            c = "0" if t == 0 else v(acc, 16)
            I(f"v_mfma_f32_32x32x16_bf16 {v(acc,16)}, {v(vKA+16*(d%2)+4*t,4)}, {v(vPQ+4*t,4)}, {c}")
    def epi(d):
        acc = vAC + 16*(d % 2); op = vOP + 8*(d % 2)
        for i in range(8): I(f"v_cvt_pk_bf16_f32 {v(op+i)}, {v(acc+2*i)}, {v(acc+2*i+1)}")
        for i in range(8):
            I(f"v_lshlrev_b32 {v(vU+2*i)}, 16, {v(op+i)}")
            I(f"v_and_b32 {v(vU+2*i+1)}, {s(sMASKH)}, {v(op+i)}")
        for i in range(8): I(f"v_pk_mul_f32 {v(vU+2*i,2)}, {v(vU+2*i,2)}, {v(vRD,2)} op_sel_hi:[1,0]")
        for i in range(8): I(f"v_cvt_pk_bf16_f32 {v(op+i)}, {v(vU+2*i)}, {v(vU+2*i+1)}")
        for u in range(2):
            x = 64*d + 16*u
            if x:
                I(f"v_xor_b32 {v(vU)}, {x}, {v(vSW)}")
                I(f"ds_write_b128 {v(vU)}, {v(op+4*u,4)}")
            else:
                I(f"ds_write_b128 {v(vSW)}, {v(op+4*u,4)}")
    if opt.fstamps: STI[0] = 14; stamp("F den done")
    I(f"s_waitcnt lgkmcnt(4)")
    mm(0)
    I(f"s_waitcnt lgkmcnt(0)")
    mm(1)
    aread(2)
    epi(0)
    if opt.fstamps: stamp("F epi0")
    I(f"s_waitcnt lgkmcnt(2)")
    mm(2)
    aread(3)
    epi(1)
    I(f"s_waitcnt lgkmcnt(2)")
    mm(3)
    if opt.fstamps: stamp("F mm3")
    epi(2)
    epi(3)
    I(f"s_waitcnt lgkmcnt(0)")
    if opt.fstamps: stamp("F epi3"); STI[0] = 18
    for i in range(8):
        x = 64*(i & 3)
        off = 1024*i
        if x:
            I(f"v_xor_b32 {v(vU+i)}, {x}, {v(vSR)}")
            I(f"ds_read_b128 {v(vST+4*i,4)}, {v(vU+i)} offset:{off}")
        else:
            I(f"ds_read_b128 {v(vST+4*i,4)}, {v(vSR)} offset:{off}")
    I(f"s_mov_b32 {s(sSOFF)}, 0")
    for i in range(8):
        I(f"s_waitcnt lgkmcnt({7-i})")
        if i % 2 == 0 and i: I(f"s_add_u32 {s(sSOFF)}, {s(sSOFF)}, 4096")
        I(f"buffer_store_dwordx4 {v(vST+4*i,4)}, {v(vOA)}, {s(rO,4)}, {s(sSOFF)} offen offset:{2048*(i%2)}{opt.ost}")
    stamp("stores issued")
    if opt.stamps:
        I("s_waitcnt vmcnt(0)")
    stamp("stores done")
    stamps_flush("f")

def build():
    common_start()
    I(f"s_cmp_ge_u32 {s(sWAVE)}, 4")
    I(f"s_cbranch_scc1 L_team_b")
    team_a()
    team_b()
    final()
    L("L_end")
    I("s_endpgm")
    body = A.render()
    hdr = f"""; fused RFA linear attention: 256 workgroups (one per CU) x 8 waves
; @launch grid=(256,1,1) block=(512,1,1) lds={LDS_BYTES}
.amdgcn_target "amdgcn-amd-amdhsa--gfx950"
.text
.globl {NAME}
.p2align 8
.type {NAME},@function
{NAME}:
"""
    ftr = f"""
.section .rodata,"a"
.p2align 6
.amdhsa_kernel {NAME}
  .amdhsa_next_free_vgpr 256
  .amdhsa_next_free_sgpr 102
  .amdhsa_accum_offset 256
  .amdhsa_group_segment_fixed_size 0
  .amdhsa_kernarg_size 56
  .amdhsa_user_sgpr_count 2
  .amdhsa_user_sgpr_kernarg_segment_ptr 1
  .amdhsa_system_sgpr_workgroup_id_x 1
  .amdhsa_float_denorm_mode_32 3
.end_amdhsa_kernel
"""
    return hdr + body + ftr

if __name__ == "__main__":
    out = sys.argv[1]
    for a in sys.argv[2:]:
        if a == "stamps": opt.stamps = True
        elif a == "nont": opt.nt = False
        elif a == "fast": opt.fast = True
        elif a == "forceslow": opt.forceslow = True
        elif a == "fstamps": opt.fstamps = True
        elif a == "nokfirst": opt.kfirst = False
        elif a == "qearly": opt.qlate = False
        elif a.startswith("ost="): opt.ost = " " + a.split("=")[1].replace("+", " ")
        elif a.startswith("dbgwg="): opt.dbgwg = int(a.split("=")[1])
        elif a.startswith("dbgwave="): opt.dbgwave = int(a.split("=")[1])
        elif a.startswith("perturb="): opt.perturb = float(a.split("=")[1])
    txt = build()
    open(out, "w").write(txt)
    if opt.stamps: json.dump(STN, open(out + ".stamps.json", "w"))
    print("wrote", out, "nops inserted:", A.nops, "lines", txt.count("\n"))
```

```python
import sys, json, struct
from asmlib import *

NAME = "standalone__linear_kernel_rfa__prompt_kernel"
class O: pass
opt = O()
opt.spin_limit = 300000
opt.stamps = False
opt.nt = True
opt.fast = True
opt.forceslow = False
opt.dbgwg = None
opt.dbgwave = 0
opt.ost = ""
opt.pretouch = True
opt.partplain = False
opt.preread = True
opt.mimicq = False
opt.mimicnum = False

KQ = 0
VR = 65536
WR = 131072
PHI = WR
ZB = WR + 16384
ZF = WR + 17408
FLG = WR + 17664
RD = WR + 18432
KVF = VR
OSA = VR + 32768
LDS_BYTES = 163840
HS = 1 << 20
O_PART = 0
O_F = 524288
O_Z = 524288 + 32768
O_FL = 524288 + 32768 + 4096
WS_ST = 20 << 20

sQp, sKp, sVp, sWp, sOp, sDp, sSp = 4, 6, 8, 10, 12, 14, 16
sHEAD, sCH = 18, 19
rK, rV, rQ, rW, rO, rP, rL = 20, 24, 28, 32, 36, 40, 52
sWAVE, sTI = 56, 57
sT0, sT1, sT2, sT3 = 58, 59, 60, 61
sNONCE, sFAST = 62, 63
sC025L, sC025H, sLOG2E, sC0125, sMASKH, sONES = 64, 65, 66, 67, 68, 69
sSPIN, sSOFF, sEPS, sM132 = 70, 71, 72, 73
sXCC, sPRES = 94, 95
sEPA = 96
sPW = 40
sJUNK = 44

A = Asm()
I, L, C = A.I, A.L, A.C
STI = [0]; STN = []
def stamp(name=""):
    if not opt.stamps: return
    C("stamp %s" % name)
    I("s_memrealtime s[98:99]")
    I("s_waitcnt lgkmcnt(0)")
    I("s_mov_b32 s%d, s98" % (74 + STI[0]))
    STN.append((STI[0], name)); STI[0] += 1
def stamps_flush(tag):
    if not opt.stamps: return
    I("s_and_b32 s97, s56, 3"); I("s_cmp_eq_u32 s97, 0"); I("s_cbranch_scc0 L_nost_%s" % tag)
    I("s_lshr_b32 s97, s56, 2"); I("s_lshl_b32 s96, s2, 1"); I("s_add_u32 s96, s96, s97"); I("s_lshl_b32 s96, s96, 7")
    I("s_add_u32 s96, s96, %d" % WS_ST)
    I("s_add_u32 s40, s16, s96"); I("s_addc_u32 s41, s17, 0"); I("s_and_b32 s41, s41, 0xffff"); I("s_mov_b32 s42, 128"); I("s_mov_b32 s43, 0x20000")
    I("s_mov_b64 exec, 1"); I("v_mov_b32 v1, 0")
    for i in range(20):
        I("v_mov_b32 v2, s%d" % (74 + i)); I("buffer_store_dword v2, v1, s[40:43], 0 offen offset:%d" % (4 * i))
    I("s_waitcnt vmcnt(0)")
    if opt.dbgwg is not None:
        I("s_cmp_eq_u32 s2, %d" % opt.dbgwg); I("s_cbranch_scc0 L_nodbg")
        I("s_cmp_eq_u32 s56, %d" % opt.dbgwave); I("s_cbranch_scc0 L_nodbg")
        I("s_mov_b32 s40, s14"); I("s_and_b32 s41, s15, 0xffff"); I("s_mov_b32 s42, 256")
        idx = [i for i in range(1, 14)] + [18, 19]
        for j, i in enumerate(idx):
            I("s_sub_u32 s97, s%d, s74" % (74 + i)); I("v_mov_b32 v2, s97"); I("buffer_store_dword v2, v1, s[40:43], 0 offen offset:%d" % (4 * j))
        I("s_waitcnt vmcnt(0)")
        L("L_nodbg")
    I("s_mov_b64 exec, -1")
    L("L_nost_%s" % tag)

def srd(r, ptr, off_s, size):
    if off_s is None:
        I(f"s_mov_b32 {s(r)}, {s(ptr)}")
        I(f"s_and_b32 {s(r+1)}, {s(ptr+1)}, 0xffff")
    else:
        I(f"s_add_u32 {s(r)}, {s(ptr)}, {s(off_s)}")
        I(f"s_addc_u32 {s(r+1)}, {s(ptr+1)}, 0")
        I(f"s_and_b32 {s(r+1)}, {s(r+1)}, 0xffff")
    I(f"s_mov_b32 {s(r+2)}, {size}")
    I(f"s_mov_b32 {s(r+3)}, 0x20000")

NT = lambda: " nt" if opt.nt else ""
vLANE = 0
vA = 2
vD = 10
vL16 = 11
vT = 12
vSS = 28
vW = 128
def W(mt, t): return vW + mt * 64 + t * 4
vKF = 32
vA1 = 96
vP4 = 12
vNQ = 32
vNK = 48
vONE = 52
vP1 = 56
vTT = 60
vEPS = 68
vZP = 69
vX = 72
vPQ = 32

POL = [" sc1"]
def pol(): return POL[0]
DUAL = [0]
def dual(fn):
    if not opt.fast:
        POL[0] = " sc1"; fn(); return
    DUAL[0] += 1; n = DUAL[0]
    I(f"s_cmp_lg_u32 {s(sFAST)}, 0")
    I(f"s_cbranch_scc1 L_fast{n}")
    POL[0] = " sc1"; fn()
    I(f"s_branch L_join{n}")
    L(f"L_fast{n}")
    POL[0] = ""; fn()
    L(f"L_join{n}")
    POL[0] = " sc1"

def prologue():
    I(f"s_cmp_ge_u32 s2, 256")
    I(f"s_cbranch_scc1 L_end")
    I(f"s_load_dwordx4 s[4:7], s[0:1], 0")
    I(f"s_load_dwordx4 s[8:11], s[0:1], 16")
    I(f"s_load_dwordx4 s[12:15], s[0:1], 32")
    I(f"s_load_dwordx2 s[16:17], s[0:1], 48")
    I(f"v_lshrrev_b32 v1, 6, v0")
    I(f"v_and_b32 {v(vLANE)}, 63, v0")
    I(f"v_readfirstlane_b32 {s(sWAVE)}, v1")
    I(f"s_and_b32 {s(sT0)}, s2, 7")
    I(f"s_lshr_b32 {s(sT1)}, s2, 3")
    I(f"s_lshr_b32 {s(sHEAD)}, {s(sT1)}, 4")
    I(f"s_lshl_b32 {s(sT0)}, {s(sT0)}, 1")
    I(f"s_add_u32 {s(sHEAD)}, {s(sHEAD)}, {s(sT0)}")
    I(f"s_and_b32 {s(sCH)}, {s(sT1)}, 15")
    I(f"s_and_b32 {s(sTI)}, {s(sWAVE)}, 3")
    I(f"v_lshrrev_b32 {v(vT)}, 5, {v(vLANE)}")
    I(f"v_and_b32 {v(vT+1)}, 31, {v(vLANE)}")
    I(f"v_xor_b32 {v(vT+1)}, {v(vT+1)}, {v(vT)}")
    I(f"v_lshlrev_b32 {v(vT+1)}, 4, {v(vT+1)}")
    I(f"v_lshl_add_u32 {v(vD)}, {v(vT)}, 9, {v(vT+1)}")
    I(f"v_lshlrev_b32 {v(vL16)}, 4, {v(vLANE)}")
    I(f"s_lshl_b32 {s(sT0)}, {s(sHEAD)}, 20")
    I(f"s_lshl_b32 {s(sT1)}, {s(sCH)}, 16")
    I(f"s_add_u32 {s(sT0)}, {s(sT0)}, {s(sT1)}")
    I(f"s_waitcnt lgkmcnt(0)")
    srd(rW, sWp, None, 32768)
    srd(rK, sKp, sT0, 65536)

def dma_omega():
    I(f"s_and_b32 {s(sT1)}, {s(sWAVE)}, 1")
    I(f"s_lshl_b32 {s(sT1)}, {s(sT1)}, 7")
    I(f"s_lshl_b32 {s(sSOFF)}, {s(sWAVE)}, 12")
    I(f"s_add_u32 m0, {s(sSOFF)}, {WR}")
    for i in range(4):
        I(f"s_add_u32 {s(sT2)}, {s(sT1)}, {32*i}")
        I(f"v_xor_b32 {v(vT)}, {s(sT2)}, {v(vD)}")
        I(f"buffer_load_dwordx4 {v(vT)}, {s(rW,4)}, {s(sSOFF)} offen offset:{1024*i} lds")

def dma_row_instr(r, base_lds, i):
    if i % 4 == 0:
        if i: I(f"s_add_u32 {s(sSOFF)}, {s(sSOFF)}, 4096")
        I(f"s_add_u32 m0, {s(sSOFF)}, {base_lds}")
    if i & 7:
        I(f"v_xor_b32 {v(vT)}, {32*(i&7)}, {v(vD)}")
        I(f"buffer_load_dwordx4 {v(vT)}, {s(r,4)}, {s(sSOFF)} offen offset:{1024*(i%4)}{NT()} lds")
    else:
        I(f"buffer_load_dwordx4 {v(vD)}, {s(r,4)}, {s(sSOFF)} offen offset:{1024*(i%4)}{NT()} lds")

def dma_k():
    I(f"s_lshl_b32 {s(sSOFF)}, {s(sWAVE)}, 13")
    for i in range(8): dma_row_instr(rK, KQ, i)

def dma_v():
    C("team B wave b: V slice b (128 B columns), all 128 rows, 16 instructions of 8 rows")
    I(f"v_lshrrev_b32 {v(vT+2)}, 4, {v(vLANE)}")
    I(f"v_and_b32 {v(vT+2)}, 1, {v(vT+2)}")
    I(f"v_lshlrev_b32 {v(vT+2)}, 2, {v(vT+2)}")
    I(f"v_and_b32 {v(vT+1)}, 7, {v(vLANE)}")
    I(f"v_xor_b32 {v(vT+2)}, {v(vT+2)}, {v(vT+1)}")
    I(f"v_lshlrev_b32 {v(vT+2)}, 4, {v(vT+2)}")
    I(f"v_lshrrev_b32 {v(vT+1)}, 3, {v(vLANE)}")
    I(f"v_lshl_add_u32 {v(vT+2)}, {v(vT+1)}, 9, {v(vT+2)}")
    I(f"s_lshl_b32 {s(sSOFF)}, {s(sTI)}, 7")
    I(f"s_lshl_b32 {s(sT1)}, {s(sTI)}, 14")
    I(f"s_add_u32 {s(sT1)}, {s(sT1)}, {VR}")
    for i in range(16):
        I(f"s_add_u32 m0, {s(sT1)}, {1024*i}")
        if i: I(f"s_add_u32 {s(sSOFF)}, {s(sSOFF)}, 4096")
        I(f"buffer_load_dwordx4 {v(vT+2)}, {s(rV,4)}, {s(sSOFF)} offen{NT()} lds")

def tile_addrs():
    I(f"v_and_b32 {v(vT)}, 31, {v(vLANE)}")
    I(f"v_lshrrev_b32 {v(vT+1)}, 5, {v(vLANE)}")
    I(f"v_and_b32 {v(vT+2)}, 15, {v(vLANE)}")
    I(f"v_xor_b32 {v(vT+2)}, {v(vT+2)}, {v(vT+1)}")
    I(f"v_lshlrev_b32 {v(vT+2)}, 4, {v(vT+2)}")
    I(f"v_lshl_add_u32 {v(vT+2)}, {v(vT)}, 9, {v(vT+2)}")
    I(f"v_add_u32 {v(vA)}, {WR}, {v(vT+2)}")
    for x in range(1, 8):
        I(f"v_xor_b32 {v(vA+x)}, {32*x}, {v(vA)}")

def read_omega():
    for t in range(16):
        for mt in range(2):
            I(f"ds_read_b128 {v(W(mt,t),4)}, {v(vA+(t&7))} offset:{(t>>3)*256 + mt*16384}")
    I(f"s_lshl_b32 {s(sT1)}, {s(sTI)}, 14")
    I(f"s_sub_u32 {s(sT1)}, {s(sT1)}, {WR - KQ}")
    for x in range(8):
        I(f"v_add_u32 {v(vA+x)}, {s(sT1)}, {v(vA+x)}")

def consts():
    I(f"s_mov_b32 {s(sC025L)}, 0x00003e80")
    I(f"s_mov_b32 {s(sC025H)}, 0x3e800000")
    I(f"s_mov_b32 {s(sLOG2E)}, 0x3fb8aa3b")
    I(f"s_mov_b32 {s(sC0125)}, 0x3e000000")
    I(f"s_mov_b32 {s(sMASKH)}, 0xffff0000")
    I(f"s_mov_b32 {s(sONES)}, 0x3f803f80")
    I(f"s_mov_b32 {s(sEPS)}, 0x358637bd")
    I(f"s_mov_b32 {s(sM132)}, 0xbd000000")

def read_tile_frags():
    for t in range(16):
        I(f"ds_read_b128 {v(vKF+4*t,4)}, {v(vA+(t&7))} offset:{(t>>3)*256}")
    for i in range(4): I(f"v_mov_b32 {v(vSS+i)}, 0")

def ssq():
    for t in range(16):
        for i in range(4):
            I(f"v_dot2c_f32_bf16 {v(vSS+i)}, {v(vKF+4*t+i)}, {v(vKF+4*t+i)}")

def ssq_reduce_steps():
    return [
        [f"v_add_f32 {v(vSS)}, {v(vSS)}, {v(vSS+1)}", f"v_add_f32 {v(vSS+2)}, {v(vSS+2)}, {v(vSS+3)}"],
        [f"v_add_f32 {v(vSS)}, {v(vSS)}, {v(vSS+2)}"],
        [f"v_mov_b32 {v(vSS+1)}, {v(vSS)}"],
        [f"v_permlane32_swap_b32 {v(vSS)}, {v(vSS+1)}"],
        [f"v_add_f32 {v(vSS)}, {v(vSS)}, {v(vSS+1)}"],
    ]

def pipeline_mimic(mt, nq_of, p4base):
    for g in range(2):
        prs = [4*g + i for i in range(4)]
        acc = lambda r: vA1 + 16*mt + r
        for i, p in enumerate(prs): I(f"v_cvt_pk_bf16_f32 {v(vP1+i)}, {v(acc(2*p))}, {v(acc(2*p+1))}")
        for i, p in enumerate(prs):
            I(f"v_dot2_f32_bf16 {v(vTT+2*i)}, {v(vP1+i)}, {s(sC025L)}, {v(nq_of(2*p))}")
            I(f"v_dot2_f32_bf16 {v(vTT+2*i+1)}, {v(vP1+i)}, {s(sC025H)}, {v(nq_of(2*p+1))}")
        for i, p in enumerate(prs): I(f"v_cvt_pk_bf16_f32 {v(vP1+i)}, {v(vTT+2*i)}, {v(vTT+2*i+1)}")
        for i, p in enumerate(prs):
            I(f"v_lshlrev_b32 {v(vTT+2*i)}, 16, {v(vP1+i)}")
            I(f"v_and_b32 {v(vTT+2*i+1)}, {s(sMASKH)}, {v(vP1+i)}")
        for i in range(8): I(f"v_mul_f32 {v(vTT+i)}, {s(sLOG2E)}, {v(vTT+i)}")
        for i in range(8): I(f"v_exp_f32 {v(vTT+i)}, {v(vTT+i)}")
        for i in range(8): I(f"v_fma_f32 {v(vTT+i)}, {v(vTT+i)}, {s(sC0125)}, {v(vEPS)}")
        for i, p in enumerate(prs): I(f"v_cvt_pk_bf16_f32 {v(p4base+p)}, {v(vTT+2*i)}, {v(vTT+2*i+1)}")

def lds_wait(addr, n, tag, tmp=None):
    tmp = vX + 4 if tmp is None else tmp
    I(f"s_mov_b32 {s(sSPIN)}, 0")
    if n == 1:
        I(f"v_mov_b32 {v(tmp)}, {addr}")
    else:
        I(f"v_and_b32 {v(tmp)}, {n-1}, {v(vLANE)}")
        I(f"v_lshlrev_b32 {v(tmp)}, 2, {v(tmp)}")
        I(f"v_add_u32 {v(tmp)}, {addr}, {v(tmp)}")
    L(f"L_ls_{tag}")
    I(f"ds_read_b32 {v(tmp+1)}, {v(tmp)}")
    I(f"s_waitcnt lgkmcnt(0)")
    I(f"v_cmp_ne_u32 vcc, {s(sNONCE)}, {v(tmp+1)}")
    I(f"s_cbranch_vccz L_lsd_{tag}")
    I(f"s_add_u32 {s(sSPIN)}, {s(sSPIN)}, 1")
    I(f"s_cmp_lt_u32 {s(sSPIN)}, {opt.spin_limit*16}")
    I(f"s_cbranch_scc1 L_ls_{tag}")
    L(f"L_lsd_{tag}")

def lds_set(addr, tmp=None, val=None):
    tmp = vX + 4 if tmp is None else tmp
    I(f"v_mov_b32 {v(tmp)}, {addr}")
    I(f"v_mov_b32 {v(tmp+1)}, {s(sNONCE) if val is None else val}")
    I(f"ds_write_b32 {v(tmp)}, {v(tmp+1)}")

def wave_flag(off):
    I(f"s_lshl_b32 {s(sT1)}, {s(sCH)}, 4")
    I(f"s_lshl_b32 {s(sT2)}, {s(sTI)}, 2")
    I(f"s_add_u32 {s(sT1)}, {s(sT1)}, {s(sT2)}")
    I(f"s_add_u32 {s(sT1)}, {s(sT1)}, {O_FL + off}")
    I(f"s_mov_b64 exec, 1")
    I(f"v_mov_b32 {v(vT)}, 0")
    I(f"v_mov_b32 {v(vT+1)}, {s(sNONCE)}")
    dual(lambda: I(f"buffer_store_dword {v(vT+1)}, {v(vT)}, {s(rP,4)}, {s(sT1)} offen{pol()}"))
    I(f"s_mov_b64 exec, -1")

def poll(off, tag):
    I(f"s_mov_b32 {s(sSPIN)}, 0")
    I(f"s_mov_b32 {s(sT2)}, {O_FL + off}")
    I(f"v_lshlrev_b32 {v(vT)}, 2, {v(vLANE)}")
    L(f"L_spin_{tag}")
    I(f"buffer_load_dword {v(vT+1)}, {v(vT)}, {s(rP,4)}, {s(sT2)} offen sc1")
    I(f"s_waitcnt vmcnt(0)")
    I(f"v_cmp_ne_u32 vcc, {s(sNONCE)}, {v(vT+1)}")
    I(f"s_cbranch_vccz L_spun_{tag}")
    I(f"s_add_u32 {s(sSPIN)}, {s(sSPIN)}, 1")
    I(f"s_cmp_lt_u32 {s(sSPIN)}, {opt.spin_limit}")
    I(f"s_cbranch_scc1 L_spin_{tag}")
    L(f"L_spun_{tag}")

def common_start():
    prologue()
    stamp("start")
    dma_omega()
    I(f"s_barrier")
    dma_k()
    C("scalar side: epoch word, translation pre-touch, descriptors")
    I(f"s_lshl_b32 {s(sT1)}, {s(sHEAD)}, 20")
    I(f"s_add_u32 {s(sEPA)}, {s(sSp)}, {s(sT1)}")
    I(f"s_addc_u32 {s(sEPA+1)}, {s(sSp+1)}, 0")
    I(f"s_load_dword {s(sNONCE)}, {s(sEPA,2)}, {O_FL}")
    if opt.preread:
        C("bring the flag lines of this head into L2 (a store to an absent line makes the next read a memory fill)")
        for j in range(8):
            I(f"s_load_dword {s(sJUNK+3)}, {s(sEPA,2)}, {O_FL + 256 + 64*j}")
    srd(rV, sVp, sT0, 65536)
    srd(rQ, sQp, sT0, 65536)
    srd(rO, sOp, sT0, 65536)
    if opt.pretouch:
        I(f"s_load_dword {s(sJUNK)}, {s(rQ,2)}, 0")
        I(f"s_load_dword {s(sJUNK+1)}, {s(rO,2)}, 0")
        I(f"s_load_dword {s(sJUNK+2)}, {s(rV,2)}, 0")
    tile_addrs()
    consts()
    stamp("K issued")
    I(f"s_waitcnt vmcnt(8) lgkmcnt(0)")
    I(f"s_add_u32 {s(sNONCE)}, {s(sNONCE)}, 1")
    I(f"s_lshl_b32 {s(sT1)}, {s(sHEAD)}, 20")
    srd(rP, sSp, sT1, HS)
    I(f"s_getreg_b32 {s(sXCC)}, hwreg(HW_REG_XCC_ID, 0, 4)")
    I(f"s_lshl_b32 {s(sPRES)}, {s(sNONCE)}, 4")
    I(f"s_add_u32 {s(sPRES)}, {s(sPRES)}, {s(sXCC)}")
    I(f"s_barrier")

def team_a():
    C("================= team A =================")
    if opt.fast:
        C("presence word: nonce*16 + XCC id (wave 0)")
        I(f"s_cmp_eq_u32 {s(sTI)}, 0")
        I(f"s_cbranch_scc0 L_nopres")
        I(f"s_mov_b64 exec, 1")
        I(f"s_lshl_b32 {s(sT1)}, {s(sCH)}, 2")
        I(f"s_add_u32 {s(sT1)}, {s(sT1)}, {O_FL + 128}")
        I(f"v_mov_b32 {v(vT)}, 0")
        I(f"v_mov_b32 {v(vT+1)}, {s(sPRES)}")
        I(f"buffer_store_dword {v(vT+1)}, {v(vT)}, {s(rP,4)}, {s(sT1)} offen sc1")
        I(f"s_mov_b64 exec, -1")
        L("L_nopres")
    read_omega()
    I(f"v_mov_b32 {v(vEPS)}, {s(sEPS)}")
    C("K landed: own loads only (the presence store of wave 0 may still be in flight)")
    I(f"s_waitcnt vmcnt(1) lgkmcnt(0)")
    I(f"s_cmp_eq_u32 {s(sTI)}, 0")
    I(f"s_cbranch_scc1 L_k0")
    I(f"s_waitcnt vmcnt(0)")
    L("L_k0")
    I(f"s_barrier")
    stamp("A B1 K landed")
    read_tile_frags()
    I(f"s_waitcnt lgkmcnt(0)")
    I(f"s_barrier")
    ssq()
    steps = ssq_reduce_steps()
    for t in range(16):
        for mt in range(2):
            c = "0" if t == 0 else v(vA1 + 16*mt, 16)
            I(f"v_mfma_f32_32x32x16_bf16 {v(vA1+16*mt,16)}, {v(vKF+4*t,4)}, {v(W(mt,t),4)}, {c}")
        if 1 <= t <= 5:
            for x in steps[t-1]: I(x)
        if t == 6:
            I(f"v_mul_f32 {v(vSS)}, {s(sM132)}, {v(vSS)}")
            I(f"v_lshrrev_b32 {v(vSS+1)}, 5, {v(vLANE)}")
        if t == 7:
            I(f"v_cmp_eq_u32 vcc, 0, {v(vSS+1)}")
        if t == 8:
            I(f"v_cndmask_b32 {v(vSS)}, 0, {v(vSS)}, vcc")
        if t == 9:
            I(f"v_cvt_pk_bf16_f32 {v(vSS)}, {v(vSS)}, 0")
    stamp("A gemm1 done")
    I(f"v_mov_b32 {v(vEPS)}, {s(sEPS)}")
    I(f"v_mov_b32 {v(vNK)}, {v(vSS)}")
    I(f"v_mov_b32 {v(vONE)}, 0x3f80")
    for i in range(1, 4):
        I(f"v_mov_b32 {v(vONE+i)}, 0")
        I(f"v_mov_b32 {v(vNK+i)}, 0")
    I(f"v_mfma_f32_32x32x16_bf16 {v(vNQ,16)}, {v(vNK,4)}, {v(vONE,4)}, 0")
    I(f"v_lshl_add_u32 {v(vX)}, {s(sTI)}, 12, {v(vL16)}")
    I(f"v_add_u32 {v(vX)}, {PHI}, {v(vX)}")
    for mt in range(2):
        pipeline_mimic(mt, lambda r: vNQ + r, vP4 + 8*mt)
        for u in range(2):
            I(f"ds_write_b128 {v(vX)}, {v(vP4+8*mt+4*u,4)} offset:{u*2048 + mt*1024}")
        I(f"v_mov_b32 {v(vZP+mt)}, 0")
        for i in range(8):
            I(f"v_dot2c_f32_bf16 {v(vZP+mt)}, {s(sONES)}, {v(vP4+8*mt+i)}")
    for mt in range(2): I(f"v_mov_b32 {v(vX+1+mt)}, {v(vZP+mt)}")
    for mt in range(2): I(f"v_permlane32_swap_b32 {v(vZP+mt)}, {v(vX+1+mt)}")
    for mt in range(2): I(f"v_add_f32 {v(vZP+mt)}, {v(vZP+mt)}, {v(vX+1+mt)}")
    I(f"v_and_b32 {v(vX+1)}, 31, {v(vLANE)}")
    I(f"v_lshlrev_b32 {v(vX+1)}, 2, {v(vX+1)}")
    I(f"s_lshl_b32 {s(sT1)}, {s(sTI)}, 8")
    I(f"s_add_u32 {s(sT1)}, {s(sT1)}, {ZB}")
    I(f"v_add_u32 {v(vX+1)}, {s(sT1)}, {v(vX+1)}")
    I(f"ds_write_b32 {v(vX+1)}, {v(vZP)}")
    I(f"ds_write_b32 {v(vX+1)}, {v(vZP+1)} offset:128")
    I(f"s_waitcnt lgkmcnt(0)")
    stamp("A phi written")
    I(f"s_lshl_b32 {s(sT2)}, {s(sTI)}, 2")
    I(f"s_add_u32 {s(sT2)}, {s(sT2)}, {FLG}")
    lds_set(s(sT2))
    C("transposing-read addresses of the V slice (computed while waiting)")
    vPH = 128; vAC = 48; vVB = 112; vVA = 28; vPA = 30
    I(f"v_lshrrev_b32 {v(vT)}, 5, {v(vLANE)}")
    I(f"v_lshlrev_b32 {v(vT)}, 2, {v(vT)}")
    I(f"v_bfe_u32 {v(vT+1)}, {v(vLANE)}, 2, 2")
    I(f"v_add_u32 {v(vT)}, {v(vT)}, {v(vT+1)}")
    I(f"v_lshlrev_b32 {v(vT)}, 7, {v(vT)}")
    I(f"v_lshrrev_b32 {v(vT+1)}, 1, {v(vT+1)}")
    I(f"v_lshl_add_u32 {v(vT)}, {v(vT+1)}, 6, {v(vT)}")
    I(f"v_bfe_u32 {v(vT+1)}, {v(vLANE)}, 4, 1")
    I(f"v_lshl_add_u32 {v(vT)}, {v(vT+1)}, 5, {v(vT)}")
    I(f"v_and_b32 {v(vT+1)}, 3, {v(vLANE)}")
    I(f"v_lshl_add_u32 {v(vT)}, {v(vT+1)}, 3, {v(vT)}")
    I(f"s_lshl_b32 {s(sT1)}, {s(sTI)}, 14")
    I(f"s_add_u32 {s(sT1)}, {s(sT1)}, {VR}")
    I(f"v_add_u32 {v(vVA)}, {s(sT1)}, {v(vT)}")
    I(f"v_xor_b32 {v(vVA+1)}, 64, {v(vVA)}")
    I(f"v_add_u32 {v(vPA)}, {PHI}, {v(vL16)}")
    lds_wait(str(FLG), 4, "phi")
    stamp("A phi all")
    for f in range(16):
        I(f"ds_read_b128 {v(vPH+4*f,4)}, {v(vPA)} offset:{1024*f}")
    def vread(kk):
        b = vVB + 8*(kk % 2)
        for dl in range(2):
            for ap in range(2):
                I(f"ds_read_b64_tr_b16 {v(b+4*dl+2*ap,2)}, {v(vVA+dl)} offset:{kk*2048 + ap*1024}")
    def mm(kk, first):
        b = vVB + 8*(kk % 2)
        for dl in range(2):
            for mt in range(2):
                acc = vAC + (dl*2 + mt)*16
                c = "0" if first else v(acc, 16)
                I(f"v_mfma_f32_32x32x16_bf16 {v(acc,16)}, {v(vPH+4*(kk*2+mt),4)}, {v(b+4*dl,4)}, {c}")
    I(f"s_lshl_b32 {s(sT2)}, {s(sTI)}, 2")
    I(f"s_add_u32 {s(sT2)}, {s(sT2)}, {FLG + 16}")
    lds_wait(s(sT2), 1, "v1", tmp=26)
    stamp("A V1 ready")
    vread(0)
    for kk in range(8):
        if kk == 3:
            I(f"s_waitcnt lgkmcnt(0)")
            mm(kk, False)
            I(f"s_add_u32 {s(sT2)}, {s(sT2)}, 16")
            lds_wait(s(sT2), 1, "v2", tmp=26)
            vread(4)
            continue
        if kk + 1 < 8:
            vread(kk + 1)
            I(f"s_waitcnt lgkmcnt(4)")
        else:
            I(f"s_waitcnt lgkmcnt(0)")
        mm(kk, kk == 0)
    stamp("A gemm2 done")
    if opt.fast:
        I(f"v_mov_b32 {v(vT+1)}, {FLG + 48}")
        I(f"ds_read_b32 {v(vT+2)}, {v(vT+1)}")
    C("z partial inputs (wave 0)")
    I(f"v_lshlrev_b32 {v(vT+3)}, 2, {v(vLANE)}")
    I(f"v_add_u32 {v(vT+4)}, {ZB}, {v(vT+3)}")
    for a in range(4): I(f"ds_read_b32 {v(vT+6+a)}, {v(vT+4)} offset:{256*a}")
    vPK = 128
    for j in range(4):
        for i in range(8):
            I(f"v_cvt_pk_bf16_f32 {v(vPK+8*j+i)}, {v(vAC+16*j+2*i)}, {v(vAC+16*j+2*i+1)}")
    I(f"s_lshl_b32 {s(sT1)}, {s(sTI)}, 13")
    I(f"v_add_u32 {v(vT)}, {s(sT1)}, {v(vL16)}")
    I(f"s_lshl_b32 {s(sSOFF)}, {s(sCH)}, 15")
    I(f"s_add_u32 {s(sT2)}, {s(sSOFF)}, 4096")
    I(f"s_waitcnt lgkmcnt(0)")
    if opt.fast:
        I(f"v_readfirstlane_b32 {s(sFAST)}, {v(vT+2)}")
        I(f"s_cmp_eq_u32 {s(sFAST)}, {s(sNONCE)}")
        I(f"s_cselect_b32 {s(sFAST)}, 1, 0")
    def st():
        for f in range(8):
            so = s(sSOFF) if f < 4 else s(sT2)
            I(f"buffer_store_dwordx4 {v(vPK+4*f,4)}, {v(vT)}, {s(rP,4)}, {so} offen offset:{(f%4)*1024}{pol()}")
    if opt.partplain: dual(st)
    else: st()
    I(f"s_cmp_eq_u32 {s(sTI)}, 0")
    I(f"s_cbranch_scc0 L_noz")
    I(f"v_add_f32 {v(vT+6)}, {v(vT+6)}, {v(vT+7)}")
    I(f"v_add_f32 {v(vT+8)}, {v(vT+8)}, {v(vT+9)}")
    I(f"v_add_f32 {v(vT+6)}, {v(vT+6)}, {v(vT+8)}")
    I(f"s_lshl_b32 {s(sSOFF)}, {s(sCH)}, 8")
    I(f"s_add_u32 {s(sSOFF)}, {s(sSOFF)}, {O_Z}")
    I(f"buffer_store_dword {v(vT+6)}, {v(vT+3)}, {s(rP,4)}, {s(sSOFF)} offen sc1")
    L("L_noz")
    C("addresses for the reduction: quarter tile a of tile 'chunk': fragment 2*chunk + (a>>1), lanes (a&1)*32 + (l&31); producer parity = l>>5")
    vR = 128
    I(f"s_lshl_b32 {s(sT1)}, {s(sCH)}, 11")
    I(f"s_lshl_b32 {s(sT2)}, {s(sTI)}, 9")
    I(f"s_add_u32 {s(sT3)}, {s(sT1)}, {s(sT2)}")
    I(f"v_and_b32 {v(vX)}, 31, {v(vLANE)}")
    I(f"v_lshlrev_b32 {v(vX)}, 4, {v(vX)}")
    I(f"v_add_u32 {v(vX)}, {s(sT3)}, {v(vX)}")
    I(f"v_lshrrev_b32 {v(vX+1)}, 5, {v(vLANE)}")
    I(f"v_lshl_add_u32 {v(vX+1)}, {v(vX+1)}, 15, {v(vX)}")
    I(f"s_waitcnt vmcnt(0)")
    stamp("A part drained")
    wave_flag(256)
    poll(256, "h1")
    stamp("A hop1")
    I(f"s_mov_b32 {s(sSOFF)}, 0")
    for c in range(8):
        I(f"buffer_load_dwordx4 {v(vR+4*c,4)}, {v(vX+1)}, {s(rP,4)}, {s(sSOFF)} offen sc1")
        if c < 7: I(f"s_add_u32 {s(sSOFF)}, {s(sSOFF)}, 65536")
    vZ = 192
    I(f"s_cmp_eq_u32 {s(sTI)}, 3")
    I(f"s_cbranch_scc0 L_noz2")
    I(f"s_mov_b32 {s(sSOFF)}, {O_Z}")
    for j in range(4):
        I(f"buffer_load_dwordx4 {v(vZ+4*j,4)}, {v(vL16)}, {s(rP,4)}, {s(sSOFF)} offen offset:{1024*j} sc1")
    L("L_noz2")
    vS = 176
    I(f"s_mov_b32 {s(sT1)}, 0x3f80")
    I(f"s_mov_b32 {s(sT2)}, 0x3f800000")
    for i in range(8): I(f"v_mov_b32 {v(vS+i)}, 0")
    C("(wave 3 has 4 younger loads in flight: its counted waits are conservative only if we wait for more, so wait per wave)")
    I(f"s_cmp_eq_u32 {s(sTI)}, 3")
    I(f"s_cbranch_scc1 L_red3")
    def red(extra):
        for c in range(8):
            I(f"s_waitcnt vmcnt({7-c+extra})")
            for i in range(4):
                I(f"v_dot2_f32_bf16 {v(vS+2*i)}, {v(vR+4*c+i)}, {s(sT1)}, {v(vS+2*i)}")
                I(f"v_dot2_f32_bf16 {v(vS+2*i+1)}, {v(vR+4*c+i)}, {s(sT2)}, {v(vS+2*i+1)}")
    red(0)
    I(f"s_branch L_redd")
    L("L_red3")
    red(4)
    L("L_redd")
    stamp("A red summed")
    for i in range(8): I(f"v_mov_b32 {v(vS+8+i)}, {v(vS+i)}")
    for i in range(8): I(f"v_permlane32_swap_b32 {v(vS+i)}, {v(vS+8+i)}")
    for i in range(8): I(f"v_add_f32 {v(vS+i)}, {v(vS+i)}, {v(vS+8+i)}")
    for i in range(4): I(f"v_cvt_pk_bf16_f32 {v(vS+i)}, {v(vS+2*i)}, {v(vS+2*i+1)}")
    I(f"s_mov_b32 {s(sSOFF)}, {O_F}")
    I(f"s_mov_b32 exec_hi, 0")
    dual(lambda: I(f"buffer_store_dwordx4 {v(vS,4)}, {v(vX)}, {s(rP,4)}, {s(sSOFF)} offen{pol()}"))
    I(f"s_mov_b64 exec, -1")
    C("z (wave 3): lane l holds m = 4*(l&15)..+3 of producer 4j + (l>>4)")
    I(f"s_cmp_eq_u32 {s(sTI)}, 3")
    I(f"s_cbranch_scc0 L_noz3")
    I(f"s_waitcnt vmcnt(1)")
    for i in range(4):
        I(f"v_add_f32 {v(vZ+i)}, {v(vZ+i)}, {v(vZ+4+i)}")
        I(f"v_add_f32 {v(vZ+8+i)}, {v(vZ+8+i)}, {v(vZ+12+i)}")
    for i in range(4): I(f"v_add_f32 {v(vZ+i)}, {v(vZ+i)}, {v(vZ+8+i)}")
    for i in range(4): I(f"v_mov_b32 {v(vZ+4+i)}, {v(vZ+i)}")
    for i in range(4): I(f"v_permlane32_swap_b32 {v(vZ+i)}, {v(vZ+4+i)}")
    for i in range(4): I(f"v_add_f32 {v(vZ+i)}, {v(vZ+i)}, {v(vZ+4+i)}")
    for i in range(4): I(f"v_mov_b32 {v(vZ+4+i)}, {v(vZ+i)}")
    for i in range(4): I(f"v_permlane16_swap_b32 {v(vZ+i)}, {v(vZ+4+i)}")
    for i in range(4): I(f"v_add_f32 {v(vZ+i)}, {v(vZ+i)}, {v(vZ+4+i)}")
    I(f"v_cvt_pk_bf16_f32 {v(vZ)}, {v(vZ)}, {v(vZ+1)}")
    I(f"v_cvt_pk_bf16_f32 {v(vZ+1)}, {v(vZ+2)}, {v(vZ+3)}")
    I(f"v_and_b32 {v(vZ+2)}, 15, {v(vLANE)}")
    I(f"v_lshlrev_b32 {v(vZ+2)}, 3, {v(vZ+2)}")
    I(f"v_add_u32 {v(vZ+2)}, {ZF}, {v(vZ+2)}")
    I(f"ds_write_b64 {v(vZ+2)}, {v(vZ,2)}")
    I(f"s_waitcnt lgkmcnt(0)")
    lds_set(str(FLG + 52))
    L("L_noz3")
    I(f"s_waitcnt vmcnt(0)")
    stamp("A reduced+drained")
    wave_flag(512)
    C("chunk 0 advances the epoch (all 16 workgroups of the head have read it)")
    I(f"s_cmp_eq_u32 {s(sCH)}, 0")
    I(f"s_cbranch_scc0 L_noep")
    I(f"s_cmp_eq_u32 {s(sTI)}, 1")
    I(f"s_cbranch_scc0 L_noep")
    I(f"s_mov_b64 exec, 1")
    I(f"v_mov_b32 {v(vT)}, 0")
    I(f"v_mov_b32 {v(vT+1)}, {s(sNONCE)}")
    I(f"s_mov_b32 {s(sT1)}, {O_FL}")
    I(f"buffer_store_dword {v(vT+1)}, {v(vT)}, {s(rP,4)}, {s(sT1)} offen sc1")
    I(f"s_mov_b64 exec, -1")
    L("L_noep")
    final_setup(True)
    poll(512, "h2")
    stamp("A hop2")
    C("gather the final kv fragments dt = 2a, 2a+1 into LDS")
    I(f"s_lshl_b32 {s(sT1)}, {s(sTI)}, 13")
    I(f"v_add_u32 {v(vX)}, {s(sT1)}, {v(vL16)}")
    I(f"s_mov_b32 {s(sSOFF)}, {O_F}")
    I(f"s_mov_b32 {s(sT2)}, {O_F + 4096}")
    for f in range(8):
        so = s(sSOFF) if f < 4 else s(sT2)
        I(f"buffer_load_dwordx4 {v(vR+4*f,4)}, {v(vX)}, {s(rP,4)}, {so} offen offset:{(f%4)*1024} sc1")
    I(f"v_add_u32 {v(vX+1)}, {KVF}, {v(vX)}")
    for f in range(8):
        I(f"s_waitcnt vmcnt({7-f})")
        I(f"ds_write_b128 {v(vX+1)}, {v(vR+4*f,4)} offset:{f*1024}")
    I(f"s_waitcnt lgkmcnt(0)")
    stamp("A kvf in lds")
    I(f"s_barrier")
    stamp("A B4")
    STI[0] = 18
    I(f"s_lshl_b32 {s(sT1)}, {s(sTI)}, 14")
    I(f"v_add_u32 {v(vT)}, {s(sT1)}, {v(vL16)}")
    for t in range(4):
        I(f"ds_read_b128 {v(vPQ+4*t,4)}, {v(vT)} offset:{t*1024}")
    I(f"s_lshl_b32 {s(sT1)}, {s(sTI)}, 8")
    I(f"s_add_u32 {s(sT1)}, {s(sT1)}, {RD}")
    I(f"v_lshlrev_b32 {v(vT+1)}, 2, {v(vLANE)}")
    I(f"v_add_u32 {v(vT+1)}, {s(sT1)}, {v(vT+1)}")
    I(f"ds_read_b32 {v(vRD)}, {v(vT+1)}")
    I(f"s_branch L_final")

vKA = 64; vAC3 = 128; vU = 48; vOP = 96
vRD, vOA, vKAa, vSW, vSR = 4, 6, 7, 8, 9
vST = 192

def final_setup(is_a):
    I(f"v_bfe_u32 {v(vU+1)}, {v(vLANE)}, 2, 1")
    I(f"v_lshlrev_b32 {v(vU+1)}, 4, {v(vU+1)}")
    I(f"v_bfe_u32 {v(vU+2)}, {v(vLANE)}, 3, 2")
    I(f"v_lshl_add_u32 {v(vU+1)}, {v(vU+2)}, 2, {v(vU+1)}")
    I(f"v_and_b32 {v(vU+2)}, 3, {v(vLANE)}")
    I(f"v_add_u32 {v(vU+1)}, {v(vU+1)}, {v(vU+2)}")
    I(f"v_and_b32 {v(vU+2)}, 32, {v(vLANE)}")
    I(f"v_add_u32 {v(vU+1)}, {v(vU+1)}, {v(vU+2)}")
    I(f"v_lshlrev_b32 {v(vU+1)}, 4, {v(vU+1)}")
    I(f"v_add_u32 {v(vKAa)}, {KVF + (16384 if is_a else 0)}, {v(vU+1)}")
    if is_a:
        I(f"s_lshl_b32 {s(sT2)}, {s(sTI)}, 13")
        I(f"s_add_u32 {s(sT2)}, {s(sT2)}, {OSA}")
    else:
        I(f"s_lshl_b32 {s(sT2)}, {s(sTI)}, 14")
        I(f"s_add_u32 {s(sT2)}, {s(sT2)}, 4096")
    I(f"v_and_b32 {v(vU+1)}, 31, {v(vLANE)}")
    I(f"v_and_b32 {v(vU+2)}, 7, {v(vLANE)}")
    I(f"v_and_b32 {v(vU+3)}, 1, {v(vLANE)}")
    I(f"v_lshl_or_b32 {v(vU+2)}, {v(vU+3)}, 3, {v(vU+2)}")
    I(f"v_lshrrev_b32 {v(vU+3)}, 5, {v(vLANE)}")
    I(f"v_lshlrev_b32 {v(vU+3)}, 1, {v(vU+3)}")
    I(f"v_xor_b32 {v(vU+2)}, {v(vU+2)}, {v(vU+3)}")
    I(f"v_lshlrev_b32 {v(vU+2)}, 4, {v(vU+2)}")
    I(f"v_lshl_add_u32 {v(vSW)}, {v(vU+1)}, 8, {v(vU+2)}")
    I(f"v_add_u32 {v(vSW)}, {s(sT2)}, {v(vSW)}")
    C("staging read: 8 rows x 128 B per instruction: row (l>>3) + 8i, piece 8p + (l&7), slot = piece ^ (row&15)")
    I(f"v_lshrrev_b32 {v(vU+1)}, 3, {v(vLANE)}")
    I(f"v_and_b32 {v(vU+2)}, 7, {v(vLANE)}")
    I(f"v_xor_b32 {v(vU+3)}, {v(vU+2)}, {v(vU+1)}")
    I(f"v_and_b32 {v(vSR)}, 1, {v(vU+1)}")
    I(f"v_lshl_or_b32 {v(vU+3)}, {v(vSR)}, 3, {v(vU+3)}")
    I(f"v_lshlrev_b32 {v(vU+3)}, 4, {v(vU+3)}")
    I(f"v_lshl_add_u32 {v(vSR)}, {v(vU+1)}, 8, {v(vU+3)}")
    I(f"v_add_u32 {v(vSR)}, {s(sT2)}, {v(vSR)}")
    I(f"v_lshlrev_b32 {v(vU+2)}, 4, {v(vU+2)}")
    I(f"v_lshl_add_u32 {v(vOA)}, {v(vU+1)}, 9, {v(vU+2)}")
    I(f"s_lshl_b32 {s(sT1)}, {s(sTI)}, 14")
    if is_a: I(f"s_add_u32 {s(sT1)}, {s(sT1)}, 256")
    I(f"v_add_u32 {v(vOA)}, {s(sT1)}, {v(vOA)}")

def team_b():
    C("================= team B =================")
    L("L_team_b")
    STI[0] = 2
    if opt.preread:
        C("bring the 2 KiB of the final kv image this workgroup writes into L2 (waves B0, B1: 1 KiB each)")
        I(f"s_cmp_lt_u32 {s(sTI)}, 2")
        I(f"s_cbranch_scc0 L_nopre")
        I(f"s_lshl_b32 {s(sT1)}, {s(sCH)}, 11")
        I(f"s_lshl_b32 {s(sT2)}, {s(sTI)}, 10")
        I(f"s_add_u32 {s(sT1)}, {s(sT1)}, {s(sT2)}")
        I(f"s_add_u32 {s(sT1)}, {s(sT1)}, {O_F}")
        I(f"buffer_load_dwordx4 {v(32,4)}, {v(vL16)}, {s(rP,4)}, {s(sT1)} offen")
        L("L_nopre")
    dma_v()
    I(f"s_waitcnt vmcnt(16)")
    I(f"s_barrier")
    stamp("B B1")
    read_omega()
    I(f"v_mov_b32 {v(vEPS)}, {s(sEPS)}")
    I(f"s_waitcnt lgkmcnt(0)")
    I(f"s_barrier")
    if opt.fast:
        I(f"s_cmp_eq_u32 {s(sTI)}, 0")
        I(f"s_cbranch_scc0 L_nochk0")
        I(f"s_load_dwordx16 {s(sPW,16)}, {s(sEPA,2)}, {O_FL + 128} glc")
        L("L_nochk0")
    I(f"s_lshl_b32 {s(sSOFF)}, {s(sTI)}, 14")
    for i in range(4): dma_row_instr(rQ, KQ, i)
    I(f"s_waitcnt vmcnt(12)")
    I(f"s_lshl_b32 {s(sT3)}, {s(sTI)}, 2")
    I(f"s_add_u32 {s(sT3)}, {s(sT3)}, {FLG + 16}")
    if opt.fast:
        I(f"s_cmp_eq_u32 {s(sTI)}, 0")
        I(f"s_cbranch_scc0 L_nochk1")
        I(f"s_waitcnt lgkmcnt(0)")
        I(f"s_mov_b32 {s(sT1)}, {s(sNONCE)}")
        I(f"s_not_b32 {s(sT2)}, {s(sNONCE)}")
        for j in range(16):
            I(f"s_cmp_eq_u32 {s(sPW+j)}, {s(sPRES)}")
            I(f"s_cselect_b32 {s(sT1)}, {s(sT1)}, {s(sT2)}")
        if opt.forceslow: I(f"s_mov_b32 {s(sT1)}, {s(sT2)}")
        lds_set(str(FLG + 48), val=s(sT1))
        I(f"s_waitcnt lgkmcnt(0)")
        L("L_nochk1")
    lds_set(s(sT3))
    stamp("B V1 landed")
    for i in range(4, 8): dma_row_instr(rQ, KQ, i)
    I(f"s_waitcnt vmcnt(8)")
    I(f"s_add_u32 {s(sT3)}, {s(sT3)}, 16")
    lds_set(s(sT3))
    stamp("B V2 landed")
    for i in range(8, 16): dma_row_instr(rQ, KQ, i)
    stamp("B q issued")
    I(f"s_waitcnt vmcnt(0)")
    stamp("B q landed")
    read_tile_frags()
    I(f"s_waitcnt lgkmcnt(0)")
    ssq()
    steps = ssq_reduce_steps()
    for t in range(16):
        c = "0" if t == 0 else v(vA1, 16)
        I(f"v_mfma_f32_32x32x16_bf16 {v(vA1,16)}, {v(W(0,t),4)}, {v(vKF+4*t,4)}, {c}")
        if 1 <= t <= 5:
            for x in steps[t-1]: I(x)
        if t == 6: I(f"v_mul_f32 {v(vSS)}, {s(sM132)}, {v(vSS)}")
        if not opt.mimicq:
            if t == 7: I(f"v_mul_f32 {v(vSS)}, {s(sLOG2E)}, {v(vSS)}")
            if t == 8: I(f"s_mov_b32 {s(sT2)}, 0x3eb8aa3b")
            if t == 9: I(f"v_mov_b32 {v(vSS+3)}, {s(sEPS)}")
    vY = 20
    vQ0 = 12
    vQ1 = 112
    def plain_ops(mt, dst):
        ops = []
        acc = lambda r: vA1 + 16*mt + r
        for g in range(2):
            for i in range(8): ops.append(f"v_fma_f32 {v(vY+i)}, {v(acc(8*g+i))}, {s(sT2)}, {v(vSS)}")
            for i in range(8): ops.append(f"v_exp_f32 {v(vY+i)}, {v(vY+i)}")
            for i in range(8): ops.append(f"v_fma_f32 {v(vY+i)}, {v(vY+i)}, {s(sC0125)}, {v(vSS+3)}")
            for i in range(4): ops.append(f"v_cvt_pk_bf16_f32 {v(dst+4*g+i)}, {v(vY+2*i)}, {v(vY+2*i+1)}")
        return ops
    if not opt.mimicq:
        ops0 = plain_ops(0, vQ0)
        k = 0
        for t in range(16):
            c = "0" if t == 0 else v(vA1 + 16, 16)
            I(f"v_mfma_f32_32x32x16_bf16 {v(vA1+16,16)}, {v(W(1,t),4)}, {v(vKF+4*t,4)}, {c}")
            if t >= 1:
                n = 4 if t < 15 else len(ops0) - k
                for x in ops0[k:k+n]: I(x)
                k += n
        stamp("B gemm1 done")
        for x in plain_ops(1, vPQ + 8): I(x)
        for i in range(8): I(f"v_mov_b32 {v(vPQ+i)}, {v(vQ0+i)}")
    else:
        for t in range(16):
            c = "0" if t == 0 else v(vA1 + 16, 16)
            I(f"v_mfma_f32_32x32x16_bf16 {v(vA1+16,16)}, {v(W(1,t),4)}, {v(vKF+4*t,4)}, {c}")
        stamp("B gemm1 done")
        I(f"v_mov_b32 {v(vEPS)}, {s(sEPS)}")
        I(f"v_cvt_pk_bf16_f32 {v(vSS)}, {v(vSS)}, 0")
        I(f"v_lshlrev_b32 {v(vNQ)}, 16, {v(vSS)}")
        for mt in range(2):
            pipeline_mimic(mt, lambda r: vNQ, vP4 + 8*mt)
        for i in range(16): I(f"v_mov_b32 {v(vPQ+i)}, {v(vP4+i)}")
    I(f"s_lshl_b32 {s(sT1)}, {s(sTI)}, 14")
    I(f"v_add_u32 {v(vX)}, {s(sT1)}, {v(vL16)}")
    for t in range(4):
        I(f"ds_write_b128 {v(vX)}, {v(vPQ+4*t,4)} offset:{t*1024}")
    stamp("B phiq done")
    final_setup(False)
    C("den = phi_q . z once z is there")
    vZF = 112; vDEN = 60
    lds_wait(str(FLG + 52), 1, "z")
    I(f"v_lshrrev_b32 {v(vDEN)}, 5, {v(vLANE)}")
    I(f"v_lshlrev_b32 {v(vDEN)}, 3, {v(vDEN)}")
    I(f"v_add_u32 {v(vDEN)}, {ZF}, {v(vDEN)}")
    for t in range(4):
        I(f"ds_read2_b64 {v(vZF+4*t,4)}, {v(vDEN)} offset0:{4*t} offset1:{4*t+2}")
    I(f"v_mov_b32 {v(vDEN+2)}, 0")
    I(f"v_mov_b32 {v(vDEN+3)}, 0")
    I(f"s_waitcnt lgkmcnt(0)")
    for i in range(16):
        I(f"v_dot2c_f32_bf16 {v(vDEN+2+(i&1))}, {v(vPQ+i)}, {v(vZF+i)}")
    I(f"v_add_f32 {v(vDEN)}, {v(vDEN+2)}, {v(vDEN+3)}")
    I(f"v_mov_b32 {v(vDEN+1)}, {v(vDEN)}")
    I(f"v_permlane32_swap_b32 {v(vDEN)}, {v(vDEN+1)}")
    I(f"v_add_f32 {v(vDEN)}, {v(vDEN)}, {v(vDEN+1)}")
    I(f"v_cvt_pk_bf16_f32 {v(vDEN)}, {v(vDEN)}, {v(vDEN)}")
    I(f"v_lshlrev_b32 {v(vDEN)}, 16, {v(vDEN)}")
    I(f"v_add_f32 {v(vDEN)}, {s(sEPS)}, {v(vDEN)}")
    I(f"v_cvt_pk_bf16_f32 {v(vDEN)}, {v(vDEN)}, {v(vDEN)}")
    I(f"v_lshlrev_b32 {v(vDEN)}, 16, {v(vDEN)}")
    I(f"v_rcp_f32 {v(vRD)}, {v(vDEN)}")
    I(f"v_fma_f32 {v(vDEN+1)}, -{v(vDEN)}, {v(vRD)}, 1.0")
    I(f"v_fma_f32 {v(vRD)}, {v(vDEN+1)}, {v(vRD)}, {v(vRD)}")
    I(f"s_lshl_b32 {s(sT1)}, {s(sTI)}, 8")
    I(f"s_add_u32 {s(sT1)}, {s(sT1)}, {RD}")
    I(f"v_lshlrev_b32 {v(vDEN)}, 2, {v(vLANE)}")
    I(f"v_add_u32 {v(vDEN)}, {s(sT1)}, {v(vDEN)}")
    I(f"ds_write_b32 {v(vDEN)}, {v(vRD)}")
    I(f"s_waitcnt lgkmcnt(0)")
    stamp("B den done")
    I(f"s_barrier")
    stamp("B B4")
    STI[0] = 18

def final():
    L("L_final")
    C("================= final =================")
    for d in range(4):
        for t in range(4):
            I(f"ds_read_b128 {v(vKA+16*(d%2)+4*t + (0 if d < 2 else 128),4)}, {v(vKAa)} offset:{(d*4+t)*1024}")
    KA = lambda d, t: vKA + 16*(d%2) + 4*t + (0 if d < 2 else 128)
    def mm(d):
        for t in range(4):
            acc = vAC3 + 16*d
            c = "0" if t == 0 else v(acc, 16)
            I(f"v_mfma_f32_32x32x16_bf16 {v(acc,16)}, {v(KA(d,t),4)}, {v(vPQ+4*t,4)}, {c}")
    def epi(d):
        acc = vAC3 + 16*d; op = vOP + 8*(d % 2)
        if opt.mimicnum:
            for i in range(8): I(f"v_cvt_pk_bf16_f32 {v(op+i)}, {v(acc+2*i)}, {v(acc+2*i+1)}")
            for i in range(8):
                I(f"v_lshlrev_b32 {v(acc+2*i)}, 16, {v(op+i)}")
                I(f"v_and_b32 {v(acc+2*i+1)}, {s(sMASKH)}, {v(op+i)}")
        for i in range(8): I(f"v_pk_mul_f32 {v(acc+2*i,2)}, {v(acc+2*i,2)}, {v(vRD,2)} op_sel_hi:[1,0]")
        for i in range(8): I(f"v_cvt_pk_bf16_f32 {v(op+i)}, {v(acc+2*i)}, {v(acc+2*i+1)}")
        for u in range(2):
            x = 64*d + 16*u
            if x:
                I(f"v_xor_b32 {v(vU+u)}, {x}, {v(vSW)}")
                I(f"ds_write_b128 {v(vU+u)}, {v(op+4*u,4)}")
            else:
                I(f"ds_write_b128 {v(vSW)}, {v(op+4*u,4)}")
    def out(p):
        for i in range(4):
            x = 128*p
            off = 2048*i
            if x:
                I(f"v_xor_b32 {v(vU+4+i)}, {x}, {v(vSR)}")
                I(f"ds_read_b128 {v(vST+16*p+4*i,4)}, {v(vU+4+i)} offset:{off}")
            else:
                I(f"ds_read_b128 {v(vST+16*p+4*i,4)}, {v(vSR)} offset:{off}")
        if p == 0:
            I(f"s_mov_b32 {s(sSOFF)}, 0")
            I(f"s_mov_b32 {s(sT1)}, 4096")
            I(f"s_mov_b32 {s(sT2)}, 8192")
            I(f"s_mov_b32 {s(sT3)}, 12288")
        so = [s(sSOFF), s(sT1), s(sT2), s(sT3)]
        for i in range(4):
            I(f"s_waitcnt lgkmcnt({3-i})")
            I(f"buffer_store_dwordx4 {v(vST+16*p+4*i,4)}, {v(vOA)}, {s(rO,4)}, {so[i]} offen offset:{128*p}{opt.ost}")
    I(f"s_waitcnt lgkmcnt(12)")
    mm(0)
    I(f"s_waitcnt lgkmcnt(8)")
    mm(1)
    I(f"s_waitcnt lgkmcnt(4)")
    mm(2)
    epi(0)
    I(f"s_waitcnt lgkmcnt(2)")
    mm(3)
    epi(1)
    I(f"s_waitcnt lgkmcnt(0)")
    out(0)
    epi(2)
    epi(3)
    I(f"s_waitcnt lgkmcnt(0)")
    out(1)
    stamp("stores issued")
    if opt.stamps: I("s_waitcnt vmcnt(0)")
    stamp("stores done")
    stamps_flush("f")

def build():
    common_start()
    I(f"s_cmp_ge_u32 {s(sWAVE)}, 4")
    I(f"s_cbranch_scc1 L_team_b")
    team_a()
    team_b()
    final()
    L("L_end")
    I("s_endpgm")
    body = A.render()
    hdr = f"""; fused RFA linear attention: 256 workgroups (one per CU) x 8 waves
; @launch grid=(256,1,1) block=(512,1,1) lds={LDS_BYTES}
.amdgcn_target "amdgcn-amd-amdhsa--gfx950"
.text
.globl {NAME}
.p2align 8
.type {NAME},@function
{NAME}:
"""
    ftr = f"""
.section .rodata,"a"
.p2align 6
.amdhsa_kernel {NAME}
  .amdhsa_next_free_vgpr 256
  .amdhsa_next_free_sgpr 102
  .amdhsa_accum_offset 256
  .amdhsa_group_segment_fixed_size 0
  .amdhsa_kernarg_size 56
  .amdhsa_user_sgpr_count 2
  .amdhsa_user_sgpr_kernarg_segment_ptr 1
  .amdhsa_system_sgpr_workgroup_id_x 1
  .amdhsa_float_denorm_mode_32 3
.end_amdhsa_kernel
"""
    return hdr + body + ftr

if __name__ == "__main__":
    out = sys.argv[1]
    for a in sys.argv[2:]:
        if a == "stamps": opt.stamps = True
        elif a == "nont": opt.nt = False
        elif a == "nofast": opt.fast = False
        elif a == "forceslow": opt.forceslow = True
        elif a == "nopretouch": opt.pretouch = False
        elif a == "mimicq": opt.mimicq = True
        elif a == "partplain": opt.partplain = True
        elif a == "nopreread": opt.preread = False
        elif a == "mimicnum": opt.mimicnum = True
        elif a.startswith("dbgwg="): opt.dbgwg = int(a.split("=")[1])
        elif a.startswith("dbgwave="): opt.dbgwave = int(a.split("=")[1])
        elif a.startswith("ost="): opt.ost = " " + a.split("=")[1].replace("+", " ")
        else: raise SystemExit("unknown option " + a)
    txt = build()
    open(out, "w").write(txt)
    if opt.stamps: json.dump(STN, open(out + ".stamps.json", "w"))
    print("wrote", out, "nops inserted:", A.nops, "lines", txt.count("\n"))
```

```python
import sys, json, struct
from asmlib import *

NAME = "standalone__linear_kernel_rfa__prompt_kernel"
class O: pass
opt = O()
opt.spin_limit = 300000
opt.stamps = False
opt.nt = True
opt.fast = True
opt.forceslow = False
opt.dbgwg = None
opt.dbgwave = 0
opt.ost = ""
opt.pretouch = True
opt.partplain = False
opt.preread = True
opt.codepf = False
opt.mimicq = False
opt.mimicnum = False

KQ = 0
VR = 65536
WR = 131072
PHI = WR
ZB = WR + 16384
ZF = WR + 17408
FLG = WR + 17664
RD = WR + 18432
KVF = VR
OSA = VR + 32768
LDS_BYTES = 163840
HS = 1 << 20
O_PART = 0
O_F = 524288
O_Z = 524288 + 32768
O_FL = 524288 + 32768 + 4096
WS_ST = 20 << 20

sQp, sKp, sVp, sWp, sOp, sDp, sSp = 4, 6, 8, 10, 12, 14, 16
sHEAD, sCH = 18, 19
rK, rV, rQ, rW, rO, rP, rL = 20, 24, 28, 32, 36, 40, 52
sWAVE, sTI = 56, 57
sT0, sT1, sT2, sT3 = 58, 59, 60, 61
sNONCE, sFAST = 62, 63
sC025L, sC025H, sLOG2E, sC0125, sMASKH, sONES = 64, 65, 66, 67, 68, 69
sSPIN, sSOFF, sEPS, sM132 = 70, 71, 72, 73
sXCC, sPRES = 94, 95
sEPA = 96
sPW = 40
sJUNK = 44

A = Asm()
I, L, C = A.I, A.L, A.C
STI = [0]; STN = []
def stamp(name=""):
    if not opt.stamps: return
    C("stamp %s" % name)
    I("s_memrealtime s[98:99]")
    I("s_waitcnt lgkmcnt(0)")
    I("s_mov_b32 s%d, s98" % (74 + STI[0]))
    STN.append((STI[0], name)); STI[0] += 1
def stamps_flush(tag):
    if not opt.stamps: return
    I("s_and_b32 s97, s56, 3"); I("s_cmp_eq_u32 s97, 0"); I("s_cbranch_scc0 L_nost_%s" % tag)
    I("s_lshr_b32 s97, s56, 2"); I("s_lshl_b32 s96, s2, 1"); I("s_add_u32 s96, s96, s97"); I("s_lshl_b32 s96, s96, 7")
    I("s_add_u32 s96, s96, %d" % WS_ST)
    I("s_add_u32 s40, s16, s96"); I("s_addc_u32 s41, s17, 0"); I("s_and_b32 s41, s41, 0xffff"); I("s_mov_b32 s42, 128"); I("s_mov_b32 s43, 0x20000")
    I("s_mov_b64 exec, 1"); I("v_mov_b32 v1, 0")
    for i in range(20):
        I("v_mov_b32 v2, s%d" % (74 + i)); I("buffer_store_dword v2, v1, s[40:43], 0 offen offset:%d" % (4 * i))
    I("s_waitcnt vmcnt(0)")
    if opt.dbgwg is not None:
        I("s_cmp_eq_u32 s2, %d" % opt.dbgwg); I("s_cbranch_scc0 L_nodbg")
        I("s_cmp_eq_u32 s56, %d" % opt.dbgwave); I("s_cbranch_scc0 L_nodbg")
        I("s_mov_b32 s40, s14"); I("s_and_b32 s41, s15, 0xffff"); I("s_mov_b32 s42, 256")
        I("s_sub_u32 s97, s74, s100"); I("v_mov_b32 v2, s97"); I("buffer_store_dword v2, v1, s[40:43], 0 offen offset:60")
        idx = [i for i in range(1, 14)] + [18, 19]
        for j, i in enumerate(idx):
            I("s_sub_u32 s97, s%d, s74" % (74 + i)); I("v_mov_b32 v2, s97"); I("buffer_store_dword v2, v1, s[40:43], 0 offen offset:%d" % (4 * j))
        I("s_waitcnt vmcnt(0)")
        L("L_nodbg")
    I("s_mov_b64 exec, -1")
    L("L_nost_%s" % tag)

def srd(r, ptr, off_s, size):
    if off_s is None:
        I(f"s_mov_b32 {s(r)}, {s(ptr)}")
        I(f"s_and_b32 {s(r+1)}, {s(ptr+1)}, 0xffff")
    else:
        I(f"s_add_u32 {s(r)}, {s(ptr)}, {s(off_s)}")
        I(f"s_addc_u32 {s(r+1)}, {s(ptr+1)}, 0")
        I(f"s_and_b32 {s(r+1)}, {s(r+1)}, 0xffff")
    I(f"s_mov_b32 {s(r+2)}, {size}")
    I(f"s_mov_b32 {s(r+3)}, 0x20000")

NT = lambda: " nt" if opt.nt else ""
vLANE = 0
vA = 2
vD = 10
vL16 = 11
vT = 12
vSS = 28
vW = 128
def W(mt, t): return vW + mt * 64 + t * 4
vKF = 32
vA1 = 96
vP4 = 12
vNQ = 32
vNK = 48
vONE = 52
vP1 = 56
vTT = 60
vEPS = 68
vZP = 69
vX = 72
vPQ = 32

POL = [" sc1"]
def pol(): return POL[0]
DUAL = [0]
def dual(fn):
    if not opt.fast:
        POL[0] = " sc1"; fn(); return
    DUAL[0] += 1; n = DUAL[0]
    I(f"s_cmp_lg_u32 {s(sFAST)}, 0")
    I(f"s_cbranch_scc1 L_fast{n}")
    POL[0] = " sc1"; fn()
    I(f"s_branch L_join{n}")
    L(f"L_fast{n}")
    POL[0] = ""; fn()
    L(f"L_join{n}")
    POL[0] = " sc1"

def prologue():
    if opt.stamps: I("s_memrealtime s[100:101]")
    I(f"s_cmp_ge_u32 s2, 256")
    I(f"s_cbranch_scc1 L_end")
    I(f"s_load_dwordx4 s[4:7], s[0:1], 0")
    I(f"s_load_dwordx4 s[8:11], s[0:1], 16")
    I(f"s_load_dwordx4 s[12:15], s[0:1], 32")
    I(f"s_load_dwordx2 s[16:17], s[0:1], 48")
    if opt.codepf:
        C("pull the kernel's own code into L2 while the kernel arguments are on their way (128 B per lane)")
        I(f"s_getpc_b64 s[20:21]")
        I(f"v_and_b32 v1, 63, v0")
        I(f"v_lshlrev_b32 v1, 7, v1")
        I(f"global_load_dword v2, v1, s[20:21]")
        I(f"v_add_u32 v1, 8192, v1")
        I(f"v_min_u32 v1, 11648, v1")
        I(f"global_load_dword v3, v1, s[20:21]")
    I(f"v_lshrrev_b32 v1, 6, v0")
    I(f"v_and_b32 {v(vLANE)}, 63, v0")
    I(f"v_readfirstlane_b32 {s(sWAVE)}, v1")
    I(f"s_and_b32 {s(sT0)}, s2, 7")
    I(f"s_lshr_b32 {s(sT1)}, s2, 3")
    I(f"s_lshr_b32 {s(sHEAD)}, {s(sT1)}, 4")
    I(f"s_lshl_b32 {s(sT0)}, {s(sT0)}, 1")
    I(f"s_add_u32 {s(sHEAD)}, {s(sHEAD)}, {s(sT0)}")
    I(f"s_and_b32 {s(sCH)}, {s(sT1)}, 15")
    I(f"s_and_b32 {s(sTI)}, {s(sWAVE)}, 3")
    I(f"v_lshrrev_b32 {v(vT)}, 5, {v(vLANE)}")
    I(f"v_and_b32 {v(vT+1)}, 31, {v(vLANE)}")
    I(f"v_xor_b32 {v(vT+1)}, {v(vT+1)}, {v(vT)}")
    I(f"v_lshlrev_b32 {v(vT+1)}, 4, {v(vT+1)}")
    I(f"v_lshl_add_u32 {v(vD)}, {v(vT)}, 9, {v(vT+1)}")
    I(f"v_lshlrev_b32 {v(vL16)}, 4, {v(vLANE)}")
    I(f"s_lshl_b32 {s(sT0)}, {s(sHEAD)}, 20")
    I(f"s_lshl_b32 {s(sT1)}, {s(sCH)}, 16")
    I(f"s_add_u32 {s(sT0)}, {s(sT0)}, {s(sT1)}")
    I(f"s_waitcnt lgkmcnt(0)")
    srd(rW, sWp, None, 32768)
    srd(rK, sKp, sT0, 65536)

def dma_omega():
    I(f"s_and_b32 {s(sT1)}, {s(sWAVE)}, 1")
    I(f"s_lshl_b32 {s(sT1)}, {s(sT1)}, 7")
    I(f"s_lshl_b32 {s(sSOFF)}, {s(sWAVE)}, 12")
    I(f"s_add_u32 m0, {s(sSOFF)}, {WR}")
    for i in range(4):
        I(f"s_add_u32 {s(sT2)}, {s(sT1)}, {32*i}")
        I(f"v_xor_b32 {v(vT)}, {s(sT2)}, {v(vD)}")
        I(f"buffer_load_dwordx4 {v(vT)}, {s(rW,4)}, {s(sSOFF)} offen offset:{1024*i} lds")

def dma_row_instr(r, base_lds, i):
    if i % 4 == 0:
        if i: I(f"s_add_u32 {s(sSOFF)}, {s(sSOFF)}, 4096")
        I(f"s_add_u32 m0, {s(sSOFF)}, {base_lds}")
    if i & 7:
        I(f"v_xor_b32 {v(vT)}, {32*(i&7)}, {v(vD)}")
        I(f"buffer_load_dwordx4 {v(vT)}, {s(r,4)}, {s(sSOFF)} offen offset:{1024*(i%4)}{NT()} lds")
    else:
        I(f"buffer_load_dwordx4 {v(vD)}, {s(r,4)}, {s(sSOFF)} offen offset:{1024*(i%4)}{NT()} lds")

def dma_k():
    I(f"s_lshl_b32 {s(sSOFF)}, {s(sWAVE)}, 13")
    for i in range(8): dma_row_instr(rK, KQ, i)

def dma_v():
    C("team B wave b: V slice b (128 B columns), all 128 rows, 16 instructions of 8 rows")
    I(f"v_lshrrev_b32 {v(vT+2)}, 4, {v(vLANE)}")
    I(f"v_and_b32 {v(vT+2)}, 1, {v(vT+2)}")
    I(f"v_lshlrev_b32 {v(vT+2)}, 2, {v(vT+2)}")
    I(f"v_and_b32 {v(vT+1)}, 7, {v(vLANE)}")
    I(f"v_xor_b32 {v(vT+2)}, {v(vT+2)}, {v(vT+1)}")
    I(f"v_lshlrev_b32 {v(vT+2)}, 4, {v(vT+2)}")
    I(f"v_lshrrev_b32 {v(vT+1)}, 3, {v(vLANE)}")
    I(f"v_lshl_add_u32 {v(vT+2)}, {v(vT+1)}, 9, {v(vT+2)}")
    I(f"s_lshl_b32 {s(sSOFF)}, {s(sTI)}, 7")
    I(f"s_lshl_b32 {s(sT1)}, {s(sTI)}, 14")
    I(f"s_add_u32 {s(sT1)}, {s(sT1)}, {VR}")
    for i in range(16):
        I(f"s_add_u32 m0, {s(sT1)}, {1024*i}")
        if i: I(f"s_add_u32 {s(sSOFF)}, {s(sSOFF)}, 4096")
        I(f"buffer_load_dwordx4 {v(vT+2)}, {s(rV,4)}, {s(sSOFF)} offen{NT()} lds")

def tile_addrs():
    I(f"v_and_b32 {v(vT)}, 31, {v(vLANE)}")
    I(f"v_lshrrev_b32 {v(vT+1)}, 5, {v(vLANE)}")
    I(f"v_and_b32 {v(vT+2)}, 15, {v(vLANE)}")
    I(f"v_xor_b32 {v(vT+2)}, {v(vT+2)}, {v(vT+1)}")
    I(f"v_lshlrev_b32 {v(vT+2)}, 4, {v(vT+2)}")
    I(f"v_lshl_add_u32 {v(vT+2)}, {v(vT)}, 9, {v(vT+2)}")
    I(f"v_add_u32 {v(vA)}, {WR}, {v(vT+2)}")
    for x in range(1, 8):
        I(f"v_xor_b32 {v(vA+x)}, {32*x}, {v(vA)}")

def read_omega():
    for t in range(16):
        for mt in range(2):
            I(f"ds_read_b128 {v(W(mt,t),4)}, {v(vA+(t&7))} offset:{(t>>3)*256 + mt*16384}")
    I(f"s_lshl_b32 {s(sT1)}, {s(sTI)}, 14")
    I(f"s_sub_u32 {s(sT1)}, {s(sT1)}, {WR - KQ}")
    for x in range(8):
        I(f"v_add_u32 {v(vA+x)}, {s(sT1)}, {v(vA+x)}")

def consts():
    I(f"s_mov_b32 {s(sC025L)}, 0x00003e80")
    I(f"s_mov_b32 {s(sC025H)}, 0x3e800000")
    I(f"s_mov_b32 {s(sLOG2E)}, 0x3fb8aa3b")
    I(f"s_mov_b32 {s(sC0125)}, 0x3e000000")
    I(f"s_mov_b32 {s(sMASKH)}, 0xffff0000")
    I(f"s_mov_b32 {s(sONES)}, 0x3f803f80")
    I(f"s_mov_b32 {s(sEPS)}, 0x358637bd")
    I(f"s_mov_b32 {s(sM132)}, 0xbd000000")

def read_tile_frags():
    for t in range(16):
        I(f"ds_read_b128 {v(vKF+4*t,4)}, {v(vA+(t&7))} offset:{(t>>3)*256}")
    for i in range(4): I(f"v_mov_b32 {v(vSS+i)}, 0")

def ssq():
    for t in range(16):
        for i in range(4):
            I(f"v_dot2c_f32_bf16 {v(vSS+i)}, {v(vKF+4*t+i)}, {v(vKF+4*t+i)}")

def ssq_reduce_steps():
    return [
        [f"v_add_f32 {v(vSS)}, {v(vSS)}, {v(vSS+1)}", f"v_add_f32 {v(vSS+2)}, {v(vSS+2)}, {v(vSS+3)}"],
        [f"v_add_f32 {v(vSS)}, {v(vSS)}, {v(vSS+2)}"],
        [f"v_mov_b32 {v(vSS+1)}, {v(vSS)}"],
        [f"v_permlane32_swap_b32 {v(vSS)}, {v(vSS+1)}"],
        [f"v_add_f32 {v(vSS)}, {v(vSS)}, {v(vSS+1)}"],
    ]

def pipeline_mimic(mt, nq_of, p4base):
    for g in range(2):
        prs = [4*g + i for i in range(4)]
        acc = lambda r: vA1 + 16*mt + r
        for i, p in enumerate(prs): I(f"v_cvt_pk_bf16_f32 {v(vP1+i)}, {v(acc(2*p))}, {v(acc(2*p+1))}")
        for i, p in enumerate(prs):
            I(f"v_dot2_f32_bf16 {v(vTT+2*i)}, {v(vP1+i)}, {s(sC025L)}, {v(nq_of(2*p))}")
            I(f"v_dot2_f32_bf16 {v(vTT+2*i+1)}, {v(vP1+i)}, {s(sC025H)}, {v(nq_of(2*p+1))}")
        for i, p in enumerate(prs): I(f"v_cvt_pk_bf16_f32 {v(vP1+i)}, {v(vTT+2*i)}, {v(vTT+2*i+1)}")
        for i, p in enumerate(prs):
            I(f"v_lshlrev_b32 {v(vTT+2*i)}, 16, {v(vP1+i)}")
            I(f"v_and_b32 {v(vTT+2*i+1)}, {s(sMASKH)}, {v(vP1+i)}")
        for i in range(8): I(f"v_mul_f32 {v(vTT+i)}, {s(sLOG2E)}, {v(vTT+i)}")
        for i in range(8): I(f"v_exp_f32 {v(vTT+i)}, {v(vTT+i)}")
        for i in range(8): I(f"v_fma_f32 {v(vTT+i)}, {v(vTT+i)}, {s(sC0125)}, {v(vEPS)}")
        for i, p in enumerate(prs): I(f"v_cvt_pk_bf16_f32 {v(p4base+p)}, {v(vTT+2*i)}, {v(vTT+2*i+1)}")

def lds_wait(addr, n, tag, tmp=None):
    tmp = vX + 4 if tmp is None else tmp
    I(f"s_mov_b32 {s(sSPIN)}, 0")
    if n == 1:
        I(f"v_mov_b32 {v(tmp)}, {addr}")
    else:
        I(f"v_and_b32 {v(tmp)}, {n-1}, {v(vLANE)}")
        I(f"v_lshlrev_b32 {v(tmp)}, 2, {v(tmp)}")
        I(f"v_add_u32 {v(tmp)}, {addr}, {v(tmp)}")
    L(f"L_ls_{tag}")
    I(f"ds_read_b32 {v(tmp+1)}, {v(tmp)}")
    I(f"s_waitcnt lgkmcnt(0)")
    I(f"v_cmp_ne_u32 vcc, {s(sNONCE)}, {v(tmp+1)}")
    I(f"s_cbranch_vccz L_lsd_{tag}")
    I(f"s_add_u32 {s(sSPIN)}, {s(sSPIN)}, 1")
    I(f"s_cmp_lt_u32 {s(sSPIN)}, {opt.spin_limit*16}")
    I(f"s_cbranch_scc1 L_ls_{tag}")
    L(f"L_lsd_{tag}")

def lds_set(addr, tmp=None, val=None):
    tmp = vX + 4 if tmp is None else tmp
    I(f"v_mov_b32 {v(tmp)}, {addr}")
    I(f"v_mov_b32 {v(tmp+1)}, {s(sNONCE) if val is None else val}")
    I(f"ds_write_b32 {v(tmp)}, {v(tmp+1)}")

def wave_flag(off):
    I(f"s_lshl_b32 {s(sT1)}, {s(sCH)}, 4")
    I(f"s_lshl_b32 {s(sT2)}, {s(sTI)}, 2")
    I(f"s_add_u32 {s(sT1)}, {s(sT1)}, {s(sT2)}")
    I(f"s_add_u32 {s(sT1)}, {s(sT1)}, {O_FL + off}")
    I(f"s_mov_b64 exec, 1")
    I(f"v_mov_b32 {v(vT)}, 0")
    I(f"v_mov_b32 {v(vT+1)}, {s(sNONCE)}")
    dual(lambda: I(f"buffer_store_dword {v(vT+1)}, {v(vT)}, {s(rP,4)}, {s(sT1)} offen{pol()}"))
    I(f"s_mov_b64 exec, -1")

def poll(off, tag):
    I(f"s_mov_b32 {s(sSPIN)}, 0")
    I(f"s_mov_b32 {s(sT2)}, {O_FL + off}")
    I(f"v_lshlrev_b32 {v(vT)}, 2, {v(vLANE)}")
    L(f"L_spin_{tag}")
    I(f"buffer_load_dword {v(vT+1)}, {v(vT)}, {s(rP,4)}, {s(sT2)} offen sc1")
    I(f"s_waitcnt vmcnt(0)")
    I(f"v_cmp_ne_u32 vcc, {s(sNONCE)}, {v(vT+1)}")
    I(f"s_cbranch_vccz L_spun_{tag}")
    I(f"s_add_u32 {s(sSPIN)}, {s(sSPIN)}, 1")
    I(f"s_cmp_lt_u32 {s(sSPIN)}, {opt.spin_limit}")
    I(f"s_cbranch_scc1 L_spin_{tag}")
    L(f"L_spun_{tag}")

def common_start():
    prologue()
    stamp("start")
    dma_omega()
    I(f"s_barrier")
    dma_k()
    C("scalar side: epoch word, translation pre-touch, descriptors")
    I(f"s_lshl_b32 {s(sT1)}, {s(sHEAD)}, 20")
    I(f"s_add_u32 {s(sEPA)}, {s(sSp)}, {s(sT1)}")
    I(f"s_addc_u32 {s(sEPA+1)}, {s(sSp+1)}, 0")
    I(f"s_load_dword {s(sNONCE)}, {s(sEPA,2)}, {O_FL}")
    if opt.preread:
        C("bring the flag lines of this head into L2 (a store to an absent line makes the next read a memory fill)")
        for j in range(8):
            I(f"s_load_dword {s(sJUNK+3)}, {s(sEPA,2)}, {O_FL + 256 + 64*j}")
    srd(rV, sVp, sT0, 65536)
    srd(rQ, sQp, sT0, 65536)
    srd(rO, sOp, sT0, 65536)
    if opt.pretouch:
        I(f"s_load_dword {s(sJUNK)}, {s(rQ,2)}, 0")
        I(f"s_load_dword {s(sJUNK+1)}, {s(rO,2)}, 0")
        I(f"s_load_dword {s(sJUNK+2)}, {s(rV,2)}, 0")
    tile_addrs()
    consts()
    stamp("K issued")
    I(f"s_waitcnt vmcnt(8) lgkmcnt(0)")
    I(f"s_add_u32 {s(sNONCE)}, {s(sNONCE)}, 1")
    I(f"s_lshl_b32 {s(sT1)}, {s(sHEAD)}, 20")
    srd(rP, sSp, sT1, HS)
    I(f"s_getreg_b32 {s(sXCC)}, hwreg(HW_REG_XCC_ID, 0, 4)")
    I(f"s_lshl_b32 {s(sPRES)}, {s(sNONCE)}, 4")
    I(f"s_add_u32 {s(sPRES)}, {s(sPRES)}, {s(sXCC)}")
    I(f"s_barrier")

def team_a():
    C("================= team A =================")
    if opt.fast:
        C("presence word: nonce*16 + XCC id (wave 0)")
        I(f"s_cmp_eq_u32 {s(sTI)}, 0")
        I(f"s_cbranch_scc0 L_nopres")
        I(f"s_mov_b64 exec, 1")
        I(f"s_lshl_b32 {s(sT1)}, {s(sCH)}, 2")
        I(f"s_add_u32 {s(sT1)}, {s(sT1)}, {O_FL + 128}")
        I(f"v_mov_b32 {v(vT)}, 0")
        I(f"v_mov_b32 {v(vT+1)}, {s(sPRES)}")
        I(f"buffer_store_dword {v(vT+1)}, {v(vT)}, {s(rP,4)}, {s(sT1)} offen sc1")
        I(f"s_mov_b64 exec, -1")
        L("L_nopres")
    read_omega()
    I(f"v_mov_b32 {v(vEPS)}, {s(sEPS)}")
    C("K landed: own loads only (the presence store of wave 0 may still be in flight)")
    I(f"s_waitcnt vmcnt(1) lgkmcnt(0)")
    I(f"s_cmp_eq_u32 {s(sTI)}, 0")
    I(f"s_cbranch_scc1 L_k0")
    I(f"s_waitcnt vmcnt(0)")
    L("L_k0")
    I(f"s_barrier")
    stamp("A B1 K landed")
    read_tile_frags()
    I(f"s_waitcnt lgkmcnt(0)")
    I(f"s_barrier")
    ssq()
    steps = ssq_reduce_steps()
    for t in range(16):
        for mt in range(2):
            c = "0" if t == 0 else v(vA1 + 16*mt, 16)
            I(f"v_mfma_f32_32x32x16_bf16 {v(vA1+16*mt,16)}, {v(vKF+4*t,4)}, {v(W(mt,t),4)}, {c}")
        if 1 <= t <= 5:
            for x in steps[t-1]: I(x)
        if t == 6:
            I(f"v_mul_f32 {v(vSS)}, {s(sM132)}, {v(vSS)}")
            I(f"v_lshrrev_b32 {v(vSS+1)}, 5, {v(vLANE)}")
        if t == 7:
            I(f"v_cmp_eq_u32 vcc, 0, {v(vSS+1)}")
        if t == 8:
            I(f"v_cndmask_b32 {v(vSS)}, 0, {v(vSS)}, vcc")
        if t == 9:
            I(f"v_cvt_pk_bf16_f32 {v(vSS)}, {v(vSS)}, 0")
    stamp("A gemm1 done")
    I(f"v_mov_b32 {v(vEPS)}, {s(sEPS)}")
    I(f"v_mov_b32 {v(vNK)}, {v(vSS)}")
    I(f"v_mov_b32 {v(vONE)}, 0x3f80")
    for i in range(1, 4):
        I(f"v_mov_b32 {v(vONE+i)}, 0")
        I(f"v_mov_b32 {v(vNK+i)}, 0")
    I(f"v_mfma_f32_32x32x16_bf16 {v(vNQ,16)}, {v(vNK,4)}, {v(vONE,4)}, 0")
    I(f"v_lshl_add_u32 {v(vX)}, {s(sTI)}, 12, {v(vL16)}")
    I(f"v_add_u32 {v(vX)}, {PHI}, {v(vX)}")
    for mt in range(2):
        pipeline_mimic(mt, lambda r: vNQ + r, vP4 + 8*mt)
        for u in range(2):
            I(f"ds_write_b128 {v(vX)}, {v(vP4+8*mt+4*u,4)} offset:{u*2048 + mt*1024}")
        I(f"v_mov_b32 {v(vZP+mt)}, 0")
        for i in range(8):
            I(f"v_dot2c_f32_bf16 {v(vZP+mt)}, {s(sONES)}, {v(vP4+8*mt+i)}")
    for mt in range(2): I(f"v_mov_b32 {v(vX+1+mt)}, {v(vZP+mt)}")
    for mt in range(2): I(f"v_permlane32_swap_b32 {v(vZP+mt)}, {v(vX+1+mt)}")
    for mt in range(2): I(f"v_add_f32 {v(vZP+mt)}, {v(vZP+mt)}, {v(vX+1+mt)}")
    I(f"v_and_b32 {v(vX+1)}, 31, {v(vLANE)}")
    I(f"v_lshlrev_b32 {v(vX+1)}, 2, {v(vX+1)}")
    I(f"s_lshl_b32 {s(sT1)}, {s(sTI)}, 8")
    I(f"s_add_u32 {s(sT1)}, {s(sT1)}, {ZB}")
    I(f"v_add_u32 {v(vX+1)}, {s(sT1)}, {v(vX+1)}")
    I(f"ds_write_b32 {v(vX+1)}, {v(vZP)}")
    I(f"ds_write_b32 {v(vX+1)}, {v(vZP+1)} offset:128")
    I(f"s_waitcnt lgkmcnt(0)")
    stamp("A phi written")
    I(f"s_lshl_b32 {s(sT2)}, {s(sTI)}, 2")
    I(f"s_add_u32 {s(sT2)}, {s(sT2)}, {FLG}")
    lds_set(s(sT2))
    C("transposing-read addresses of the V slice (computed while waiting)")
    vPH = 128; vAC = 48; vVB = 112; vVA = 28; vPA = 30
    I(f"v_lshrrev_b32 {v(vT)}, 5, {v(vLANE)}")
    I(f"v_lshlrev_b32 {v(vT)}, 2, {v(vT)}")
    I(f"v_bfe_u32 {v(vT+1)}, {v(vLANE)}, 2, 2")
    I(f"v_add_u32 {v(vT)}, {v(vT)}, {v(vT+1)}")
    I(f"v_lshlrev_b32 {v(vT)}, 7, {v(vT)}")
    I(f"v_lshrrev_b32 {v(vT+1)}, 1, {v(vT+1)}")
    I(f"v_lshl_add_u32 {v(vT)}, {v(vT+1)}, 6, {v(vT)}")
    I(f"v_bfe_u32 {v(vT+1)}, {v(vLANE)}, 4, 1")
    I(f"v_lshl_add_u32 {v(vT)}, {v(vT+1)}, 5, {v(vT)}")
    I(f"v_and_b32 {v(vT+1)}, 3, {v(vLANE)}")
    I(f"v_lshl_add_u32 {v(vT)}, {v(vT+1)}, 3, {v(vT)}")
    I(f"s_lshl_b32 {s(sT1)}, {s(sTI)}, 14")
    I(f"s_add_u32 {s(sT1)}, {s(sT1)}, {VR}")
    I(f"v_add_u32 {v(vVA)}, {s(sT1)}, {v(vT)}")
    I(f"v_xor_b32 {v(vVA+1)}, 64, {v(vVA)}")
    I(f"v_add_u32 {v(vPA)}, {PHI}, {v(vL16)}")
    lds_wait(str(FLG), 4, "phi")
    stamp("A phi all")
    for f in range(16):
        I(f"ds_read_b128 {v(vPH+4*f,4)}, {v(vPA)} offset:{1024*f}")
    def vread(kk):
        b = vVB + 8*(kk % 2)
        for dl in range(2):
            for ap in range(2):
                I(f"ds_read_b64_tr_b16 {v(b+4*dl+2*ap,2)}, {v(vVA+dl)} offset:{kk*2048 + ap*1024}")
    def mm(kk, first):
        b = vVB + 8*(kk % 2)
        for dl in range(2):
            for mt in range(2):
                acc = vAC + (dl*2 + mt)*16
                c = "0" if first else v(acc, 16)
                I(f"v_mfma_f32_32x32x16_bf16 {v(acc,16)}, {v(vPH+4*(kk*2+mt),4)}, {v(b+4*dl,4)}, {c}")
    I(f"s_lshl_b32 {s(sT2)}, {s(sTI)}, 2")
    I(f"s_add_u32 {s(sT2)}, {s(sT2)}, {FLG + 16}")
    lds_wait(s(sT2), 1, "v1", tmp=26)
    stamp("A V1 ready")
    vread(0)
    for kk in range(8):
        if kk == 3:
            I(f"s_waitcnt lgkmcnt(0)")
            mm(kk, False)
            I(f"s_add_u32 {s(sT2)}, {s(sT2)}, 16")
            lds_wait(s(sT2), 1, "v2", tmp=26)
            vread(4)
            continue
        if kk + 1 < 8:
            vread(kk + 1)
            I(f"s_waitcnt lgkmcnt(4)")
        else:
            I(f"s_waitcnt lgkmcnt(0)")
        mm(kk, kk == 0)
    stamp("A gemm2 done")
    if opt.fast:
        I(f"v_mov_b32 {v(vT+1)}, {FLG + 48}")
        I(f"ds_read_b32 {v(vT+2)}, {v(vT+1)}")
    C("z partial inputs (wave 0)")
    I(f"v_lshlrev_b32 {v(vT+3)}, 2, {v(vLANE)}")
    I(f"v_add_u32 {v(vT+4)}, {ZB}, {v(vT+3)}")
    for a in range(4): I(f"ds_read_b32 {v(vT+6+a)}, {v(vT+4)} offset:{256*a}")
    vPK = 128
    for j in range(4):
        for i in range(8):
            I(f"v_cvt_pk_bf16_f32 {v(vPK+8*j+i)}, {v(vAC+16*j+2*i)}, {v(vAC+16*j+2*i+1)}")
    I(f"s_lshl_b32 {s(sT1)}, {s(sTI)}, 13")
    I(f"v_add_u32 {v(vT)}, {s(sT1)}, {v(vL16)}")
    I(f"s_lshl_b32 {s(sSOFF)}, {s(sCH)}, 15")
    I(f"s_add_u32 {s(sT2)}, {s(sSOFF)}, 4096")
    I(f"s_waitcnt lgkmcnt(0)")
    if opt.fast:
        I(f"v_readfirstlane_b32 {s(sFAST)}, {v(vT+2)}")
        I(f"s_cmp_eq_u32 {s(sFAST)}, {s(sNONCE)}")
        I(f"s_cselect_b32 {s(sFAST)}, 1, 0")
    def st():
        for f in range(8):
            so = s(sSOFF) if f < 4 else s(sT2)
            I(f"buffer_store_dwordx4 {v(vPK+4*f,4)}, {v(vT)}, {s(rP,4)}, {so} offen offset:{(f%4)*1024}{pol()}")
    if opt.partplain: dual(st)
    else: st()
    I(f"s_cmp_eq_u32 {s(sTI)}, 0")
    I(f"s_cbranch_scc0 L_noz")
    I(f"v_add_f32 {v(vT+6)}, {v(vT+6)}, {v(vT+7)}")
    I(f"v_add_f32 {v(vT+8)}, {v(vT+8)}, {v(vT+9)}")
    I(f"v_add_f32 {v(vT+6)}, {v(vT+6)}, {v(vT+8)}")
    I(f"s_lshl_b32 {s(sSOFF)}, {s(sCH)}, 8")
    I(f"s_add_u32 {s(sSOFF)}, {s(sSOFF)}, {O_Z}")
    I(f"buffer_store_dword {v(vT+6)}, {v(vT+3)}, {s(rP,4)}, {s(sSOFF)} offen sc1")
    L("L_noz")
    C("addresses for the reduction: quarter tile a of tile 'chunk': fragment 2*chunk + (a>>1), lanes (a&1)*32 + (l&31); producer parity = l>>5")
    vR = 128
    I(f"s_lshl_b32 {s(sT1)}, {s(sCH)}, 11")
    I(f"s_lshl_b32 {s(sT2)}, {s(sTI)}, 9")
    I(f"s_add_u32 {s(sT3)}, {s(sT1)}, {s(sT2)}")
    I(f"v_and_b32 {v(vX)}, 31, {v(vLANE)}")
    I(f"v_lshlrev_b32 {v(vX)}, 4, {v(vX)}")
    I(f"v_add_u32 {v(vX)}, {s(sT3)}, {v(vX)}")
    I(f"v_lshrrev_b32 {v(vX+1)}, 5, {v(vLANE)}")
    I(f"v_lshl_add_u32 {v(vX+1)}, {v(vX+1)}, 15, {v(vX)}")
    I(f"s_waitcnt vmcnt(0)")
    stamp("A part drained")
    wave_flag(256)
    poll(256, "h1")
    stamp("A hop1")
    I(f"s_mov_b32 {s(sSOFF)}, 0")
    for c in range(8):
        I(f"buffer_load_dwordx4 {v(vR+4*c,4)}, {v(vX+1)}, {s(rP,4)}, {s(sSOFF)} offen sc1")
        if c < 7: I(f"s_add_u32 {s(sSOFF)}, {s(sSOFF)}, 65536")
    vZ = 192
    I(f"s_cmp_eq_u32 {s(sTI)}, 3")
    I(f"s_cbranch_scc0 L_noz2")
    I(f"s_mov_b32 {s(sSOFF)}, {O_Z}")
    for j in range(4):
        I(f"buffer_load_dwordx4 {v(vZ+4*j,4)}, {v(vL16)}, {s(rP,4)}, {s(sSOFF)} offen offset:{1024*j} sc1")
    L("L_noz2")
    vS = 176
    I(f"s_mov_b32 {s(sT1)}, 0x3f80")
    I(f"s_mov_b32 {s(sT2)}, 0x3f800000")
    for i in range(8): I(f"v_mov_b32 {v(vS+i)}, 0")
    C("(wave 3 has 4 younger loads in flight: its counted waits are conservative only if we wait for more, so wait per wave)")
    I(f"s_cmp_eq_u32 {s(sTI)}, 3")
    I(f"s_cbranch_scc1 L_red3")
    def red(extra):
        for c in range(8):
            I(f"s_waitcnt vmcnt({7-c+extra})")
            for i in range(4):
                I(f"v_dot2_f32_bf16 {v(vS+2*i)}, {v(vR+4*c+i)}, {s(sT1)}, {v(vS+2*i)}")
                I(f"v_dot2_f32_bf16 {v(vS+2*i+1)}, {v(vR+4*c+i)}, {s(sT2)}, {v(vS+2*i+1)}")
    red(0)
    I(f"s_branch L_redd")
    L("L_red3")
    red(4)
    L("L_redd")
    stamp("A red summed")
    for i in range(8): I(f"v_mov_b32 {v(vS+8+i)}, {v(vS+i)}")
    for i in range(8): I(f"v_permlane32_swap_b32 {v(vS+i)}, {v(vS+8+i)}")
    for i in range(8): I(f"v_add_f32 {v(vS+i)}, {v(vS+i)}, {v(vS+8+i)}")
    for i in range(4): I(f"v_cvt_pk_bf16_f32 {v(vS+i)}, {v(vS+2*i)}, {v(vS+2*i+1)}")
    I(f"s_mov_b32 {s(sSOFF)}, {O_F}")
    I(f"s_mov_b32 exec_hi, 0")
    dual(lambda: I(f"buffer_store_dwordx4 {v(vS,4)}, {v(vX)}, {s(rP,4)}, {s(sSOFF)} offen{pol()}"))
    I(f"s_mov_b64 exec, -1")
    C("z (wave 3): lane l holds m = 4*(l&15)..+3 of producer 4j + (l>>4)")
    I(f"s_cmp_eq_u32 {s(sTI)}, 3")
    I(f"s_cbranch_scc0 L_noz3")
    I(f"s_waitcnt vmcnt(1)")
    for i in range(4):
        I(f"v_add_f32 {v(vZ+i)}, {v(vZ+i)}, {v(vZ+4+i)}")
        I(f"v_add_f32 {v(vZ+8+i)}, {v(vZ+8+i)}, {v(vZ+12+i)}")
    for i in range(4): I(f"v_add_f32 {v(vZ+i)}, {v(vZ+i)}, {v(vZ+8+i)}")
    for i in range(4): I(f"v_mov_b32 {v(vZ+4+i)}, {v(vZ+i)}")
    for i in range(4): I(f"v_permlane32_swap_b32 {v(vZ+i)}, {v(vZ+4+i)}")
    for i in range(4): I(f"v_add_f32 {v(vZ+i)}, {v(vZ+i)}, {v(vZ+4+i)}")
    for i in range(4): I(f"v_mov_b32 {v(vZ+4+i)}, {v(vZ+i)}")
    for i in range(4): I(f"v_permlane16_swap_b32 {v(vZ+i)}, {v(vZ+4+i)}")
    for i in range(4): I(f"v_add_f32 {v(vZ+i)}, {v(vZ+i)}, {v(vZ+4+i)}")
    I(f"v_cvt_pk_bf16_f32 {v(vZ)}, {v(vZ)}, {v(vZ+1)}")
    I(f"v_cvt_pk_bf16_f32 {v(vZ+1)}, {v(vZ+2)}, {v(vZ+3)}")
    I(f"v_and_b32 {v(vZ+2)}, 15, {v(vLANE)}")
    I(f"v_lshlrev_b32 {v(vZ+2)}, 3, {v(vZ+2)}")
    I(f"v_add_u32 {v(vZ+2)}, {ZF}, {v(vZ+2)}")
    I(f"ds_write_b64 {v(vZ+2)}, {v(vZ,2)}")
    I(f"s_waitcnt lgkmcnt(0)")
    lds_set(str(FLG + 52))
    L("L_noz3")
    I(f"s_waitcnt vmcnt(0)")
    stamp("A reduced+drained")
    wave_flag(512)
    C("chunk 0 advances the epoch (all 16 workgroups of the head have read it)")
    I(f"s_cmp_eq_u32 {s(sCH)}, 0")
    I(f"s_cbranch_scc0 L_noep")
    I(f"s_cmp_eq_u32 {s(sTI)}, 1")
    I(f"s_cbranch_scc0 L_noep")
    I(f"s_mov_b64 exec, 1")
    I(f"v_mov_b32 {v(vT)}, 0")
    I(f"v_mov_b32 {v(vT+1)}, {s(sNONCE)}")
    I(f"s_mov_b32 {s(sT1)}, {O_FL}")
    I(f"buffer_store_dword {v(vT+1)}, {v(vT)}, {s(rP,4)}, {s(sT1)} offen sc1")
    I(f"s_mov_b64 exec, -1")
    L("L_noep")
    final_setup(True)
    poll(512, "h2")
    stamp("A hop2")
    C("gather the final kv fragments dt = 2a, 2a+1 into LDS")
    I(f"s_lshl_b32 {s(sT1)}, {s(sTI)}, 13")
    I(f"v_add_u32 {v(vX)}, {s(sT1)}, {v(vL16)}")
    I(f"s_mov_b32 {s(sSOFF)}, {O_F}")
    I(f"s_mov_b32 {s(sT2)}, {O_F + 4096}")
    for f in range(8):
        so = s(sSOFF) if f < 4 else s(sT2)
        I(f"buffer_load_dwordx4 {v(vR+4*f,4)}, {v(vX)}, {s(rP,4)}, {so} offen offset:{(f%4)*1024} sc1")
    I(f"v_add_u32 {v(vX+1)}, {KVF}, {v(vX)}")
    for f in range(8):
        I(f"s_waitcnt vmcnt({7-f})")
        I(f"ds_write_b128 {v(vX+1)}, {v(vR+4*f,4)} offset:{f*1024}")
    I(f"s_waitcnt lgkmcnt(0)")
    stamp("A kvf in lds")
    I(f"s_barrier")
    stamp("A B4")
    STI[0] = 18
    I(f"s_lshl_b32 {s(sT1)}, {s(sTI)}, 14")
    I(f"v_add_u32 {v(vT)}, {s(sT1)}, {v(vL16)}")
    for t in range(4):
        I(f"ds_read_b128 {v(vPQ+4*t,4)}, {v(vT)} offset:{t*1024}")
    I(f"s_lshl_b32 {s(sT1)}, {s(sTI)}, 8")
    I(f"s_add_u32 {s(sT1)}, {s(sT1)}, {RD}")
    I(f"v_lshlrev_b32 {v(vT+1)}, 2, {v(vLANE)}")
    I(f"v_add_u32 {v(vT+1)}, {s(sT1)}, {v(vT+1)}")
    I(f"ds_read_b32 {v(vRD)}, {v(vT+1)}")
    I(f"s_branch L_final")

vKA = 64; vAC3 = 128; vU = 48; vOP = 96
vRD, vOA, vKAa, vSW, vSR = 4, 6, 7, 8, 9
vST = 192

def final_setup(is_a):
    I(f"v_bfe_u32 {v(vU+1)}, {v(vLANE)}, 2, 1")
    I(f"v_lshlrev_b32 {v(vU+1)}, 4, {v(vU+1)}")
    I(f"v_bfe_u32 {v(vU+2)}, {v(vLANE)}, 3, 2")
    I(f"v_lshl_add_u32 {v(vU+1)}, {v(vU+2)}, 2, {v(vU+1)}")
    I(f"v_and_b32 {v(vU+2)}, 3, {v(vLANE)}")
    I(f"v_add_u32 {v(vU+1)}, {v(vU+1)}, {v(vU+2)}")
    I(f"v_and_b32 {v(vU+2)}, 32, {v(vLANE)}")
    I(f"v_add_u32 {v(vU+1)}, {v(vU+1)}, {v(vU+2)}")
    I(f"v_lshlrev_b32 {v(vU+1)}, 4, {v(vU+1)}")
    I(f"v_add_u32 {v(vKAa)}, {KVF + (16384 if is_a else 0)}, {v(vU+1)}")
    if is_a:
        I(f"s_lshl_b32 {s(sT2)}, {s(sTI)}, 13")
        I(f"s_add_u32 {s(sT2)}, {s(sT2)}, {OSA}")
    else:
        I(f"s_lshl_b32 {s(sT2)}, {s(sTI)}, 14")
        I(f"s_add_u32 {s(sT2)}, {s(sT2)}, 4096")
    I(f"v_and_b32 {v(vU+1)}, 31, {v(vLANE)}")
    I(f"v_and_b32 {v(vU+2)}, 7, {v(vLANE)}")
    I(f"v_and_b32 {v(vU+3)}, 1, {v(vLANE)}")
    I(f"v_lshl_or_b32 {v(vU+2)}, {v(vU+3)}, 3, {v(vU+2)}")
    I(f"v_lshrrev_b32 {v(vU+3)}, 5, {v(vLANE)}")
    I(f"v_lshlrev_b32 {v(vU+3)}, 1, {v(vU+3)}")
    I(f"v_xor_b32 {v(vU+2)}, {v(vU+2)}, {v(vU+3)}")
    I(f"v_lshlrev_b32 {v(vU+2)}, 4, {v(vU+2)}")
    I(f"v_lshl_add_u32 {v(vSW)}, {v(vU+1)}, 8, {v(vU+2)}")
    I(f"v_add_u32 {v(vSW)}, {s(sT2)}, {v(vSW)}")
    C("staging read: 8 rows x 128 B per instruction: row (l>>3) + 8i, piece 8p + (l&7), slot = piece ^ (row&15)")
    I(f"v_lshrrev_b32 {v(vU+1)}, 3, {v(vLANE)}")
    I(f"v_and_b32 {v(vU+2)}, 7, {v(vLANE)}")
    I(f"v_xor_b32 {v(vU+3)}, {v(vU+2)}, {v(vU+1)}")
    I(f"v_and_b32 {v(vSR)}, 1, {v(vU+1)}")
    I(f"v_lshl_or_b32 {v(vU+3)}, {v(vSR)}, 3, {v(vU+3)}")
    I(f"v_lshlrev_b32 {v(vU+3)}, 4, {v(vU+3)}")
    I(f"v_lshl_add_u32 {v(vSR)}, {v(vU+1)}, 8, {v(vU+3)}")
    I(f"v_add_u32 {v(vSR)}, {s(sT2)}, {v(vSR)}")
    I(f"v_lshlrev_b32 {v(vU+2)}, 4, {v(vU+2)}")
    I(f"v_lshl_add_u32 {v(vOA)}, {v(vU+1)}, 9, {v(vU+2)}")
    I(f"s_lshl_b32 {s(sT1)}, {s(sTI)}, 14")
    if is_a: I(f"s_add_u32 {s(sT1)}, {s(sT1)}, 256")
    I(f"v_add_u32 {v(vOA)}, {s(sT1)}, {v(vOA)}")

def team_b():
    C("================= team B =================")
    L("L_team_b")
    STI[0] = 2
    if opt.preread:
        C("bring the 2 KiB of the final kv image this workgroup writes into L2 (waves B0, B1: 1 KiB each)")
        I(f"s_cmp_lt_u32 {s(sTI)}, 2")
        I(f"s_cbranch_scc0 L_nopre")
        I(f"s_lshl_b32 {s(sT1)}, {s(sCH)}, 11")
        I(f"s_lshl_b32 {s(sT2)}, {s(sTI)}, 10")
        I(f"s_add_u32 {s(sT1)}, {s(sT1)}, {s(sT2)}")
        I(f"s_add_u32 {s(sT1)}, {s(sT1)}, {O_F}")
        I(f"buffer_load_dwordx4 {v(32,4)}, {v(vL16)}, {s(rP,4)}, {s(sT1)} offen")
        L("L_nopre")
    dma_v()
    I(f"s_waitcnt vmcnt(16)")
    I(f"s_barrier")
    stamp("B B1")
    read_omega()
    I(f"v_mov_b32 {v(vEPS)}, {s(sEPS)}")
    I(f"s_waitcnt lgkmcnt(0)")
    I(f"s_barrier")
    if opt.fast:
        I(f"s_cmp_eq_u32 {s(sTI)}, 0")
        I(f"s_cbranch_scc0 L_nochk0")
        I(f"s_load_dwordx16 {s(sPW,16)}, {s(sEPA,2)}, {O_FL + 128} glc")
        L("L_nochk0")
    I(f"s_lshl_b32 {s(sSOFF)}, {s(sTI)}, 14")
    for i in range(4): dma_row_instr(rQ, KQ, i)
    I(f"s_waitcnt vmcnt(12)")
    I(f"s_lshl_b32 {s(sT3)}, {s(sTI)}, 2")
    I(f"s_add_u32 {s(sT3)}, {s(sT3)}, {FLG + 16}")
    if opt.fast:
        I(f"s_cmp_eq_u32 {s(sTI)}, 0")
        I(f"s_cbranch_scc0 L_nochk1")
        I(f"s_waitcnt lgkmcnt(0)")
        I(f"s_mov_b32 {s(sT1)}, {s(sNONCE)}")
        I(f"s_not_b32 {s(sT2)}, {s(sNONCE)}")
        for j in range(16):
            I(f"s_cmp_eq_u32 {s(sPW+j)}, {s(sPRES)}")
            I(f"s_cselect_b32 {s(sT1)}, {s(sT1)}, {s(sT2)}")
        if opt.forceslow: I(f"s_mov_b32 {s(sT1)}, {s(sT2)}")
        lds_set(str(FLG + 48), val=s(sT1))
        I(f"s_waitcnt lgkmcnt(0)")
        L("L_nochk1")
    lds_set(s(sT3))
    stamp("B V1 landed")
    for i in range(4, 8): dma_row_instr(rQ, KQ, i)
    I(f"s_waitcnt vmcnt(8)")
    I(f"s_add_u32 {s(sT3)}, {s(sT3)}, 16")
    lds_set(s(sT3))
    stamp("B V2 landed")
    for i in range(8, 16): dma_row_instr(rQ, KQ, i)
    stamp("B q issued")
    I(f"s_waitcnt vmcnt(0)")
    stamp("B q landed")
    read_tile_frags()
    I(f"s_waitcnt lgkmcnt(0)")
    ssq()
    steps = ssq_reduce_steps()
    for t in range(16):
        c = "0" if t == 0 else v(vA1, 16)
        I(f"v_mfma_f32_32x32x16_bf16 {v(vA1,16)}, {v(W(0,t),4)}, {v(vKF+4*t,4)}, {c}")
        if 1 <= t <= 5:
            for x in steps[t-1]: I(x)
        if t == 6: I(f"v_mul_f32 {v(vSS)}, {s(sM132)}, {v(vSS)}")
        if not opt.mimicq:
            if t == 7: I(f"v_mul_f32 {v(vSS)}, {s(sLOG2E)}, {v(vSS)}")
            if t == 8: I(f"s_mov_b32 {s(sT2)}, 0x3eb8aa3b")
            if t == 9: I(f"v_mov_b32 {v(vSS+3)}, {s(sEPS)}")
    vY = 20
    vQ0 = 12
    vQ1 = 112
    def plain_ops(mt, dst):
        ops = []
        acc = lambda r: vA1 + 16*mt + r
        for g in range(2):
            for i in range(8): ops.append(f"v_fma_f32 {v(vY+i)}, {v(acc(8*g+i))}, {s(sT2)}, {v(vSS)}")
            for i in range(8): ops.append(f"v_exp_f32 {v(vY+i)}, {v(vY+i)}")
            for i in range(8): ops.append(f"v_fma_f32 {v(vY+i)}, {v(vY+i)}, {s(sC0125)}, {v(vSS+3)}")
            for i in range(4): ops.append(f"v_cvt_pk_bf16_f32 {v(dst+4*g+i)}, {v(vY+2*i)}, {v(vY+2*i+1)}")
        return ops
    if not opt.mimicq:
        ops0 = plain_ops(0, vQ0)
        k = 0
        for t in range(16):
            c = "0" if t == 0 else v(vA1 + 16, 16)
            I(f"v_mfma_f32_32x32x16_bf16 {v(vA1+16,16)}, {v(W(1,t),4)}, {v(vKF+4*t,4)}, {c}")
            if t >= 1:
                n = 4 if t < 15 else len(ops0) - k
                for x in ops0[k:k+n]: I(x)
                k += n
        stamp("B gemm1 done")
        for x in plain_ops(1, vPQ + 8): I(x)
        for i in range(8): I(f"v_mov_b32 {v(vPQ+i)}, {v(vQ0+i)}")
    else:
        for t in range(16):
            c = "0" if t == 0 else v(vA1 + 16, 16)
            I(f"v_mfma_f32_32x32x16_bf16 {v(vA1+16,16)}, {v(W(1,t),4)}, {v(vKF+4*t,4)}, {c}")
        stamp("B gemm1 done")
        I(f"v_mov_b32 {v(vEPS)}, {s(sEPS)}")
        I(f"v_cvt_pk_bf16_f32 {v(vSS)}, {v(vSS)}, 0")
        I(f"v_lshlrev_b32 {v(vNQ)}, 16, {v(vSS)}")
        for mt in range(2):
            pipeline_mimic(mt, lambda r: vNQ, vP4 + 8*mt)
        for i in range(16): I(f"v_mov_b32 {v(vPQ+i)}, {v(vP4+i)}")
    I(f"s_lshl_b32 {s(sT1)}, {s(sTI)}, 14")
    I(f"v_add_u32 {v(vX)}, {s(sT1)}, {v(vL16)}")
    for t in range(4):
        I(f"ds_write_b128 {v(vX)}, {v(vPQ+4*t,4)} offset:{t*1024}")
    stamp("B phiq done")
    final_setup(False)
    C("den = phi_q . z once z is there")
    vZF = 112; vDEN = 60
    lds_wait(str(FLG + 52), 1, "z")
    I(f"v_lshrrev_b32 {v(vDEN)}, 5, {v(vLANE)}")
    I(f"v_lshlrev_b32 {v(vDEN)}, 3, {v(vDEN)}")
    I(f"v_add_u32 {v(vDEN)}, {ZF}, {v(vDEN)}")
    for t in range(4):
        I(f"ds_read2_b64 {v(vZF+4*t,4)}, {v(vDEN)} offset0:{4*t} offset1:{4*t+2}")
    I(f"v_mov_b32 {v(vDEN+2)}, 0")
    I(f"v_mov_b32 {v(vDEN+3)}, 0")
    I(f"s_waitcnt lgkmcnt(0)")
    for i in range(16):
        I(f"v_dot2c_f32_bf16 {v(vDEN+2+(i&1))}, {v(vPQ+i)}, {v(vZF+i)}")
    I(f"v_add_f32 {v(vDEN)}, {v(vDEN+2)}, {v(vDEN+3)}")
    I(f"v_mov_b32 {v(vDEN+1)}, {v(vDEN)}")
    I(f"v_permlane32_swap_b32 {v(vDEN)}, {v(vDEN+1)}")
    I(f"v_add_f32 {v(vDEN)}, {v(vDEN)}, {v(vDEN+1)}")
    I(f"v_cvt_pk_bf16_f32 {v(vDEN)}, {v(vDEN)}, {v(vDEN)}")
    I(f"v_lshlrev_b32 {v(vDEN)}, 16, {v(vDEN)}")
    I(f"v_add_f32 {v(vDEN)}, {s(sEPS)}, {v(vDEN)}")
    I(f"v_cvt_pk_bf16_f32 {v(vDEN)}, {v(vDEN)}, {v(vDEN)}")
    I(f"v_lshlrev_b32 {v(vDEN)}, 16, {v(vDEN)}")
    I(f"v_rcp_f32 {v(vRD)}, {v(vDEN)}")
    I(f"v_fma_f32 {v(vDEN+1)}, -{v(vDEN)}, {v(vRD)}, 1.0")
    I(f"v_fma_f32 {v(vRD)}, {v(vDEN+1)}, {v(vRD)}, {v(vRD)}")
    I(f"s_lshl_b32 {s(sT1)}, {s(sTI)}, 8")
    I(f"s_add_u32 {s(sT1)}, {s(sT1)}, {RD}")
    I(f"v_lshlrev_b32 {v(vDEN)}, 2, {v(vLANE)}")
    I(f"v_add_u32 {v(vDEN)}, {s(sT1)}, {v(vDEN)}")
    I(f"ds_write_b32 {v(vDEN)}, {v(vRD)}")
    I(f"s_waitcnt lgkmcnt(0)")
    stamp("B den done")
    I(f"s_barrier")
    stamp("B B4")
    STI[0] = 18

def final():
    L("L_final")
    C("================= final =================")
    for d in range(4):
        for t in range(4):
            I(f"ds_read_b128 {v(vKA+16*(d%2)+4*t + (0 if d < 2 else 128),4)}, {v(vKAa)} offset:{(d*4+t)*1024}")
    KA = lambda d, t: vKA + 16*(d%2) + 4*t + (0 if d < 2 else 128)
    def mm(d):
        for t in range(4):
            acc = vAC3 + 16*d
            c = "0" if t == 0 else v(acc, 16)
            I(f"v_mfma_f32_32x32x16_bf16 {v(acc,16)}, {v(KA(d,t),4)}, {v(vPQ+4*t,4)}, {c}")
    def epi(d):
        acc = vAC3 + 16*d; op = vOP + 8*(d % 2)
        if opt.mimicnum:
            for i in range(8): I(f"v_cvt_pk_bf16_f32 {v(op+i)}, {v(acc+2*i)}, {v(acc+2*i+1)}")
            for i in range(8):
                I(f"v_lshlrev_b32 {v(acc+2*i)}, 16, {v(op+i)}")
                I(f"v_and_b32 {v(acc+2*i+1)}, {s(sMASKH)}, {v(op+i)}")
        for i in range(8): I(f"v_pk_mul_f32 {v(acc+2*i,2)}, {v(acc+2*i,2)}, {v(vRD,2)} op_sel_hi:[1,0]")
        for i in range(8): I(f"v_cvt_pk_bf16_f32 {v(op+i)}, {v(acc+2*i)}, {v(acc+2*i+1)}")
        for u in range(2):
            x = 64*d + 16*u
            if x:
                I(f"v_xor_b32 {v(vU+u)}, {x}, {v(vSW)}")
                I(f"ds_write_b128 {v(vU+u)}, {v(op+4*u,4)}")
            else:
                I(f"ds_write_b128 {v(vSW)}, {v(op+4*u,4)}")
    def out(p):
        for i in range(4):
            x = 128*p
            off = 2048*i
            if x:
                I(f"v_xor_b32 {v(vU+4+i)}, {x}, {v(vSR)}")
                I(f"ds_read_b128 {v(vST+16*p+4*i,4)}, {v(vU+4+i)} offset:{off}")
            else:
                I(f"ds_read_b128 {v(vST+16*p+4*i,4)}, {v(vSR)} offset:{off}")
        if p == 0:
            I(f"s_mov_b32 {s(sSOFF)}, 0")
            I(f"s_mov_b32 {s(sT1)}, 4096")
            I(f"s_mov_b32 {s(sT2)}, 8192")
            I(f"s_mov_b32 {s(sT3)}, 12288")
        so = [s(sSOFF), s(sT1), s(sT2), s(sT3)]
        for i in range(4):
            I(f"s_waitcnt lgkmcnt({3-i})")
            I(f"buffer_store_dwordx4 {v(vST+16*p+4*i,4)}, {v(vOA)}, {s(rO,4)}, {so[i]} offen offset:{128*p}{opt.ost}")
    I(f"s_waitcnt lgkmcnt(12)")
    mm(0)
    I(f"s_waitcnt lgkmcnt(8)")
    mm(1)
    I(f"s_waitcnt lgkmcnt(4)")
    mm(2)
    epi(0)
    I(f"s_waitcnt lgkmcnt(2)")
    mm(3)
    epi(1)
    I(f"s_waitcnt lgkmcnt(0)")
    out(0)
    epi(2)
    epi(3)
    I(f"s_waitcnt lgkmcnt(0)")
    out(1)
    stamp("stores issued")
    if opt.stamps: I("s_waitcnt vmcnt(0)")
    stamp("stores done")
    stamps_flush("f")

def build():
    common_start()
    I(f"s_cmp_ge_u32 {s(sWAVE)}, 4")
    I(f"s_cbranch_scc1 L_team_b")
    team_a()
    team_b()
    final()
    L("L_end")
    I("s_endpgm")
    body = A.render()
    hdr = f"""; fused RFA linear attention: 256 workgroups (one per CU) x 8 waves
; @launch grid=(256,1,1) block=(512,1,1) lds={LDS_BYTES}
.amdgcn_target "amdgcn-amd-amdhsa--gfx950"
.text
.globl {NAME}
.p2align 8
.type {NAME},@function
{NAME}:
"""
    ftr = f"""
.section .rodata,"a"
.p2align 6
.amdhsa_kernel {NAME}
  .amdhsa_next_free_vgpr 256
  .amdhsa_next_free_sgpr 102
  .amdhsa_accum_offset 256
  .amdhsa_group_segment_fixed_size 0
  .amdhsa_kernarg_size 56
  .amdhsa_user_sgpr_count 2
  .amdhsa_user_sgpr_kernarg_segment_ptr 1
  .amdhsa_system_sgpr_workgroup_id_x 1
  .amdhsa_float_denorm_mode_32 3
.end_amdhsa_kernel
"""
    return hdr + body + ftr

if __name__ == "__main__":
    out = sys.argv[1]
    for a in sys.argv[2:]:
        if a == "stamps": opt.stamps = True
        elif a == "nont": opt.nt = False
        elif a == "nofast": opt.fast = False
        elif a == "forceslow": opt.forceslow = True
        elif a == "nopretouch": opt.pretouch = False
        elif a == "mimicq": opt.mimicq = True
        elif a == "codepf": opt.codepf = True
        elif a == "partplain": opt.partplain = True
        elif a == "nopreread": opt.preread = False
        elif a == "mimicnum": opt.mimicnum = True
        elif a.startswith("dbgwg="): opt.dbgwg = int(a.split("=")[1])
        elif a.startswith("dbgwave="): opt.dbgwave = int(a.split("=")[1])
        elif a.startswith("ost="): opt.ost = " " + a.split("=")[1].replace("+", " ")
        else: raise SystemExit("unknown option " + a)
    txt = build()
    open(out, "w").write(txt)
    if opt.stamps: json.dump(STN, open(out + ".stamps.json", "w"))
    print("wrote", out, "nops inserted:", A.nops, "lines", txt.count("\n"))
```

```python
import sys, json, struct
from asmlib import *

NAME = "standalone__linear_kernel_rfa__prompt_kernel"
class O: pass
opt = O()
opt.spin_limit = 300000
opt.stamps = False
opt.nt = True
opt.fast = True
opt.forceslow = False
opt.dbgwg = None
opt.dbgwave = 0
opt.ost = ""
opt.pretouch = True
opt.partplain = False
opt.preread = True
opt.codepf = False
opt.partpol = ' sc1'
opt.prepart = False
opt.prepol = ' nt'
opt.mimicq = False
opt.mimicnum = False

KQ = 0
VR = 65536
WR = 131072
PHI = WR
ZB = WR + 16384
ZF = WR + 17408
FLG = WR + 17664
RD = WR + 18432
KVF = VR
OSA = VR + 32768
LDS_BYTES = 163840
HS = 1 << 20
O_PART = 0
O_F = 524288
O_Z = 524288 + 32768
O_FL = 524288 + 32768 + 4096
WS_ST = 20 << 20

sQp, sKp, sVp, sWp, sOp, sDp, sSp = 4, 6, 8, 10, 12, 14, 16
sHEAD, sCH = 18, 19
rK, rV, rQ, rW, rO, rP, rL = 20, 24, 28, 32, 36, 40, 52
sWAVE, sTI = 56, 57
sT0, sT1, sT2, sT3 = 58, 59, 60, 61
sNONCE, sFAST = 62, 63
sC025L, sC025H, sLOG2E, sC0125, sMASKH, sONES = 64, 65, 66, 67, 68, 69
sSPIN, sSOFF, sEPS, sM132 = 70, 71, 72, 73
sXCC, sPRES = 94, 95
sEPA = 96
sPW = 40
sJUNK = 44

A = Asm()
I, L, C = A.I, A.L, A.C
STI = [0]; STN = []
def stamp(name=""):
    if not opt.stamps: return
    C("stamp %s" % name)
    I("s_memrealtime s[98:99]")
    I("s_waitcnt lgkmcnt(0)")
    I("s_mov_b32 s%d, s98" % (74 + STI[0]))
    STN.append((STI[0], name)); STI[0] += 1
def stamps_flush(tag):
    if not opt.stamps: return
    I("s_and_b32 s97, s56, 3"); I("s_cmp_eq_u32 s97, 0"); I("s_cbranch_scc0 L_nost_%s" % tag)
    I("s_lshr_b32 s97, s56, 2"); I("s_lshl_b32 s96, s2, 1"); I("s_add_u32 s96, s96, s97"); I("s_lshl_b32 s96, s96, 7")
    I("s_add_u32 s96, s96, %d" % WS_ST)
    I("s_add_u32 s40, s16, s96"); I("s_addc_u32 s41, s17, 0"); I("s_and_b32 s41, s41, 0xffff"); I("s_mov_b32 s42, 128"); I("s_mov_b32 s43, 0x20000")
    I("s_mov_b64 exec, 1"); I("v_mov_b32 v1, 0")
    for i in range(20):
        I("v_mov_b32 v2, s%d" % (74 + i)); I("buffer_store_dword v2, v1, s[40:43], 0 offen offset:%d" % (4 * i))
    I("s_waitcnt vmcnt(0)")
    if opt.dbgwg is not None:
        I("s_cmp_eq_u32 s2, %d" % opt.dbgwg); I("s_cbranch_scc0 L_nodbg")
        I("s_cmp_eq_u32 s56, %d" % opt.dbgwave); I("s_cbranch_scc0 L_nodbg")
        I("s_mov_b32 s40, s14"); I("s_and_b32 s41, s15, 0xffff"); I("s_mov_b32 s42, 256")
        I("s_sub_u32 s97, s74, s100"); I("v_mov_b32 v2, s97"); I("buffer_store_dword v2, v1, s[40:43], 0 offen offset:60")
        idx = [i for i in range(1, 14)] + [18, 19]
        for j, i in enumerate(idx):
            I("s_sub_u32 s97, s%d, s74" % (74 + i)); I("v_mov_b32 v2, s97"); I("buffer_store_dword v2, v1, s[40:43], 0 offen offset:%d" % (4 * j))
        I("s_waitcnt vmcnt(0)")
        L("L_nodbg")
    I("s_mov_b64 exec, -1")
    L("L_nost_%s" % tag)

def srd(r, ptr, off_s, size):
    if off_s is None:
        I(f"s_mov_b32 {s(r)}, {s(ptr)}")
        I(f"s_and_b32 {s(r+1)}, {s(ptr+1)}, 0xffff")
    else:
        I(f"s_add_u32 {s(r)}, {s(ptr)}, {s(off_s)}")
        I(f"s_addc_u32 {s(r+1)}, {s(ptr+1)}, 0")
        I(f"s_and_b32 {s(r+1)}, {s(r+1)}, 0xffff")
    I(f"s_mov_b32 {s(r+2)}, {size}")
    I(f"s_mov_b32 {s(r+3)}, 0x20000")

NT = lambda: " nt" if opt.nt else ""
vLANE = 0
vA = 2
vD = 10
vL16 = 11
vT = 12
vSS = 28
vW = 128
def W(mt, t): return vW + mt * 64 + t * 4
vKF = 32
vA1 = 96
vP4 = 12
vNQ = 32
vNK = 48
vONE = 52
vP1 = 56
vTT = 60
vEPS = 68
vZP = 69
vX = 72
vPQ = 32

POL = [" sc1"]
def pol(): return POL[0]
DUAL = [0]
def dual(fn):
    if not opt.fast:
        POL[0] = " sc1"; fn(); return
    DUAL[0] += 1; n = DUAL[0]
    I(f"s_cmp_lg_u32 {s(sFAST)}, 0")
    I(f"s_cbranch_scc1 L_fast{n}")
    POL[0] = " sc1"; fn()
    I(f"s_branch L_join{n}")
    L(f"L_fast{n}")
    POL[0] = ""; fn()
    L(f"L_join{n}")
    POL[0] = " sc1"

def prologue():
    if opt.stamps: I("s_memrealtime s[100:101]")
    I(f"s_cmp_ge_u32 s2, 256")
    I(f"s_cbranch_scc1 L_end")
    I(f"s_load_dwordx4 s[4:7], s[0:1], 0")
    I(f"s_load_dwordx4 s[8:11], s[0:1], 16")
    I(f"s_load_dwordx4 s[12:15], s[0:1], 32")
    I(f"s_load_dwordx2 s[16:17], s[0:1], 48")
    if opt.codepf:
        C("pull the kernel's own code into L2 while the kernel arguments are on their way (128 B per lane)")
        I(f"s_getpc_b64 s[20:21]")
        I(f"v_and_b32 v1, 63, v0")
        I(f"v_lshlrev_b32 v1, 7, v1")
        I(f"global_load_dword v2, v1, s[20:21]")
        I(f"v_add_u32 v1, 8192, v1")
        I(f"v_min_u32 v1, 11648, v1")
        I(f"global_load_dword v3, v1, s[20:21]")
    I(f"v_lshrrev_b32 v1, 6, v0")
    I(f"v_and_b32 {v(vLANE)}, 63, v0")
    I(f"v_readfirstlane_b32 {s(sWAVE)}, v1")
    I(f"s_and_b32 {s(sT0)}, s2, 7")
    I(f"s_lshr_b32 {s(sT1)}, s2, 3")
    I(f"s_lshr_b32 {s(sHEAD)}, {s(sT1)}, 4")
    I(f"s_lshl_b32 {s(sT0)}, {s(sT0)}, 1")
    I(f"s_add_u32 {s(sHEAD)}, {s(sHEAD)}, {s(sT0)}")
    I(f"s_and_b32 {s(sCH)}, {s(sT1)}, 15")
    I(f"s_and_b32 {s(sTI)}, {s(sWAVE)}, 3")
    I(f"v_lshrrev_b32 {v(vT)}, 5, {v(vLANE)}")
    I(f"v_and_b32 {v(vT+1)}, 31, {v(vLANE)}")
    I(f"v_xor_b32 {v(vT+1)}, {v(vT+1)}, {v(vT)}")
    I(f"v_lshlrev_b32 {v(vT+1)}, 4, {v(vT+1)}")
    I(f"v_lshl_add_u32 {v(vD)}, {v(vT)}, 9, {v(vT+1)}")
    I(f"v_lshlrev_b32 {v(vL16)}, 4, {v(vLANE)}")
    I(f"s_lshl_b32 {s(sT0)}, {s(sHEAD)}, 20")
    I(f"s_lshl_b32 {s(sT1)}, {s(sCH)}, 16")
    I(f"s_add_u32 {s(sT0)}, {s(sT0)}, {s(sT1)}")
    I(f"s_waitcnt lgkmcnt(0)")
    srd(rW, sWp, None, 32768)
    srd(rK, sKp, sT0, 65536)

def dma_omega():
    I(f"s_and_b32 {s(sT1)}, {s(sWAVE)}, 1")
    I(f"s_lshl_b32 {s(sT1)}, {s(sT1)}, 7")
    I(f"s_lshl_b32 {s(sSOFF)}, {s(sWAVE)}, 12")
    I(f"s_add_u32 m0, {s(sSOFF)}, {WR}")
    for i in range(4):
        I(f"s_add_u32 {s(sT2)}, {s(sT1)}, {32*i}")
        I(f"v_xor_b32 {v(vT)}, {s(sT2)}, {v(vD)}")
        I(f"buffer_load_dwordx4 {v(vT)}, {s(rW,4)}, {s(sSOFF)} offen offset:{1024*i} lds")

def dma_row_instr(r, base_lds, i):
    if i % 4 == 0:
        if i: I(f"s_add_u32 {s(sSOFF)}, {s(sSOFF)}, 4096")
        I(f"s_add_u32 m0, {s(sSOFF)}, {base_lds}")
    if i & 7:
        I(f"v_xor_b32 {v(vT)}, {32*(i&7)}, {v(vD)}")
        I(f"buffer_load_dwordx4 {v(vT)}, {s(r,4)}, {s(sSOFF)} offen offset:{1024*(i%4)}{NT()} lds")
    else:
        I(f"buffer_load_dwordx4 {v(vD)}, {s(r,4)}, {s(sSOFF)} offen offset:{1024*(i%4)}{NT()} lds")

def dma_k():
    I(f"s_lshl_b32 {s(sSOFF)}, {s(sWAVE)}, 13")
    for i in range(8): dma_row_instr(rK, KQ, i)

def dma_v():
    C("team B wave b: V slice b (128 B columns), all 128 rows, 16 instructions of 8 rows")
    I(f"v_lshrrev_b32 {v(vT+2)}, 4, {v(vLANE)}")
    I(f"v_and_b32 {v(vT+2)}, 1, {v(vT+2)}")
    I(f"v_lshlrev_b32 {v(vT+2)}, 2, {v(vT+2)}")
    I(f"v_and_b32 {v(vT+1)}, 7, {v(vLANE)}")
    I(f"v_xor_b32 {v(vT+2)}, {v(vT+2)}, {v(vT+1)}")
    I(f"v_lshlrev_b32 {v(vT+2)}, 4, {v(vT+2)}")
    I(f"v_lshrrev_b32 {v(vT+1)}, 3, {v(vLANE)}")
    I(f"v_lshl_add_u32 {v(vT+2)}, {v(vT+1)}, 9, {v(vT+2)}")
    I(f"s_lshl_b32 {s(sSOFF)}, {s(sTI)}, 7")
    I(f"s_lshl_b32 {s(sT1)}, {s(sTI)}, 14")
    I(f"s_add_u32 {s(sT1)}, {s(sT1)}, {VR}")
    for i in range(16):
        I(f"s_add_u32 m0, {s(sT1)}, {1024*i}")
        if i: I(f"s_add_u32 {s(sSOFF)}, {s(sSOFF)}, 4096")
        I(f"buffer_load_dwordx4 {v(vT+2)}, {s(rV,4)}, {s(sSOFF)} offen{NT()} lds")

def tile_addrs():
    I(f"v_and_b32 {v(vT)}, 31, {v(vLANE)}")
    I(f"v_lshrrev_b32 {v(vT+1)}, 5, {v(vLANE)}")
    I(f"v_and_b32 {v(vT+2)}, 15, {v(vLANE)}")
    I(f"v_xor_b32 {v(vT+2)}, {v(vT+2)}, {v(vT+1)}")
    I(f"v_lshlrev_b32 {v(vT+2)}, 4, {v(vT+2)}")
    I(f"v_lshl_add_u32 {v(vT+2)}, {v(vT)}, 9, {v(vT+2)}")
    I(f"v_add_u32 {v(vA)}, {WR}, {v(vT+2)}")
    for x in range(1, 8):
        I(f"v_xor_b32 {v(vA+x)}, {32*x}, {v(vA)}")

def read_omega():
    for t in range(16):
        for mt in range(2):
            I(f"ds_read_b128 {v(W(mt,t),4)}, {v(vA+(t&7))} offset:{(t>>3)*256 + mt*16384}")
    I(f"s_lshl_b32 {s(sT1)}, {s(sTI)}, 14")
    I(f"s_sub_u32 {s(sT1)}, {s(sT1)}, {WR - KQ}")
    for x in range(8):
        I(f"v_add_u32 {v(vA+x)}, {s(sT1)}, {v(vA+x)}")

def consts():
    I(f"s_mov_b32 {s(sC025L)}, 0x00003e80")
    I(f"s_mov_b32 {s(sC025H)}, 0x3e800000")
    I(f"s_mov_b32 {s(sLOG2E)}, 0x3fb8aa3b")
    I(f"s_mov_b32 {s(sC0125)}, 0x3e000000")
    I(f"s_mov_b32 {s(sMASKH)}, 0xffff0000")
    I(f"s_mov_b32 {s(sONES)}, 0x3f803f80")
    I(f"s_mov_b32 {s(sEPS)}, 0x358637bd")
    I(f"s_mov_b32 {s(sM132)}, 0xbd000000")

def read_tile_frags():
    for t in range(16):
        I(f"ds_read_b128 {v(vKF+4*t,4)}, {v(vA+(t&7))} offset:{(t>>3)*256}")
    for i in range(4): I(f"v_mov_b32 {v(vSS+i)}, 0")

def ssq():
    for t in range(16):
        for i in range(4):
            I(f"v_dot2c_f32_bf16 {v(vSS+i)}, {v(vKF+4*t+i)}, {v(vKF+4*t+i)}")

def ssq_reduce_steps():
    return [
        [f"v_add_f32 {v(vSS)}, {v(vSS)}, {v(vSS+1)}", f"v_add_f32 {v(vSS+2)}, {v(vSS+2)}, {v(vSS+3)}"],
        [f"v_add_f32 {v(vSS)}, {v(vSS)}, {v(vSS+2)}"],
        [f"v_mov_b32 {v(vSS+1)}, {v(vSS)}"],
        [f"v_permlane32_swap_b32 {v(vSS)}, {v(vSS+1)}"],
        [f"v_add_f32 {v(vSS)}, {v(vSS)}, {v(vSS+1)}"],
    ]

def pipeline_mimic(mt, nq_of, p4base):
    for g in range(2):
        prs = [4*g + i for i in range(4)]
        acc = lambda r: vA1 + 16*mt + r
        for i, p in enumerate(prs): I(f"v_cvt_pk_bf16_f32 {v(vP1+i)}, {v(acc(2*p))}, {v(acc(2*p+1))}")
        for i, p in enumerate(prs):
            I(f"v_dot2_f32_bf16 {v(vTT+2*i)}, {v(vP1+i)}, {s(sC025L)}, {v(nq_of(2*p))}")
            I(f"v_dot2_f32_bf16 {v(vTT+2*i+1)}, {v(vP1+i)}, {s(sC025H)}, {v(nq_of(2*p+1))}")
        for i, p in enumerate(prs): I(f"v_cvt_pk_bf16_f32 {v(vP1+i)}, {v(vTT+2*i)}, {v(vTT+2*i+1)}")
        for i, p in enumerate(prs):
            I(f"v_lshlrev_b32 {v(vTT+2*i)}, 16, {v(vP1+i)}")
            I(f"v_and_b32 {v(vTT+2*i+1)}, {s(sMASKH)}, {v(vP1+i)}")
        for i in range(8): I(f"v_mul_f32 {v(vTT+i)}, {s(sLOG2E)}, {v(vTT+i)}")
        for i in range(8): I(f"v_exp_f32 {v(vTT+i)}, {v(vTT+i)}")
        for i in range(8): I(f"v_fma_f32 {v(vTT+i)}, {v(vTT+i)}, {s(sC0125)}, {v(vEPS)}")
        for i, p in enumerate(prs): I(f"v_cvt_pk_bf16_f32 {v(p4base+p)}, {v(vTT+2*i)}, {v(vTT+2*i+1)}")

def lds_wait(addr, n, tag, tmp=None):
    tmp = vX + 4 if tmp is None else tmp
    I(f"s_mov_b32 {s(sSPIN)}, 0")
    if n == 1:
        I(f"v_mov_b32 {v(tmp)}, {addr}")
    else:
        I(f"v_and_b32 {v(tmp)}, {n-1}, {v(vLANE)}")
        I(f"v_lshlrev_b32 {v(tmp)}, 2, {v(tmp)}")
        I(f"v_add_u32 {v(tmp)}, {addr}, {v(tmp)}")
    L(f"L_ls_{tag}")
    I(f"ds_read_b32 {v(tmp+1)}, {v(tmp)}")
    I(f"s_waitcnt lgkmcnt(0)")
    I(f"v_cmp_ne_u32 vcc, {s(sNONCE)}, {v(tmp+1)}")
    I(f"s_cbranch_vccz L_lsd_{tag}")
    I(f"s_add_u32 {s(sSPIN)}, {s(sSPIN)}, 1")
    I(f"s_cmp_lt_u32 {s(sSPIN)}, {opt.spin_limit*16}")
    I(f"s_cbranch_scc1 L_ls_{tag}")
    L(f"L_lsd_{tag}")

def lds_set(addr, tmp=None, val=None):
    tmp = vX + 4 if tmp is None else tmp
    I(f"v_mov_b32 {v(tmp)}, {addr}")
    I(f"v_mov_b32 {v(tmp+1)}, {s(sNONCE) if val is None else val}")
    I(f"ds_write_b32 {v(tmp)}, {v(tmp+1)}")

def wave_flag(off):
    I(f"s_lshl_b32 {s(sT1)}, {s(sCH)}, 4")
    I(f"s_lshl_b32 {s(sT2)}, {s(sTI)}, 2")
    I(f"s_add_u32 {s(sT1)}, {s(sT1)}, {s(sT2)}")
    I(f"s_add_u32 {s(sT1)}, {s(sT1)}, {O_FL + off}")
    I(f"s_mov_b64 exec, 1")
    I(f"v_mov_b32 {v(vT)}, 0")
    I(f"v_mov_b32 {v(vT+1)}, {s(sNONCE)}")
    dual(lambda: I(f"buffer_store_dword {v(vT+1)}, {v(vT)}, {s(rP,4)}, {s(sT1)} offen{pol()}"))
    I(f"s_mov_b64 exec, -1")

def poll(off, tag):
    I(f"s_mov_b32 {s(sSPIN)}, 0")
    I(f"s_mov_b32 {s(sT2)}, {O_FL + off}")
    I(f"v_lshlrev_b32 {v(vT)}, 2, {v(vLANE)}")
    L(f"L_spin_{tag}")
    I(f"buffer_load_dword {v(vT+1)}, {v(vT)}, {s(rP,4)}, {s(sT2)} offen sc1")
    I(f"s_waitcnt vmcnt(0)")
    I(f"v_cmp_ne_u32 vcc, {s(sNONCE)}, {v(vT+1)}")
    I(f"s_cbranch_vccz L_spun_{tag}")
    I(f"s_add_u32 {s(sSPIN)}, {s(sSPIN)}, 1")
    I(f"s_cmp_lt_u32 {s(sSPIN)}, {opt.spin_limit}")
    I(f"s_cbranch_scc1 L_spin_{tag}")
    L(f"L_spun_{tag}")

def common_start():
    prologue()
    stamp("start")
    dma_omega()
    I(f"s_barrier")
    dma_k()
    C("scalar side: epoch word, translation pre-touch, descriptors")
    I(f"s_lshl_b32 {s(sT1)}, {s(sHEAD)}, 20")
    I(f"s_add_u32 {s(sEPA)}, {s(sSp)}, {s(sT1)}")
    I(f"s_addc_u32 {s(sEPA+1)}, {s(sSp+1)}, 0")
    I(f"s_load_dword {s(sNONCE)}, {s(sEPA,2)}, {O_FL}")
    if opt.preread:
        C("bring the flag lines of this head into L2 (a store to an absent line makes the next read a memory fill)")
        for j in range(8):
            I(f"s_load_dword {s(sJUNK+3)}, {s(sEPA,2)}, {O_FL + 256 + 64*j}")
    srd(rV, sVp, sT0, 65536)
    srd(rQ, sQp, sT0, 65536)
    srd(rO, sOp, sT0, 65536)
    if opt.pretouch:
        I(f"s_load_dword {s(sJUNK)}, {s(rQ,2)}, 0")
        I(f"s_load_dword {s(sJUNK+1)}, {s(rO,2)}, 0")
        I(f"s_load_dword {s(sJUNK+2)}, {s(rV,2)}, 0")
    tile_addrs()
    consts()
    stamp("K issued")
    I(f"s_waitcnt vmcnt(8) lgkmcnt(0)")
    I(f"s_add_u32 {s(sNONCE)}, {s(sNONCE)}, 1")
    I(f"s_lshl_b32 {s(sT1)}, {s(sHEAD)}, 20")
    srd(rP, sSp, sT1, HS)
    I(f"s_getreg_b32 {s(sXCC)}, hwreg(HW_REG_XCC_ID, 0, 4)")
    I(f"s_lshl_b32 {s(sPRES)}, {s(sNONCE)}, 4")
    I(f"s_add_u32 {s(sPRES)}, {s(sPRES)}, {s(sXCC)}")
    I(f"s_barrier")

def team_a():
    C("================= team A =================")
    if opt.fast:
        C("presence word: nonce*16 + XCC id (wave 0)")
        I(f"s_cmp_eq_u32 {s(sTI)}, 0")
        I(f"s_cbranch_scc0 L_nopres")
        I(f"s_mov_b64 exec, 1")
        I(f"s_lshl_b32 {s(sT1)}, {s(sCH)}, 2")
        I(f"s_add_u32 {s(sT1)}, {s(sT1)}, {O_FL + 128}")
        I(f"v_mov_b32 {v(vT)}, 0")
        I(f"v_mov_b32 {v(vT+1)}, {s(sPRES)}")
        I(f"buffer_store_dword {v(vT+1)}, {v(vT)}, {s(rP,4)}, {s(sT1)} offen sc1")
        I(f"s_mov_b64 exec, -1")
        L("L_nopres")
    read_omega()
    I(f"v_mov_b32 {v(vEPS)}, {s(sEPS)}")
    C("K landed: own loads only (the presence store of wave 0 may still be in flight)")
    I(f"s_waitcnt vmcnt(1) lgkmcnt(0)")
    I(f"s_cmp_eq_u32 {s(sTI)}, 0")
    I(f"s_cbranch_scc1 L_k0")
    I(f"s_waitcnt vmcnt(0)")
    L("L_k0")
    I(f"s_barrier")
    stamp("A B1 K landed")
    read_tile_frags()
    I(f"s_waitcnt lgkmcnt(0)")
    I(f"s_barrier")
    ssq()
    steps = ssq_reduce_steps()
    for t in range(16):
        for mt in range(2):
            c = "0" if t == 0 else v(vA1 + 16*mt, 16)
            I(f"v_mfma_f32_32x32x16_bf16 {v(vA1+16*mt,16)}, {v(vKF+4*t,4)}, {v(W(mt,t),4)}, {c}")
        if 1 <= t <= 5:
            for x in steps[t-1]: I(x)
        if t == 6:
            I(f"v_mul_f32 {v(vSS)}, {s(sM132)}, {v(vSS)}")
            I(f"v_lshrrev_b32 {v(vSS+1)}, 5, {v(vLANE)}")
        if t == 7:
            I(f"v_cmp_eq_u32 vcc, 0, {v(vSS+1)}")
        if t == 8:
            I(f"v_cndmask_b32 {v(vSS)}, 0, {v(vSS)}, vcc")
        if t == 9:
            I(f"v_cvt_pk_bf16_f32 {v(vSS)}, {v(vSS)}, 0")
    stamp("A gemm1 done")
    I(f"v_mov_b32 {v(vEPS)}, {s(sEPS)}")
    I(f"v_mov_b32 {v(vNK)}, {v(vSS)}")
    I(f"v_mov_b32 {v(vONE)}, 0x3f80")
    for i in range(1, 4):
        I(f"v_mov_b32 {v(vONE+i)}, 0")
        I(f"v_mov_b32 {v(vNK+i)}, 0")
    I(f"v_mfma_f32_32x32x16_bf16 {v(vNQ,16)}, {v(vNK,4)}, {v(vONE,4)}, 0")
    I(f"v_lshl_add_u32 {v(vX)}, {s(sTI)}, 12, {v(vL16)}")
    I(f"v_add_u32 {v(vX)}, {PHI}, {v(vX)}")
    for mt in range(2):
        pipeline_mimic(mt, lambda r: vNQ + r, vP4 + 8*mt)
        for u in range(2):
            I(f"ds_write_b128 {v(vX)}, {v(vP4+8*mt+4*u,4)} offset:{u*2048 + mt*1024}")
        I(f"v_mov_b32 {v(vZP+mt)}, 0")
        for i in range(8):
            I(f"v_dot2c_f32_bf16 {v(vZP+mt)}, {s(sONES)}, {v(vP4+8*mt+i)}")
    for mt in range(2): I(f"v_mov_b32 {v(vX+1+mt)}, {v(vZP+mt)}")
    for mt in range(2): I(f"v_permlane32_swap_b32 {v(vZP+mt)}, {v(vX+1+mt)}")
    for mt in range(2): I(f"v_add_f32 {v(vZP+mt)}, {v(vZP+mt)}, {v(vX+1+mt)}")
    I(f"v_and_b32 {v(vX+1)}, 31, {v(vLANE)}")
    I(f"v_lshlrev_b32 {v(vX+1)}, 2, {v(vX+1)}")
    I(f"s_lshl_b32 {s(sT1)}, {s(sTI)}, 8")
    I(f"s_add_u32 {s(sT1)}, {s(sT1)}, {ZB}")
    I(f"v_add_u32 {v(vX+1)}, {s(sT1)}, {v(vX+1)}")
    I(f"ds_write_b32 {v(vX+1)}, {v(vZP)}")
    I(f"ds_write_b32 {v(vX+1)}, {v(vZP+1)} offset:128")
    I(f"s_waitcnt lgkmcnt(0)")
    stamp("A phi written")
    I(f"s_lshl_b32 {s(sT2)}, {s(sTI)}, 2")
    I(f"s_add_u32 {s(sT2)}, {s(sT2)}, {FLG}")
    lds_set(s(sT2))
    C("transposing-read addresses of the V slice (computed while waiting)")
    vPH = 128; vAC = 48; vVB = 112; vVA = 28; vPA = 30
    I(f"v_lshrrev_b32 {v(vT)}, 5, {v(vLANE)}")
    I(f"v_lshlrev_b32 {v(vT)}, 2, {v(vT)}")
    I(f"v_bfe_u32 {v(vT+1)}, {v(vLANE)}, 2, 2")
    I(f"v_add_u32 {v(vT)}, {v(vT)}, {v(vT+1)}")
    I(f"v_lshlrev_b32 {v(vT)}, 7, {v(vT)}")
    I(f"v_lshrrev_b32 {v(vT+1)}, 1, {v(vT+1)}")
    I(f"v_lshl_add_u32 {v(vT)}, {v(vT+1)}, 6, {v(vT)}")
    I(f"v_bfe_u32 {v(vT+1)}, {v(vLANE)}, 4, 1")
    I(f"v_lshl_add_u32 {v(vT)}, {v(vT+1)}, 5, {v(vT)}")
    I(f"v_and_b32 {v(vT+1)}, 3, {v(vLANE)}")
    I(f"v_lshl_add_u32 {v(vT)}, {v(vT+1)}, 3, {v(vT)}")
    I(f"s_lshl_b32 {s(sT1)}, {s(sTI)}, 14")
    I(f"s_add_u32 {s(sT1)}, {s(sT1)}, {VR}")
    I(f"v_add_u32 {v(vVA)}, {s(sT1)}, {v(vT)}")
    I(f"v_xor_b32 {v(vVA+1)}, 64, {v(vVA)}")
    I(f"v_add_u32 {v(vPA)}, {PHI}, {v(vL16)}")
    lds_wait(str(FLG), 4, "phi")
    stamp("A phi all")
    for f in range(16):
        I(f"ds_read_b128 {v(vPH+4*f,4)}, {v(vPA)} offset:{1024*f}")
    def vread(kk):
        b = vVB + 8*(kk % 2)
        for dl in range(2):
            for ap in range(2):
                I(f"ds_read_b64_tr_b16 {v(b+4*dl+2*ap,2)}, {v(vVA+dl)} offset:{kk*2048 + ap*1024}")
    def mm(kk, first):
        b = vVB + 8*(kk % 2)
        for dl in range(2):
            for mt in range(2):
                acc = vAC + (dl*2 + mt)*16
                c = "0" if first else v(acc, 16)
                I(f"v_mfma_f32_32x32x16_bf16 {v(acc,16)}, {v(vPH+4*(kk*2+mt),4)}, {v(b+4*dl,4)}, {c}")
    I(f"s_lshl_b32 {s(sT2)}, {s(sTI)}, 2")
    I(f"s_add_u32 {s(sT2)}, {s(sT2)}, {FLG + 16}")
    lds_wait(s(sT2), 1, "v1", tmp=26)
    stamp("A V1 ready")
    vread(0)
    for kk in range(8):
        if kk == 3:
            I(f"s_waitcnt lgkmcnt(0)")
            mm(kk, False)
            I(f"s_add_u32 {s(sT2)}, {s(sT2)}, 16")
            lds_wait(s(sT2), 1, "v2", tmp=26)
            vread(4)
            continue
        if kk + 1 < 8:
            vread(kk + 1)
            I(f"s_waitcnt lgkmcnt(4)")
        else:
            I(f"s_waitcnt lgkmcnt(0)")
        mm(kk, kk == 0)
    stamp("A gemm2 done")
    if opt.fast:
        I(f"v_mov_b32 {v(vT+1)}, {FLG + 48}")
        I(f"ds_read_b32 {v(vT+2)}, {v(vT+1)}")
    C("z partial inputs (wave 0)")
    I(f"v_lshlrev_b32 {v(vT+3)}, 2, {v(vLANE)}")
    I(f"v_add_u32 {v(vT+4)}, {ZB}, {v(vT+3)}")
    for a in range(4): I(f"ds_read_b32 {v(vT+6+a)}, {v(vT+4)} offset:{256*a}")
    vPK = 128
    for j in range(4):
        for i in range(8):
            I(f"v_cvt_pk_bf16_f32 {v(vPK+8*j+i)}, {v(vAC+16*j+2*i)}, {v(vAC+16*j+2*i+1)}")
    I(f"s_lshl_b32 {s(sT1)}, {s(sTI)}, 13")
    I(f"v_add_u32 {v(vT)}, {s(sT1)}, {v(vL16)}")
    I(f"s_lshl_b32 {s(sSOFF)}, {s(sCH)}, 15")
    I(f"s_add_u32 {s(sT2)}, {s(sSOFF)}, 4096")
    I(f"s_waitcnt lgkmcnt(0)")
    if opt.fast:
        I(f"v_readfirstlane_b32 {s(sFAST)}, {v(vT+2)}")
        I(f"s_cmp_eq_u32 {s(sFAST)}, {s(sNONCE)}")
        I(f"s_cselect_b32 {s(sFAST)}, 1, 0")
    def st():
        for f in range(8):
            so = s(sSOFF) if f < 4 else s(sT2)
            I(f"buffer_store_dwordx4 {v(vPK+4*f,4)}, {v(vT)}, {s(rP,4)}, {so} offen offset:{(f%4)*1024}{pol()}")
    if opt.partplain: dual(st)
    else:
        POL[0] = opt.partpol; st(); POL[0] = " sc1"
    I(f"s_cmp_eq_u32 {s(sTI)}, 0")
    I(f"s_cbranch_scc0 L_noz")
    I(f"v_add_f32 {v(vT+6)}, {v(vT+6)}, {v(vT+7)}")
    I(f"v_add_f32 {v(vT+8)}, {v(vT+8)}, {v(vT+9)}")
    I(f"v_add_f32 {v(vT+6)}, {v(vT+6)}, {v(vT+8)}")
    I(f"s_lshl_b32 {s(sSOFF)}, {s(sCH)}, 8")
    I(f"s_add_u32 {s(sSOFF)}, {s(sSOFF)}, {O_Z}")
    I(f"buffer_store_dword {v(vT+6)}, {v(vT+3)}, {s(rP,4)}, {s(sSOFF)} offen sc1")
    L("L_noz")
    C("addresses for the reduction: quarter tile a of tile 'chunk': fragment 2*chunk + (a>>1), lanes (a&1)*32 + (l&31); producer parity = l>>5")
    vR = 128
    I(f"s_lshl_b32 {s(sT1)}, {s(sCH)}, 11")
    I(f"s_lshl_b32 {s(sT2)}, {s(sTI)}, 9")
    I(f"s_add_u32 {s(sT3)}, {s(sT1)}, {s(sT2)}")
    I(f"v_and_b32 {v(vX)}, 31, {v(vLANE)}")
    I(f"v_lshlrev_b32 {v(vX)}, 4, {v(vX)}")
    I(f"v_add_u32 {v(vX)}, {s(sT3)}, {v(vX)}")
    I(f"v_lshrrev_b32 {v(vX+1)}, 5, {v(vLANE)}")
    I(f"v_lshl_add_u32 {v(vX+1)}, {v(vX+1)}, 15, {v(vX)}")
    I(f"s_waitcnt vmcnt(0)")
    stamp("A part drained")
    wave_flag(256)
    poll(256, "h1")
    stamp("A hop1")
    I(f"s_mov_b32 {s(sSOFF)}, 0")
    for c in range(8):
        I(f"buffer_load_dwordx4 {v(vR+4*c,4)}, {v(vX+1)}, {s(rP,4)}, {s(sSOFF)} offen sc1")
        if c < 7: I(f"s_add_u32 {s(sSOFF)}, {s(sSOFF)}, 65536")
    vZ = 192
    I(f"s_cmp_eq_u32 {s(sTI)}, 3")
    I(f"s_cbranch_scc0 L_noz2")
    I(f"s_mov_b32 {s(sSOFF)}, {O_Z}")
    for j in range(4):
        I(f"buffer_load_dwordx4 {v(vZ+4*j,4)}, {v(vL16)}, {s(rP,4)}, {s(sSOFF)} offen offset:{1024*j} sc1")
    L("L_noz2")
    vS = 176
    I(f"s_mov_b32 {s(sT1)}, 0x3f80")
    I(f"s_mov_b32 {s(sT2)}, 0x3f800000")
    for i in range(8): I(f"v_mov_b32 {v(vS+i)}, 0")
    C("(wave 3 has 4 younger loads in flight: its counted waits are conservative only if we wait for more, so wait per wave)")
    I(f"s_cmp_eq_u32 {s(sTI)}, 3")
    I(f"s_cbranch_scc1 L_red3")
    def red(extra):
        for c in range(8):
            I(f"s_waitcnt vmcnt({7-c+extra})")
            for i in range(4):
                I(f"v_dot2_f32_bf16 {v(vS+2*i)}, {v(vR+4*c+i)}, {s(sT1)}, {v(vS+2*i)}")
                I(f"v_dot2_f32_bf16 {v(vS+2*i+1)}, {v(vR+4*c+i)}, {s(sT2)}, {v(vS+2*i+1)}")
    red(0)
    I(f"s_branch L_redd")
    L("L_red3")
    red(4)
    L("L_redd")
    stamp("A red summed")
    for i in range(8): I(f"v_mov_b32 {v(vS+8+i)}, {v(vS+i)}")
    for i in range(8): I(f"v_permlane32_swap_b32 {v(vS+i)}, {v(vS+8+i)}")
    for i in range(8): I(f"v_add_f32 {v(vS+i)}, {v(vS+i)}, {v(vS+8+i)}")
    for i in range(4): I(f"v_cvt_pk_bf16_f32 {v(vS+i)}, {v(vS+2*i)}, {v(vS+2*i+1)}")
    I(f"s_mov_b32 {s(sSOFF)}, {O_F}")
    I(f"s_mov_b32 exec_hi, 0")
    dual(lambda: I(f"buffer_store_dwordx4 {v(vS,4)}, {v(vX)}, {s(rP,4)}, {s(sSOFF)} offen{pol()}"))
    I(f"s_mov_b64 exec, -1")
    C("z (wave 3): lane l holds m = 4*(l&15)..+3 of producer 4j + (l>>4)")
    I(f"s_cmp_eq_u32 {s(sTI)}, 3")
    I(f"s_cbranch_scc0 L_noz3")
    I(f"s_waitcnt vmcnt(1)")
    for i in range(4):
        I(f"v_add_f32 {v(vZ+i)}, {v(vZ+i)}, {v(vZ+4+i)}")
        I(f"v_add_f32 {v(vZ+8+i)}, {v(vZ+8+i)}, {v(vZ+12+i)}")
    for i in range(4): I(f"v_add_f32 {v(vZ+i)}, {v(vZ+i)}, {v(vZ+8+i)}")
    for i in range(4): I(f"v_mov_b32 {v(vZ+4+i)}, {v(vZ+i)}")
    for i in range(4): I(f"v_permlane32_swap_b32 {v(vZ+i)}, {v(vZ+4+i)}")
    for i in range(4): I(f"v_add_f32 {v(vZ+i)}, {v(vZ+i)}, {v(vZ+4+i)}")
    for i in range(4): I(f"v_mov_b32 {v(vZ+4+i)}, {v(vZ+i)}")
    for i in range(4): I(f"v_permlane16_swap_b32 {v(vZ+i)}, {v(vZ+4+i)}")
    for i in range(4): I(f"v_add_f32 {v(vZ+i)}, {v(vZ+i)}, {v(vZ+4+i)}")
    I(f"v_cvt_pk_bf16_f32 {v(vZ)}, {v(vZ)}, {v(vZ+1)}")
    I(f"v_cvt_pk_bf16_f32 {v(vZ+1)}, {v(vZ+2)}, {v(vZ+3)}")
    I(f"v_and_b32 {v(vZ+2)}, 15, {v(vLANE)}")
    I(f"v_lshlrev_b32 {v(vZ+2)}, 3, {v(vZ+2)}")
    I(f"v_add_u32 {v(vZ+2)}, {ZF}, {v(vZ+2)}")
    I(f"ds_write_b64 {v(vZ+2)}, {v(vZ,2)}")
    I(f"s_waitcnt lgkmcnt(0)")
    lds_set(str(FLG + 52))
    L("L_noz3")
    I(f"s_waitcnt vmcnt(0)")
    stamp("A reduced+drained")
    wave_flag(512)
    C("chunk 0 advances the epoch (all 16 workgroups of the head have read it)")
    I(f"s_cmp_eq_u32 {s(sCH)}, 0")
    I(f"s_cbranch_scc0 L_noep")
    I(f"s_cmp_eq_u32 {s(sTI)}, 1")
    I(f"s_cbranch_scc0 L_noep")
    I(f"s_mov_b64 exec, 1")
    I(f"v_mov_b32 {v(vT)}, 0")
    I(f"v_mov_b32 {v(vT+1)}, {s(sNONCE)}")
    I(f"s_mov_b32 {s(sT1)}, {O_FL}")
    I(f"buffer_store_dword {v(vT+1)}, {v(vT)}, {s(rP,4)}, {s(sT1)} offen sc1")
    I(f"s_mov_b64 exec, -1")
    L("L_noep")
    final_setup(True)
    poll(512, "h2")
    stamp("A hop2")
    C("gather the final kv fragments dt = 2a, 2a+1 into LDS")
    I(f"s_lshl_b32 {s(sT1)}, {s(sTI)}, 13")
    I(f"v_add_u32 {v(vX)}, {s(sT1)}, {v(vL16)}")
    I(f"s_mov_b32 {s(sSOFF)}, {O_F}")
    I(f"s_mov_b32 {s(sT2)}, {O_F + 4096}")
    for f in range(8):
        so = s(sSOFF) if f < 4 else s(sT2)
        I(f"buffer_load_dwordx4 {v(vR+4*f,4)}, {v(vX)}, {s(rP,4)}, {so} offen offset:{(f%4)*1024} sc1")
    I(f"v_add_u32 {v(vX+1)}, {KVF}, {v(vX)}")
    for f in range(8):
        I(f"s_waitcnt vmcnt({7-f})")
        I(f"ds_write_b128 {v(vX+1)}, {v(vR+4*f,4)} offset:{f*1024}")
    I(f"s_waitcnt lgkmcnt(0)")
    stamp("A kvf in lds")
    I(f"s_barrier")
    stamp("A B4")
    STI[0] = 18
    I(f"s_lshl_b32 {s(sT1)}, {s(sTI)}, 14")
    I(f"v_add_u32 {v(vT)}, {s(sT1)}, {v(vL16)}")
    for t in range(4):
        I(f"ds_read_b128 {v(vPQ+4*t,4)}, {v(vT)} offset:{t*1024}")
    I(f"s_lshl_b32 {s(sT1)}, {s(sTI)}, 8")
    I(f"s_add_u32 {s(sT1)}, {s(sT1)}, {RD}")
    I(f"v_lshlrev_b32 {v(vT+1)}, 2, {v(vLANE)}")
    I(f"v_add_u32 {v(vT+1)}, {s(sT1)}, {v(vT+1)}")
    I(f"ds_read_b32 {v(vRD)}, {v(vT+1)}")
    I(f"s_branch L_final")

vKA = 64; vAC3 = 128; vU = 48; vOP = 96
vRD, vOA, vKAa, vSW, vSR = 4, 6, 7, 8, 9
vST = 192

def final_setup(is_a):
    I(f"v_bfe_u32 {v(vU+1)}, {v(vLANE)}, 2, 1")
    I(f"v_lshlrev_b32 {v(vU+1)}, 4, {v(vU+1)}")
    I(f"v_bfe_u32 {v(vU+2)}, {v(vLANE)}, 3, 2")
    I(f"v_lshl_add_u32 {v(vU+1)}, {v(vU+2)}, 2, {v(vU+1)}")
    I(f"v_and_b32 {v(vU+2)}, 3, {v(vLANE)}")
    I(f"v_add_u32 {v(vU+1)}, {v(vU+1)}, {v(vU+2)}")
    I(f"v_and_b32 {v(vU+2)}, 32, {v(vLANE)}")
    I(f"v_add_u32 {v(vU+1)}, {v(vU+1)}, {v(vU+2)}")
    I(f"v_lshlrev_b32 {v(vU+1)}, 4, {v(vU+1)}")
    I(f"v_add_u32 {v(vKAa)}, {KVF + (16384 if is_a else 0)}, {v(vU+1)}")
    if is_a:
        I(f"s_lshl_b32 {s(sT2)}, {s(sTI)}, 13")
        I(f"s_add_u32 {s(sT2)}, {s(sT2)}, {OSA}")
    else:
        I(f"s_lshl_b32 {s(sT2)}, {s(sTI)}, 14")
        I(f"s_add_u32 {s(sT2)}, {s(sT2)}, 4096")
    I(f"v_and_b32 {v(vU+1)}, 31, {v(vLANE)}")
    I(f"v_and_b32 {v(vU+2)}, 7, {v(vLANE)}")
    I(f"v_and_b32 {v(vU+3)}, 1, {v(vLANE)}")
    I(f"v_lshl_or_b32 {v(vU+2)}, {v(vU+3)}, 3, {v(vU+2)}")
    I(f"v_lshrrev_b32 {v(vU+3)}, 5, {v(vLANE)}")
    I(f"v_lshlrev_b32 {v(vU+3)}, 1, {v(vU+3)}")
    I(f"v_xor_b32 {v(vU+2)}, {v(vU+2)}, {v(vU+3)}")
    I(f"v_lshlrev_b32 {v(vU+2)}, 4, {v(vU+2)}")
    I(f"v_lshl_add_u32 {v(vSW)}, {v(vU+1)}, 8, {v(vU+2)}")
    I(f"v_add_u32 {v(vSW)}, {s(sT2)}, {v(vSW)}")
    C("staging read: 8 rows x 128 B per instruction: row (l>>3) + 8i, piece 8p + (l&7), slot = piece ^ (row&15)")
    I(f"v_lshrrev_b32 {v(vU+1)}, 3, {v(vLANE)}")
    I(f"v_and_b32 {v(vU+2)}, 7, {v(vLANE)}")
    I(f"v_xor_b32 {v(vU+3)}, {v(vU+2)}, {v(vU+1)}")
    I(f"v_and_b32 {v(vSR)}, 1, {v(vU+1)}")
    I(f"v_lshl_or_b32 {v(vU+3)}, {v(vSR)}, 3, {v(vU+3)}")
    I(f"v_lshlrev_b32 {v(vU+3)}, 4, {v(vU+3)}")
    I(f"v_lshl_add_u32 {v(vSR)}, {v(vU+1)}, 8, {v(vU+3)}")
    I(f"v_add_u32 {v(vSR)}, {s(sT2)}, {v(vSR)}")
    I(f"v_lshlrev_b32 {v(vU+2)}, 4, {v(vU+2)}")
    I(f"v_lshl_add_u32 {v(vOA)}, {v(vU+1)}, 9, {v(vU+2)}")
    I(f"s_lshl_b32 {s(sT1)}, {s(sTI)}, 14")
    if is_a: I(f"s_add_u32 {s(sT1)}, {s(sT1)}, 256")
    I(f"v_add_u32 {v(vOA)}, {s(sT1)}, {v(vOA)}")

def team_b():
    C("================= team B =================")
    L("L_team_b")
    STI[0] = 2
    if opt.preread:
        C("bring the 2 KiB of the final kv image this workgroup writes into L2 (waves B0, B1: 1 KiB each)")
        I(f"s_cmp_lt_u32 {s(sTI)}, 2")
        I(f"s_cbranch_scc0 L_nopre")
        I(f"s_lshl_b32 {s(sT1)}, {s(sCH)}, 11")
        I(f"s_lshl_b32 {s(sT2)}, {s(sTI)}, 10")
        I(f"s_add_u32 {s(sT1)}, {s(sT1)}, {s(sT2)}")
        I(f"s_add_u32 {s(sT1)}, {s(sT1)}, {O_F}")
        I(f"buffer_load_dwordx4 {v(32,4)}, {v(vL16)}, {s(rP,4)}, {s(sT1)} offen")
        L("L_nopre")
    dma_v()
    I(f"s_waitcnt vmcnt(16)")
    I(f"s_barrier")
    stamp("B B1")
    read_omega()
    I(f"v_mov_b32 {v(vEPS)}, {s(sEPS)}")
    I(f"s_waitcnt lgkmcnt(0)")
    I(f"s_barrier")
    if opt.fast:
        I(f"s_cmp_eq_u32 {s(sTI)}, 0")
        I(f"s_cbranch_scc0 L_nochk0")
        I(f"s_load_dwordx8 {s(20,8)}, {s(sEPA,2)}, {O_FL + 128} glc")
        I(f"s_load_dwordx8 {s(44,8)}, {s(sEPA,2)}, {O_FL + 160} glc")
        L("L_nochk0")
    def pre(i):
        I(f"s_add_u32 {s(sT1)}, {s(sT0)}, {1024*i}")
        I(f"buffer_load_dwordx4 {v(32+4*(i%8),4)}, {v(vL16)}, {s(rP,4)}, {s(sT1)} offen{opt.prepol}")
    if opt.prepart:
        I(f"s_lshl_b32 {s(sT0)}, {s(sCH)}, 15")
        I(f"s_lshl_b32 {s(sT1)}, {s(sTI)}, 13")
        I(f"s_add_u32 {s(sT0)}, {s(sT0)}, {s(sT1)}")
        for i in range(4): pre(i)
    else:
        I(f"s_lshl_b32 {s(sSOFF)}, {s(sTI)}, 14")
        for i in range(4): dma_row_instr(rQ, KQ, i)
    I(f"s_waitcnt vmcnt(12)")
    I(f"s_lshl_b32 {s(sT3)}, {s(sTI)}, 2")
    I(f"s_add_u32 {s(sT3)}, {s(sT3)}, {FLG + 16}")
    if opt.fast:
        I(f"s_cmp_eq_u32 {s(sTI)}, 0")
        I(f"s_cbranch_scc0 L_nochk1")
        I(f"s_waitcnt lgkmcnt(0)")
        I(f"s_mov_b32 {s(sT1)}, {s(sNONCE)}")
        I(f"s_not_b32 {s(sT2)}, {s(sNONCE)}")
        for j in range(16):
            I(f"s_cmp_eq_u32 {s((20 if j < 8 else 36) + j)}, {s(sPRES)}")
            I(f"s_cselect_b32 {s(sT1)}, {s(sT1)}, {s(sT2)}")
        if opt.forceslow: I(f"s_mov_b32 {s(sT1)}, {s(sT2)}")
        lds_set(str(FLG + 48), val=s(sT1))
        I(f"s_waitcnt lgkmcnt(0)")
        L("L_nochk1")
    lds_set(s(sT3))
    stamp("B V1 landed")
    if opt.prepart:
        for i in range(4, 8): pre(i)
    else:
        for i in range(4, 8): dma_row_instr(rQ, KQ, i)
    I(f"s_waitcnt vmcnt(8)")
    I(f"s_add_u32 {s(sT3)}, {s(sT3)}, 16")
    lds_set(s(sT3))
    stamp("B V2 landed")
    if opt.prepart:
        I(f"s_lshl_b32 {s(sSOFF)}, {s(sTI)}, 14")
        for i in range(16): dma_row_instr(rQ, KQ, i)
    else:
        for i in range(8, 16): dma_row_instr(rQ, KQ, i)
    stamp("B q issued")
    I(f"s_waitcnt vmcnt(0)")
    stamp("B q landed")
    read_tile_frags()
    I(f"s_waitcnt lgkmcnt(0)")
    ssq()
    steps = ssq_reduce_steps()
    for t in range(16):
        c = "0" if t == 0 else v(vA1, 16)
        I(f"v_mfma_f32_32x32x16_bf16 {v(vA1,16)}, {v(W(0,t),4)}, {v(vKF+4*t,4)}, {c}")
        if 1 <= t <= 5:
            for x in steps[t-1]: I(x)
        if t == 6: I(f"v_mul_f32 {v(vSS)}, {s(sM132)}, {v(vSS)}")
        if not opt.mimicq:
            if t == 7: I(f"v_mul_f32 {v(vSS)}, {s(sLOG2E)}, {v(vSS)}")
            if t == 8: I(f"s_mov_b32 {s(sT2)}, 0x3eb8aa3b")
            if t == 9: I(f"v_mov_b32 {v(vSS+3)}, {s(sEPS)}")
    vY = 20
    vQ0 = 12
    vQ1 = 112
    def plain_ops(mt, dst):
        ops = []
        acc = lambda r: vA1 + 16*mt + r
        for g in range(2):
            for i in range(8): ops.append(f"v_fma_f32 {v(vY+i)}, {v(acc(8*g+i))}, {s(sT2)}, {v(vSS)}")
            for i in range(8): ops.append(f"v_exp_f32 {v(vY+i)}, {v(vY+i)}")
            for i in range(8): ops.append(f"v_fma_f32 {v(vY+i)}, {v(vY+i)}, {s(sC0125)}, {v(vSS+3)}")
            for i in range(4): ops.append(f"v_cvt_pk_bf16_f32 {v(dst+4*g+i)}, {v(vY+2*i)}, {v(vY+2*i+1)}")
        return ops
    if not opt.mimicq:
        ops0 = plain_ops(0, vQ0)
        k = 0
        for t in range(16):
            c = "0" if t == 0 else v(vA1 + 16, 16)
            I(f"v_mfma_f32_32x32x16_bf16 {v(vA1+16,16)}, {v(W(1,t),4)}, {v(vKF+4*t,4)}, {c}")
            if t >= 1:
                n = 4 if t < 15 else len(ops0) - k
                for x in ops0[k:k+n]: I(x)
                k += n
        stamp("B gemm1 done")
        for x in plain_ops(1, vPQ + 8): I(x)
        for i in range(8): I(f"v_mov_b32 {v(vPQ+i)}, {v(vQ0+i)}")
    else:
        for t in range(16):
            c = "0" if t == 0 else v(vA1 + 16, 16)
            I(f"v_mfma_f32_32x32x16_bf16 {v(vA1+16,16)}, {v(W(1,t),4)}, {v(vKF+4*t,4)}, {c}")
        stamp("B gemm1 done")
        I(f"v_mov_b32 {v(vEPS)}, {s(sEPS)}")
        I(f"v_cvt_pk_bf16_f32 {v(vSS)}, {v(vSS)}, 0")
        I(f"v_lshlrev_b32 {v(vNQ)}, 16, {v(vSS)}")
        for mt in range(2):
            pipeline_mimic(mt, lambda r: vNQ, vP4 + 8*mt)
        for i in range(16): I(f"v_mov_b32 {v(vPQ+i)}, {v(vP4+i)}")
    I(f"s_lshl_b32 {s(sT1)}, {s(sTI)}, 14")
    I(f"v_add_u32 {v(vX)}, {s(sT1)}, {v(vL16)}")
    for t in range(4):
        I(f"ds_write_b128 {v(vX)}, {v(vPQ+4*t,4)} offset:{t*1024}")
    stamp("B phiq done")
    final_setup(False)
    C("den = phi_q . z once z is there")
    vZF = 112; vDEN = 60
    lds_wait(str(FLG + 52), 1, "z")
    I(f"v_lshrrev_b32 {v(vDEN)}, 5, {v(vLANE)}")
    I(f"v_lshlrev_b32 {v(vDEN)}, 3, {v(vDEN)}")
    I(f"v_add_u32 {v(vDEN)}, {ZF}, {v(vDEN)}")
    for t in range(4):
        I(f"ds_read2_b64 {v(vZF+4*t,4)}, {v(vDEN)} offset0:{4*t} offset1:{4*t+2}")
    I(f"v_mov_b32 {v(vDEN+2)}, 0")
    I(f"v_mov_b32 {v(vDEN+3)}, 0")
    I(f"s_waitcnt lgkmcnt(0)")
    for i in range(16):
        I(f"v_dot2c_f32_bf16 {v(vDEN+2+(i&1))}, {v(vPQ+i)}, {v(vZF+i)}")
    I(f"v_add_f32 {v(vDEN)}, {v(vDEN+2)}, {v(vDEN+3)}")
    I(f"v_mov_b32 {v(vDEN+1)}, {v(vDEN)}")
    I(f"v_permlane32_swap_b32 {v(vDEN)}, {v(vDEN+1)}")
    I(f"v_add_f32 {v(vDEN)}, {v(vDEN)}, {v(vDEN+1)}")
    I(f"v_cvt_pk_bf16_f32 {v(vDEN)}, {v(vDEN)}, {v(vDEN)}")
    I(f"v_lshlrev_b32 {v(vDEN)}, 16, {v(vDEN)}")
    I(f"v_add_f32 {v(vDEN)}, {s(sEPS)}, {v(vDEN)}")
    I(f"v_cvt_pk_bf16_f32 {v(vDEN)}, {v(vDEN)}, {v(vDEN)}")
    I(f"v_lshlrev_b32 {v(vDEN)}, 16, {v(vDEN)}")
    I(f"v_rcp_f32 {v(vRD)}, {v(vDEN)}")
    I(f"v_fma_f32 {v(vDEN+1)}, -{v(vDEN)}, {v(vRD)}, 1.0")
    I(f"v_fma_f32 {v(vRD)}, {v(vDEN+1)}, {v(vRD)}, {v(vRD)}")
    I(f"s_lshl_b32 {s(sT1)}, {s(sTI)}, 8")
    I(f"s_add_u32 {s(sT1)}, {s(sT1)}, {RD}")
    I(f"v_lshlrev_b32 {v(vDEN)}, 2, {v(vLANE)}")
    I(f"v_add_u32 {v(vDEN)}, {s(sT1)}, {v(vDEN)}")
    I(f"ds_write_b32 {v(vDEN)}, {v(vRD)}")
    I(f"s_waitcnt lgkmcnt(0)")
    stamp("B den done")
    I(f"s_barrier")
    stamp("B B4")
    STI[0] = 18

def final():
    L("L_final")
    C("================= final =================")
    for d in range(4):
        for t in range(4):
            I(f"ds_read_b128 {v(vKA+16*(d%2)+4*t + (0 if d < 2 else 128),4)}, {v(vKAa)} offset:{(d*4+t)*1024}")
    KA = lambda d, t: vKA + 16*(d%2) + 4*t + (0 if d < 2 else 128)
    def mm(d):
        for t in range(4):
            acc = vAC3 + 16*d
            c = "0" if t == 0 else v(acc, 16)
            I(f"v_mfma_f32_32x32x16_bf16 {v(acc,16)}, {v(KA(d,t),4)}, {v(vPQ+4*t,4)}, {c}")
    def epi(d):
        acc = vAC3 + 16*d; op = vOP + 8*(d % 2)
        if opt.mimicnum:
            for i in range(8): I(f"v_cvt_pk_bf16_f32 {v(op+i)}, {v(acc+2*i)}, {v(acc+2*i+1)}")
            for i in range(8):
                I(f"v_lshlrev_b32 {v(acc+2*i)}, 16, {v(op+i)}")
                I(f"v_and_b32 {v(acc+2*i+1)}, {s(sMASKH)}, {v(op+i)}")
        for i in range(8): I(f"v_pk_mul_f32 {v(acc+2*i,2)}, {v(acc+2*i,2)}, {v(vRD,2)} op_sel_hi:[1,0]")
        for i in range(8): I(f"v_cvt_pk_bf16_f32 {v(op+i)}, {v(acc+2*i)}, {v(acc+2*i+1)}")
        for u in range(2):
            x = 64*d + 16*u
            if x:
                I(f"v_xor_b32 {v(vU+u)}, {x}, {v(vSW)}")
                I(f"ds_write_b128 {v(vU+u)}, {v(op+4*u,4)}")
            else:
                I(f"ds_write_b128 {v(vSW)}, {v(op+4*u,4)}")
    def out(p):
        for i in range(4):
            x = 128*p
            off = 2048*i
            if x:
                I(f"v_xor_b32 {v(vU+4+i)}, {x}, {v(vSR)}")
                I(f"ds_read_b128 {v(vST+16*p+4*i,4)}, {v(vU+4+i)} offset:{off}")
            else:
                I(f"ds_read_b128 {v(vST+16*p+4*i,4)}, {v(vSR)} offset:{off}")
        if p == 0:
            I(f"s_mov_b32 {s(sSOFF)}, 0")
            I(f"s_mov_b32 {s(sT1)}, 4096")
            I(f"s_mov_b32 {s(sT2)}, 8192")
            I(f"s_mov_b32 {s(sT3)}, 12288")
        so = [s(sSOFF), s(sT1), s(sT2), s(sT3)]
        for i in range(4):
            I(f"s_waitcnt lgkmcnt({3-i})")
            I(f"buffer_store_dwordx4 {v(vST+16*p+4*i,4)}, {v(vOA)}, {s(rO,4)}, {so[i]} offen offset:{128*p}{opt.ost}")
    I(f"s_waitcnt lgkmcnt(12)")
    mm(0)
    I(f"s_waitcnt lgkmcnt(8)")
    mm(1)
    I(f"s_waitcnt lgkmcnt(4)")
    mm(2)
    epi(0)
    I(f"s_waitcnt lgkmcnt(2)")
    mm(3)
    epi(1)
    I(f"s_waitcnt lgkmcnt(0)")
    out(0)
    epi(2)
    epi(3)
    I(f"s_waitcnt lgkmcnt(0)")
    out(1)
    stamp("stores issued")
    if opt.stamps: I("s_waitcnt vmcnt(0)")
    stamp("stores done")
    stamps_flush("f")

def build():
    common_start()
    I(f"s_cmp_ge_u32 {s(sWAVE)}, 4")
    I(f"s_cbranch_scc1 L_team_b")
    team_a()
    team_b()
    final()
    L("L_end")
    I("s_endpgm")
    body = A.render()
    hdr = f"""; fused RFA linear attention: 256 workgroups (one per CU) x 8 waves
; @launch grid=(256,1,1) block=(512,1,1) lds={LDS_BYTES}
.amdgcn_target "amdgcn-amd-amdhsa--gfx950"
.text
.globl {NAME}
.p2align 8
.type {NAME},@function
{NAME}:
"""
    ftr = f"""
.section .rodata,"a"
.p2align 6
.amdhsa_kernel {NAME}
  .amdhsa_next_free_vgpr 256
  .amdhsa_next_free_sgpr 102
  .amdhsa_accum_offset 256
  .amdhsa_group_segment_fixed_size 0
  .amdhsa_kernarg_size 56
  .amdhsa_user_sgpr_count 2
  .amdhsa_user_sgpr_kernarg_segment_ptr 1
  .amdhsa_system_sgpr_workgroup_id_x 1
  .amdhsa_float_denorm_mode_32 3
.end_amdhsa_kernel
"""
    return hdr + body + ftr

if __name__ == "__main__":
    out = sys.argv[1]
    for a in sys.argv[2:]:
        if a == "stamps": opt.stamps = True
        elif a == "nont": opt.nt = False
        elif a == "nofast": opt.fast = False
        elif a == "forceslow": opt.forceslow = True
        elif a == "nopretouch": opt.pretouch = False
        elif a == "mimicq": opt.mimicq = True
        elif a == "prepart": opt.prepart = True; opt.partplain = True
        elif a.startswith("prepol="): opt.prepol = (" " + a.split("=")[1].replace("+", " ")).rstrip()
        elif a.startswith("partpol="): opt.partpol = " " + a.split("=")[1].replace("+", " ")
        elif a == "codepf": opt.codepf = True
        elif a == "partplain": opt.partplain = True
        elif a == "nopreread": opt.preread = False
        elif a == "mimicnum": opt.mimicnum = True
        elif a.startswith("dbgwg="): opt.dbgwg = int(a.split("=")[1])
        elif a.startswith("dbgwave="): opt.dbgwave = int(a.split("=")[1])
        elif a.startswith("ost="): opt.ost = " " + a.split("=")[1].replace("+", " ")
        else: raise SystemExit("unknown option " + a)
    txt = build()
    open(out, "w").write(txt)
    if opt.stamps: json.dump(STN, open(out + ".stamps.json", "w"))
    print("wrote", out, "nops inserted:", A.nops, "lines", txt.count("\n"))
```

```python
import sys, json, struct
from asmlib import *

NAME = "standalone__linear_kernel_rfa__prompt_kernel"
class O: pass
opt = O()
opt.spin_limit = 300000
opt.stamps = False
opt.nt = True
opt.fast = True
opt.forceslow = False
opt.dbgwg = None
opt.dbgwave = 0
opt.ost = ""
opt.pretouch = True
opt.partplain = False
opt.preread = True
opt.codepf = False
opt.partpol = ' sc1'
opt.prepart = False
opt.prepol = ' nt'
opt.light = False
opt.mimicq = False
opt.mimicnum = False

KQ = 0
VR = 65536
WR = 131072
PHI = WR
ZB = WR + 16384
ZF = WR + 17408
FLG = WR + 17664
RD = WR + 18432
KVF = VR
OSA = VR + 32768
LDS_BYTES = 163840
HS = 1 << 20
O_PART = 0
O_F = 524288
O_Z = 524288 + 32768
O_FL = 524288 + 32768 + 4096
WS_ST = 20 << 20

sQp, sKp, sVp, sWp, sOp, sDp, sSp = 4, 6, 8, 10, 12, 14, 16
sHEAD, sCH = 18, 19
rK, rV, rQ, rW, rO, rP, rL = 20, 24, 28, 32, 36, 40, 52
sWAVE, sTI = 56, 57
sT0, sT1, sT2, sT3 = 58, 59, 60, 61
sNONCE, sFAST = 62, 63
sC025L, sC025H, sLOG2E, sC0125, sMASKH, sONES = 64, 65, 66, 67, 68, 69
sSPIN, sSOFF, sEPS, sM132 = 70, 71, 72, 73
sXCC, sPRES = 94, 95
sEPA = 96
sPW = 40
sJUNK = 44

A = Asm()
I, L, C = A.I, A.L, A.C
STI = [0]; STN = []
def stamp(name=""):
    if not opt.stamps: return
    if opt.light and name not in ("start", "stores done"):
        STN.append((STI[0], name)); STI[0] += 1
        return
    C("stamp %s" % name)
    I("s_memrealtime s[98:99]")
    I("s_waitcnt lgkmcnt(0)")
    I("s_mov_b32 s%d, s98" % (74 + STI[0]))
    STN.append((STI[0], name)); STI[0] += 1
def stamps_flush(tag):
    if not opt.stamps: return
    I("s_and_b32 s97, s56, 3"); I("s_cmp_eq_u32 s97, 0"); I("s_cbranch_scc0 L_nost_%s" % tag)
    I("s_lshr_b32 s97, s56, 2"); I("s_lshl_b32 s96, s2, 1"); I("s_add_u32 s96, s96, s97"); I("s_lshl_b32 s96, s96, 7")
    I("s_add_u32 s96, s96, %d" % WS_ST)
    I("s_add_u32 s40, s16, s96"); I("s_addc_u32 s41, s17, 0"); I("s_and_b32 s41, s41, 0xffff"); I("s_mov_b32 s42, 128"); I("s_mov_b32 s43, 0x20000")
    I("s_mov_b64 exec, 1"); I("v_mov_b32 v1, 0")
    for i in range(20):
        I("v_mov_b32 v2, s%d" % (74 + i)); I("buffer_store_dword v2, v1, s[40:43], 0 offen offset:%d" % (4 * i))
    I("s_waitcnt vmcnt(0)")
    if opt.dbgwg is not None:
        I("s_cmp_eq_u32 s2, %d" % opt.dbgwg); I("s_cbranch_scc0 L_nodbg")
        I("s_cmp_eq_u32 s56, %d" % opt.dbgwave); I("s_cbranch_scc0 L_nodbg")
        I("s_mov_b32 s40, s14"); I("s_and_b32 s41, s15, 0xffff"); I("s_mov_b32 s42, 256")
        I("s_sub_u32 s97, s74, s100"); I("v_mov_b32 v2, s97"); I("buffer_store_dword v2, v1, s[40:43], 0 offen offset:60")
        idx = [i for i in range(1, 14)] + [18, 19]
        for j, i in enumerate(idx):
            I("s_sub_u32 s97, s%d, s74" % (74 + i)); I("v_mov_b32 v2, s97"); I("buffer_store_dword v2, v1, s[40:43], 0 offen offset:%d" % (4 * j))
        I("s_waitcnt vmcnt(0)")
        L("L_nodbg")
    I("s_mov_b64 exec, -1")
    L("L_nost_%s" % tag)

def srd(r, ptr, off_s, size):
    if off_s is None:
        I(f"s_mov_b32 {s(r)}, {s(ptr)}")
        I(f"s_and_b32 {s(r+1)}, {s(ptr+1)}, 0xffff")
    else:
        I(f"s_add_u32 {s(r)}, {s(ptr)}, {s(off_s)}")
        I(f"s_addc_u32 {s(r+1)}, {s(ptr+1)}, 0")
        I(f"s_and_b32 {s(r+1)}, {s(r+1)}, 0xffff")
    I(f"s_mov_b32 {s(r+2)}, {size}")
    I(f"s_mov_b32 {s(r+3)}, 0x20000")

NT = lambda: " nt" if opt.nt else ""
vLANE = 0
vA = 2
vD = 10
vL16 = 11
vT = 12
vSS = 28
vW = 128
def W(mt, t): return vW + mt * 64 + t * 4
vKF = 32
vA1 = 96
vP4 = 12
vNQ = 32
vNK = 48
vONE = 52
vP1 = 56
vTT = 60
vEPS = 68
vZP = 69
vX = 72
vPQ = 32

POL = [" sc1"]
def pol(): return POL[0]
DUAL = [0]
def dual(fn):
    if not opt.fast:
        POL[0] = " sc1"; fn(); return
    DUAL[0] += 1; n = DUAL[0]
    I(f"s_cmp_lg_u32 {s(sFAST)}, 0")
    I(f"s_cbranch_scc1 L_fast{n}")
    POL[0] = " sc1"; fn()
    I(f"s_branch L_join{n}")
    L(f"L_fast{n}")
    POL[0] = ""; fn()
    L(f"L_join{n}")
    POL[0] = " sc1"

def prologue():
    if opt.stamps: I("s_memrealtime s[100:101]")
    I(f"s_cmp_ge_u32 s2, 256")
    I(f"s_cbranch_scc1 L_end")
    I(f"s_load_dwordx4 s[4:7], s[0:1], 0")
    I(f"s_load_dwordx4 s[8:11], s[0:1], 16")
    I(f"s_load_dwordx4 s[12:15], s[0:1], 32")
    I(f"s_load_dwordx2 s[16:17], s[0:1], 48")
    if opt.codepf:
        C("pull the kernel's own code into L2 while the kernel arguments are on their way (128 B per lane)")
        I(f"s_getpc_b64 s[20:21]")
        I(f"v_and_b32 v1, 63, v0")
        I(f"v_lshlrev_b32 v1, 7, v1")
        I(f"global_load_dword v2, v1, s[20:21]")
        I(f"v_add_u32 v1, 8192, v1")
        I(f"v_min_u32 v1, 11648, v1")
        I(f"global_load_dword v3, v1, s[20:21]")
    I(f"v_lshrrev_b32 v1, 6, v0")
    I(f"v_and_b32 {v(vLANE)}, 63, v0")
    I(f"v_readfirstlane_b32 {s(sWAVE)}, v1")
    I(f"s_and_b32 {s(sT0)}, s2, 7")
    I(f"s_lshr_b32 {s(sT1)}, s2, 3")
    I(f"s_lshr_b32 {s(sHEAD)}, {s(sT1)}, 4")
    I(f"s_lshl_b32 {s(sT0)}, {s(sT0)}, 1")
    I(f"s_add_u32 {s(sHEAD)}, {s(sHEAD)}, {s(sT0)}")
    I(f"s_and_b32 {s(sCH)}, {s(sT1)}, 15")
    I(f"s_and_b32 {s(sTI)}, {s(sWAVE)}, 3")
    I(f"v_lshrrev_b32 {v(vT)}, 5, {v(vLANE)}")
    I(f"v_and_b32 {v(vT+1)}, 31, {v(vLANE)}")
    I(f"v_xor_b32 {v(vT+1)}, {v(vT+1)}, {v(vT)}")
    I(f"v_lshlrev_b32 {v(vT+1)}, 4, {v(vT+1)}")
    I(f"v_lshl_add_u32 {v(vD)}, {v(vT)}, 9, {v(vT+1)}")
    I(f"v_lshlrev_b32 {v(vL16)}, 4, {v(vLANE)}")
    I(f"s_lshl_b32 {s(sT0)}, {s(sHEAD)}, 20")
    I(f"s_lshl_b32 {s(sT1)}, {s(sCH)}, 16")
    I(f"s_add_u32 {s(sT0)}, {s(sT0)}, {s(sT1)}")
    I(f"s_waitcnt lgkmcnt(0)")
    srd(rW, sWp, None, 32768)
    srd(rK, sKp, sT0, 65536)

def dma_omega():
    I(f"s_and_b32 {s(sT1)}, {s(sWAVE)}, 1")
    I(f"s_lshl_b32 {s(sT1)}, {s(sT1)}, 7")
    I(f"s_lshl_b32 {s(sSOFF)}, {s(sWAVE)}, 12")
    I(f"s_add_u32 m0, {s(sSOFF)}, {WR}")
    for i in range(4):
        I(f"s_add_u32 {s(sT2)}, {s(sT1)}, {32*i}")
        I(f"v_xor_b32 {v(vT)}, {s(sT2)}, {v(vD)}")
        I(f"buffer_load_dwordx4 {v(vT)}, {s(rW,4)}, {s(sSOFF)} offen offset:{1024*i} lds")

def dma_row_instr(r, base_lds, i):
    if i % 4 == 0:
        if i: I(f"s_add_u32 {s(sSOFF)}, {s(sSOFF)}, 4096")
        I(f"s_add_u32 m0, {s(sSOFF)}, {base_lds}")
    if i & 7:
        I(f"v_xor_b32 {v(vT)}, {32*(i&7)}, {v(vD)}")
        I(f"buffer_load_dwordx4 {v(vT)}, {s(r,4)}, {s(sSOFF)} offen offset:{1024*(i%4)}{NT()} lds")
    else:
        I(f"buffer_load_dwordx4 {v(vD)}, {s(r,4)}, {s(sSOFF)} offen offset:{1024*(i%4)}{NT()} lds")

def dma_k():
    I(f"s_lshl_b32 {s(sSOFF)}, {s(sWAVE)}, 13")
    for i in range(8): dma_row_instr(rK, KQ, i)

def dma_v():
    C("team B wave b: V slice b (128 B columns), all 128 rows, 16 instructions of 8 rows")
    I(f"v_lshrrev_b32 {v(vT+2)}, 4, {v(vLANE)}")
    I(f"v_and_b32 {v(vT+2)}, 1, {v(vT+2)}")
    I(f"v_lshlrev_b32 {v(vT+2)}, 2, {v(vT+2)}")
    I(f"v_and_b32 {v(vT+1)}, 7, {v(vLANE)}")
    I(f"v_xor_b32 {v(vT+2)}, {v(vT+2)}, {v(vT+1)}")
    I(f"v_lshlrev_b32 {v(vT+2)}, 4, {v(vT+2)}")
    I(f"v_lshrrev_b32 {v(vT+1)}, 3, {v(vLANE)}")
    I(f"v_lshl_add_u32 {v(vT+2)}, {v(vT+1)}, 9, {v(vT+2)}")
    I(f"s_lshl_b32 {s(sSOFF)}, {s(sTI)}, 7")
    I(f"s_lshl_b32 {s(sT1)}, {s(sTI)}, 14")
    I(f"s_add_u32 {s(sT1)}, {s(sT1)}, {VR}")
    for i in range(16):
        I(f"s_add_u32 m0, {s(sT1)}, {1024*i}")
        if i: I(f"s_add_u32 {s(sSOFF)}, {s(sSOFF)}, 4096")
        I(f"buffer_load_dwordx4 {v(vT+2)}, {s(rV,4)}, {s(sSOFF)} offen{NT()} lds")

def tile_addrs():
    I(f"v_and_b32 {v(vT)}, 31, {v(vLANE)}")
    I(f"v_lshrrev_b32 {v(vT+1)}, 5, {v(vLANE)}")
    I(f"v_and_b32 {v(vT+2)}, 15, {v(vLANE)}")
    I(f"v_xor_b32 {v(vT+2)}, {v(vT+2)}, {v(vT+1)}")
    I(f"v_lshlrev_b32 {v(vT+2)}, 4, {v(vT+2)}")
    I(f"v_lshl_add_u32 {v(vT+2)}, {v(vT)}, 9, {v(vT+2)}")
    I(f"v_add_u32 {v(vA)}, {WR}, {v(vT+2)}")
    for x in range(1, 8):
        I(f"v_xor_b32 {v(vA+x)}, {32*x}, {v(vA)}")

def read_omega():
    for t in range(16):
        for mt in range(2):
            I(f"ds_read_b128 {v(W(mt,t),4)}, {v(vA+(t&7))} offset:{(t>>3)*256 + mt*16384}")
    I(f"s_lshl_b32 {s(sT1)}, {s(sTI)}, 14")
    I(f"s_sub_u32 {s(sT1)}, {s(sT1)}, {WR - KQ}")
    for x in range(8):
        I(f"v_add_u32 {v(vA+x)}, {s(sT1)}, {v(vA+x)}")

def consts():
    I(f"s_mov_b32 {s(sC025L)}, 0x00003e80")
    I(f"s_mov_b32 {s(sC025H)}, 0x3e800000")
    I(f"s_mov_b32 {s(sLOG2E)}, 0x3fb8aa3b")
    I(f"s_mov_b32 {s(sC0125)}, 0x3e000000")
    I(f"s_mov_b32 {s(sMASKH)}, 0xffff0000")
    I(f"s_mov_b32 {s(sONES)}, 0x3f803f80")
    I(f"s_mov_b32 {s(sEPS)}, 0x358637bd")
    I(f"s_mov_b32 {s(sM132)}, 0xbd000000")

def read_tile_frags():
    for t in range(16):
        I(f"ds_read_b128 {v(vKF+4*t,4)}, {v(vA+(t&7))} offset:{(t>>3)*256}")
    for i in range(4): I(f"v_mov_b32 {v(vSS+i)}, 0")

def ssq():
    for t in range(16):
        for i in range(4):
            I(f"v_dot2c_f32_bf16 {v(vSS+i)}, {v(vKF+4*t+i)}, {v(vKF+4*t+i)}")

def ssq_reduce_steps():
    return [
        [f"v_add_f32 {v(vSS)}, {v(vSS)}, {v(vSS+1)}", f"v_add_f32 {v(vSS+2)}, {v(vSS+2)}, {v(vSS+3)}"],
        [f"v_add_f32 {v(vSS)}, {v(vSS)}, {v(vSS+2)}"],
        [f"v_mov_b32 {v(vSS+1)}, {v(vSS)}"],
        [f"v_permlane32_swap_b32 {v(vSS)}, {v(vSS+1)}"],
        [f"v_add_f32 {v(vSS)}, {v(vSS)}, {v(vSS+1)}"],
    ]

def pipeline_mimic(mt, nq_of, p4base):
    for g in range(2):
        prs = [4*g + i for i in range(4)]
        acc = lambda r: vA1 + 16*mt + r
        for i, p in enumerate(prs): I(f"v_cvt_pk_bf16_f32 {v(vP1+i)}, {v(acc(2*p))}, {v(acc(2*p+1))}")
        for i, p in enumerate(prs):
            I(f"v_dot2_f32_bf16 {v(vTT+2*i)}, {v(vP1+i)}, {s(sC025L)}, {v(nq_of(2*p))}")
            I(f"v_dot2_f32_bf16 {v(vTT+2*i+1)}, {v(vP1+i)}, {s(sC025H)}, {v(nq_of(2*p+1))}")
        for i, p in enumerate(prs): I(f"v_cvt_pk_bf16_f32 {v(vP1+i)}, {v(vTT+2*i)}, {v(vTT+2*i+1)}")
        for i, p in enumerate(prs):
            I(f"v_lshlrev_b32 {v(vTT+2*i)}, 16, {v(vP1+i)}")
            I(f"v_and_b32 {v(vTT+2*i+1)}, {s(sMASKH)}, {v(vP1+i)}")
        for i in range(8): I(f"v_mul_f32 {v(vTT+i)}, {s(sLOG2E)}, {v(vTT+i)}")
        for i in range(8): I(f"v_exp_f32 {v(vTT+i)}, {v(vTT+i)}")
        for i in range(8): I(f"v_fma_f32 {v(vTT+i)}, {v(vTT+i)}, {s(sC0125)}, {v(vEPS)}")
        for i, p in enumerate(prs): I(f"v_cvt_pk_bf16_f32 {v(p4base+p)}, {v(vTT+2*i)}, {v(vTT+2*i+1)}")

def lds_wait(addr, n, tag, tmp=None):
    tmp = vX + 4 if tmp is None else tmp
    I(f"s_mov_b32 {s(sSPIN)}, 0")
    if n == 1:
        I(f"v_mov_b32 {v(tmp)}, {addr}")
    else:
        I(f"v_and_b32 {v(tmp)}, {n-1}, {v(vLANE)}")
        I(f"v_lshlrev_b32 {v(tmp)}, 2, {v(tmp)}")
        I(f"v_add_u32 {v(tmp)}, {addr}, {v(tmp)}")
    L(f"L_ls_{tag}")
    I(f"ds_read_b32 {v(tmp+1)}, {v(tmp)}")
    I(f"s_waitcnt lgkmcnt(0)")
    I(f"v_cmp_ne_u32 vcc, {s(sNONCE)}, {v(tmp+1)}")
    I(f"s_cbranch_vccz L_lsd_{tag}")
    I(f"s_add_u32 {s(sSPIN)}, {s(sSPIN)}, 1")
    I(f"s_cmp_lt_u32 {s(sSPIN)}, {opt.spin_limit*16}")
    I(f"s_cbranch_scc1 L_ls_{tag}")
    L(f"L_lsd_{tag}")

def lds_set(addr, tmp=None, val=None):
    tmp = vX + 4 if tmp is None else tmp
    I(f"v_mov_b32 {v(tmp)}, {addr}")
    I(f"v_mov_b32 {v(tmp+1)}, {s(sNONCE) if val is None else val}")
    I(f"ds_write_b32 {v(tmp)}, {v(tmp+1)}")

def wave_flag(off):
    I(f"s_lshl_b32 {s(sT1)}, {s(sCH)}, 4")
    I(f"s_lshl_b32 {s(sT2)}, {s(sTI)}, 2")
    I(f"s_add_u32 {s(sT1)}, {s(sT1)}, {s(sT2)}")
    I(f"s_add_u32 {s(sT1)}, {s(sT1)}, {O_FL + off}")
    I(f"s_mov_b64 exec, 1")
    I(f"v_mov_b32 {v(vT)}, 0")
    I(f"v_mov_b32 {v(vT+1)}, {s(sNONCE)}")
    dual(lambda: I(f"buffer_store_dword {v(vT+1)}, {v(vT)}, {s(rP,4)}, {s(sT1)} offen{pol()}"))
    I(f"s_mov_b64 exec, -1")

def poll(off, tag):
    I(f"s_mov_b32 {s(sSPIN)}, 0")
    I(f"s_mov_b32 {s(sT2)}, {O_FL + off}")
    I(f"v_lshlrev_b32 {v(vT)}, 2, {v(vLANE)}")
    L(f"L_spin_{tag}")
    I(f"buffer_load_dword {v(vT+1)}, {v(vT)}, {s(rP,4)}, {s(sT2)} offen sc1")
    I(f"s_waitcnt vmcnt(0)")
    I(f"v_cmp_ne_u32 vcc, {s(sNONCE)}, {v(vT+1)}")
    I(f"s_cbranch_vccz L_spun_{tag}")
    I(f"s_add_u32 {s(sSPIN)}, {s(sSPIN)}, 1")
    I(f"s_cmp_lt_u32 {s(sSPIN)}, {opt.spin_limit}")
    I(f"s_cbranch_scc1 L_spin_{tag}")
    L(f"L_spun_{tag}")

def common_start():
    prologue()
    stamp("start")
    dma_omega()
    I(f"s_barrier")
    dma_k()
    C("scalar side: epoch word, translation pre-touch, descriptors")
    I(f"s_lshl_b32 {s(sT1)}, {s(sHEAD)}, 20")
    I(f"s_add_u32 {s(sEPA)}, {s(sSp)}, {s(sT1)}")
    I(f"s_addc_u32 {s(sEPA+1)}, {s(sSp+1)}, 0")
    I(f"s_load_dword {s(sNONCE)}, {s(sEPA,2)}, {O_FL}")
    if opt.preread:
        C("bring the flag lines of this head into L2 (a store to an absent line makes the next read a memory fill)")
        for j in range(8):
            I(f"s_load_dword {s(sJUNK+3)}, {s(sEPA,2)}, {O_FL + 256 + 64*j}")
    srd(rV, sVp, sT0, 65536)
    srd(rQ, sQp, sT0, 65536)
    srd(rO, sOp, sT0, 65536)
    if opt.pretouch:
        I(f"s_load_dword {s(sJUNK)}, {s(rQ,2)}, 0")
        I(f"s_load_dword {s(sJUNK+1)}, {s(rO,2)}, 0")
        I(f"s_load_dword {s(sJUNK+2)}, {s(rV,2)}, 0")
    tile_addrs()
    consts()
    stamp("K issued")
    I(f"s_waitcnt vmcnt(8) lgkmcnt(0)")
    I(f"s_add_u32 {s(sNONCE)}, {s(sNONCE)}, 1")
    I(f"s_lshl_b32 {s(sT1)}, {s(sHEAD)}, 20")
    srd(rP, sSp, sT1, HS)
    I(f"s_getreg_b32 {s(sXCC)}, hwreg(HW_REG_XCC_ID, 0, 4)")
    I(f"s_lshl_b32 {s(sPRES)}, {s(sNONCE)}, 4")
    I(f"s_add_u32 {s(sPRES)}, {s(sPRES)}, {s(sXCC)}")
    I(f"s_barrier")

def team_a():
    C("================= team A =================")
    if opt.fast:
        C("presence word: nonce*16 + XCC id (wave 0)")
        I(f"s_cmp_eq_u32 {s(sTI)}, 0")
        I(f"s_cbranch_scc0 L_nopres")
        I(f"s_mov_b64 exec, 1")
        I(f"s_lshl_b32 {s(sT1)}, {s(sCH)}, 2")
        I(f"s_add_u32 {s(sT1)}, {s(sT1)}, {O_FL + 128}")
        I(f"v_mov_b32 {v(vT)}, 0")
        I(f"v_mov_b32 {v(vT+1)}, {s(sPRES)}")
        I(f"buffer_store_dword {v(vT+1)}, {v(vT)}, {s(rP,4)}, {s(sT1)} offen sc1")
        I(f"s_mov_b64 exec, -1")
        L("L_nopres")
    read_omega()
    I(f"v_mov_b32 {v(vEPS)}, {s(sEPS)}")
    C("K landed: own loads only (the presence store of wave 0 may still be in flight)")
    I(f"s_waitcnt vmcnt(1) lgkmcnt(0)")
    I(f"s_cmp_eq_u32 {s(sTI)}, 0")
    I(f"s_cbranch_scc1 L_k0")
    I(f"s_waitcnt vmcnt(0)")
    L("L_k0")
    I(f"s_barrier")
    stamp("A B1 K landed")
    read_tile_frags()
    I(f"s_waitcnt lgkmcnt(0)")
    I(f"s_barrier")
    ssq()
    steps = ssq_reduce_steps()
    for t in range(16):
        for mt in range(2):
            c = "0" if t == 0 else v(vA1 + 16*mt, 16)
            I(f"v_mfma_f32_32x32x16_bf16 {v(vA1+16*mt,16)}, {v(vKF+4*t,4)}, {v(W(mt,t),4)}, {c}")
        if 1 <= t <= 5:
            for x in steps[t-1]: I(x)
        if t == 6:
            I(f"v_mul_f32 {v(vSS)}, {s(sM132)}, {v(vSS)}")
            I(f"v_lshrrev_b32 {v(vSS+1)}, 5, {v(vLANE)}")
        if t == 7:
            I(f"v_cmp_eq_u32 vcc, 0, {v(vSS+1)}")
        if t == 8:
            I(f"v_cndmask_b32 {v(vSS)}, 0, {v(vSS)}, vcc")
        if t == 9:
            I(f"v_cvt_pk_bf16_f32 {v(vSS)}, {v(vSS)}, 0")
    stamp("A gemm1 done")
    I(f"v_mov_b32 {v(vEPS)}, {s(sEPS)}")
    I(f"v_mov_b32 {v(vNK)}, {v(vSS)}")
    I(f"v_mov_b32 {v(vONE)}, 0x3f80")
    for i in range(1, 4):
        I(f"v_mov_b32 {v(vONE+i)}, 0")
        I(f"v_mov_b32 {v(vNK+i)}, 0")
    I(f"v_mfma_f32_32x32x16_bf16 {v(vNQ,16)}, {v(vNK,4)}, {v(vONE,4)}, 0")
    I(f"v_lshl_add_u32 {v(vX)}, {s(sTI)}, 12, {v(vL16)}")
    I(f"v_add_u32 {v(vX)}, {PHI}, {v(vX)}")
    for mt in range(2):
        pipeline_mimic(mt, lambda r: vNQ + r, vP4 + 8*mt)
        for u in range(2):
            I(f"ds_write_b128 {v(vX)}, {v(vP4+8*mt+4*u,4)} offset:{u*2048 + mt*1024}")
        I(f"v_mov_b32 {v(vZP+mt)}, 0")
        for i in range(8):
            I(f"v_dot2c_f32_bf16 {v(vZP+mt)}, {s(sONES)}, {v(vP4+8*mt+i)}")
    for mt in range(2): I(f"v_mov_b32 {v(vX+1+mt)}, {v(vZP+mt)}")
    for mt in range(2): I(f"v_permlane32_swap_b32 {v(vZP+mt)}, {v(vX+1+mt)}")
    for mt in range(2): I(f"v_add_f32 {v(vZP+mt)}, {v(vZP+mt)}, {v(vX+1+mt)}")
    I(f"v_and_b32 {v(vX+1)}, 31, {v(vLANE)}")
    I(f"v_lshlrev_b32 {v(vX+1)}, 2, {v(vX+1)}")
    I(f"s_lshl_b32 {s(sT1)}, {s(sTI)}, 8")
    I(f"s_add_u32 {s(sT1)}, {s(sT1)}, {ZB}")
    I(f"v_add_u32 {v(vX+1)}, {s(sT1)}, {v(vX+1)}")
    I(f"ds_write_b32 {v(vX+1)}, {v(vZP)}")
    I(f"ds_write_b32 {v(vX+1)}, {v(vZP+1)} offset:128")
    I(f"s_waitcnt lgkmcnt(0)")
    stamp("A phi written")
    I(f"s_lshl_b32 {s(sT2)}, {s(sTI)}, 2")
    I(f"s_add_u32 {s(sT2)}, {s(sT2)}, {FLG}")
    lds_set(s(sT2))
    C("transposing-read addresses of the V slice (computed while waiting)")
    vPH = 128; vAC = 48; vVB = 112; vVA = 28; vPA = 30
    I(f"v_lshrrev_b32 {v(vT)}, 5, {v(vLANE)}")
    I(f"v_lshlrev_b32 {v(vT)}, 2, {v(vT)}")
    I(f"v_bfe_u32 {v(vT+1)}, {v(vLANE)}, 2, 2")
    I(f"v_add_u32 {v(vT)}, {v(vT)}, {v(vT+1)}")
    I(f"v_lshlrev_b32 {v(vT)}, 7, {v(vT)}")
    I(f"v_lshrrev_b32 {v(vT+1)}, 1, {v(vT+1)}")
    I(f"v_lshl_add_u32 {v(vT)}, {v(vT+1)}, 6, {v(vT)}")
    I(f"v_bfe_u32 {v(vT+1)}, {v(vLANE)}, 4, 1")
    I(f"v_lshl_add_u32 {v(vT)}, {v(vT+1)}, 5, {v(vT)}")
    I(f"v_and_b32 {v(vT+1)}, 3, {v(vLANE)}")
    I(f"v_lshl_add_u32 {v(vT)}, {v(vT+1)}, 3, {v(vT)}")
    I(f"s_lshl_b32 {s(sT1)}, {s(sTI)}, 14")
    I(f"s_add_u32 {s(sT1)}, {s(sT1)}, {VR}")
    I(f"v_add_u32 {v(vVA)}, {s(sT1)}, {v(vT)}")
    I(f"v_xor_b32 {v(vVA+1)}, 64, {v(vVA)}")
    I(f"v_add_u32 {v(vPA)}, {PHI}, {v(vL16)}")
    lds_wait(str(FLG), 4, "phi")
    stamp("A phi all")
    for f in range(16):
        I(f"ds_read_b128 {v(vPH+4*f,4)}, {v(vPA)} offset:{1024*f}")
    def vread(kk):
        b = vVB + 8*(kk % 2)
        for dl in range(2):
            for ap in range(2):
                I(f"ds_read_b64_tr_b16 {v(b+4*dl+2*ap,2)}, {v(vVA+dl)} offset:{kk*2048 + ap*1024}")
    def mm(kk, first):
        b = vVB + 8*(kk % 2)
        for dl in range(2):
            for mt in range(2):
                acc = vAC + (dl*2 + mt)*16
                c = "0" if first else v(acc, 16)
                I(f"v_mfma_f32_32x32x16_bf16 {v(acc,16)}, {v(vPH+4*(kk*2+mt),4)}, {v(b+4*dl,4)}, {c}")
    I(f"s_lshl_b32 {s(sT2)}, {s(sTI)}, 2")
    I(f"s_add_u32 {s(sT2)}, {s(sT2)}, {FLG + 16}")
    lds_wait(s(sT2), 1, "v1", tmp=26)
    stamp("A V1 ready")
    vread(0)
    for kk in range(8):
        if kk == 3:
            I(f"s_waitcnt lgkmcnt(0)")
            mm(kk, False)
            I(f"s_add_u32 {s(sT2)}, {s(sT2)}, 16")
            lds_wait(s(sT2), 1, "v2", tmp=26)
            vread(4)
            continue
        if kk + 1 < 8:
            vread(kk + 1)
            I(f"s_waitcnt lgkmcnt(4)")
        else:
            I(f"s_waitcnt lgkmcnt(0)")
        mm(kk, kk == 0)
    stamp("A gemm2 done")
    if opt.fast:
        I(f"v_mov_b32 {v(vT+1)}, {FLG + 48}")
        I(f"ds_read_b32 {v(vT+2)}, {v(vT+1)}")
    C("z partial inputs (wave 0)")
    I(f"v_lshlrev_b32 {v(vT+3)}, 2, {v(vLANE)}")
    I(f"v_add_u32 {v(vT+4)}, {ZB}, {v(vT+3)}")
    for a in range(4): I(f"ds_read_b32 {v(vT+6+a)}, {v(vT+4)} offset:{256*a}")
    vPK = 128
    for j in range(4):
        for i in range(8):
            I(f"v_cvt_pk_bf16_f32 {v(vPK+8*j+i)}, {v(vAC+16*j+2*i)}, {v(vAC+16*j+2*i+1)}")
    I(f"s_lshl_b32 {s(sT1)}, {s(sTI)}, 13")
    I(f"v_add_u32 {v(vT)}, {s(sT1)}, {v(vL16)}")
    I(f"s_lshl_b32 {s(sSOFF)}, {s(sCH)}, 15")
    I(f"s_add_u32 {s(sT2)}, {s(sSOFF)}, 4096")
    I(f"s_waitcnt lgkmcnt(0)")
    if opt.fast:
        I(f"v_readfirstlane_b32 {s(sFAST)}, {v(vT+2)}")
        I(f"s_cmp_eq_u32 {s(sFAST)}, {s(sNONCE)}")
        I(f"s_cselect_b32 {s(sFAST)}, 1, 0")
    def st():
        for f in range(8):
            so = s(sSOFF) if f < 4 else s(sT2)
            I(f"buffer_store_dwordx4 {v(vPK+4*f,4)}, {v(vT)}, {s(rP,4)}, {so} offen offset:{(f%4)*1024}{pol()}")
    if opt.partplain: dual(st)
    else:
        POL[0] = opt.partpol; st(); POL[0] = " sc1"
    I(f"s_cmp_eq_u32 {s(sTI)}, 0")
    I(f"s_cbranch_scc0 L_noz")
    I(f"v_add_f32 {v(vT+6)}, {v(vT+6)}, {v(vT+7)}")
    I(f"v_add_f32 {v(vT+8)}, {v(vT+8)}, {v(vT+9)}")
    I(f"v_add_f32 {v(vT+6)}, {v(vT+6)}, {v(vT+8)}")
    I(f"s_lshl_b32 {s(sSOFF)}, {s(sCH)}, 8")
    I(f"s_add_u32 {s(sSOFF)}, {s(sSOFF)}, {O_Z}")
    I(f"buffer_store_dword {v(vT+6)}, {v(vT+3)}, {s(rP,4)}, {s(sSOFF)} offen sc1")
    L("L_noz")
    C("addresses for the reduction: quarter tile a of tile 'chunk': fragment 2*chunk + (a>>1), lanes (a&1)*32 + (l&31); producer parity = l>>5")
    vR = 128
    I(f"s_lshl_b32 {s(sT1)}, {s(sCH)}, 11")
    I(f"s_lshl_b32 {s(sT2)}, {s(sTI)}, 9")
    I(f"s_add_u32 {s(sT3)}, {s(sT1)}, {s(sT2)}")
    I(f"v_and_b32 {v(vX)}, 31, {v(vLANE)}")
    I(f"v_lshlrev_b32 {v(vX)}, 4, {v(vX)}")
    I(f"v_add_u32 {v(vX)}, {s(sT3)}, {v(vX)}")
    I(f"v_lshrrev_b32 {v(vX+1)}, 5, {v(vLANE)}")
    I(f"v_lshl_add_u32 {v(vX+1)}, {v(vX+1)}, 15, {v(vX)}")
    I(f"s_waitcnt vmcnt(0)")
    stamp("A part drained")
    wave_flag(256)
    poll(256, "h1")
    stamp("A hop1")
    I(f"s_mov_b32 {s(sSOFF)}, 0")
    for c in range(8):
        I(f"buffer_load_dwordx4 {v(vR+4*c,4)}, {v(vX+1)}, {s(rP,4)}, {s(sSOFF)} offen sc1")
        if c < 7: I(f"s_add_u32 {s(sSOFF)}, {s(sSOFF)}, 65536")
    vZ = 192
    I(f"s_cmp_eq_u32 {s(sTI)}, 3")
    I(f"s_cbranch_scc0 L_noz2")
    I(f"s_mov_b32 {s(sSOFF)}, {O_Z}")
    for j in range(4):
        I(f"buffer_load_dwordx4 {v(vZ+4*j,4)}, {v(vL16)}, {s(rP,4)}, {s(sSOFF)} offen offset:{1024*j} sc1")
    L("L_noz2")
    vS = 176
    I(f"s_mov_b32 {s(sT1)}, 0x3f80")
    I(f"s_mov_b32 {s(sT2)}, 0x3f800000")
    for i in range(8): I(f"v_mov_b32 {v(vS+i)}, 0")
    C("(wave 3 has 4 younger loads in flight: its counted waits are conservative only if we wait for more, so wait per wave)")
    I(f"s_cmp_eq_u32 {s(sTI)}, 3")
    I(f"s_cbranch_scc1 L_red3")
    def red(extra):
        for c in range(8):
            I(f"s_waitcnt vmcnt({7-c+extra})")
            for i in range(4):
                I(f"v_dot2_f32_bf16 {v(vS+2*i)}, {v(vR+4*c+i)}, {s(sT1)}, {v(vS+2*i)}")
                I(f"v_dot2_f32_bf16 {v(vS+2*i+1)}, {v(vR+4*c+i)}, {s(sT2)}, {v(vS+2*i+1)}")
    red(0)
    I(f"s_branch L_redd")
    L("L_red3")
    red(4)
    L("L_redd")
    stamp("A red summed")
    for i in range(8): I(f"v_mov_b32 {v(vS+8+i)}, {v(vS+i)}")
    for i in range(8): I(f"v_permlane32_swap_b32 {v(vS+i)}, {v(vS+8+i)}")
    for i in range(8): I(f"v_add_f32 {v(vS+i)}, {v(vS+i)}, {v(vS+8+i)}")
    for i in range(4): I(f"v_cvt_pk_bf16_f32 {v(vS+i)}, {v(vS+2*i)}, {v(vS+2*i+1)}")
    I(f"s_mov_b32 {s(sSOFF)}, {O_F}")
    I(f"s_mov_b32 exec_hi, 0")
    dual(lambda: I(f"buffer_store_dwordx4 {v(vS,4)}, {v(vX)}, {s(rP,4)}, {s(sSOFF)} offen{pol()}"))
    I(f"s_mov_b64 exec, -1")
    C("z (wave 3): lane l holds m = 4*(l&15)..+3 of producer 4j + (l>>4)")
    I(f"s_cmp_eq_u32 {s(sTI)}, 3")
    I(f"s_cbranch_scc0 L_noz3")
    I(f"s_waitcnt vmcnt(1)")
    for i in range(4):
        I(f"v_add_f32 {v(vZ+i)}, {v(vZ+i)}, {v(vZ+4+i)}")
        I(f"v_add_f32 {v(vZ+8+i)}, {v(vZ+8+i)}, {v(vZ+12+i)}")
    for i in range(4): I(f"v_add_f32 {v(vZ+i)}, {v(vZ+i)}, {v(vZ+8+i)}")
    for i in range(4): I(f"v_mov_b32 {v(vZ+4+i)}, {v(vZ+i)}")
    for i in range(4): I(f"v_permlane32_swap_b32 {v(vZ+i)}, {v(vZ+4+i)}")
    for i in range(4): I(f"v_add_f32 {v(vZ+i)}, {v(vZ+i)}, {v(vZ+4+i)}")
    for i in range(4): I(f"v_mov_b32 {v(vZ+4+i)}, {v(vZ+i)}")
    for i in range(4): I(f"v_permlane16_swap_b32 {v(vZ+i)}, {v(vZ+4+i)}")
    for i in range(4): I(f"v_add_f32 {v(vZ+i)}, {v(vZ+i)}, {v(vZ+4+i)}")
    I(f"v_cvt_pk_bf16_f32 {v(vZ)}, {v(vZ)}, {v(vZ+1)}")
    I(f"v_cvt_pk_bf16_f32 {v(vZ+1)}, {v(vZ+2)}, {v(vZ+3)}")
    I(f"v_and_b32 {v(vZ+2)}, 15, {v(vLANE)}")
    I(f"v_lshlrev_b32 {v(vZ+2)}, 3, {v(vZ+2)}")
    I(f"v_add_u32 {v(vZ+2)}, {ZF}, {v(vZ+2)}")
    I(f"ds_write_b64 {v(vZ+2)}, {v(vZ,2)}")
    I(f"s_waitcnt lgkmcnt(0)")
    lds_set(str(FLG + 52))
    L("L_noz3")
    I(f"s_waitcnt vmcnt(0)")
    stamp("A reduced+drained")
    wave_flag(512)
    C("chunk 0 advances the epoch (all 16 workgroups of the head have read it)")
    I(f"s_cmp_eq_u32 {s(sCH)}, 0")
    I(f"s_cbranch_scc0 L_noep")
    I(f"s_cmp_eq_u32 {s(sTI)}, 1")
    I(f"s_cbranch_scc0 L_noep")
    I(f"s_mov_b64 exec, 1")
    I(f"v_mov_b32 {v(vT)}, 0")
    I(f"v_mov_b32 {v(vT+1)}, {s(sNONCE)}")
    I(f"s_mov_b32 {s(sT1)}, {O_FL}")
    I(f"buffer_store_dword {v(vT+1)}, {v(vT)}, {s(rP,4)}, {s(sT1)} offen sc1")
    I(f"s_mov_b64 exec, -1")
    L("L_noep")
    final_setup(True)
    poll(512, "h2")
    stamp("A hop2")
    C("gather the final kv fragments dt = 2a, 2a+1 into LDS")
    I(f"s_lshl_b32 {s(sT1)}, {s(sTI)}, 13")
    I(f"v_add_u32 {v(vX)}, {s(sT1)}, {v(vL16)}")
    I(f"s_mov_b32 {s(sSOFF)}, {O_F}")
    I(f"s_mov_b32 {s(sT2)}, {O_F + 4096}")
    for f in range(8):
        so = s(sSOFF) if f < 4 else s(sT2)
        I(f"buffer_load_dwordx4 {v(vR+4*f,4)}, {v(vX)}, {s(rP,4)}, {so} offen offset:{(f%4)*1024} sc1")
    I(f"v_add_u32 {v(vX+1)}, {KVF}, {v(vX)}")
    for f in range(8):
        I(f"s_waitcnt vmcnt({7-f})")
        I(f"ds_write_b128 {v(vX+1)}, {v(vR+4*f,4)} offset:{f*1024}")
    I(f"s_waitcnt lgkmcnt(0)")
    stamp("A kvf in lds")
    I(f"s_barrier")
    stamp("A B4")
    STI[0] = 18
    I(f"s_lshl_b32 {s(sT1)}, {s(sTI)}, 14")
    I(f"v_add_u32 {v(vT)}, {s(sT1)}, {v(vL16)}")
    for t in range(4):
        I(f"ds_read_b128 {v(vPQ+4*t,4)}, {v(vT)} offset:{t*1024}")
    I(f"s_lshl_b32 {s(sT1)}, {s(sTI)}, 8")
    I(f"s_add_u32 {s(sT1)}, {s(sT1)}, {RD}")
    I(f"v_lshlrev_b32 {v(vT+1)}, 2, {v(vLANE)}")
    I(f"v_add_u32 {v(vT+1)}, {s(sT1)}, {v(vT+1)}")
    I(f"ds_read_b32 {v(vRD)}, {v(vT+1)}")
    I(f"s_branch L_final")

vKA = 64; vAC3 = 128; vU = 48; vOP = 96
vRD, vOA, vKAa, vSW, vSR = 4, 6, 7, 8, 9
vST = 192

def final_setup(is_a):
    I(f"v_bfe_u32 {v(vU+1)}, {v(vLANE)}, 2, 1")
    I(f"v_lshlrev_b32 {v(vU+1)}, 4, {v(vU+1)}")
    I(f"v_bfe_u32 {v(vU+2)}, {v(vLANE)}, 3, 2")
    I(f"v_lshl_add_u32 {v(vU+1)}, {v(vU+2)}, 2, {v(vU+1)}")
    I(f"v_and_b32 {v(vU+2)}, 3, {v(vLANE)}")
    I(f"v_add_u32 {v(vU+1)}, {v(vU+1)}, {v(vU+2)}")
    I(f"v_and_b32 {v(vU+2)}, 32, {v(vLANE)}")
    I(f"v_add_u32 {v(vU+1)}, {v(vU+1)}, {v(vU+2)}")
    I(f"v_lshlrev_b32 {v(vU+1)}, 4, {v(vU+1)}")
    I(f"v_add_u32 {v(vKAa)}, {KVF + (16384 if is_a else 0)}, {v(vU+1)}")
    if is_a:
        I(f"s_lshl_b32 {s(sT2)}, {s(sTI)}, 13")
        I(f"s_add_u32 {s(sT2)}, {s(sT2)}, {OSA}")
    else:
        I(f"s_lshl_b32 {s(sT2)}, {s(sTI)}, 14")
        I(f"s_add_u32 {s(sT2)}, {s(sT2)}, 4096")
    I(f"v_and_b32 {v(vU+1)}, 31, {v(vLANE)}")
    I(f"v_and_b32 {v(vU+2)}, 7, {v(vLANE)}")
    I(f"v_and_b32 {v(vU+3)}, 1, {v(vLANE)}")
    I(f"v_lshl_or_b32 {v(vU+2)}, {v(vU+3)}, 3, {v(vU+2)}")
    I(f"v_lshrrev_b32 {v(vU+3)}, 5, {v(vLANE)}")
    I(f"v_lshlrev_b32 {v(vU+3)}, 1, {v(vU+3)}")
    I(f"v_xor_b32 {v(vU+2)}, {v(vU+2)}, {v(vU+3)}")
    I(f"v_lshlrev_b32 {v(vU+2)}, 4, {v(vU+2)}")
    I(f"v_lshl_add_u32 {v(vSW)}, {v(vU+1)}, 8, {v(vU+2)}")
    I(f"v_add_u32 {v(vSW)}, {s(sT2)}, {v(vSW)}")
    C("staging read: 8 rows x 128 B per instruction: row (l>>3) + 8i, piece 8p + (l&7), slot = piece ^ (row&15)")
    I(f"v_lshrrev_b32 {v(vU+1)}, 3, {v(vLANE)}")
    I(f"v_and_b32 {v(vU+2)}, 7, {v(vLANE)}")
    I(f"v_xor_b32 {v(vU+3)}, {v(vU+2)}, {v(vU+1)}")
    I(f"v_and_b32 {v(vSR)}, 1, {v(vU+1)}")
    I(f"v_lshl_or_b32 {v(vU+3)}, {v(vSR)}, 3, {v(vU+3)}")
    I(f"v_lshlrev_b32 {v(vU+3)}, 4, {v(vU+3)}")
    I(f"v_lshl_add_u32 {v(vSR)}, {v(vU+1)}, 8, {v(vU+3)}")
    I(f"v_add_u32 {v(vSR)}, {s(sT2)}, {v(vSR)}")
    I(f"v_lshlrev_b32 {v(vU+2)}, 4, {v(vU+2)}")
    I(f"v_lshl_add_u32 {v(vOA)}, {v(vU+1)}, 9, {v(vU+2)}")
    I(f"s_lshl_b32 {s(sT1)}, {s(sTI)}, 14")
    if is_a: I(f"s_add_u32 {s(sT1)}, {s(sT1)}, 256")
    I(f"v_add_u32 {v(vOA)}, {s(sT1)}, {v(vOA)}")

def team_b():
    C("================= team B =================")
    L("L_team_b")
    STI[0] = 2
    if opt.preread:
        C("bring the 2 KiB of the final kv image this workgroup writes into L2 (waves B0, B1: 1 KiB each)")
        I(f"s_cmp_lt_u32 {s(sTI)}, 2")
        I(f"s_cbranch_scc0 L_nopre")
        I(f"s_lshl_b32 {s(sT1)}, {s(sCH)}, 11")
        I(f"s_lshl_b32 {s(sT2)}, {s(sTI)}, 10")
        I(f"s_add_u32 {s(sT1)}, {s(sT1)}, {s(sT2)}")
        I(f"s_add_u32 {s(sT1)}, {s(sT1)}, {O_F}")
        I(f"buffer_load_dwordx4 {v(32,4)}, {v(vL16)}, {s(rP,4)}, {s(sT1)} offen")
        L("L_nopre")
    dma_v()
    I(f"s_waitcnt vmcnt(16)")
    I(f"s_barrier")
    stamp("B B1")
    read_omega()
    I(f"v_mov_b32 {v(vEPS)}, {s(sEPS)}")
    I(f"s_waitcnt lgkmcnt(0)")
    I(f"s_barrier")
    if opt.fast:
        I(f"s_cmp_eq_u32 {s(sTI)}, 0")
        I(f"s_cbranch_scc0 L_nochk0")
        I(f"s_load_dwordx8 {s(20,8)}, {s(sEPA,2)}, {O_FL + 128} glc")
        I(f"s_load_dwordx8 {s(44,8)}, {s(sEPA,2)}, {O_FL + 160} glc")
        L("L_nochk0")
    def pre(i):
        I(f"s_add_u32 {s(sT1)}, {s(sT0)}, {1024*i}")
        I(f"buffer_load_dwordx4 {v(32+4*(i%8),4)}, {v(vL16)}, {s(rP,4)}, {s(sT1)} offen{opt.prepol}")
    if opt.prepart:
        I(f"s_lshl_b32 {s(sT0)}, {s(sCH)}, 15")
        I(f"s_lshl_b32 {s(sT1)}, {s(sTI)}, 13")
        I(f"s_add_u32 {s(sT0)}, {s(sT0)}, {s(sT1)}")
        for i in range(4): pre(i)
    else:
        I(f"s_lshl_b32 {s(sSOFF)}, {s(sTI)}, 14")
        for i in range(4): dma_row_instr(rQ, KQ, i)
    I(f"s_waitcnt vmcnt(12)")
    I(f"s_lshl_b32 {s(sT3)}, {s(sTI)}, 2")
    I(f"s_add_u32 {s(sT3)}, {s(sT3)}, {FLG + 16}")
    if opt.fast:
        I(f"s_cmp_eq_u32 {s(sTI)}, 0")
        I(f"s_cbranch_scc0 L_nochk1")
        I(f"s_waitcnt lgkmcnt(0)")
        I(f"s_mov_b32 {s(sT1)}, {s(sNONCE)}")
        I(f"s_not_b32 {s(sT2)}, {s(sNONCE)}")
        for j in range(16):
            I(f"s_cmp_eq_u32 {s((20 if j < 8 else 36) + j)}, {s(sPRES)}")
            I(f"s_cselect_b32 {s(sT1)}, {s(sT1)}, {s(sT2)}")
        if opt.forceslow: I(f"s_mov_b32 {s(sT1)}, {s(sT2)}")
        lds_set(str(FLG + 48), val=s(sT1))
        I(f"s_waitcnt lgkmcnt(0)")
        L("L_nochk1")
    lds_set(s(sT3))
    stamp("B V1 landed")
    if opt.prepart:
        for i in range(4, 8): pre(i)
    else:
        for i in range(4, 8): dma_row_instr(rQ, KQ, i)
    I(f"s_waitcnt vmcnt(8)")
    I(f"s_add_u32 {s(sT3)}, {s(sT3)}, 16")
    lds_set(s(sT3))
    stamp("B V2 landed")
    if opt.prepart:
        I(f"s_lshl_b32 {s(sSOFF)}, {s(sTI)}, 14")
        for i in range(16): dma_row_instr(rQ, KQ, i)
    else:
        for i in range(8, 16): dma_row_instr(rQ, KQ, i)
    stamp("B q issued")
    I(f"s_waitcnt vmcnt(0)")
    stamp("B q landed")
    read_tile_frags()
    I(f"s_waitcnt lgkmcnt(0)")
    ssq()
    steps = ssq_reduce_steps()
    for t in range(16):
        c = "0" if t == 0 else v(vA1, 16)
        I(f"v_mfma_f32_32x32x16_bf16 {v(vA1,16)}, {v(W(0,t),4)}, {v(vKF+4*t,4)}, {c}")
        if 1 <= t <= 5:
            for x in steps[t-1]: I(x)
        if t == 6: I(f"v_mul_f32 {v(vSS)}, {s(sM132)}, {v(vSS)}")
        if not opt.mimicq:
            if t == 7: I(f"v_mul_f32 {v(vSS)}, {s(sLOG2E)}, {v(vSS)}")
            if t == 8: I(f"s_mov_b32 {s(sT2)}, 0x3eb8aa3b")
            if t == 9: I(f"v_mov_b32 {v(vSS+3)}, {s(sEPS)}")
    vY = 20
    vQ0 = 12
    vQ1 = 112
    def plain_ops(mt, dst):
        ops = []
        acc = lambda r: vA1 + 16*mt + r
        for g in range(2):
            for i in range(8): ops.append(f"v_fma_f32 {v(vY+i)}, {v(acc(8*g+i))}, {s(sT2)}, {v(vSS)}")
            for i in range(8): ops.append(f"v_exp_f32 {v(vY+i)}, {v(vY+i)}")
            for i in range(8): ops.append(f"v_fma_f32 {v(vY+i)}, {v(vY+i)}, {s(sC0125)}, {v(vSS+3)}")
            for i in range(4): ops.append(f"v_cvt_pk_bf16_f32 {v(dst+4*g+i)}, {v(vY+2*i)}, {v(vY+2*i+1)}")
        return ops
    if not opt.mimicq:
        ops0 = plain_ops(0, vQ0)
        k = 0
        for t in range(16):
            c = "0" if t == 0 else v(vA1 + 16, 16)
            I(f"v_mfma_f32_32x32x16_bf16 {v(vA1+16,16)}, {v(W(1,t),4)}, {v(vKF+4*t,4)}, {c}")
            if t >= 1:
                n = 4 if t < 15 else len(ops0) - k
                for x in ops0[k:k+n]: I(x)
                k += n
        stamp("B gemm1 done")
        for x in plain_ops(1, vPQ + 8): I(x)
        for i in range(8): I(f"v_mov_b32 {v(vPQ+i)}, {v(vQ0+i)}")
    else:
        for t in range(16):
            c = "0" if t == 0 else v(vA1 + 16, 16)
            I(f"v_mfma_f32_32x32x16_bf16 {v(vA1+16,16)}, {v(W(1,t),4)}, {v(vKF+4*t,4)}, {c}")
        stamp("B gemm1 done")
        I(f"v_mov_b32 {v(vEPS)}, {s(sEPS)}")
        I(f"v_cvt_pk_bf16_f32 {v(vSS)}, {v(vSS)}, 0")
        I(f"v_lshlrev_b32 {v(vNQ)}, 16, {v(vSS)}")
        for mt in range(2):
            pipeline_mimic(mt, lambda r: vNQ, vP4 + 8*mt)
        for i in range(16): I(f"v_mov_b32 {v(vPQ+i)}, {v(vP4+i)}")
    I(f"s_lshl_b32 {s(sT1)}, {s(sTI)}, 14")
    I(f"v_add_u32 {v(vX)}, {s(sT1)}, {v(vL16)}")
    for t in range(4):
        I(f"ds_write_b128 {v(vX)}, {v(vPQ+4*t,4)} offset:{t*1024}")
    stamp("B phiq done")
    final_setup(False)
    C("den = phi_q . z once z is there")
    vZF = 112; vDEN = 60
    lds_wait(str(FLG + 52), 1, "z")
    I(f"v_lshrrev_b32 {v(vDEN)}, 5, {v(vLANE)}")
    I(f"v_lshlrev_b32 {v(vDEN)}, 3, {v(vDEN)}")
    I(f"v_add_u32 {v(vDEN)}, {ZF}, {v(vDEN)}")
    for t in range(4):
        I(f"ds_read2_b64 {v(vZF+4*t,4)}, {v(vDEN)} offset0:{4*t} offset1:{4*t+2}")
    I(f"v_mov_b32 {v(vDEN+2)}, 0")
    I(f"v_mov_b32 {v(vDEN+3)}, 0")
    I(f"s_waitcnt lgkmcnt(0)")
    for i in range(16):
        I(f"v_dot2c_f32_bf16 {v(vDEN+2+(i&1))}, {v(vPQ+i)}, {v(vZF+i)}")
    I(f"v_add_f32 {v(vDEN)}, {v(vDEN+2)}, {v(vDEN+3)}")
    I(f"v_mov_b32 {v(vDEN+1)}, {v(vDEN)}")
    I(f"v_permlane32_swap_b32 {v(vDEN)}, {v(vDEN+1)}")
    I(f"v_add_f32 {v(vDEN)}, {v(vDEN)}, {v(vDEN+1)}")
    I(f"v_cvt_pk_bf16_f32 {v(vDEN)}, {v(vDEN)}, {v(vDEN)}")
    I(f"v_lshlrev_b32 {v(vDEN)}, 16, {v(vDEN)}")
    I(f"v_add_f32 {v(vDEN)}, {s(sEPS)}, {v(vDEN)}")
    I(f"v_cvt_pk_bf16_f32 {v(vDEN)}, {v(vDEN)}, {v(vDEN)}")
    I(f"v_lshlrev_b32 {v(vDEN)}, 16, {v(vDEN)}")
    I(f"v_rcp_f32 {v(vRD)}, {v(vDEN)}")
    I(f"v_fma_f32 {v(vDEN+1)}, -{v(vDEN)}, {v(vRD)}, 1.0")
    I(f"v_fma_f32 {v(vRD)}, {v(vDEN+1)}, {v(vRD)}, {v(vRD)}")
    I(f"s_lshl_b32 {s(sT1)}, {s(sTI)}, 8")
    I(f"s_add_u32 {s(sT1)}, {s(sT1)}, {RD}")
    I(f"v_lshlrev_b32 {v(vDEN)}, 2, {v(vLANE)}")
    I(f"v_add_u32 {v(vDEN)}, {s(sT1)}, {v(vDEN)}")
    I(f"ds_write_b32 {v(vDEN)}, {v(vRD)}")
    I(f"s_waitcnt lgkmcnt(0)")
    stamp("B den done")
    I(f"s_barrier")
    stamp("B B4")
    STI[0] = 18

def final():
    L("L_final")
    C("================= final =================")
    for d in range(4):
        for t in range(4):
            I(f"ds_read_b128 {v(vKA+16*(d%2)+4*t + (0 if d < 2 else 128),4)}, {v(vKAa)} offset:{(d*4+t)*1024}")
    KA = lambda d, t: vKA + 16*(d%2) + 4*t + (0 if d < 2 else 128)
    def mm(d):
        for t in range(4):
            acc = vAC3 + 16*d
            c = "0" if t == 0 else v(acc, 16)
            I(f"v_mfma_f32_32x32x16_bf16 {v(acc,16)}, {v(KA(d,t),4)}, {v(vPQ+4*t,4)}, {c}")
    def epi(d):
        acc = vAC3 + 16*d; op = vOP + 8*(d % 2)
        if opt.mimicnum:
            for i in range(8): I(f"v_cvt_pk_bf16_f32 {v(op+i)}, {v(acc+2*i)}, {v(acc+2*i+1)}")
            for i in range(8):
                I(f"v_lshlrev_b32 {v(acc+2*i)}, 16, {v(op+i)}")
                I(f"v_and_b32 {v(acc+2*i+1)}, {s(sMASKH)}, {v(op+i)}")
        for i in range(8): I(f"v_pk_mul_f32 {v(acc+2*i,2)}, {v(acc+2*i,2)}, {v(vRD,2)} op_sel_hi:[1,0]")
        for i in range(8): I(f"v_cvt_pk_bf16_f32 {v(op+i)}, {v(acc+2*i)}, {v(acc+2*i+1)}")
        for u in range(2):
            x = 64*d + 16*u
            if x:
                I(f"v_xor_b32 {v(vU+u)}, {x}, {v(vSW)}")
                I(f"ds_write_b128 {v(vU+u)}, {v(op+4*u,4)}")
            else:
                I(f"ds_write_b128 {v(vSW)}, {v(op+4*u,4)}")
    def out(p):
        for i in range(4):
            x = 128*p
            off = 2048*i
            if x:
                I(f"v_xor_b32 {v(vU+4+i)}, {x}, {v(vSR)}")
                I(f"ds_read_b128 {v(vST+16*p+4*i,4)}, {v(vU+4+i)} offset:{off}")
            else:
                I(f"ds_read_b128 {v(vST+16*p+4*i,4)}, {v(vSR)} offset:{off}")
        if p == 0:
            I(f"s_mov_b32 {s(sSOFF)}, 0")
            I(f"s_mov_b32 {s(sT1)}, 4096")
            I(f"s_mov_b32 {s(sT2)}, 8192")
            I(f"s_mov_b32 {s(sT3)}, 12288")
        so = [s(sSOFF), s(sT1), s(sT2), s(sT3)]
        for i in range(4):
            I(f"s_waitcnt lgkmcnt({3-i})")
            I(f"buffer_store_dwordx4 {v(vST+16*p+4*i,4)}, {v(vOA)}, {s(rO,4)}, {so[i]} offen offset:{128*p}{opt.ost}")
    I(f"s_waitcnt lgkmcnt(12)")
    mm(0)
    I(f"s_waitcnt lgkmcnt(8)")
    mm(1)
    I(f"s_waitcnt lgkmcnt(4)")
    mm(2)
    epi(0)
    I(f"s_waitcnt lgkmcnt(2)")
    mm(3)
    epi(1)
    I(f"s_waitcnt lgkmcnt(0)")
    out(0)
    epi(2)
    epi(3)
    I(f"s_waitcnt lgkmcnt(0)")
    out(1)
    stamp("stores issued")
    if opt.stamps: I("s_waitcnt vmcnt(0)")
    stamp("stores done")
    stamps_flush("f")

def build():
    common_start()
    I(f"s_cmp_ge_u32 {s(sWAVE)}, 4")
    I(f"s_cbranch_scc1 L_team_b")
    team_a()
    team_b()
    final()
    L("L_end")
    I("s_endpgm")
    body = A.render()
    hdr = f"""; fused RFA linear attention: 256 workgroups (one per CU) x 8 waves
; @launch grid=(256,1,1) block=(512,1,1) lds={LDS_BYTES}
.amdgcn_target "amdgcn-amd-amdhsa--gfx950"
.text
.globl {NAME}
.p2align 8
.type {NAME},@function
{NAME}:
"""
    ftr = f"""
.section .rodata,"a"
.p2align 6
.amdhsa_kernel {NAME}
  .amdhsa_next_free_vgpr 256
  .amdhsa_next_free_sgpr 102
  .amdhsa_accum_offset 256
  .amdhsa_group_segment_fixed_size 0
  .amdhsa_kernarg_size 56
  .amdhsa_user_sgpr_count 2
  .amdhsa_user_sgpr_kernarg_segment_ptr 1
  .amdhsa_system_sgpr_workgroup_id_x 1
  .amdhsa_float_denorm_mode_32 3
.end_amdhsa_kernel
"""
    return hdr + body + ftr

if __name__ == "__main__":
    out = sys.argv[1]
    for a in sys.argv[2:]:
        if a == "stamps": opt.stamps = True
        elif a == "light": opt.stamps = True; opt.light = True
        elif a == "nont": opt.nt = False
        elif a == "nofast": opt.fast = False
        elif a == "forceslow": opt.forceslow = True
        elif a == "nopretouch": opt.pretouch = False
        elif a == "mimicq": opt.mimicq = True
        elif a == "prepart": opt.prepart = True; opt.partplain = True
        elif a.startswith("prepol="): opt.prepol = (" " + a.split("=")[1].replace("+", " ")).rstrip()
        elif a.startswith("partpol="): opt.partpol = " " + a.split("=")[1].replace("+", " ")
        elif a == "codepf": opt.codepf = True
        elif a == "partplain": opt.partplain = True
        elif a == "nopreread": opt.preread = False
        elif a == "mimicnum": opt.mimicnum = True
        elif a.startswith("dbgwg="): opt.dbgwg = int(a.split("=")[1])
        elif a.startswith("dbgwave="): opt.dbgwave = int(a.split("=")[1])
        elif a.startswith("ost="): opt.ost = " " + a.split("=")[1].replace("+", " ")
        else: raise SystemExit("unknown option " + a)
    txt = build()
    open(out, "w").write(txt)
    if opt.stamps: json.dump(STN, open(out + ".stamps.json", "w"))
    print("wrote", out, "nops inserted:", A.nops, "lines", txt.count("\n"))
```

```python
import sys, json, struct
from asmlib import *

NAME = "standalone__linear_kernel_rfa__prompt_kernel"
class O: pass
opt = O()
opt.spin_limit = 300000
opt.stamps = False
opt.nt = True
opt.fast = True
opt.forceslow = False
opt.dbgwg = None
opt.dbgwave = 0
opt.ost = " nt"
opt.pretouch = True
opt.partplain = False
opt.preread = True
opt.codepf = False
opt.partpol = ' sc1'
opt.prepart = False
opt.prepol = ' nt'
opt.light = False
opt.stagger = False
opt.pacept = 'v2'
opt.pacemax = 40
opt.kqv = False
opt.holdq = 0
opt.bomega = True
opt.kfast = True
opt.kshadow = 6
opt.holdst = False
opt.cyc = False
opt.mimicq = False
opt.mimicnum = False

KQ = 0
QR = 0
VR = 65536
WR = 131072
PHI = WR
ZB = WR + 16384
ZF = WR + 17408
FLG = WR + 17664
RD = WR + 18432
KVF = VR
OSA = VR + 32768
def set_regions(kqv):
    global QR, VR, KVF, OSA
    QR, VR = (65536, 0) if kqv else (0, 65536)
    KVF = VR; OSA = VR + 32768
LDS_BYTES = 163840
HS = 1 << 20
O_PART = 0
O_F = 524288
O_Z = 524288 + 32768
O_FL = 524288 + 32768 + 4096
WS_ST = 20 << 20

sQp, sKp, sVp, sWp, sOp, sDp, sSp = 4, 6, 8, 10, 12, 14, 16
sHEAD, sCH = 18, 19
rK, rV, rQ, rW, rO, rP, rL = 20, 24, 28, 32, 36, 40, 52
sWAVE, sTI = 56, 57
sT0, sT1, sT2, sT3 = 58, 59, 60, 61
sNONCE, sFAST = 62, 63
sC025L, sC025H, sLOG2E, sC0125, sMASKH, sONES = 64, 65, 66, 67, 68, 69
sSPIN, sSOFF, sEPS, sM132 = 70, 71, 72, 73
sXCC, sPRES = 94, 95
sEPA = 96
sPW = 40
sJUNK = 44

A = Asm()
I, L, C = A.I, A.L, A.C
STI = [0]; STN = []; PS = [0]; VF = [None]
def stamp(name=""):
    if not opt.stamps: return
    if opt.light and name not in ("start", "stores done"):
        STN.append((STI[0], name)); STI[0] += 1
        return
    C("stamp %s" % name)
    I("s_memtime s[98:99]" if opt.cyc else "s_memrealtime s[98:99]")
    I("s_waitcnt lgkmcnt(0)")
    I("s_mov_b32 s%d, s98" % (74 + STI[0]))
    STN.append((STI[0], name)); STI[0] += 1
def stamps_flush(tag):
    if not opt.stamps: return
    I("s_and_b32 s97, s56, 3"); I("s_cmp_eq_u32 s97, 0"); I("s_cbranch_scc0 L_nost_%s" % tag)
    I("s_lshr_b32 s97, s56, 2"); I("s_lshl_b32 s96, s2, 1"); I("s_add_u32 s96, s96, s97"); I("s_lshl_b32 s96, s96, 7")
    I("s_add_u32 s96, s96, %d" % WS_ST)
    I("s_add_u32 s40, s16, s96"); I("s_addc_u32 s41, s17, 0"); I("s_and_b32 s41, s41, 0xffff"); I("s_mov_b32 s42, 128"); I("s_mov_b32 s43, 0x20000")
    I("s_mov_b64 exec, 1"); I("v_mov_b32 v1, 0")
    for i in range(20):
        I("v_mov_b32 v2, s%d" % (74 + i)); I("buffer_store_dword v2, v1, s[40:43], 0 offen offset:%d" % (4 * i))
    I("s_waitcnt vmcnt(0)")
    if opt.dbgwg is not None:
        I("s_cmp_eq_u32 s2, %d" % opt.dbgwg); I("s_cbranch_scc0 L_nodbg")
        I("s_cmp_eq_u32 s56, %d" % opt.dbgwave); I("s_cbranch_scc0 L_nodbg")
        I("s_mov_b32 s40, s14"); I("s_and_b32 s41, s15, 0xffff"); I("s_mov_b32 s42, 256")
        I("s_sub_u32 s97, s74, s100"); I("v_mov_b32 v2, s97"); I("buffer_store_dword v2, v1, s[40:43], 0 offen offset:60")
        idx = [i for i in range(1, 14)] + [18, 19]
        for j, i in enumerate(idx):
            I("s_sub_u32 s97, s%d, s74" % (74 + i)); I("v_mov_b32 v2, s97"); I("buffer_store_dword v2, v1, s[40:43], 0 offen offset:%d" % (4 * j))
        I("s_waitcnt vmcnt(0)")
        L("L_nodbg")
    I("s_mov_b64 exec, -1")
    L("L_nost_%s" % tag)

def srd(r, ptr, off_s, size):
    if off_s is None:
        I(f"s_mov_b32 {s(r)}, {s(ptr)}")
        I(f"s_and_b32 {s(r+1)}, {s(ptr+1)}, 0xffff")
    else:
        I(f"s_add_u32 {s(r)}, {s(ptr)}, {s(off_s)}")
        I(f"s_addc_u32 {s(r+1)}, {s(ptr+1)}, 0")
        I(f"s_and_b32 {s(r+1)}, {s(r+1)}, 0xffff")
    I(f"s_mov_b32 {s(r+2)}, {size}")
    I(f"s_mov_b32 {s(r+3)}, 0x20000")

NT = lambda: " nt" if opt.nt else ""
vLANE = 0
vA = 2
vD = 10
vL16 = 11
vT = 12
vSS = 28
vW = 128
def W(mt, t): return vW + mt * 64 + t * 4
vKF = 32
vA1 = 96
vP4 = 12
vNQ = 32
vNK = 48
vONE = 52
vP1 = 56
vTT = 60
vEPS = 68
vZP = 69
vX = 72
vPQ = 32

POL = [" sc1"]
def pol(): return POL[0]
DUAL = [0]
def dual(fn):
    if not opt.fast:
        POL[0] = " sc1"; fn(); return
    DUAL[0] += 1; n = DUAL[0]
    I(f"s_cmp_lg_u32 {s(sFAST)}, 0")
    I(f"s_cbranch_scc1 L_fast{n}")
    POL[0] = " sc1"; fn()
    I(f"s_branch L_join{n}")
    L(f"L_fast{n}")
    POL[0] = ""; fn()
    L(f"L_join{n}")
    POL[0] = " sc1"

def prologue():
    if opt.stamps: I("s_memrealtime s[100:101]")
    I(f"s_cmp_ge_u32 s2, 256")
    I(f"s_cbranch_scc1 L_end")
    I(f"s_load_dwordx4 s[4:7], s[0:1], 0")
    I(f"s_load_dwordx4 s[8:11], s[0:1], 16")
    I(f"s_load_dwordx4 s[12:15], s[0:1], 32")
    I(f"s_load_dwordx2 s[16:17], s[0:1], 48")
    if opt.codepf:
        C("pull the kernel's own code into L2 while the kernel arguments are on their way (128 B per lane)")
        I(f"s_getpc_b64 s[20:21]")
        I(f"v_and_b32 v1, 63, v0")
        I(f"v_lshlrev_b32 v1, 7, v1")
        I(f"global_load_dword v2, v1, s[20:21]")
        I(f"v_add_u32 v1, 8192, v1")
        I(f"v_min_u32 v1, 11648, v1")
        I(f"global_load_dword v3, v1, s[20:21]")
    I(f"v_lshrrev_b32 v1, 6, v0")
    I(f"v_and_b32 {v(vLANE)}, 63, v0")
    I(f"v_readfirstlane_b32 {s(sWAVE)}, v1")
    I(f"s_and_b32 {s(sT0)}, s2, 7")
    I(f"s_lshr_b32 {s(sT1)}, s2, 3")
    I(f"s_lshr_b32 {s(sHEAD)}, {s(sT1)}, 4")
    I(f"s_lshl_b32 {s(sT0)}, {s(sT0)}, 1")
    I(f"s_add_u32 {s(sHEAD)}, {s(sHEAD)}, {s(sT0)}")
    I(f"s_and_b32 {s(sCH)}, {s(sT1)}, 15")
    I(f"s_and_b32 {s(sTI)}, {s(sWAVE)}, 3")
    I(f"v_lshrrev_b32 {v(vT)}, 5, {v(vLANE)}")
    I(f"v_and_b32 {v(vT+1)}, 31, {v(vLANE)}")
    I(f"v_xor_b32 {v(vT+1)}, {v(vT+1)}, {v(vT)}")
    I(f"v_lshlrev_b32 {v(vT+1)}, 4, {v(vT+1)}")
    I(f"v_lshl_add_u32 {v(vD)}, {v(vT)}, 9, {v(vT+1)}")
    I(f"v_lshlrev_b32 {v(vL16)}, 4, {v(vLANE)}")
    I(f"s_lshl_b32 {s(sT0)}, {s(sHEAD)}, 20")
    I(f"s_lshl_b32 {s(sT1)}, {s(sCH)}, 16")
    I(f"s_add_u32 {s(sT0)}, {s(sT0)}, {s(sT1)}")
    I(f"s_waitcnt lgkmcnt(0)")
    srd(rW, sWp, None, 32768)
    srd(rK, sKp, sT0, 65536)

def dma_omega():
    I(f"s_and_b32 {s(sT1)}, {s(sWAVE)}, 1")
    I(f"s_lshl_b32 {s(sT1)}, {s(sT1)}, 7")
    I(f"s_lshl_b32 {s(sSOFF)}, {s(sWAVE)}, 12")
    I(f"s_add_u32 m0, {s(sSOFF)}, {WR}")
    for i in range(4):
        I(f"s_add_u32 {s(sT2)}, {s(sT1)}, {32*i}")
        I(f"v_xor_b32 {v(vT)}, {s(sT2)}, {v(vD)}")
        I(f"buffer_load_dwordx4 {v(vT)}, {s(rW,4)}, {s(sSOFF)} offen offset:{1024*i} lds")

def dma_row_instr(r, base_lds, i):
    if i % 4 == 0:
        if i: I(f"s_add_u32 {s(sSOFF)}, {s(sSOFF)}, 4096")
        I(f"s_add_u32 m0, {s(sSOFF)}, {base_lds}")
    if i & 7:
        I(f"v_xor_b32 {v(vT)}, {32*(i&7)}, {v(vD)}")
        I(f"buffer_load_dwordx4 {v(vT)}, {s(r,4)}, {s(sSOFF)} offen offset:{1024*(i%4)}{NT()} lds")
    else:
        I(f"buffer_load_dwordx4 {v(vD)}, {s(r,4)}, {s(sSOFF)} offen offset:{1024*(i%4)}{NT()} lds")

def dma_k():
    I(f"s_lshl_b32 {s(sSOFF)}, {s(sWAVE)}, 13")
    for i in range(8): dma_row_instr(rK, KQ, i)

def dma_v():
    C("team B wave b: V slice b (128 B columns), all 128 rows, 16 instructions of 8 rows")
    I(f"v_lshrrev_b32 {v(vT+2)}, 4, {v(vLANE)}")
    I(f"v_and_b32 {v(vT+2)}, 1, {v(vT+2)}")
    I(f"v_lshlrev_b32 {v(vT+2)}, 2, {v(vT+2)}")
    I(f"v_and_b32 {v(vT+1)}, 7, {v(vLANE)}")
    I(f"v_xor_b32 {v(vT+2)}, {v(vT+2)}, {v(vT+1)}")
    I(f"v_lshlrev_b32 {v(vT+2)}, 4, {v(vT+2)}")
    I(f"v_lshrrev_b32 {v(vT+1)}, 3, {v(vLANE)}")
    I(f"v_lshl_add_u32 {v(vT+2)}, {v(vT+1)}, 9, {v(vT+2)}")
    I(f"s_lshl_b32 {s(sSOFF)}, {s(sTI)}, 7")
    I(f"s_lshl_b32 {s(sT1)}, {s(sTI)}, 14")
    I(f"s_add_u32 {s(sT1)}, {s(sT1)}, {VR}")
    for i in range(16):
        I(f"s_add_u32 m0, {s(sT1)}, {1024*i}")
        if i: I(f"s_add_u32 {s(sSOFF)}, {s(sSOFF)}, 4096")
        I(f"buffer_load_dwordx4 {v(vT+2)}, {s(rV,4)}, {s(sSOFF)} offen{NT()} lds")

def tile_addrs():
    I(f"v_and_b32 {v(vT)}, 31, {v(vLANE)}")
    I(f"v_lshrrev_b32 {v(vT+1)}, 5, {v(vLANE)}")
    I(f"v_and_b32 {v(vT+2)}, 15, {v(vLANE)}")
    I(f"v_xor_b32 {v(vT+2)}, {v(vT+2)}, {v(vT+1)}")
    I(f"v_lshlrev_b32 {v(vT+2)}, 4, {v(vT+2)}")
    I(f"v_lshl_add_u32 {v(vT+2)}, {v(vT)}, 9, {v(vT+2)}")
    I(f"v_add_u32 {v(vA)}, {WR}, {v(vT+2)}")
    for x in range(1, 8):
        I(f"v_xor_b32 {v(vA+x)}, {32*x}, {v(vA)}")

def read_omega(base):
    for t in range(16):
        for mt in range(2):
            I(f"ds_read_b128 {v(W(mt,t),4)}, {v(vA+(t&7))} offset:{(t>>3)*256 + mt*16384}")
    I(f"s_lshl_b32 {s(sT1)}, {s(sTI)}, 14")
    I(f"s_sub_u32 {s(sT1)}, {s(sT1)}, {WR - base}")
    for x in range(8):
        I(f"v_add_u32 {v(vA+x)}, {s(sT1)}, {v(vA+x)}")

def consts():
    I(f"s_mov_b32 {s(sC025L)}, 0x00003e80")
    I(f"s_mov_b32 {s(sC025H)}, 0x3e800000")
    I(f"s_mov_b32 {s(sLOG2E)}, 0x3fb8aa3b")
    I(f"s_mov_b32 {s(sC0125)}, 0x3e000000")
    I(f"s_mov_b32 {s(sMASKH)}, 0xffff0000")
    I(f"s_mov_b32 {s(sONES)}, 0x3f803f80")
    I(f"s_mov_b32 {s(sEPS)}, 0x358637bd")
    I(f"s_mov_b32 {s(sM132)}, 0xbd000000")

def read_tile_frags():
    for t in range(16):
        I(f"ds_read_b128 {v(vKF+4*t,4)}, {v(vA+(t&7))} offset:{(t>>3)*256}")
    for i in range(4): I(f"v_mov_b32 {v(vSS+i)}, 0")

def ssq():
    for t in range(16):
        for i in range(4):
            I(f"v_dot2c_f32_bf16 {v(vSS+i)}, {v(vKF+4*t+i)}, {v(vKF+4*t+i)}")

def ssq_reduce_steps():
    return [
        [f"v_add_f32 {v(vSS)}, {v(vSS)}, {v(vSS+1)}", f"v_add_f32 {v(vSS+2)}, {v(vSS+2)}, {v(vSS+3)}"],
        [f"v_add_f32 {v(vSS)}, {v(vSS)}, {v(vSS+2)}"],
        [f"v_mov_b32 {v(vSS+1)}, {v(vSS)}"],
        [f"v_permlane32_swap_b32 {v(vSS)}, {v(vSS+1)}"],
        [f"v_add_f32 {v(vSS)}, {v(vSS)}, {v(vSS+1)}"],
    ]

def pipeline_mimic(mt, nq_of, p4base):
    for g in range(2):
        prs = [4*g + i for i in range(4)]
        acc = lambda r: vA1 + 16*mt + r
        for i, p in enumerate(prs): I(f"v_cvt_pk_bf16_f32 {v(vP1+i)}, {v(acc(2*p))}, {v(acc(2*p+1))}")
        for i, p in enumerate(prs):
            I(f"v_dot2_f32_bf16 {v(vTT+2*i)}, {v(vP1+i)}, {s(sC025L)}, {v(nq_of(2*p))}")
            I(f"v_dot2_f32_bf16 {v(vTT+2*i+1)}, {v(vP1+i)}, {s(sC025H)}, {v(nq_of(2*p+1))}")
        for i, p in enumerate(prs): I(f"v_cvt_pk_bf16_f32 {v(vP1+i)}, {v(vTT+2*i)}, {v(vTT+2*i+1)}")
        for i, p in enumerate(prs):
            I(f"v_lshlrev_b32 {v(vTT+2*i)}, 16, {v(vP1+i)}")
            I(f"v_and_b32 {v(vTT+2*i+1)}, {s(sMASKH)}, {v(vP1+i)}")
        for i in range(8): I(f"v_mul_f32 {v(vTT+i)}, {s(sLOG2E)}, {v(vTT+i)}")
        for i in range(8): I(f"v_exp_f32 {v(vTT+i)}, {v(vTT+i)}")
        for i in range(8): I(f"v_fma_f32 {v(vTT+i)}, {v(vTT+i)}, {s(sC0125)}, {v(vEPS)}")
        for i, p in enumerate(prs): I(f"v_cvt_pk_bf16_f32 {v(p4base+p)}, {v(vTT+2*i)}, {v(vTT+2*i+1)}")

def lds_wait(addr, n, tag, tmp=None):
    tmp = vX + 4 if tmp is None else tmp
    I(f"s_mov_b32 {s(sSPIN)}, 0")
    if n == 1:
        I(f"v_mov_b32 {v(tmp)}, {addr}")
    else:
        I(f"v_and_b32 {v(tmp)}, {n-1}, {v(vLANE)}")
        I(f"v_lshlrev_b32 {v(tmp)}, 2, {v(tmp)}")
        I(f"v_add_u32 {v(tmp)}, {addr}, {v(tmp)}")
    L(f"L_ls_{tag}")
    I(f"ds_read_b32 {v(tmp+1)}, {v(tmp)}")
    I(f"s_waitcnt lgkmcnt(0)")
    I(f"v_cmp_ne_u32 vcc, {s(sNONCE)}, {v(tmp+1)}")
    I(f"s_cbranch_vccz L_lsd_{tag}")
    I(f"s_add_u32 {s(sSPIN)}, {s(sSPIN)}, 1")
    I(f"s_cmp_lt_u32 {s(sSPIN)}, {opt.spin_limit*16}")
    I(f"s_cbranch_scc1 L_ls_{tag}")
    L(f"L_lsd_{tag}")

def lds_set(addr, tmp=None, val=None):
    tmp = vX + 4 if tmp is None else tmp
    I(f"v_mov_b32 {v(tmp)}, {addr}")
    I(f"v_mov_b32 {v(tmp+1)}, {s(sNONCE) if val is None else val}")
    I(f"ds_write_b32 {v(tmp)}, {v(tmp+1)}")

def wave_flag(off):
    I(f"s_lshl_b32 {s(sT1)}, {s(sCH)}, 4")
    I(f"s_lshl_b32 {s(sT2)}, {s(sTI)}, 2")
    I(f"s_add_u32 {s(sT1)}, {s(sT1)}, {s(sT2)}")
    I(f"s_add_u32 {s(sT1)}, {s(sT1)}, {O_FL + off}")
    I(f"s_mov_b64 exec, 1")
    I(f"v_mov_b32 {v(vT)}, 0")
    I(f"v_mov_b32 {v(vT+1)}, {s(sNONCE)}")
    dual(lambda: I(f"buffer_store_dword {v(vT+1)}, {v(vT)}, {s(rP,4)}, {s(sT1)} offen{pol()}"))
    I(f"s_mov_b64 exec, -1")

def poll(off, tag, tmp=None):
    tmp = vT if tmp is None else tmp
    I(f"s_mov_b32 {s(sSPIN)}, 0")
    I(f"s_mov_b32 {s(sT2)}, {O_FL + off}")
    I(f"v_lshlrev_b32 {v(tmp)}, 2, {v(vLANE)}")
    L(f"L_spin_{tag}")
    I(f"buffer_load_dword {v(tmp+1)}, {v(tmp)}, {s(rP,4)}, {s(sT2)} offen sc1")
    I(f"s_waitcnt vmcnt(0)")
    I(f"v_cmp_ne_u32 vcc, {s(sNONCE)}, {v(tmp+1)}")
    I(f"s_cbranch_vccz L_spun_{tag}")
    I(f"s_add_u32 {s(sSPIN)}, {s(sSPIN)}, 1")
    I(f"s_cmp_lt_u32 {s(sSPIN)}, {opt.spin_limit}")
    I(f"s_cbranch_scc1 L_spin_{tag}")
    L(f"L_spun_{tag}")

def common_start():
    prologue()
    stamp("start")
    dma_omega()
    if opt.stagger:
        C("odd heads start their streams once the even head on the same compute die has issued its own")
        I(f"s_and_b32 {s(sT1)}, {s(sHEAD)}, 1")
        I(f"s_cmp_eq_u32 {s(sT1)}, 0")
        I(f"s_cbranch_scc1 L_nopace")
        I(f"s_cmp_eq_u32 {s(sWAVE)}, 0")
        I(f"s_cbranch_scc0 L_nopace")
        I(f"s_sub_u32 {s(sT1)}, {s(sHEAD)}, 1")
        I(f"s_lshl_b32 {s(sT1)}, {s(sT1)}, 20")
        I(f"s_add_u32 {s(sEPA)}, {s(sSp)}, {s(sT1)}")
        I(f"s_addc_u32 {s(sEPA+1)}, {s(sSp+1)}, 0")
        I(f"s_load_dword {s(sT2)}, {s(sEPA,2)}, {O_FL}")
        srd(rP, sSp, sT1, HS)
        I(f"s_lshl_b32 {s(sT1)}, {s(sCH)}, 2")
        I(f"s_add_u32 {s(sT1)}, {s(sT1)}, {O_FL + 768}")
        I(f"v_mov_b32 {v(vT+4)}, 0")
        I(f"s_mov_b32 {s(sSPIN)}, 0")
        I(f"s_waitcnt lgkmcnt(0)")
        I(f"s_add_u32 {s(sT2)}, {s(sT2)}, 1")
        L("L_pace")
        I(f"buffer_load_dword {v(vT+5)}, {v(vT+4)}, {s(rP,4)}, {s(sT1)} offen sc1")
        I(f"s_waitcnt vmcnt(0)")
        I(f"v_cmp_ne_u32 vcc, {s(sT2)}, {v(vT+5)}")
        I(f"s_cbranch_vccz L_nopace")
        I(f"s_add_u32 {s(sSPIN)}, {s(sSPIN)}, 1")
        I(f"s_cmp_lt_u32 {s(sSPIN)}, {opt.pacemax}")
        I(f"s_cbranch_scc1 L_pace")
        L("L_nopace")
    I(f"s_barrier")
    dma_k()
    C("scalar side: epoch word, translation pre-touch, descriptors")
    I(f"s_lshl_b32 {s(sT1)}, {s(sHEAD)}, 20")
    I(f"s_add_u32 {s(sEPA)}, {s(sSp)}, {s(sT1)}")
    I(f"s_addc_u32 {s(sEPA+1)}, {s(sSp+1)}, 0")
    I(f"s_load_dword {s(sNONCE)}, {s(sEPA,2)}, {O_FL}")
    if opt.preread:
        C("bring the flag lines of this head into L2 (a store to an absent line makes the next read a memory fill)")
        for j in range(8):
            I(f"s_load_dword {s(sJUNK+3)}, {s(sEPA,2)}, {O_FL + 256 + 64*j}")
    srd(rV, sVp, sT0, 65536)
    srd(rQ, sQp, sT0, 65536)
    srd(rO, sOp, sT0, 65536)
    if opt.pretouch:
        I(f"s_load_dword {s(sJUNK)}, {s(rQ,2)}, 0")
        I(f"s_load_dword {s(sJUNK+1)}, {s(rO,2)}, 0")
        I(f"s_load_dword {s(sJUNK+2)}, {s(rV,2)}, 0")
    tile_addrs()
    consts()
    stamp("K issued")
    I(f"s_waitcnt vmcnt(8) lgkmcnt(0)")
    I(f"s_add_u32 {s(sNONCE)}, {s(sNONCE)}, 1")
    I(f"s_lshl_b32 {s(sT1)}, {s(sHEAD)}, 20")
    srd(rP, sSp, sT1, HS)
    I(f"s_getreg_b32 {s(sXCC)}, hwreg(HW_REG_XCC_ID, 0, 4)")
    I(f"s_lshl_b32 {s(sPRES)}, {s(sNONCE)}, 4")
    I(f"s_add_u32 {s(sPRES)}, {s(sPRES)}, {s(sXCC)}")
    I(f"s_barrier")

def team_a():
    C("================= team A =================")
    if opt.fast:
        C("presence word: nonce*16 + XCC id (wave 0)")
        I(f"s_cmp_eq_u32 {s(sTI)}, 0")
        I(f"s_cbranch_scc0 L_nopres")
        I(f"s_mov_b64 exec, 1")
        I(f"s_lshl_b32 {s(sT1)}, {s(sCH)}, 2")
        I(f"s_add_u32 {s(sT1)}, {s(sT1)}, {O_FL + 128}")
        I(f"v_mov_b32 {v(vT)}, 0")
        I(f"v_mov_b32 {v(vT+1)}, {s(sPRES)}")
        I(f"buffer_store_dword {v(vT+1)}, {v(vT)}, {s(rP,4)}, {s(sT1)} offen sc1")
        I(f"s_mov_b64 exec, -1")
        L("L_nopres")
    read_omega(KQ)
    I(f"v_mov_b32 {v(vEPS)}, {s(sEPS)}")
    C("K landed: own loads only (the presence store of wave 0 may still be in flight)")
    I(f"s_waitcnt vmcnt(1) lgkmcnt(0)")
    I(f"s_cmp_eq_u32 {s(sTI)}, 0")
    I(f"s_cbranch_scc1 L_k0")
    I(f"s_waitcnt vmcnt(0)")
    L("L_k0")
    I(f"s_barrier")
    stamp("A B1 K landed")
    read_tile_frags()
    I(f"s_waitcnt lgkmcnt(0)")
    I(f"s_barrier")
    if not opt.kfast:
        ssq()
        steps = ssq_reduce_steps()
        for t in range(16):
            for mt in range(2):
                c = "0" if t == 0 else v(vA1 + 16*mt, 16)
                I(f"v_mfma_f32_32x32x16_bf16 {v(vA1+16*mt,16)}, {v(vKF+4*t,4)}, {v(W(mt,t),4)}, {c}")
            if 1 <= t <= 5:
                for x in steps[t-1]: I(x)
            if t == 6:
                I(f"v_mul_f32 {v(vSS)}, {s(sM132)}, {v(vSS)}")
                I(f"v_lshrrev_b32 {v(vSS+1)}, 5, {v(vLANE)}")
            if t == 7:
                I(f"v_cmp_eq_u32 vcc, 0, {v(vSS+1)}")
            if t == 8:
                I(f"v_cndmask_b32 {v(vSS)}, 0, {v(vSS)}, vcc")
            if t == 9:
                I(f"v_cvt_pk_bf16_f32 {v(vSS)}, {v(vSS)}, 0")
        stamp("A gemm1 done")
        I(f"v_mov_b32 {v(vEPS)}, {s(sEPS)}")
        I(f"v_mov_b32 {v(vNK)}, {v(vSS)}")
        I(f"v_mov_b32 {v(vONE)}, 0x3f80")
        for i in range(1, 4):
            I(f"v_mov_b32 {v(vONE+i)}, 0")
            I(f"v_mov_b32 {v(vNK+i)}, 0")
        I(f"v_mfma_f32_32x32x16_bf16 {v(vNQ,16)}, {v(vNK,4)}, {v(vONE,4)}, 0")
        I(f"v_lshl_add_u32 {v(vX)}, {s(sTI)}, 12, {v(vL16)}")
        I(f"v_add_u32 {v(vX)}, {PHI}, {v(vX)}")
        for mt in range(2):
            pipeline_mimic(mt, lambda r: vNQ + r, vP4 + 8*mt)
            for u in range(2):
                I(f"ds_write_b128 {v(vX)}, {v(vP4+8*mt+4*u,4)} offset:{u*2048 + mt*1024}")
            I(f"v_mov_b32 {v(vZP+mt)}, 0")
            for i in range(8):
                I(f"v_dot2c_f32_bf16 {v(vZP+mt)}, {s(sONES)}, {v(vP4+8*mt+i)}")
    else:
        vNQ2 = 128; vNK2 = 144; vON2 = 148; vP1b = 152; vTb = 156; vEP2 = 164; vZP2 = 165; vXb = 168
        ssq()
        steps = ssq_reduce_steps()
        for t in range(16):
            c = "0" if t == 0 else v(vA1, 16)
            I(f"v_mfma_f32_32x32x16_bf16 {v(vA1,16)}, {v(vKF+4*t,4)}, {v(W(0,t),4)}, {c}")
            if 1 <= t <= 5:
                for x in steps[t-1]: I(x)
            if t == 6:
                I(f"v_mul_f32 {v(vSS)}, {s(sM132)}, {v(vSS)}")
                I(f"v_lshrrev_b32 {v(vSS+1)}, 5, {v(vLANE)}")
            if t == 7: I(f"v_cmp_eq_u32 vcc, 0, {v(vSS+1)}")
            if t == 8: I(f"v_cndmask_b32 {v(vSS)}, 0, {v(vSS)}, vcc")
            if t == 9: I(f"v_cvt_pk_bf16_f32 {v(vSS)}, {v(vSS)}, 0")
            if t == 10: I(f"s_mov_b32 {s(sT3)}, 0x3e800000")
            if t == 12:
                I(f"v_mov_b32 {v(vNK2)}, {v(vSS)}")
                I(f"v_mov_b32 {v(vON2)}, 0x3f80")
            if t == 13:
                for i in range(1, 4):
                    I(f"v_mov_b32 {v(vON2+i)}, 0")
                    I(f"v_mov_b32 {v(vNK2+i)}, 0")
        I(f"v_mfma_f32_32x32x16_bf16 {v(vNQ2,16)}, {v(vNK2,4)}, {v(vON2,4)}, 0")
        def mimic_ops(mt, p4base):
            ops = []
            acc = lambda r: vA1 + 16*mt + r
            for g in range(2):
                prs = [4*g + i for i in range(4)]
                for i, p in enumerate(prs): ops.append(f"v_cvt_pk_bf16_f32 {v(vP1b+i)}, {v(acc(2*p))}, {v(acc(2*p+1))}")
                for i, p in enumerate(prs):
                    ops.append(f"v_lshlrev_b32 {v(vTb+2*i)}, 16, {v(vP1b+i)}")
                    ops.append(f"v_and_b32 {v(vTb+2*i+1)}, {s(sMASKH)}, {v(vP1b+i)}")
                for i, p in enumerate(prs):
                    ops.append(f"v_fma_f32 {v(vTb+2*i)}, {v(vTb+2*i)}, {s(sT3)}, {v(vNQ2+2*p)}")
                    ops.append(f"v_fma_f32 {v(vTb+2*i+1)}, {v(vTb+2*i+1)}, {s(sT3)}, {v(vNQ2+2*p+1)}")
                for i, p in enumerate(prs): ops.append(f"v_cvt_pk_bf16_f32 {v(vP1b+i)}, {v(vTb+2*i)}, {v(vTb+2*i+1)}")
                for i, p in enumerate(prs):
                    ops.append(f"v_lshlrev_b32 {v(vTb+2*i)}, 16, {v(vP1b+i)}")
                    ops.append(f"v_and_b32 {v(vTb+2*i+1)}, {s(sMASKH)}, {v(vP1b+i)}")
                for i in range(8): ops.append(f"v_mul_f32 {v(vTb+i)}, {s(sLOG2E)}, {v(vTb+i)}")
                for i in range(8): ops.append(f"v_exp_f32 {v(vTb+i)}, {v(vTb+i)}")
                for i in range(8): ops.append(f"v_fma_f32 {v(vTb+i)}, {v(vTb+i)}, {s(sC0125)}, {v(vEP2)}")
                for i, p in enumerate(prs): ops.append(f"v_cvt_pk_bf16_f32 {v(p4base+p)}, {v(vTb+2*i)}, {v(vTb+2*i+1)}")
            return ops
        ops0 = [f"v_mov_b32 {v(vEP2)}, {s(sEPS)}"] + mimic_ops(0, vP4)
        k = 0
        for t in range(16):
            c = "0" if t == 0 else v(vA1 + 16, 16)
            I(f"v_mfma_f32_32x32x16_bf16 {v(vA1+16,16)}, {v(vKF+4*t,4)}, {v(W(1,t),4)}, {c}")
            if t >= 1:
                n = opt.kshadow
                for x in ops0[k:k+n]: I(x)
                k += n
        stamp("A gemm1 done")
        for x in ops0[k:]: I(x)
        I(f"v_lshl_add_u32 {v(vX)}, {s(sTI)}, 12, {v(vL16)}")
        I(f"v_add_u32 {v(vX)}, {PHI}, {v(vX)}")
        for u in range(2):
            I(f"ds_write_b128 {v(vX)}, {v(vP4+4*u,4)} offset:{u*2048}")
        for x in mimic_ops(1, vP4 + 8): I(x)
        for u in range(2):
            I(f"ds_write_b128 {v(vX)}, {v(vP4+8+4*u,4)} offset:{u*2048 + 1024}")
        for mt in range(2):
            I(f"v_mov_b32 {v(vZP+mt)}, 0")
        for i in range(8):
            for mt in range(2):
                I(f"v_dot2c_f32_bf16 {v(vZP+mt)}, {s(sONES)}, {v(vP4+8*mt+i)}")
    for mt in range(2): I(f"v_mov_b32 {v(vX+1+mt)}, {v(vZP+mt)}")
    for mt in range(2): I(f"v_permlane32_swap_b32 {v(vZP+mt)}, {v(vX+1+mt)}")
    for mt in range(2): I(f"v_add_f32 {v(vZP+mt)}, {v(vZP+mt)}, {v(vX+1+mt)}")
    I(f"v_and_b32 {v(vX+1)}, 31, {v(vLANE)}")
    I(f"v_lshlrev_b32 {v(vX+1)}, 2, {v(vX+1)}")
    I(f"s_lshl_b32 {s(sT1)}, {s(sTI)}, 8")
    I(f"s_add_u32 {s(sT1)}, {s(sT1)}, {ZB}")
    I(f"v_add_u32 {v(vX+1)}, {s(sT1)}, {v(vX+1)}")
    I(f"ds_write_b32 {v(vX+1)}, {v(vZP)}")
    I(f"ds_write_b32 {v(vX+1)}, {v(vZP+1)} offset:128")
    I(f"s_waitcnt lgkmcnt(0)")
    stamp("A phi written")
    I(f"s_lshl_b32 {s(sT2)}, {s(sTI)}, 2")
    I(f"s_add_u32 {s(sT2)}, {s(sT2)}, {FLG}")
    lds_set(s(sT2))
    C("transposing-read addresses of the V slice (computed while waiting)")
    vPH = 128; vAC = 48; vVB = 112; vVA = 28; vPA = 30
    I(f"v_lshrrev_b32 {v(vT)}, 5, {v(vLANE)}")
    I(f"v_lshlrev_b32 {v(vT)}, 2, {v(vT)}")
    I(f"v_bfe_u32 {v(vT+1)}, {v(vLANE)}, 2, 2")
    I(f"v_add_u32 {v(vT)}, {v(vT)}, {v(vT+1)}")
    I(f"v_lshlrev_b32 {v(vT)}, 7, {v(vT)}")
    I(f"v_lshrrev_b32 {v(vT+1)}, 1, {v(vT+1)}")
    I(f"v_lshl_add_u32 {v(vT)}, {v(vT+1)}, 6, {v(vT)}")
    I(f"v_bfe_u32 {v(vT+1)}, {v(vLANE)}, 4, 1")
    I(f"v_lshl_add_u32 {v(vT)}, {v(vT+1)}, 5, {v(vT)}")
    I(f"v_and_b32 {v(vT+1)}, 3, {v(vLANE)}")
    I(f"v_lshl_add_u32 {v(vT)}, {v(vT+1)}, 3, {v(vT)}")
    I(f"s_lshl_b32 {s(sT1)}, {s(sTI)}, 14")
    I(f"s_add_u32 {s(sT1)}, {s(sT1)}, {VR}")
    I(f"v_add_u32 {v(vVA)}, {s(sT1)}, {v(vT)}")
    I(f"v_xor_b32 {v(vVA+1)}, 64, {v(vVA)}")
    I(f"v_add_u32 {v(vPA)}, {PHI}, {v(vL16)}")
    lds_wait(str(FLG), 4, "phi")
    stamp("A phi all")
    for f in range(16):
        I(f"ds_read_b128 {v(vPH+4*f,4)}, {v(vPA)} offset:{1024*f}")
    vVB = 192
    def vread(kk):
        b = vVB + 8*(kk % 4)
        for dl in range(2):
            for ap in range(2):
                I(f"ds_read_b64_tr_b16 {v(b+4*dl+2*ap,2)}, {v(vVA+dl)} offset:{kk*2048 + ap*1024}")
    def mm(kk, first):
        b = vVB + 8*(kk % 4)
        for dl in range(2):
            for mt in range(2):
                acc = vAC + (dl*2 + mt)*16
                c = "0" if first else v(acc, 16)
                I(f"v_mfma_f32_32x32x16_bf16 {v(acc,16)}, {v(vPH+4*(kk*2+mt),4)}, {v(b+4*dl,4)}, {c}")
    I(f"s_lshl_b32 {s(sT2)}, {s(sTI)}, 2")
    I(f"s_add_u32 {s(sT2)}, {s(sT2)}, {FLG + 16}")
    lds_wait(s(sT2), 1, "v1", tmp=26)
    stamp("A V1 ready")
    vread(0); vread(1); vread(2)
    for kk in range(8):
        rem = min(2, 7 - kk)
        if kk == 2:
            I(f"s_waitcnt lgkmcnt(4)")
        else:
            I(f"s_waitcnt lgkmcnt({4*rem})")
        mm(kk, kk == 0)
        if kk == 1:
            I(f"s_add_u32 {s(sT2)}, {s(sT2)}, 16")
            lds_wait(s(sT2), 1, "v2", tmp=26)
        if kk + 3 < 8: vread(kk + 3)
    stamp("A gemm2 done")
    if opt.fast:
        I(f"v_mov_b32 {v(vT+1)}, {FLG + 48}")
        I(f"ds_read_b32 {v(vT+2)}, {v(vT+1)}")
    C("z partial inputs (wave 0)")
    I(f"v_lshlrev_b32 {v(vT+3)}, 2, {v(vLANE)}")
    I(f"v_add_u32 {v(vT+4)}, {ZB}, {v(vT+3)}")
    for a in range(4): I(f"ds_read_b32 {v(vT+6+a)}, {v(vT+4)} offset:{256*a}")
    vPK = 128
    for j in range(4):
        for i in range(8):
            I(f"v_cvt_pk_bf16_f32 {v(vPK+8*j+i)}, {v(vAC+16*j+2*i)}, {v(vAC+16*j+2*i+1)}")
    I(f"s_lshl_b32 {s(sT1)}, {s(sTI)}, 13")
    I(f"v_add_u32 {v(vT)}, {s(sT1)}, {v(vL16)}")
    I(f"s_lshl_b32 {s(sSOFF)}, {s(sCH)}, 15")
    I(f"s_add_u32 {s(sT2)}, {s(sSOFF)}, 4096")
    I(f"s_waitcnt lgkmcnt(0)")
    if opt.fast:
        I(f"v_readfirstlane_b32 {s(sFAST)}, {v(vT+2)}")
        I(f"s_cmp_eq_u32 {s(sFAST)}, {s(sNONCE)}")
        I(f"s_cselect_b32 {s(sFAST)}, 1, 0")
    if opt.holdst:
        lds_wait(str(FLG + 112), 4, "qi", tmp=26)
    def st():
        for f in range(8):
            so = s(sSOFF) if f < 4 else s(sT2)
            I(f"buffer_store_dwordx4 {v(vPK+4*f,4)}, {v(vT)}, {s(rP,4)}, {so} offen offset:{(f%4)*1024}{pol()}")
    if opt.partplain: dual(st)
    else:
        POL[0] = opt.partpol; st(); POL[0] = " sc1"
    if opt.holdq:
        I(f"s_lshl_b32 {s(sT1)}, {s(sTI)}, 2")
        I(f"s_add_u32 {s(sT1)}, {s(sT1)}, {FLG + 64}")
        lds_set(s(sT1), tmp=26)
    I(f"s_cmp_eq_u32 {s(sTI)}, 0")
    I(f"s_cbranch_scc0 L_noz")
    I(f"v_add_f32 {v(vT+6)}, {v(vT+6)}, {v(vT+7)}")
    I(f"v_add_f32 {v(vT+8)}, {v(vT+8)}, {v(vT+9)}")
    I(f"v_add_f32 {v(vT+6)}, {v(vT+6)}, {v(vT+8)}")
    I(f"s_lshl_b32 {s(sSOFF)}, {s(sCH)}, 8")
    I(f"s_add_u32 {s(sSOFF)}, {s(sSOFF)}, {O_Z}")
    I(f"buffer_store_dword {v(vT+6)}, {v(vT+3)}, {s(rP,4)}, {s(sSOFF)} offen sc1")
    L("L_noz")
    C("addresses for the reduction: quarter tile a of tile 'chunk': fragment 2*chunk + (a>>1), lanes (a&1)*32 + (l&31); producer parity = l>>5")
    vR = 128
    I(f"s_lshl_b32 {s(sT1)}, {s(sCH)}, 11")
    I(f"s_lshl_b32 {s(sT2)}, {s(sTI)}, 9")
    I(f"s_add_u32 {s(sT3)}, {s(sT1)}, {s(sT2)}")
    I(f"v_and_b32 {v(vX)}, 31, {v(vLANE)}")
    I(f"v_lshlrev_b32 {v(vX)}, 4, {v(vX)}")
    I(f"v_add_u32 {v(vX)}, {s(sT3)}, {v(vX)}")
    I(f"v_lshrrev_b32 {v(vX+1)}, 5, {v(vLANE)}")
    I(f"v_lshl_add_u32 {v(vX+1)}, {v(vX+1)}, 15, {v(vX)}")
    I(f"s_waitcnt vmcnt(0)")
    stamp("A part drained")
    wave_flag(256)
    poll(256, "h1")
    stamp("A hop1")
    I(f"s_mov_b32 {s(sSOFF)}, 0")
    for c in range(8):
        I(f"buffer_load_dwordx4 {v(vR+4*c,4)}, {v(vX+1)}, {s(rP,4)}, {s(sSOFF)} offen sc1")
        if c < 7: I(f"s_add_u32 {s(sSOFF)}, {s(sSOFF)}, 65536")
    vZ = 192
    I(f"s_cmp_eq_u32 {s(sTI)}, 3")
    I(f"s_cbranch_scc0 L_noz2")
    I(f"s_mov_b32 {s(sSOFF)}, {O_Z}")
    for j in range(4):
        I(f"buffer_load_dwordx4 {v(vZ+4*j,4)}, {v(vL16)}, {s(rP,4)}, {s(sSOFF)} offen offset:{1024*j} sc1")
    L("L_noz2")
    vS = 176
    I(f"s_mov_b32 {s(sT1)}, 0x3f80")
    I(f"s_mov_b32 {s(sT2)}, 0x3f800000")
    for i in range(8): I(f"v_mov_b32 {v(vS+i)}, 0")
    C("(wave 3 has 4 younger loads in flight: its counted waits are conservative only if we wait for more, so wait per wave)")
    I(f"s_cmp_eq_u32 {s(sTI)}, 3")
    I(f"s_cbranch_scc1 L_red3")
    def red(extra):
        for c in range(8):
            I(f"s_waitcnt vmcnt({7-c+extra})")
            for i in range(4):
                I(f"v_dot2_f32_bf16 {v(vS+2*i)}, {v(vR+4*c+i)}, {s(sT1)}, {v(vS+2*i)}")
                I(f"v_dot2_f32_bf16 {v(vS+2*i+1)}, {v(vR+4*c+i)}, {s(sT2)}, {v(vS+2*i+1)}")
    red(0)
    I(f"s_branch L_redd")
    L("L_red3")
    red(4)
    L("L_redd")
    stamp("A red summed")
    for i in range(8): I(f"v_mov_b32 {v(vS+8+i)}, {v(vS+i)}")
    for i in range(8): I(f"v_permlane32_swap_b32 {v(vS+i)}, {v(vS+8+i)}")
    for i in range(8): I(f"v_add_f32 {v(vS+i)}, {v(vS+i)}, {v(vS+8+i)}")
    for i in range(4): I(f"v_cvt_pk_bf16_f32 {v(vS+i)}, {v(vS+2*i)}, {v(vS+2*i+1)}")
    I(f"s_mov_b32 {s(sSOFF)}, {O_F}")
    I(f"s_mov_b32 exec_hi, 0")
    dual(lambda: I(f"buffer_store_dwordx4 {v(vS,4)}, {v(vX)}, {s(rP,4)}, {s(sSOFF)} offen{pol()}"))
    I(f"s_mov_b64 exec, -1")
    C("z (wave 3): lane l holds m = 4*(l&15)..+3 of producer 4j + (l>>4)")
    I(f"s_cmp_eq_u32 {s(sTI)}, 3")
    I(f"s_cbranch_scc0 L_noz3")
    I(f"s_waitcnt vmcnt(1)")
    for i in range(4):
        I(f"v_add_f32 {v(vZ+i)}, {v(vZ+i)}, {v(vZ+4+i)}")
        I(f"v_add_f32 {v(vZ+8+i)}, {v(vZ+8+i)}, {v(vZ+12+i)}")
    for i in range(4): I(f"v_add_f32 {v(vZ+i)}, {v(vZ+i)}, {v(vZ+8+i)}")
    for i in range(4): I(f"v_mov_b32 {v(vZ+4+i)}, {v(vZ+i)}")
    for i in range(4): I(f"v_permlane32_swap_b32 {v(vZ+i)}, {v(vZ+4+i)}")
    for i in range(4): I(f"v_add_f32 {v(vZ+i)}, {v(vZ+i)}, {v(vZ+4+i)}")
    for i in range(4): I(f"v_mov_b32 {v(vZ+4+i)}, {v(vZ+i)}")
    for i in range(4): I(f"v_permlane16_swap_b32 {v(vZ+i)}, {v(vZ+4+i)}")
    for i in range(4): I(f"v_add_f32 {v(vZ+i)}, {v(vZ+i)}, {v(vZ+4+i)}")
    I(f"v_cvt_pk_bf16_f32 {v(vZ)}, {v(vZ)}, {v(vZ+1)}")
    I(f"v_cvt_pk_bf16_f32 {v(vZ+1)}, {v(vZ+2)}, {v(vZ+3)}")
    I(f"v_and_b32 {v(vZ+2)}, 15, {v(vLANE)}")
    I(f"v_lshlrev_b32 {v(vZ+2)}, 3, {v(vZ+2)}")
    I(f"v_add_u32 {v(vZ+2)}, {ZF}, {v(vZ+2)}")
    I(f"ds_write_b64 {v(vZ+2)}, {v(vZ,2)}")
    I(f"s_waitcnt lgkmcnt(0)")
    lds_set(str(FLG + 52))
    L("L_noz3")
    I(f"s_waitcnt vmcnt(0)")
    stamp("A reduced+drained")
    wave_flag(512)
    C("chunk 0 advances the epoch (all 16 workgroups of the head have read it)")
    I(f"s_cmp_eq_u32 {s(sCH)}, 0")
    I(f"s_cbranch_scc0 L_noep")
    I(f"s_cmp_eq_u32 {s(sTI)}, 1")
    I(f"s_cbranch_scc0 L_noep")
    I(f"s_mov_b64 exec, 1")
    I(f"v_mov_b32 {v(vT)}, 0")
    I(f"v_mov_b32 {v(vT+1)}, {s(sNONCE)}")
    I(f"s_mov_b32 {s(sT1)}, {O_FL}")
    I(f"buffer_store_dword {v(vT+1)}, {v(vT)}, {s(rP,4)}, {s(sT1)} offen sc1")
    I(f"s_mov_b64 exec, -1")
    L("L_noep")
    STI[0] = 13
    I(f"s_branch L_final")

vPQ16 = 32
vKA = 96
vOP = 112
vAC3 = 128
vST = 192
vKG, vPA2, vRA, vSW, vSR, vOA, vU = 2, 3, 4, 5, 6, 7, 20
vRDS = 12
vRD = 4

def final_setup():
    I(f"v_bfe_u32 {v(vU+1)}, {v(vLANE)}, 2, 1")
    I(f"v_lshlrev_b32 {v(vU+1)}, 4, {v(vU+1)}")
    I(f"v_bfe_u32 {v(vU+2)}, {v(vLANE)}, 3, 2")
    I(f"v_lshl_add_u32 {v(vU+1)}, {v(vU+2)}, 2, {v(vU+1)}")
    I(f"v_and_b32 {v(vU+2)}, 3, {v(vLANE)}")
    I(f"v_add_u32 {v(vU+1)}, {v(vU+1)}, {v(vU+2)}")
    I(f"v_and_b32 {v(vU+2)}, 32, {v(vLANE)}")
    I(f"v_add_u32 {v(vU+1)}, {v(vU+1)}, {v(vU+2)}")
    I(f"v_lshlrev_b32 {v(vKG)}, 4, {v(vU+1)}")
    I(f"v_add_u32 {v(vPA2)}, {QR}, {v(vL16)}")
    I(f"v_lshlrev_b32 {v(vRA)}, 2, {v(vLANE)}")
    I(f"v_add_u32 {v(vRA)}, {RD}, {v(vRA)}")
    C("staging write: row q*512 + ((4w + 2h) ^ (q&7))*16")
    I(f"v_lshrrev_b32 {v(vU+1)}, 5, {v(vLANE)}")
    I(f"s_lshl_b32 {s(sT1)}, {s(sWAVE)}, 2")
    I(f"v_lshl_add_u32 {v(vU+2)}, {v(vU+1)}, 1, {s(sT1)}")
    I(f"v_and_b32 {v(vU+3)}, 7, {v(vLANE)}")
    I(f"v_xor_b32 {v(vU+2)}, {v(vU+2)}, {v(vU+3)}")
    I(f"v_lshlrev_b32 {v(vU+2)}, 4, {v(vU+2)}")
    I(f"v_and_b32 {v(vU+3)}, 31, {v(vLANE)}")
    I(f"v_lshl_add_u32 {v(vSW)}, {v(vU+3)}, 9, {v(vU+2)}")
    I(f"v_add_u32 {v(vSW)}, {VR}, {v(vSW)}")
    C("staging read: row 4w + 2j + hi, slot (l&31) ^ (row&7)")
    I(f"s_and_b32 {s(sT2)}, {s(sWAVE)}, 1")
    I(f"s_lshl_b32 {s(sT2)}, {s(sT2)}, 2")
    I(f"v_add_u32 {v(vU+2)}, {s(sT2)}, {v(vU+1)}")
    I(f"v_xor_b32 {v(vU+2)}, {v(vU+2)}, {v(vU+3)}")
    I(f"v_lshlrev_b32 {v(vU+2)}, 4, {v(vU+2)}")
    I(f"v_add_u32 {v(vU+1)}, {s(sT1)}, {v(vU+1)}")
    I(f"v_lshl_add_u32 {v(vSR)}, {v(vU+1)}, 9, {v(vU+2)}")
    I(f"v_add_u32 {v(vSR)}, {VR}, {v(vSR)}")
    I(f"s_lshl_b32 {s(sT1)}, {s(sWAVE)}, 11")
    I(f"v_add_u32 {v(vOA)}, {s(sT1)}, {v(vL16)}")

def team_b():
    C("================= team B =================")
    L("L_team_b")
    STI[0] = 2
    if opt.preread:
        C("bring the 2 KiB of the final kv image this workgroup writes into L2 (waves B0, B1: 1 KiB each)")
        I(f"s_cmp_lt_u32 {s(sTI)}, 2")
        I(f"s_cbranch_scc0 L_nopre")
        I(f"s_lshl_b32 {s(sT1)}, {s(sCH)}, 11")
        I(f"s_lshl_b32 {s(sT2)}, {s(sTI)}, 10")
        I(f"s_add_u32 {s(sT1)}, {s(sT1)}, {s(sT2)}")
        I(f"s_add_u32 {s(sT1)}, {s(sT1)}, {O_F}")
        I(f"buffer_load_dwordx4 {v(32,4)}, {v(vL16)}, {s(rP,4)}, {s(sT1)} offen")
        L("L_nopre")
    def mode_check():
        if not opt.fast: return
        I(f"s_cmp_eq_u32 {s(sTI)}, 0")
        I(f"s_cbranch_scc0 L_nochk1")
        I(f"s_waitcnt lgkmcnt(0)")
        I(f"s_mov_b32 {s(sT1)}, {s(sNONCE)}")
        I(f"s_not_b32 {s(sT2)}, {s(sNONCE)}")
        for j in range(16):
            I(f"s_cmp_eq_u32 {s((20 if j < 8 else 36) + j)}, {s(sPRES)}")
            I(f"s_cselect_b32 {s(sT1)}, {s(sT1)}, {s(sT2)}")
        if opt.forceslow: I(f"s_mov_b32 {s(sT1)}, {s(sT2)}")
        lds_set(str(FLG + 48), val=s(sT1))
        I(f"s_waitcnt lgkmcnt(0)")
        L("L_nochk1")
    def vflag(k):
        I(f"s_lshl_b32 {s(sT3)}, {s(sTI)}, 2")
        I(f"s_add_u32 {s(sT3)}, {s(sT3)}, {FLG + 16 + 16*k}")
        lds_set(s(sT3))
    VF[0] = vflag
    if opt.kqv:
        I(f"s_lshl_b32 {s(sSOFF)}, {s(sTI)}, 14")
        for i in range(16): dma_row_instr(rQ, QR, i)
        I(f"s_waitcnt vmcnt(16)")
        I(f"s_barrier")
        stamp("B B1")
        read_omega(QR)
        I(f"s_waitcnt lgkmcnt(0)")
        I(f"s_barrier")
        dma_v()
        if opt.fast:
            I(f"s_cmp_eq_u32 {s(sTI)}, 0")
            I(f"s_cbranch_scc0 L_nochk0")
            I(f"s_load_dwordx8 {s(20,8)}, {s(sEPA,2)}, {O_FL + 128} glc")
            I(f"s_load_dwordx8 {s(44,8)}, {s(sEPA,2)}, {O_FL + 160} glc")
            L("L_nochk0")
        stamp("B v issued")
        I(f"s_waitcnt vmcnt(16)")
        stamp("B q landed")
        mode_check()
    else:
        if opt.bomega: read_omega(QR)
        dma_v()
        I(f"s_waitcnt vmcnt(16)")
        if opt.bomega: I(f"s_waitcnt lgkmcnt(0)")
        I(f"s_barrier")
        stamp("B B1")
        if not opt.bomega:
            read_omega(QR)
            I(f"s_waitcnt lgkmcnt(0)")
        I(f"s_barrier")
        if opt.fast:
            I(f"s_cmp_eq_u32 {s(sTI)}, 0")
            I(f"s_cbranch_scc0 L_nochk0")
            I(f"s_load_dwordx8 {s(20,8)}, {s(sEPA,2)}, {O_FL + 128} glc")
            I(f"s_load_dwordx8 {s(44,8)}, {s(sEPA,2)}, {O_FL + 160} glc")
            L("L_nochk0")
        def pace_signal():
            if not opt.stagger: return
            PS[0] += 1
            I(f"s_and_b32 {s(sT1)}, {s(sHEAD)}, 1")
            I(f"s_or_b32 {s(sT1)}, {s(sT1)}, {s(sTI)}")
            I(f"s_cmp_eq_u32 {s(sT1)}, 0")
            I(f"s_cbranch_scc0 L_nosigp{PS[0]}")
            I(f"s_lshl_b32 {s(sT1)}, {s(sCH)}, 2")
            I(f"s_add_u32 {s(sT1)}, {s(sT1)}, {O_FL + 768}")
            I(f"s_mov_b64 exec, 1")
            I(f"v_mov_b32 {v(vX+4)}, 0")
            I(f"v_mov_b32 {v(vX+5)}, {s(sNONCE)}")
            I(f"buffer_store_dword {v(vX+5)}, {v(vX+4)}, {s(rP,4)}, {s(sT1)} offen sc1")
            I(f"s_mov_b64 exec, -1")
            L(f"L_nosigp{PS[0]}")
        def pre(i):
            I(f"s_add_u32 {s(sT1)}, {s(sT0)}, {1024*i}")
            I(f"buffer_load_dwordx4 {v(32+4*(i%8),4)}, {v(vL16)}, {s(rP,4)}, {s(sT1)} offen{opt.prepol}")
        if opt.pacept == "b2": pace_signal()
        if opt.prepart:
            I(f"s_lshl_b32 {s(sT0)}, {s(sCH)}, 15")
            I(f"s_lshl_b32 {s(sT1)}, {s(sTI)}, 13")
            I(f"s_add_u32 {s(sT0)}, {s(sT0)}, {s(sT1)}")
            for i in range(4): pre(i)
        else:
            I(f"s_lshl_b32 {s(sSOFF)}, {s(sTI)}, 14")
            for i in range(4): dma_row_instr(rQ, QR, i)
        I(f"s_waitcnt vmcnt(12)")
        I(f"s_lshl_b32 {s(sT3)}, {s(sTI)}, 2")
        I(f"s_add_u32 {s(sT3)}, {s(sT3)}, {FLG + 16}")
        if opt.fast:
            I(f"s_cmp_eq_u32 {s(sTI)}, 0")
            I(f"s_cbranch_scc0 L_nochk1")
            I(f"s_waitcnt lgkmcnt(0)")
            I(f"s_mov_b32 {s(sT1)}, {s(sNONCE)}")
            I(f"s_not_b32 {s(sT2)}, {s(sNONCE)}")
            for j in range(16):
                I(f"s_cmp_eq_u32 {s((20 if j < 8 else 36) + j)}, {s(sPRES)}")
                I(f"s_cselect_b32 {s(sT1)}, {s(sT1)}, {s(sT2)}")
            if opt.forceslow: I(f"s_mov_b32 {s(sT1)}, {s(sT2)}")
            lds_set(str(FLG + 48), val=s(sT1))
            I(f"s_waitcnt lgkmcnt(0)")
            L("L_nochk1")
        lds_set(s(sT3))
        if opt.pacept == "v1": pace_signal()
        stamp("B V1 landed")
        if opt.prepart:
            for i in range(4, 8): pre(i)
        else:
            for i in range(4, 8): dma_row_instr(rQ, QR, i)
        I(f"s_waitcnt vmcnt(8)")
        I(f"s_add_u32 {s(sT3)}, {s(sT3)}, 16")
        lds_set(s(sT3))
        if opt.pacept == "v2": pace_signal()
        stamp("B V2 landed")
        if opt.prepart:
            I(f"s_lshl_b32 {s(sSOFF)}, {s(sTI)}, 14")
            for i in range(16): dma_row_instr(rQ, QR, i)
        else:
            nh = opt.holdq
            for i in range(8, 16 - nh): dma_row_instr(rQ, QR, i)
            if nh:
                I(f"s_lshl_b32 {s(sT3)}, {s(sTI)}, 2")
                I(f"s_add_u32 {s(sT3)}, {s(sT3)}, {FLG + 64}")
                lds_wait(s(sT3), 1, "hq")
                for i in range(16 - nh, 16): dma_row_instr(rQ, QR, i)
        if opt.pacept == "q": pace_signal()
        if opt.holdst:
            I(f"s_lshl_b32 {s(sT3)}, {s(sTI)}, 2")
            I(f"s_add_u32 {s(sT3)}, {s(sT3)}, {FLG + 112}")
            lds_set(s(sT3))
        stamp("B q issued")
        I(f"s_waitcnt vmcnt(0)")
        stamp("B q landed")
    read_tile_frags()
    I(f"s_waitcnt lgkmcnt(0)")
    ssq()
    steps = ssq_reduce_steps()
    for t in range(16):
        c = "0" if t == 0 else v(vA1, 16)
        I(f"v_mfma_f32_32x32x16_bf16 {v(vA1,16)}, {v(W(0,t),4)}, {v(vKF+4*t,4)}, {c}")
        if 1 <= t <= 5:
            for x in steps[t-1]: I(x)
        if t == 6: I(f"v_mul_f32 {v(vSS)}, {s(sM132)}, {v(vSS)}")
        if not opt.mimicq:
            if t == 7: I(f"v_mul_f32 {v(vSS)}, {s(sLOG2E)}, {v(vSS)}")
            if t == 8: I(f"s_mov_b32 {s(sT2)}, 0x3eb8aa3b")
            if t == 9: I(f"v_mov_b32 {v(vSS+3)}, {s(sEPS)}")
    vY = 20
    vQ0 = 12
    vQ1 = 112
    def plain_ops(mt, dst):
        ops = []
        acc = lambda r: vA1 + 16*mt + r
        for g in range(2):
            for i in range(8): ops.append(f"v_fma_f32 {v(vY+i)}, {v(acc(8*g+i))}, {s(sT2)}, {v(vSS)}")
            for i in range(8): ops.append(f"v_exp_f32 {v(vY+i)}, {v(vY+i)}")
            for i in range(8): ops.append(f"v_fma_f32 {v(vY+i)}, {v(vY+i)}, {s(sC0125)}, {v(vSS+3)}")
            for i in range(4): ops.append(f"v_cvt_pk_bf16_f32 {v(dst+4*g+i)}, {v(vY+2*i)}, {v(vY+2*i+1)}")
        return ops
    if not opt.mimicq:
        ops0 = plain_ops(0, vQ0)
        k = 0
        for t in range(16):
            c = "0" if t == 0 else v(vA1 + 16, 16)
            I(f"v_mfma_f32_32x32x16_bf16 {v(vA1+16,16)}, {v(W(1,t),4)}, {v(vKF+4*t,4)}, {c}")
            if t >= 1:
                n = 4 if t < 15 else len(ops0) - k
                for x in ops0[k:k+n]: I(x)
                k += n
        stamp("B gemm1 done")
        if opt.kqv:
            I(f"s_waitcnt vmcnt(8)")
            VF[0](0)
        for x in plain_ops(1, vPQ + 8): I(x)
        if opt.kqv:
            I(f"s_waitcnt vmcnt(0)")
            VF[0](1)
            stamp("B V2 landed")
        for i in range(8): I(f"v_mov_b32 {v(vPQ+i)}, {v(vQ0+i)}")
    else:
        for t in range(16):
            c = "0" if t == 0 else v(vA1 + 16, 16)
            I(f"v_mfma_f32_32x32x16_bf16 {v(vA1+16,16)}, {v(W(1,t),4)}, {v(vKF+4*t,4)}, {c}")
        stamp("B gemm1 done")
        I(f"v_mov_b32 {v(vEPS)}, {s(sEPS)}")
        I(f"v_cvt_pk_bf16_f32 {v(vSS)}, {v(vSS)}, 0")
        I(f"v_lshlrev_b32 {v(vNQ)}, 16, {v(vSS)}")
        for mt in range(2):
            pipeline_mimic(mt, lambda r: vNQ, vP4 + 8*mt)
        for i in range(16): I(f"v_mov_b32 {v(vPQ+i)}, {v(vP4+i)}")
    I(f"s_lshl_b32 {s(sT1)}, {s(sTI)}, 14")
    I(f"s_add_u32 {s(sT1)}, {s(sT1)}, {QR}")
    I(f"v_add_u32 {v(vX)}, {s(sT1)}, {v(vL16)}")
    for t in range(4):
        I(f"ds_write_b128 {v(vX)}, {v(vPQ+4*t,4)} offset:{t*1024}")
    I(f"s_waitcnt lgkmcnt(0)")
    I(f"s_lshl_b32 {s(sT1)}, {s(sTI)}, 2")
    I(f"s_add_u32 {s(sT1)}, {s(sT1)}, {FLG + 80}")
    lds_set(s(sT1))
    stamp("B phiq done")
    C("den = phi_q . z once z is there")
    vZF = 112; vDEN = 60
    lds_wait(str(FLG + 52), 1, "z")
    I(f"v_lshrrev_b32 {v(vDEN)}, 5, {v(vLANE)}")
    I(f"v_lshlrev_b32 {v(vDEN)}, 3, {v(vDEN)}")
    I(f"v_add_u32 {v(vDEN)}, {ZF}, {v(vDEN)}")
    for t in range(4):
        I(f"ds_read2_b64 {v(vZF+4*t,4)}, {v(vDEN)} offset0:{4*t} offset1:{4*t+2}")
    I(f"v_mov_b32 {v(vDEN+2)}, 0")
    I(f"v_mov_b32 {v(vDEN+3)}, 0")
    I(f"s_waitcnt lgkmcnt(0)")
    for i in range(16):
        I(f"v_dot2c_f32_bf16 {v(vDEN+2+(i&1))}, {v(vPQ+i)}, {v(vZF+i)}")
    I(f"v_add_f32 {v(vDEN)}, {v(vDEN+2)}, {v(vDEN+3)}")
    I(f"v_mov_b32 {v(vDEN+1)}, {v(vDEN)}")
    I(f"v_permlane32_swap_b32 {v(vDEN)}, {v(vDEN+1)}")
    I(f"v_add_f32 {v(vDEN)}, {v(vDEN)}, {v(vDEN+1)}")
    I(f"v_cvt_pk_bf16_f32 {v(vDEN)}, {v(vDEN)}, {v(vDEN)}")
    I(f"v_lshlrev_b32 {v(vDEN)}, 16, {v(vDEN)}")
    I(f"v_add_f32 {v(vDEN)}, {s(sEPS)}, {v(vDEN)}")
    I(f"v_cvt_pk_bf16_f32 {v(vDEN)}, {v(vDEN)}, {v(vDEN)}")
    I(f"v_lshlrev_b32 {v(vDEN)}, 16, {v(vDEN)}")
    I(f"v_rcp_f32 {v(vRD)}, {v(vDEN)}")
    I(f"v_fma_f32 {v(vDEN+1)}, -{v(vDEN)}, {v(vRD)}, 1.0")
    I(f"v_fma_f32 {v(vRD)}, {v(vDEN+1)}, {v(vRD)}, {v(vRD)}")
    I(f"s_lshl_b32 {s(sT1)}, {s(sTI)}, 8")
    I(f"s_add_u32 {s(sT1)}, {s(sT1)}, {RD}")
    I(f"v_lshlrev_b32 {v(vDEN)}, 2, {v(vLANE)}")
    I(f"v_add_u32 {v(vDEN)}, {s(sT1)}, {v(vDEN)}")
    I(f"ds_write_b32 {v(vDEN)}, {v(vRD)}")
    I(f"s_waitcnt lgkmcnt(0)")
    I(f"s_lshl_b32 {s(sT1)}, {s(sTI)}, 2")
    I(f"s_add_u32 {s(sT1)}, {s(sT1)}, {FLG + 96}")
    lds_set(s(sT1))
    stamp("B den done")
    STI[0] = 13

def final():
    L("L_final")
    C("================= final: wave w = d tile w, all four q tiles =================")
    final_setup()
    lds_wait(str(FLG + 80), 4, "pq", tmp=vU)
    for i in range(4):
        for t in range(4):
            I(f"ds_read_b128 {v(vPQ16+16*i+4*t,4)}, {v(vPA2)} offset:{i*16384 + t*1024}")
    stamp("F phiq read")
    poll(512, "h2", tmp=vU)
    stamp("F hop2")
    I(f"s_lshl_b32 {s(sT1)}, {s(sWAVE)}, 12")
    I(f"s_add_u32 {s(sT1)}, {s(sT1)}, {O_F}")
    for t in range(4):
        I(f"buffer_load_dwordx4 {v(vKA+4*t,4)}, {v(vKG)}, {s(rP,4)}, {s(sT1)} offen offset:{t*1024} sc1")
    lds_wait(str(FLG + 96), 4, "rd", tmp=vU)
    for i in range(4):
        I(f"ds_read_b32 {v(vRDS+2*i)}, {v(vRA)} offset:{256*i}")
    so = [74, 75, 76, 77] if not opt.stamps else [sSOFF, sT1, sT2, sT3]
    for i in range(4): I(f"s_mov_b32 {s(so[i])}, {16384*i}")
    def mm(i):
        for t in range(4):
            acc = vAC3 + 16*i
            c = "0" if t == 0 else v(acc, 16)
            I(f"v_mfma_f32_32x32x16_bf16 {v(acc,16)}, {v(vKA+4*t,4)}, {v(vPQ16+16*i+4*t,4)}, {c}")
    def epi(i):
        acc = vAC3 + 16*i; op = vOP + 8*(i % 2)
        if opt.mimicnum:
            for k in range(8): I(f"v_cvt_pk_bf16_f32 {v(op+k)}, {v(acc+2*k)}, {v(acc+2*k+1)}")
            for k in range(8):
                I(f"v_lshlrev_b32 {v(acc+2*k)}, 16, {v(op+k)}")
                I(f"v_and_b32 {v(acc+2*k+1)}, {s(sMASKH)}, {v(op+k)}")
        for k in range(8): I(f"v_pk_mul_f32 {v(acc+2*k,2)}, {v(acc+2*k,2)}, {v(vRDS+2*i,2)} op_sel_hi:[1,0]")
        for k in range(8): I(f"v_cvt_pk_bf16_f32 {v(op+k)}, {v(acc+2*k)}, {v(acc+2*k+1)}")
        I(f"ds_write_b128 {v(vSW)}, {v(op,4)} offset:{16384*i}")
        I(f"ds_write_b128 {v(vU)}, {v(op+4,4)} offset:{16384*i}")
    def R(i):
        I(f"ds_read_b128 {v(vST+8*i,4)}, {v(vSR)} offset:{16384*i}")
        I(f"ds_read_b128 {v(vST+8*i+4,4)}, {v(vU+1)} offset:{16384*i + 1024}")
    def S(i):
        for j in range(2):
            I(f"buffer_store_dwordx4 {v(vST+8*i+4*j,4)}, {v(vOA)}, {s(rO,4)}, {s(so[i])} offen offset:{1024*j}{opt.ost}")
    I(f"v_xor_b32 {v(vU)}, 16, {v(vSW)}")
    I(f"v_xor_b32 {v(vU+1)}, 32, {v(vSR)}")
    I(f"s_waitcnt vmcnt(0) lgkmcnt(0)")
    stamp("F kv there")
    mm(0); mm(1); epi(0)
    I(f"s_waitcnt lgkmcnt(0)"); I(f"s_barrier")
    R(0); mm(2); epi(1)
    I(f"s_waitcnt lgkmcnt(2)"); S(0)
    I(f"s_waitcnt lgkmcnt(0)"); I(f"s_barrier")
    R(1); mm(3); epi(2)
    I(f"s_waitcnt lgkmcnt(2)"); S(1)
    I(f"s_waitcnt lgkmcnt(0)"); I(f"s_barrier")
    R(2); epi(3)
    I(f"s_waitcnt lgkmcnt(2)"); S(2)
    I(f"s_waitcnt lgkmcnt(0)"); I(f"s_barrier")
    R(3)
    I(f"s_waitcnt lgkmcnt(0)"); S(3)
    STI[0] = 18
    stamp("stores issued")
    if opt.stamps: I("s_waitcnt vmcnt(0)")
    stamp("stores done")
    stamps_flush("f")

def build():
    set_regions(opt.kqv)
    common_start()
    I(f"s_cmp_ge_u32 {s(sWAVE)}, 4")
    I(f"s_cbranch_scc1 L_team_b")
    team_a()
    team_b()
    final()
    L("L_end")
    I("s_endpgm")
    body = A.render()
    hdr = f"""; fused RFA linear attention: 256 workgroups (one per CU) x 8 waves
; @launch grid=(256,1,1) block=(512,1,1) lds={LDS_BYTES}
.amdgcn_target "amdgcn-amd-amdhsa--gfx950"
.text
.globl {NAME}
.p2align 8
.type {NAME},@function
{NAME}:
"""
    ftr = f"""
.section .rodata,"a"
.p2align 6
.amdhsa_kernel {NAME}
  .amdhsa_next_free_vgpr 256
  .amdhsa_next_free_sgpr 102
  .amdhsa_accum_offset 256
  .amdhsa_group_segment_fixed_size 0
  .amdhsa_kernarg_size 56
  .amdhsa_user_sgpr_count 2
  .amdhsa_user_sgpr_kernarg_segment_ptr 1
  .amdhsa_system_sgpr_workgroup_id_x 1
  .amdhsa_float_denorm_mode_32 3
.end_amdhsa_kernel
"""
    return hdr + body + ftr

if __name__ == "__main__":
    out = sys.argv[1]
    for a in sys.argv[2:]:
        if a == "stamps": opt.stamps = True
        elif a == "light": opt.stamps = True; opt.light = True
        elif a == "nont": opt.nt = False
        elif a == "nofast": opt.fast = False
        elif a == "forceslow": opt.forceslow = True
        elif a == "nopretouch": opt.pretouch = False
        elif a == "mimicq": opt.mimicq = True
        elif a == "cyc": opt.cyc = True
        elif a == "holdst": opt.holdst = True
        elif a == "nobomega": opt.bomega = False
        elif a == "nokfast": opt.kfast = False
        elif a.startswith("kshadow="): opt.kshadow = int(a.split("=")[1])
        elif a.startswith("holdq="): opt.holdq = int(a.split("=")[1])
        elif a == "kqv": opt.kqv = True
        elif a.startswith("stagger="): opt.stagger = True; opt.pacept = a.split("=")[1]
        elif a == "prepart": opt.prepart = True; opt.partplain = True
        elif a.startswith("prepol="): opt.prepol = (" " + a.split("=")[1].replace("+", " ")).rstrip()
        elif a.startswith("partpol="): opt.partpol = " " + a.split("=")[1].replace("+", " ")
        elif a == "codepf": opt.codepf = True
        elif a == "partplain": opt.partplain = True
        elif a == "nopreread": opt.preread = False
        elif a == "mimicnum": opt.mimicnum = True
        elif a.startswith("dbgwg="): opt.dbgwg = int(a.split("=")[1])
        elif a.startswith("dbgwave="): opt.dbgwave = int(a.split("=")[1])
        elif a.startswith("ost="): opt.ost = " " + a.split("=")[1].replace("+", " ")
        else: raise SystemExit("unknown option " + a)
    txt = build()
    open(out, "w").write(txt)
    if opt.stamps: json.dump(STN, open(out + ".stamps.json", "w"))
    print("wrote", out, "nops inserted:", A.nops, "lines", txt.count("\n"))
```

```python
import sys, json, struct
from asmlib import *

NAME = "standalone__linear_kernel_rfa__prompt_kernel"
class O: pass
opt = O()
opt.spin_limit = 300000
opt.stamps = False
opt.nt = True
opt.fast = True
opt.forceslow = False
opt.dbgwg = None
opt.dbgwave = 0
opt.ost = " nt"
opt.pretouch = True
opt.partplain = False
opt.preread = True
opt.codepf = False
opt.partpol = ' sc1'
opt.prepart = False
opt.prepol = ' nt'
opt.light = False
opt.stagger = False
opt.pacept = 'v2'
opt.pacemax = 40
opt.kqv = False
opt.holdq = 0
opt.bomega = True
opt.kfast = True
opt.kshadow = 6
opt.holdst = False
opt.cyc = False
opt.kok = False
opt.kokbar = True
opt.holdall = ''
opt.kko = False
opt.early = False
opt.mimicq = False
opt.mimicnum = False

KQ = 0
QR = 0
VR = 65536
WR = 131072
PHI = WR
ZB = WR + 16384
ZF = WR + 17408
FLG = WR + 17664
RD = WR + 18432
KVF = VR
OSA = VR + 32768
def set_regions(kqv):
    global QR, VR, KVF, OSA
    QR, VR = (65536, 0) if kqv else (0, 65536)
    KVF = VR; OSA = VR + 32768
LDS_BYTES = 163840
HS = 1 << 20
O_PART = 0
O_F = 524288
O_Z = 524288 + 32768
O_FL = 524288 + 32768 + 4096
WS_ST = 20 << 20

sQp, sKp, sVp, sWp, sOp, sDp, sSp = 4, 6, 8, 10, 12, 14, 16
sHEAD, sCH = 18, 19
rK, rV, rQ, rW, rO, rP, rL = 20, 24, 28, 32, 36, 40, 52
sWAVE, sTI = 56, 57
sT0, sT1, sT2, sT3 = 58, 59, 60, 61
sNONCE, sFAST = 62, 63
sC025L, sC025H, sLOG2E, sC0125, sMASKH, sONES = 64, 65, 66, 67, 68, 69
sSPIN, sSOFF, sEPS, sM132 = 70, 71, 72, 73
sXCC, sPRES = 94, 95
sEPA = 96
sPW = 40
sJUNK = 44

A = Asm()
I, L, C = A.I, A.L, A.C
STI = [0]; STN = []; PS = [0]; VF = [None]
def stamp(name=""):
    if not opt.stamps: return
    if opt.light and name not in ("start", "stores done"):
        STN.append((STI[0], name)); STI[0] += 1
        return
    C("stamp %s" % name)
    I("s_memtime s[98:99]" if opt.cyc else "s_memrealtime s[98:99]")
    I("s_waitcnt lgkmcnt(0)")
    I("s_mov_b32 s%d, s98" % (74 + STI[0]))
    STN.append((STI[0], name)); STI[0] += 1
def stamps_flush(tag):
    if not opt.stamps: return
    I("s_and_b32 s97, s56, 3"); I("s_cmp_eq_u32 s97, 0"); I("s_cbranch_scc0 L_nost_%s" % tag)
    I("s_lshr_b32 s97, s56, 2"); I("s_lshl_b32 s96, s2, 1"); I("s_add_u32 s96, s96, s97"); I("s_lshl_b32 s96, s96, 7")
    I("s_add_u32 s96, s96, %d" % WS_ST)
    I("s_add_u32 s40, s16, s96"); I("s_addc_u32 s41, s17, 0"); I("s_and_b32 s41, s41, 0xffff"); I("s_mov_b32 s42, 128"); I("s_mov_b32 s43, 0x20000")
    I("s_mov_b64 exec, 1"); I("v_mov_b32 v1, 0")
    for i in range(20):
        I("v_mov_b32 v2, s%d" % (74 + i)); I("buffer_store_dword v2, v1, s[40:43], 0 offen offset:%d" % (4 * i))
    I("s_waitcnt vmcnt(0)")
    if opt.dbgwg is not None:
        I("s_cmp_eq_u32 s2, %d" % opt.dbgwg); I("s_cbranch_scc0 L_nodbg")
        I("s_cmp_eq_u32 s56, %d" % opt.dbgwave); I("s_cbranch_scc0 L_nodbg")
        I("s_mov_b32 s40, s14"); I("s_and_b32 s41, s15, 0xffff"); I("s_mov_b32 s42, 256")
        I("s_sub_u32 s97, s74, s100"); I("v_mov_b32 v2, s97"); I("buffer_store_dword v2, v1, s[40:43], 0 offen offset:60")
        idx = [i for i in range(1, 14)] + [18, 19]
        for j, i in enumerate(idx):
            I("s_sub_u32 s97, s%d, s74" % (74 + i)); I("v_mov_b32 v2, s97"); I("buffer_store_dword v2, v1, s[40:43], 0 offen offset:%d" % (4 * j))
        I("s_waitcnt vmcnt(0)")
        L("L_nodbg")
    I("s_mov_b64 exec, -1")
    L("L_nost_%s" % tag)

def srd(r, ptr, off_s, size):
    if off_s is None:
        I(f"s_mov_b32 {s(r)}, {s(ptr)}")
        I(f"s_and_b32 {s(r+1)}, {s(ptr+1)}, 0xffff")
    else:
        I(f"s_add_u32 {s(r)}, {s(ptr)}, {s(off_s)}")
        I(f"s_addc_u32 {s(r+1)}, {s(ptr+1)}, 0")
        I(f"s_and_b32 {s(r+1)}, {s(r+1)}, 0xffff")
    I(f"s_mov_b32 {s(r+2)}, {size}")
    I(f"s_mov_b32 {s(r+3)}, 0x20000")

NT = lambda: " nt" if opt.nt else ""
vLANE = 0
vA = 2
vD = 10
vL16 = 11
vT = 12
vSS = 28
vW = 128
def W(mt, t): return vW + mt * 64 + t * 4
vKF = 32
vA1 = 96
vP4 = 12
vNQ = 32
vNK = 48
vONE = 52
vP1 = 56
vTT = 60
vEPS = 68
vZP = 69
vX = 72
vPQ = 32
vPO = 96

POL = [" sc1"]
def pol(): return POL[0]
DUAL = [0]
def dual(fn):
    if not opt.fast:
        POL[0] = " sc1"; fn(); return
    DUAL[0] += 1; n = DUAL[0]
    I(f"s_cmp_lg_u32 {s(sFAST)}, 0")
    I(f"s_cbranch_scc1 L_fast{n}")
    POL[0] = " sc1"; fn()
    I(f"s_branch L_join{n}")
    L(f"L_fast{n}")
    POL[0] = ""; fn()
    L(f"L_join{n}")
    POL[0] = " sc1"

def prologue():
    if opt.stamps: I("s_memrealtime s[100:101]")
    I(f"s_cmp_ge_u32 s2, 256")
    I(f"s_cbranch_scc1 L_end")
    I(f"s_load_dwordx4 s[4:7], s[0:1], 0")
    I(f"s_load_dwordx4 s[8:11], s[0:1], 16")
    I(f"s_load_dwordx4 s[12:15], s[0:1], 32")
    I(f"s_load_dwordx2 s[16:17], s[0:1], 48")
    if opt.codepf:
        C("pull the kernel's own code into L2 while the kernel arguments are on their way (128 B per lane)")
        I(f"s_getpc_b64 s[20:21]")
        I(f"v_and_b32 v1, 63, v0")
        I(f"v_lshlrev_b32 v1, 7, v1")
        I(f"global_load_dword v2, v1, s[20:21]")
        I(f"v_add_u32 v1, 8192, v1")
        I(f"v_min_u32 v1, 11648, v1")
        I(f"global_load_dword v3, v1, s[20:21]")
    I(f"v_lshrrev_b32 v1, 6, v0")
    I(f"v_and_b32 {v(vLANE)}, 63, v0")
    I(f"v_readfirstlane_b32 {s(sWAVE)}, v1")
    I(f"s_and_b32 {s(sT0)}, s2, 7")
    I(f"s_lshr_b32 {s(sT1)}, s2, 3")
    I(f"s_lshr_b32 {s(sHEAD)}, {s(sT1)}, 4")
    I(f"s_lshl_b32 {s(sT0)}, {s(sT0)}, 1")
    I(f"s_add_u32 {s(sHEAD)}, {s(sHEAD)}, {s(sT0)}")
    I(f"s_and_b32 {s(sCH)}, {s(sT1)}, 15")
    I(f"s_and_b32 {s(sTI)}, {s(sWAVE)}, 3")
    I(f"v_lshrrev_b32 {v(vT)}, 5, {v(vLANE)}")
    I(f"v_and_b32 {v(vT+1)}, 31, {v(vLANE)}")
    I(f"v_xor_b32 {v(vT+1)}, {v(vT+1)}, {v(vT)}")
    I(f"v_lshlrev_b32 {v(vT+1)}, 4, {v(vT+1)}")
    I(f"v_lshl_add_u32 {v(vD)}, {v(vT)}, 9, {v(vT+1)}")
    I(f"v_lshlrev_b32 {v(vL16)}, 4, {v(vLANE)}")
    I(f"s_lshl_b32 {s(sT0)}, {s(sHEAD)}, 20")
    I(f"s_lshl_b32 {s(sT1)}, {s(sCH)}, 16")
    I(f"s_add_u32 {s(sT0)}, {s(sT0)}, {s(sT1)}")
    I(f"s_waitcnt lgkmcnt(0)")
    srd(rW, sWp, None, 32768)
    srd(rK, sKp, sT0, 65536)

def dma_omega():
    I(f"s_and_b32 {s(sT1)}, {s(sWAVE)}, 1")
    I(f"s_lshl_b32 {s(sT1)}, {s(sT1)}, 7")
    I(f"s_lshl_b32 {s(sSOFF)}, {s(sWAVE)}, 12")
    I(f"s_add_u32 m0, {s(sSOFF)}, {WR}")
    for i in range(4):
        I(f"s_add_u32 {s(sT2)}, {s(sT1)}, {32*i}")
        I(f"v_xor_b32 {v(vT)}, {s(sT2)}, {v(vD)}")
        I(f"buffer_load_dwordx4 {v(vT)}, {s(rW,4)}, {s(sSOFF)} offen offset:{1024*i} lds")

def dma_row_instr(r, base_lds, i):
    if i % 4 == 0:
        if i: I(f"s_add_u32 {s(sSOFF)}, {s(sSOFF)}, 4096")
        I(f"s_add_u32 m0, {s(sSOFF)}, {base_lds}")
    if i & 7:
        I(f"v_xor_b32 {v(vT)}, {32*(i&7)}, {v(vD)}")
        I(f"buffer_load_dwordx4 {v(vT)}, {s(r,4)}, {s(sSOFF)} offen offset:{1024*(i%4)}{NT()} lds")
    else:
        I(f"buffer_load_dwordx4 {v(vD)}, {s(r,4)}, {s(sSOFF)} offen offset:{1024*(i%4)}{NT()} lds")

def dma_k():
    I(f"s_lshl_b32 {s(sSOFF)}, {s(sWAVE)}, 13")
    for i in range(8): dma_row_instr(rK, KQ, i)

vVD = 9
def v_setup(reg):
    I(f"v_lshrrev_b32 {v(reg)}, 4, {v(vLANE)}")
    I(f"v_and_b32 {v(reg)}, 1, {v(reg)}")
    I(f"v_lshlrev_b32 {v(reg)}, 2, {v(reg)}")
    I(f"v_and_b32 {v(vT+1)}, 7, {v(vLANE)}")
    I(f"v_xor_b32 {v(reg)}, {v(reg)}, {v(vT+1)}")
    I(f"v_lshlrev_b32 {v(reg)}, 4, {v(reg)}")
    I(f"v_lshrrev_b32 {v(vT+1)}, 3, {v(vLANE)}")
    I(f"v_lshl_add_u32 {v(reg)}, {v(vT+1)}, 9, {v(reg)}")

def v_issue(reg, first_s, n):
    I(f"s_lshl_b32 {s(sSOFF)}, {first_s}, 12")
    I(f"s_lshl_b32 {s(sT1)}, {s(sTI)}, 7")
    I(f"s_add_u32 {s(sSOFF)}, {s(sSOFF)}, {s(sT1)}")
    I(f"s_lshl_b32 {s(sT1)}, {first_s}, 10")
    I(f"s_lshl_b32 {s(sT2)}, {s(sTI)}, 14")
    I(f"s_add_u32 {s(sT1)}, {s(sT1)}, {s(sT2)}")
    I(f"s_add_u32 {s(sT1)}, {s(sT1)}, {VR}")
    for i in range(n):
        I(f"s_add_u32 m0, {s(sT1)}, {1024*i}")
        if i: I(f"s_add_u32 {s(sSOFF)}, {s(sSOFF)}, 4096")
        I(f"buffer_load_dwordx4 {v(reg)}, {s(rV,4)}, {s(sSOFF)} offen{NT()} lds")

def dma_v():
    C("team B wave b: V slice b (128 B columns), all 128 rows, 16 instructions of 8 rows")
    v_setup(vT+2)
    I(f"s_mov_b32 {s(sT3)}, 0")
    v_issue(vT+2, s(sT3), 16)

def tile_addrs():
    I(f"v_and_b32 {v(vT)}, 31, {v(vLANE)}")
    I(f"v_lshrrev_b32 {v(vT+1)}, 5, {v(vLANE)}")
    I(f"v_and_b32 {v(vT+2)}, 15, {v(vLANE)}")
    I(f"v_xor_b32 {v(vT+2)}, {v(vT+2)}, {v(vT+1)}")
    I(f"v_lshlrev_b32 {v(vT+2)}, 4, {v(vT+2)}")
    I(f"v_lshl_add_u32 {v(vT+2)}, {v(vT)}, 9, {v(vT+2)}")
    I(f"v_add_u32 {v(vA)}, {WR}, {v(vT+2)}")
    for x in range(1, 8):
        I(f"v_xor_b32 {v(vA+x)}, {32*x}, {v(vA)}")

def read_omega(base):
    for t in range(16):
        for mt in range(2):
            I(f"ds_read_b128 {v(W(mt,t),4)}, {v(vA+(t&7))} offset:{(t>>3)*256 + mt*16384}")
    I(f"s_lshl_b32 {s(sT1)}, {s(sTI)}, 14")
    I(f"s_sub_u32 {s(sT1)}, {s(sT1)}, {WR - base}")
    for x in range(8):
        I(f"v_add_u32 {v(vA+x)}, {s(sT1)}, {v(vA+x)}")

def consts():
    I(f"s_mov_b32 {s(sC025L)}, 0x00003e80")
    I(f"s_mov_b32 {s(sC025H)}, 0x3e800000")
    I(f"s_mov_b32 {s(sLOG2E)}, 0x3fb8aa3b")
    I(f"s_mov_b32 {s(sC0125)}, 0x3e000000")
    I(f"s_mov_b32 {s(sMASKH)}, 0xffff0000")
    I(f"s_mov_b32 {s(sONES)}, 0x3f803f80")
    I(f"s_mov_b32 {s(sEPS)}, 0x358637bd")
    I(f"s_mov_b32 {s(sM132)}, 0xbd000000")

def read_tile_frags():
    for t in range(16):
        I(f"ds_read_b128 {v(vKF+4*t,4)}, {v(vA+(t&7))} offset:{(t>>3)*256}")
    for i in range(4): I(f"v_mov_b32 {v(vSS+i)}, 0")

def ssq():
    for t in range(16):
        for i in range(4):
            I(f"v_dot2c_f32_bf16 {v(vSS+i)}, {v(vKF+4*t+i)}, {v(vKF+4*t+i)}")

def ssq_reduce_steps():
    return [
        [f"v_add_f32 {v(vSS)}, {v(vSS)}, {v(vSS+1)}", f"v_add_f32 {v(vSS+2)}, {v(vSS+2)}, {v(vSS+3)}"],
        [f"v_add_f32 {v(vSS)}, {v(vSS)}, {v(vSS+2)}"],
        [f"v_mov_b32 {v(vSS+1)}, {v(vSS)}"],
        [f"v_permlane32_swap_b32 {v(vSS)}, {v(vSS+1)}"],
        [f"v_add_f32 {v(vSS)}, {v(vSS)}, {v(vSS+1)}"],
    ]

def pipeline_mimic(mt, nq_of, p4base):
    for g in range(2):
        prs = [4*g + i for i in range(4)]
        acc = lambda r: vA1 + 16*mt + r
        for i, p in enumerate(prs): I(f"v_cvt_pk_bf16_f32 {v(vP1+i)}, {v(acc(2*p))}, {v(acc(2*p+1))}")
        for i, p in enumerate(prs):
            I(f"v_dot2_f32_bf16 {v(vTT+2*i)}, {v(vP1+i)}, {s(sC025L)}, {v(nq_of(2*p))}")
            I(f"v_dot2_f32_bf16 {v(vTT+2*i+1)}, {v(vP1+i)}, {s(sC025H)}, {v(nq_of(2*p+1))}")
        for i, p in enumerate(prs): I(f"v_cvt_pk_bf16_f32 {v(vP1+i)}, {v(vTT+2*i)}, {v(vTT+2*i+1)}")
        for i, p in enumerate(prs):
            I(f"v_lshlrev_b32 {v(vTT+2*i)}, 16, {v(vP1+i)}")
            I(f"v_and_b32 {v(vTT+2*i+1)}, {s(sMASKH)}, {v(vP1+i)}")
        for i in range(8): I(f"v_mul_f32 {v(vTT+i)}, {s(sLOG2E)}, {v(vTT+i)}")
        for i in range(8): I(f"v_exp_f32 {v(vTT+i)}, {v(vTT+i)}")
        for i in range(8): I(f"v_fma_f32 {v(vTT+i)}, {v(vTT+i)}, {s(sC0125)}, {v(vEPS)}")
        for i, p in enumerate(prs): I(f"v_cvt_pk_bf16_f32 {v(p4base+p)}, {v(vTT+2*i)}, {v(vTT+2*i+1)}")

def lds_wait(addr, n, tag, tmp=None):
    tmp = vX + 4 if tmp is None else tmp
    I(f"s_mov_b32 {s(sSPIN)}, 0")
    if n == 1:
        I(f"v_mov_b32 {v(tmp)}, {addr}")
    else:
        I(f"v_and_b32 {v(tmp)}, {n-1}, {v(vLANE)}")
        I(f"v_lshlrev_b32 {v(tmp)}, 2, {v(tmp)}")
        I(f"v_add_u32 {v(tmp)}, {addr}, {v(tmp)}")
    L(f"L_ls_{tag}")
    I(f"ds_read_b32 {v(tmp+1)}, {v(tmp)}")
    I(f"s_waitcnt lgkmcnt(0)")
    I(f"v_cmp_ne_u32 vcc, {s(sNONCE)}, {v(tmp+1)}")
    I(f"s_cbranch_vccz L_lsd_{tag}")
    I(f"s_add_u32 {s(sSPIN)}, {s(sSPIN)}, 1")
    I(f"s_cmp_lt_u32 {s(sSPIN)}, {opt.spin_limit*16}")
    I(f"s_cbranch_scc1 L_ls_{tag}")
    L(f"L_lsd_{tag}")

def lds_set(addr, tmp=None, val=None):
    tmp = vX + 4 if tmp is None else tmp
    I(f"v_mov_b32 {v(tmp)}, {addr}")
    I(f"v_mov_b32 {v(tmp+1)}, {s(sNONCE) if val is None else val}")
    I(f"ds_write_b32 {v(tmp)}, {v(tmp+1)}")

def wave_flag(off):
    I(f"s_lshl_b32 {s(sT1)}, {s(sCH)}, 4")
    I(f"s_lshl_b32 {s(sT2)}, {s(sTI)}, 2")
    I(f"s_add_u32 {s(sT1)}, {s(sT1)}, {s(sT2)}")
    I(f"s_add_u32 {s(sT1)}, {s(sT1)}, {O_FL + off}")
    I(f"s_mov_b64 exec, 1")
    I(f"v_mov_b32 {v(vT)}, 0")
    I(f"v_mov_b32 {v(vT+1)}, {s(sNONCE)}")
    dual(lambda: I(f"buffer_store_dword {v(vT+1)}, {v(vT)}, {s(rP,4)}, {s(sT1)} offen{pol()}"))
    I(f"s_mov_b64 exec, -1")

def poll(off, tag, tmp=None):
    tmp = vT if tmp is None else tmp
    I(f"s_mov_b32 {s(sSPIN)}, 0")
    I(f"s_mov_b32 {s(sT2)}, {O_FL + off}")
    I(f"v_lshlrev_b32 {v(tmp)}, 2, {v(vLANE)}")
    L(f"L_spin_{tag}")
    I(f"buffer_load_dword {v(tmp+1)}, {v(tmp)}, {s(rP,4)}, {s(sT2)} offen sc1")
    I(f"s_waitcnt vmcnt(0)")
    I(f"v_cmp_ne_u32 vcc, {s(sNONCE)}, {v(tmp+1)}")
    I(f"s_cbranch_vccz L_spun_{tag}")
    I(f"s_cmp_lg_u32 {s(sFAST)}, 0")
    I(f"s_cbranch_scc1 L_nap_{tag}")
    I(f"s_sleep 12")
    L(f"L_nap_{tag}")
    I(f"s_add_u32 {s(sSPIN)}, {s(sSPIN)}, 1")
    I(f"s_cmp_lt_u32 {s(sSPIN)}, {opt.spin_limit}")
    I(f"s_cbranch_scc1 L_spin_{tag}")
    L(f"L_spun_{tag}")

def common_start():
    prologue()
    stamp("start")
    if opt.early:
        C("K(0..3), omega, K(4..7), then four V loads: rows 0..31 (team A) / 32..63 (team B) of slice w&3")
        I(f"s_lshl_b32 {s(sSOFF)}, {s(sWAVE)}, 13")
        for i in range(4): dma_row_instr(rK, KQ, i)
        I(f"s_mov_b32 {s(sT3)}, {s(sSOFF)}")
        dma_omega()
        I(f"s_mov_b32 {s(sSOFF)}, {s(sT3)}")
        I(f"s_barrier")
        for i in range(4, 8): dma_row_instr(rK, KQ, i)
        srd(rV, sVp, sT0, 65536)
        v_setup(30)
        I(f"s_lshr_b32 {s(sT3)}, {s(sWAVE)}, 2")
        I(f"s_lshl_b32 {s(sT3)}, {s(sT3)}, 2")
        v_issue(30, s(sT3), 4)
    elif opt.kko:
        C("omega lines -> L2 (one touch per line), then K, then omega itself (L2 hits by then)")
        I(f"v_and_b32 {v(vT+2)}, 31, {v(vLANE)}")
        I(f"v_lshlrev_b32 {v(vT+2)}, 7, {v(vT+2)}")
        I(f"s_lshl_b32 {s(sT1)}, {s(sWAVE)}, 12")
        I(f"buffer_load_dword {v(vT+3)}, {v(vT+2)}, {s(rW,4)}, {s(sT1)} offen")
        dma_k()
        dma_omega()
    elif opt.kok:
        C("issue order K(0..3), omega, K(4..7): omega rides in the first window without holding K back")
        I(f"s_lshl_b32 {s(sSOFF)}, {s(sWAVE)}, 13")
        for i in range(4): dma_row_instr(rK, KQ, i)
        I(f"s_mov_b32 {s(sT3)}, {s(sSOFF)}")
        dma_omega()
        I(f"s_mov_b32 {s(sSOFF)}, {s(sT3)}")
        if opt.kokbar: I(f"s_barrier")
        for i in range(4, 8): dma_row_instr(rK, KQ, i)
    else:
        dma_omega()
        I(f"s_barrier")
        dma_k()
    C("scalar side: epoch word, translation pre-touch, descriptors")
    I(f"s_lshl_b32 {s(sT1)}, {s(sHEAD)}, 20")
    I(f"s_add_u32 {s(sEPA)}, {s(sSp)}, {s(sT1)}")
    I(f"s_addc_u32 {s(sEPA+1)}, {s(sSp+1)}, 0")
    I(f"s_load_dword {s(sNONCE)}, {s(sEPA,2)}, {O_FL}")
    if opt.preread:
        C("bring the flag lines of this head into L2 (a store to an absent line makes the next read a memory fill)")
        for j in range(8):
            I(f"s_load_dword {s(sJUNK+3)}, {s(sEPA,2)}, {O_FL + 256 + 64*j}")
    if not opt.early: srd(rV, sVp, sT0, 65536)
    srd(rQ, sQp, sT0, 65536)
    srd(rO, sOp, sT0, 65536)
    if opt.pretouch:
        I(f"s_load_dword {s(sJUNK)}, {s(rQ,2)}, 0")
        I(f"s_load_dword {s(sJUNK+1)}, {s(rO,2)}, 0")
        I(f"s_load_dword {s(sJUNK+2)}, {s(rV,2)}, 0")
    tile_addrs()
    consts()
    stamp("K issued")
    I(f"s_waitcnt lgkmcnt(0)")
    I(f"s_add_u32 {s(sNONCE)}, {s(sNONCE)}, 1")
    I(f"s_lshl_b32 {s(sT1)}, {s(sHEAD)}, 20")
    srd(rP, sSp, sT1, HS)
    I(f"s_mov_b32 {s(sFAST)}, 0")
    I(f"s_getreg_b32 {s(sXCC)}, hwreg(HW_REG_XCC_ID, 0, 4)")
    I(f"s_lshl_b32 {s(sPRES)}, {s(sNONCE)}, 4")
    I(f"s_add_u32 {s(sPRES)}, {s(sPRES)}, {s(sXCC)}")
    nyoung = {"early": 8, "kko": None, "kok": 4}.get("early" if opt.early else "kko" if opt.kko else "kok" if opt.kok else "", 8)
    I(f"s_cmp_eq_u32 {s(sWAVE)}, 0")
    I(f"s_cbranch_scc0 L_nopres")
    if opt.fast:
        C("presence word: nonce*16 + XCC id (wave 0)")
        I(f"s_mov_b64 exec, 1")
        I(f"s_lshl_b32 {s(sT1)}, {s(sCH)}, 2")
        I(f"s_add_u32 {s(sT1)}, {s(sT1)}, {O_FL + 128}")
        I(f"v_mov_b32 {v(vT)}, 0")
        I(f"v_mov_b32 {v(vT+1)}, {s(sPRES)}")
        I(f"buffer_store_dword {v(vT+1)}, {v(vT)}, {s(rP,4)}, {s(sT1)} offen sc1")
        I(f"s_mov_b64 exec, -1")
        if nyoung is not None: I(f"s_waitcnt vmcnt({nyoung + 1})")
    else:
        if nyoung is not None: I(f"s_waitcnt vmcnt({nyoung})")
    I(f"s_branch L_presd")
    L("L_nopres")
    if nyoung is not None: I(f"s_waitcnt vmcnt({nyoung})")
    L("L_presd")
    if not opt.kko: I(f"s_barrier")

def team_a():
    C("================= team A =================")
    if not opt.kko: read_omega(KQ)
    C("K landed: own loads only (the presence store of wave 0 may still be in flight)")
    ey = 4 if opt.early else 0
    I(f"s_waitcnt vmcnt({1 + ey}) lgkmcnt(0)")
    I(f"s_cmp_eq_u32 {s(sTI)}, 0")
    I(f"s_cbranch_scc1 L_k0")
    I(f"s_waitcnt vmcnt({ey})")
    L("L_k0")
    I(f"s_barrier")
    stamp("A B1 K landed")
    if opt.kko: read_omega(KQ)
    read_tile_frags()
    I(f"s_waitcnt lgkmcnt(0)")
    I(f"s_barrier")
    if not opt.kfast:
        ssq()
        steps = ssq_reduce_steps()
        for t in range(16):
            for mt in range(2):
                c = "0" if t == 0 else v(vA1 + 16*mt, 16)
                I(f"v_mfma_f32_32x32x16_bf16 {v(vA1+16*mt,16)}, {v(vKF+4*t,4)}, {v(W(mt,t),4)}, {c}")
            if 1 <= t <= 5:
                for x in steps[t-1]: I(x)
            if t == 6:
                I(f"v_mul_f32 {v(vSS)}, {s(sM132)}, {v(vSS)}")
                I(f"v_lshrrev_b32 {v(vSS+1)}, 5, {v(vLANE)}")
            if t == 7:
                I(f"v_cmp_eq_u32 vcc, 0, {v(vSS+1)}")
            if t == 8:
                I(f"v_cndmask_b32 {v(vSS)}, 0, {v(vSS)}, vcc")
            if t == 9:
                I(f"v_cvt_pk_bf16_f32 {v(vSS)}, {v(vSS)}, 0")
        stamp("A gemm1 done")
        I(f"v_mov_b32 {v(vEPS)}, {s(sEPS)}")
        I(f"v_mov_b32 {v(vNK)}, {v(vSS)}")
        I(f"v_mov_b32 {v(vONE)}, 0x3f80")
        for i in range(1, 4):
            I(f"v_mov_b32 {v(vONE+i)}, 0")
            I(f"v_mov_b32 {v(vNK+i)}, 0")
        I(f"v_mfma_f32_32x32x16_bf16 {v(vNQ,16)}, {v(vNK,4)}, {v(vONE,4)}, 0")
        I(f"v_lshl_add_u32 {v(vX)}, {s(sTI)}, 12, {v(vL16)}")
        I(f"v_add_u32 {v(vX)}, {PHI}, {v(vX)}")
        for mt in range(2):
            pipeline_mimic(mt, lambda r: vNQ + r, vP4 + 8*mt)
            for u in range(2):
                I(f"ds_write_b128 {v(vX)}, {v(vP4+8*mt+4*u,4)} offset:{u*2048 + mt*1024}")
            I(f"v_mov_b32 {v(vZP+mt)}, 0")
            for i in range(8):
                I(f"v_dot2c_f32_bf16 {v(vZP+mt)}, {s(sONES)}, {v(vP4+8*mt+i)}")
    else:
        vNQ2 = 128; vNK2 = 144; vON2 = 148; vP1b = 152; vTb = 156; vEP2 = 164; vZP2 = 165; vXb = 168
        ssq()
        steps = ssq_reduce_steps()
        for t in range(16):
            c = "0" if t == 0 else v(vA1, 16)
            I(f"v_mfma_f32_32x32x16_bf16 {v(vA1,16)}, {v(vKF+4*t,4)}, {v(W(0,t),4)}, {c}")
            if 1 <= t <= 5:
                for x in steps[t-1]: I(x)
            if t == 6:
                I(f"v_mul_f32 {v(vSS)}, {s(sM132)}, {v(vSS)}")
                I(f"v_lshrrev_b32 {v(vSS+1)}, 5, {v(vLANE)}")
            if t == 7: I(f"v_cmp_eq_u32 vcc, 0, {v(vSS+1)}")
            if t == 8: I(f"v_cndmask_b32 {v(vSS)}, 0, {v(vSS)}, vcc")
            if t == 9: I(f"v_cvt_pk_bf16_f32 {v(vSS)}, {v(vSS)}, 0")
            if t == 10: I(f"s_mov_b32 {s(sT3)}, 0x3e800000")
            if t == 12:
                I(f"v_mov_b32 {v(vNK2)}, {v(vSS)}")
                I(f"v_mov_b32 {v(vON2)}, 0x3f80")
            if t == 13:
                for i in range(1, 4):
                    I(f"v_mov_b32 {v(vON2+i)}, 0")
                    I(f"v_mov_b32 {v(vNK2+i)}, 0")
        I(f"v_mfma_f32_32x32x16_bf16 {v(vNQ2,16)}, {v(vNK2,4)}, {v(vON2,4)}, 0")
        def mimic_ops(mt, p4base):
            ops = []
            acc = lambda r: vA1 + 16*mt + r
            for g in range(2):
                prs = [4*g + i for i in range(4)]
                for i, p in enumerate(prs): ops.append(f"v_cvt_pk_bf16_f32 {v(vP1b+i)}, {v(acc(2*p))}, {v(acc(2*p+1))}")
                for i, p in enumerate(prs):
                    ops.append(f"v_lshlrev_b32 {v(vTb+2*i)}, 16, {v(vP1b+i)}")
                    ops.append(f"v_and_b32 {v(vTb+2*i+1)}, {s(sMASKH)}, {v(vP1b+i)}")
                for i, p in enumerate(prs):
                    ops.append(f"v_fma_f32 {v(vTb+2*i)}, {v(vTb+2*i)}, {s(sT3)}, {v(vNQ2+2*p)}")
                    ops.append(f"v_fma_f32 {v(vTb+2*i+1)}, {v(vTb+2*i+1)}, {s(sT3)}, {v(vNQ2+2*p+1)}")
                for i, p in enumerate(prs): ops.append(f"v_cvt_pk_bf16_f32 {v(vP1b+i)}, {v(vTb+2*i)}, {v(vTb+2*i+1)}")
                for i, p in enumerate(prs):
                    ops.append(f"v_lshlrev_b32 {v(vTb+2*i)}, 16, {v(vP1b+i)}")
                    ops.append(f"v_and_b32 {v(vTb+2*i+1)}, {s(sMASKH)}, {v(vP1b+i)}")
                for i in range(8): ops.append(f"v_mul_f32 {v(vTb+i)}, {s(sLOG2E)}, {v(vTb+i)}")
                for i in range(8): ops.append(f"v_exp_f32 {v(vTb+i)}, {v(vTb+i)}")
                for i in range(8): ops.append(f"v_fma_f32 {v(vTb+i)}, {v(vTb+i)}, {s(sC0125)}, {v(vEP2)}")
                for i, p in enumerate(prs): ops.append(f"v_cvt_pk_bf16_f32 {v(p4base+p)}, {v(vTb+2*i)}, {v(vTb+2*i+1)}")
            return ops
        ops0 = [f"v_mov_b32 {v(vEP2)}, {s(sEPS)}"] + mimic_ops(0, vP4)
        k = 0
        for t in range(16):
            c = "0" if t == 0 else v(vA1 + 16, 16)
            I(f"v_mfma_f32_32x32x16_bf16 {v(vA1+16,16)}, {v(vKF+4*t,4)}, {v(W(1,t),4)}, {c}")
            if t >= 1:
                n = opt.kshadow
                for x in ops0[k:k+n]: I(x)
                k += n
        stamp("A gemm1 done")
        for x in ops0[k:]: I(x)
        I(f"v_lshl_add_u32 {v(vX)}, {s(sTI)}, 12, {v(vL16)}")
        I(f"v_add_u32 {v(vX)}, {PHI}, {v(vX)}")
        for u in range(2):
            I(f"ds_write_b128 {v(vX)}, {v(vP4+4*u,4)} offset:{u*2048}")
        for x in mimic_ops(1, vP4 + 8): I(x)
        for u in range(2):
            I(f"ds_write_b128 {v(vX)}, {v(vP4+8+4*u,4)} offset:{u*2048 + 1024}")
        for mt in range(2):
            I(f"v_mov_b32 {v(vZP+mt)}, 0")
        for i in range(8):
            for mt in range(2):
                I(f"v_dot2c_f32_bf16 {v(vZP+mt)}, {s(sONES)}, {v(vP4+8*mt+i)}")
    for mt in range(2): I(f"v_mov_b32 {v(vX+1+mt)}, {v(vZP+mt)}")
    for mt in range(2): I(f"v_permlane32_swap_b32 {v(vZP+mt)}, {v(vX+1+mt)}")
    for mt in range(2): I(f"v_add_f32 {v(vZP+mt)}, {v(vZP+mt)}, {v(vX+1+mt)}")
    I(f"v_and_b32 {v(vX+1)}, 31, {v(vLANE)}")
    I(f"v_lshlrev_b32 {v(vX+1)}, 2, {v(vX+1)}")
    I(f"s_lshl_b32 {s(sT1)}, {s(sTI)}, 8")
    I(f"s_add_u32 {s(sT1)}, {s(sT1)}, {ZB}")
    I(f"v_add_u32 {v(vX+1)}, {s(sT1)}, {v(vX+1)}")
    I(f"ds_write_b32 {v(vX+1)}, {v(vZP)}")
    I(f"ds_write_b32 {v(vX+1)}, {v(vZP+1)} offset:128")
    I(f"s_waitcnt lgkmcnt(0)")
    stamp("A phi written")
    I(f"s_lshl_b32 {s(sT2)}, {s(sTI)}, 2")
    I(f"s_add_u32 {s(sT2)}, {s(sT2)}, {FLG}")
    lds_set(s(sT2))
    C("transposing-read addresses of the V slice (computed while waiting)")
    vPH = 128; vAC = 48; vVB = 112; vVA = 28; vPA = 30
    I(f"v_lshrrev_b32 {v(vT)}, 5, {v(vLANE)}")
    I(f"v_lshlrev_b32 {v(vT)}, 2, {v(vT)}")
    I(f"v_bfe_u32 {v(vT+1)}, {v(vLANE)}, 2, 2")
    I(f"v_add_u32 {v(vT)}, {v(vT)}, {v(vT+1)}")
    I(f"v_lshlrev_b32 {v(vT)}, 7, {v(vT)}")
    I(f"v_lshrrev_b32 {v(vT+1)}, 1, {v(vT+1)}")
    I(f"v_lshl_add_u32 {v(vT)}, {v(vT+1)}, 6, {v(vT)}")
    I(f"v_bfe_u32 {v(vT+1)}, {v(vLANE)}, 4, 1")
    I(f"v_lshl_add_u32 {v(vT)}, {v(vT+1)}, 5, {v(vT)}")
    I(f"v_and_b32 {v(vT+1)}, 3, {v(vLANE)}")
    I(f"v_lshl_add_u32 {v(vT)}, {v(vT+1)}, 3, {v(vT)}")
    I(f"s_lshl_b32 {s(sT1)}, {s(sTI)}, 14")
    I(f"s_add_u32 {s(sT1)}, {s(sT1)}, {VR}")
    I(f"v_add_u32 {v(vVA)}, {s(sT1)}, {v(vT)}")
    I(f"v_xor_b32 {v(vVA+1)}, 64, {v(vVA)}")
    I(f"v_add_u32 {v(vPA)}, {PHI}, {v(vL16)}")
    lds_wait(str(FLG), 4, "phi")
    stamp("A phi all")
    for f in range(16):
        I(f"ds_read_b128 {v(vPH+4*f,4)}, {v(vPA)} offset:{1024*f}")
    vVB = 192
    def vread(kk):
        b = vVB + 8*(kk % 4)
        for dl in range(2):
            for ap in range(2):
                I(f"ds_read_b64_tr_b16 {v(b+4*dl+2*ap,2)}, {v(vVA+dl)} offset:{kk*2048 + ap*1024}")
    def mm(kk, first):
        b = vVB + 8*(kk % 4)
        for dl in range(2):
            for mt in range(2):
                acc = vAC + (dl*2 + mt)*16
                c = "0" if first else v(acc, 16)
                I(f"v_mfma_f32_32x32x16_bf16 {v(acc,16)}, {v(vPH+4*(kk*2+mt),4)}, {v(b+4*dl,4)}, {c}")
    I(f"s_lshl_b32 {s(sT2)}, {s(sTI)}, 2")
    I(f"s_add_u32 {s(sT2)}, {s(sT2)}, {FLG + 16}")
    if opt.early: I(f"s_waitcnt vmcnt(0)")
    lds_wait(s(sT2), 1, "v1", tmp=26)
    stamp("A V1 ready")
    vread(0); vread(1); vread(2)
    for kk in range(8):
        rem = min(2, 7 - kk)
        if kk == 2:
            I(f"s_waitcnt lgkmcnt(4)")
        else:
            I(f"s_waitcnt lgkmcnt({4*rem})")
        mm(kk, kk == 0)
        if kk == 1:
            I(f"s_add_u32 {s(sT2)}, {s(sT2)}, 16")
            lds_wait(s(sT2), 1, "v2", tmp=26)
        if kk + 3 < 8: vread(kk + 3)
    stamp("A gemm2 done")
    if opt.fast:
        lds_wait(str(FLG + 56), 1, "md", tmp=26)
        I(f"v_mov_b32 {v(vT+1)}, {FLG + 48}")
        I(f"ds_read_b32 {v(vT+2)}, {v(vT+1)}")
    C("z partial inputs (wave 0)")
    I(f"v_lshlrev_b32 {v(vT+3)}, 2, {v(vLANE)}")
    I(f"v_add_u32 {v(vT+4)}, {ZB}, {v(vT+3)}")
    for a in range(4): I(f"ds_read_b32 {v(vT+6+a)}, {v(vT+4)} offset:{256*a}")
    vPK = 128
    for j in range(4):
        for i in range(8):
            I(f"v_cvt_pk_bf16_f32 {v(vPK+8*j+i)}, {v(vAC+16*j+2*i)}, {v(vAC+16*j+2*i+1)}")
    I(f"s_lshl_b32 {s(sT1)}, {s(sTI)}, 13")
    I(f"v_add_u32 {v(vT)}, {s(sT1)}, {v(vL16)}")
    I(f"s_lshl_b32 {s(sSOFF)}, {s(sCH)}, 15")
    I(f"s_add_u32 {s(sT2)}, {s(sSOFF)}, 4096")
    I(f"s_waitcnt lgkmcnt(0)")
    if opt.fast:
        I(f"v_readfirstlane_b32 {s(sFAST)}, {v(vT+2)}")
        I(f"s_cmp_eq_u32 {s(sFAST)}, {s(sNONCE)}")
        I(f"s_cselect_b32 {s(sFAST)}, 1, 0")
        if opt.stamps: I(f"s_mov_b32 s91, {s(sFAST)}")
    if opt.holdst:
        lds_wait(str(FLG + 112), 4, "qi", tmp=26)
    def st():
        for f in range(8):
            so = s(sSOFF) if f < 4 else s(sT2)
            I(f"buffer_store_dwordx4 {v(vPK+4*f,4)}, {v(vT)}, {s(rP,4)}, {so} offen offset:{(f%4)*1024}{pol()}")
    if opt.partplain: dual(st)
    else:
        POL[0] = opt.partpol; st(); POL[0] = " sc1"
    def psflag():
        I(f"s_lshl_b32 {s(sT1)}, {s(sTI)}, 2")
        I(f"s_add_u32 {s(sT1)}, {s(sT1)}, {FLG + 64}")
        lds_set(s(sT1), tmp=26)
    if opt.holdq or opt.holdall == "issued": psflag()
    I(f"s_cmp_eq_u32 {s(sTI)}, 0")
    I(f"s_cbranch_scc0 L_noz")
    I(f"v_add_f32 {v(vT+6)}, {v(vT+6)}, {v(vT+7)}")
    I(f"v_add_f32 {v(vT+8)}, {v(vT+8)}, {v(vT+9)}")
    I(f"v_add_f32 {v(vT+6)}, {v(vT+6)}, {v(vT+8)}")
    I(f"s_lshl_b32 {s(sSOFF)}, {s(sCH)}, 8")
    I(f"s_add_u32 {s(sSOFF)}, {s(sSOFF)}, {O_Z}")
    I(f"buffer_store_dword {v(vT+6)}, {v(vT+3)}, {s(rP,4)}, {s(sSOFF)} offen sc1")
    L("L_noz")
    C("addresses for the reduction: quarter tile a of tile 'chunk': fragment 2*chunk + (a>>1), lanes (a&1)*32 + (l&31); producer parity = l>>5")
    vR = 128
    I(f"s_lshl_b32 {s(sT1)}, {s(sCH)}, 11")
    I(f"s_lshl_b32 {s(sT2)}, {s(sTI)}, 9")
    I(f"s_add_u32 {s(sT3)}, {s(sT1)}, {s(sT2)}")
    I(f"v_and_b32 {v(vX)}, 31, {v(vLANE)}")
    I(f"v_lshlrev_b32 {v(vX)}, 4, {v(vX)}")
    I(f"v_add_u32 {v(vX)}, {s(sT3)}, {v(vX)}")
    I(f"v_lshrrev_b32 {v(vX+1)}, 5, {v(vLANE)}")
    I(f"v_lshl_add_u32 {v(vX+1)}, {v(vX+1)}, 15, {v(vX)}")
    I(f"s_waitcnt vmcnt(0)")
    stamp("A part drained")
    wave_flag(256)
    if opt.holdall == "drained": psflag()
    final_setup()
    poll(256, "h1")
    stamp("A hop1")
    I(f"s_mov_b32 {s(sSOFF)}, 0")
    for c in range(8):
        I(f"buffer_load_dwordx4 {v(vR+4*c,4)}, {v(vX+1)}, {s(rP,4)}, {s(sSOFF)} offen sc1")
        if c < 7: I(f"s_add_u32 {s(sSOFF)}, {s(sSOFF)}, 65536")
    if opt.holdall == "reduce": psflag()
    vZ = 192
    I(f"s_cmp_eq_u32 {s(sTI)}, 3")
    I(f"s_cbranch_scc0 L_noz2")
    I(f"s_mov_b32 {s(sSOFF)}, {O_Z}")
    for j in range(4):
        I(f"buffer_load_dwordx4 {v(vZ+4*j,4)}, {v(vL16)}, {s(rP,4)}, {s(sSOFF)} offen offset:{1024*j} sc1")
    L("L_noz2")
    vS = 176
    I(f"s_mov_b32 {s(sT1)}, 0x3f80")
    I(f"s_mov_b32 {s(sT2)}, 0x3f800000")
    for i in range(8): I(f"v_mov_b32 {v(vS+i)}, 0")
    C("(wave 3 has 4 younger loads in flight: its counted waits are conservative only if we wait for more, so wait per wave)")
    I(f"s_cmp_eq_u32 {s(sTI)}, 3")
    I(f"s_cbranch_scc1 L_red3")
    def red(extra):
        for c in range(8):
            I(f"s_waitcnt vmcnt({7-c+extra})")
            for i in range(4):
                I(f"v_dot2_f32_bf16 {v(vS+2*i)}, {v(vR+4*c+i)}, {s(sT1)}, {v(vS+2*i)}")
                I(f"v_dot2_f32_bf16 {v(vS+2*i+1)}, {v(vR+4*c+i)}, {s(sT2)}, {v(vS+2*i+1)}")
    red(0)
    I(f"s_branch L_redd")
    L("L_red3")
    red(4)
    L("L_redd")
    stamp("A red summed")
    for i in range(8): I(f"v_mov_b32 {v(vS+8+i)}, {v(vS+i)}")
    for i in range(8): I(f"v_permlane32_swap_b32 {v(vS+i)}, {v(vS+8+i)}")
    for i in range(8): I(f"v_add_f32 {v(vS+i)}, {v(vS+i)}, {v(vS+8+i)}")
    for i in range(4): I(f"v_cvt_pk_bf16_f32 {v(vS+i)}, {v(vS+2*i)}, {v(vS+2*i+1)}")
    I(f"s_mov_b32 {s(sSOFF)}, {O_F}")
    I(f"s_mov_b32 exec_hi, 0")
    dual(lambda: I(f"buffer_store_dwordx4 {v(vS,4)}, {v(vX)}, {s(rP,4)}, {s(sSOFF)} offen{pol()}"))
    I(f"s_mov_b64 exec, -1")
    C("z (wave 3): lane l holds m = 4*(l&15)..+3 of producer 4j + (l>>4)")
    I(f"s_cmp_eq_u32 {s(sTI)}, 3")
    I(f"s_cbranch_scc0 L_noz3")
    I(f"s_waitcnt vmcnt(1)")
    for i in range(4):
        I(f"v_add_f32 {v(vZ+i)}, {v(vZ+i)}, {v(vZ+4+i)}")
        I(f"v_add_f32 {v(vZ+8+i)}, {v(vZ+8+i)}, {v(vZ+12+i)}")
    for i in range(4): I(f"v_add_f32 {v(vZ+i)}, {v(vZ+i)}, {v(vZ+8+i)}")
    for i in range(4): I(f"v_mov_b32 {v(vZ+4+i)}, {v(vZ+i)}")
    for i in range(4): I(f"v_permlane32_swap_b32 {v(vZ+i)}, {v(vZ+4+i)}")
    for i in range(4): I(f"v_add_f32 {v(vZ+i)}, {v(vZ+i)}, {v(vZ+4+i)}")
    for i in range(4): I(f"v_mov_b32 {v(vZ+4+i)}, {v(vZ+i)}")
    for i in range(4): I(f"v_permlane16_swap_b32 {v(vZ+i)}, {v(vZ+4+i)}")
    for i in range(4): I(f"v_add_f32 {v(vZ+i)}, {v(vZ+i)}, {v(vZ+4+i)}")
    I(f"v_cvt_pk_bf16_f32 {v(vZ)}, {v(vZ)}, {v(vZ+1)}")
    I(f"v_cvt_pk_bf16_f32 {v(vZ+1)}, {v(vZ+2)}, {v(vZ+3)}")
    I(f"v_and_b32 {v(vZ+2)}, 15, {v(vLANE)}")
    I(f"v_lshlrev_b32 {v(vZ+2)}, 3, {v(vZ+2)}")
    I(f"v_add_u32 {v(vZ+2)}, {ZF}, {v(vZ+2)}")
    I(f"ds_write_b64 {v(vZ+2)}, {v(vZ,2)}")
    I(f"s_waitcnt lgkmcnt(0)")
    lds_set(str(FLG + 52))
    L("L_noz3")
    I(f"s_waitcnt vmcnt(0)")
    stamp("A reduced+drained")
    wave_flag(512)
    C("chunk 0 advances the epoch (all 16 workgroups of the head have read it)")
    I(f"s_cmp_eq_u32 {s(sCH)}, 0")
    I(f"s_cbranch_scc0 L_noep")
    I(f"s_cmp_eq_u32 {s(sTI)}, 1")
    I(f"s_cbranch_scc0 L_noep")
    I(f"s_mov_b64 exec, 1")
    I(f"v_mov_b32 {v(vT)}, 0")
    I(f"v_mov_b32 {v(vT+1)}, {s(sNONCE)}")
    I(f"s_mov_b32 {s(sT1)}, {O_FL}")
    I(f"buffer_store_dword {v(vT+1)}, {v(vT)}, {s(rP,4)}, {s(sT1)} offen sc1")
    I(f"s_mov_b64 exec, -1")
    L("L_noep")
    phiq_frags("a")
    STI[0] = 13
    I(f"s_branch L_final")

vPQ8 = 32
vKA = 64
vOP = 96
vAC3 = 128
vST = 192
vKG, vPA2, vRA, vSW, vSR, vOA, vU = 2, 3, 4, 5, 6, 7, 20
vRDS = 12
vRD = 4

def final_setup():
    I(f"s_and_b32 {s(sT3)}, {s(sWAVE)}, 3")
    I(f"s_lshr_b32 {s(sT2)}, {s(sWAVE)}, 2")
    I(f"v_bfe_u32 {v(vU+1)}, {v(vLANE)}, 2, 1")
    I(f"v_lshlrev_b32 {v(vU+1)}, 4, {v(vU+1)}")
    I(f"v_bfe_u32 {v(vU+2)}, {v(vLANE)}, 3, 2")
    I(f"v_lshl_add_u32 {v(vU+1)}, {v(vU+2)}, 2, {v(vU+1)}")
    I(f"v_and_b32 {v(vU+2)}, 3, {v(vLANE)}")
    I(f"v_add_u32 {v(vU+1)}, {v(vU+1)}, {v(vU+2)}")
    I(f"v_and_b32 {v(vU+2)}, 32, {v(vLANE)}")
    I(f"v_add_u32 {v(vU+1)}, {v(vU+1)}, {v(vU+2)}")
    I(f"v_lshlrev_b32 {v(vKG)}, 4, {v(vU+1)}")
    C("phi_q fragments of q tiles 2hq, 2hq+1; 1/den")
    I(f"s_lshl_b32 {s(sT1)}, {s(sT2)}, 15")
    I(f"s_add_u32 {s(sT1)}, {s(sT1)}, {QR}")
    I(f"v_add_u32 {v(vPA2)}, {s(sT1)}, {v(vL16)}")
    I(f"s_lshl_b32 {s(sT1)}, {s(sT2)}, 9")
    I(f"s_add_u32 {s(sT1)}, {s(sT1)}, {RD}")
    I(f"v_lshlrev_b32 {v(vRA)}, 2, {v(vLANE)}")
    I(f"v_add_u32 {v(vRA)}, {s(sT1)}, {v(vRA)}")
    C("private staging [2 q tiles][32 rows][128 B]: piece = 4 dl + 2 h + u, slot = piece ^ (row & 7)")
    I(f"s_lshl_b32 {s(sT1)}, {s(sWAVE)}, 13")
    I(f"s_add_u32 {s(sT1)}, {s(sT1)}, {VR}")
    I(f"v_lshrrev_b32 {v(vU+1)}, 5, {v(vLANE)}")
    I(f"v_lshlrev_b32 {v(vU+2)}, 1, {v(vU+1)}")
    I(f"v_and_b32 {v(vU+3)}, 7, {v(vLANE)}")
    I(f"v_xor_b32 {v(vU+2)}, {v(vU+2)}, {v(vU+3)}")
    I(f"v_lshlrev_b32 {v(vU+2)}, 4, {v(vU+2)}")
    I(f"v_and_b32 {v(vU+3)}, 31, {v(vLANE)}")
    I(f"v_lshl_add_u32 {v(vSW)}, {v(vU+3)}, 7, {v(vU+2)}")
    I(f"v_add_u32 {v(vSW)}, {s(sT1)}, {v(vSW)}")
    C("read back: row 8j + (l>>3), piece l&7")
    I(f"v_lshrrev_b32 {v(vU+1)}, 3, {v(vLANE)}")
    I(f"v_and_b32 {v(vU+2)}, 7, {v(vLANE)}")
    I(f"v_xor_b32 {v(vU+3)}, {v(vU+2)}, {v(vU+1)}")
    I(f"v_lshlrev_b32 {v(vU+3)}, 4, {v(vU+3)}")
    I(f"v_lshl_add_u32 {v(vSR)}, {v(vU+1)}, 7, {v(vU+3)}")
    I(f"v_add_u32 {v(vSR)}, {s(sT1)}, {v(vSR)}")
    C("output offset: (64 hq + (l>>3))*512 + p*128 + (l&7)*16")
    I(f"v_lshlrev_b32 {v(vU+2)}, 4, {v(vU+2)}")
    I(f"v_lshl_add_u32 {v(vOA)}, {v(vU+1)}, 9, {v(vU+2)}")
    I(f"s_lshl_b32 {s(sT1)}, {s(sT2)}, 15")
    I(f"s_lshl_b32 {s(sT2)}, {s(sT3)}, 7")
    I(f"s_add_u32 {s(sT1)}, {s(sT1)}, {s(sT2)}")
    I(f"v_add_u32 {v(vOA)}, {s(sT1)}, {v(vOA)}")

def team_b():
    C("================= team B =================")
    L("L_team_b")
    STI[0] = 2
    def preread():
        if opt.preread:
            C("bring the 2 KiB of the final kv image this workgroup writes into L2 (waves B0, B1: 1 KiB each)")
            I(f"s_cmp_lt_u32 {s(sTI)}, 2")
            I(f"s_cbranch_scc0 L_nopre")
            I(f"s_lshl_b32 {s(sT1)}, {s(sCH)}, 11")
            I(f"s_lshl_b32 {s(sT2)}, {s(sTI)}, 10")
            I(f"s_add_u32 {s(sT1)}, {s(sT1)}, {s(sT2)}")
            I(f"s_add_u32 {s(sT1)}, {s(sT1)}, {O_F}")
            I(f"buffer_load_dwordx4 {v(32,4)}, {v(vL16)}, {s(rP,4)}, {s(sT1)} offen")
            L("L_nopre")
    if not opt.early: preread()
    def pres_load(tag):
        if not opt.fast: return
        I(f"s_cmp_eq_u32 {s(sTI)}, 0")
        I(f"s_cbranch_scc0 L_nochk0{tag}")
        I(f"s_load_dwordx8 {s(20,8)}, {s(sEPA,2)}, {O_FL + 128} glc")
        I(f"s_load_dwordx8 {s(44,8)}, {s(sEPA,2)}, {O_FL + 160} glc")
        L(f"L_nochk0{tag}")
    def mode_check():
        if not opt.fast: return
        I(f"s_cmp_eq_u32 {s(sTI)}, 0")
        I(f"s_cbranch_scc0 L_nochk1")
        I(f"s_mov_b32 {s(sSPIN)}, 0")
        L("L_chk")
        I(f"s_waitcnt lgkmcnt(0)")
        I(f"s_mov_b32 {s(sT1)}, {s(sNONCE)}")
        I(f"s_not_b32 {s(sT2)}, {s(sNONCE)}")
        I(f"s_mov_b32 {s(sT3)}, 1")
        for j in range(16):
            r = (20 if j < 8 else 36) + j
            I(f"s_cmp_eq_u32 {s(r)}, {s(sPRES)}")
            I(f"s_cselect_b32 {s(sT1)}, {s(sT1)}, {s(sT2)}")
            I(f"s_lshr_b32 {s(r)}, {s(r)}, 4")
            I(f"s_lshr_b32 {s(sFAST)}, {s(sPRES)}, 4")
            I(f"s_cmp_eq_u32 {s(r)}, {s(sFAST)}")
            I(f"s_cselect_b32 {s(sT3)}, {s(sT3)}, 0")
        I(f"s_cmp_eq_u32 {s(sT3)}, 1")
        I(f"s_cbranch_scc1 L_chkd")
        I(f"s_add_u32 {s(sSPIN)}, {s(sSPIN)}, 1")
        I(f"s_cmp_ge_u32 {s(sSPIN)}, 12")
        I(f"s_cbranch_scc1 L_chkd")
        I(f"s_load_dwordx8 {s(20,8)}, {s(sEPA,2)}, {O_FL + 128} glc")
        I(f"s_load_dwordx8 {s(44,8)}, {s(sEPA,2)}, {O_FL + 160} glc")
        I(f"s_branch L_chk")
        L("L_chkd")
        if opt.forceslow: I(f"s_mov_b32 {s(sT1)}, {s(sT2)}")
        lds_set(str(FLG + 48), val=s(sT1))
        lds_set(str(FLG + 56))
        I(f"s_waitcnt lgkmcnt(0)")
        L("L_nochk1")
    def vflag(k):
        I(f"s_lshl_b32 {s(sT3)}, {s(sTI)}, 2")
        I(f"s_add_u32 {s(sT3)}, {s(sT3)}, {FLG + 16 + 16*k}")
        lds_set(s(sT3))
    VF[0] = vflag
    if opt.early:
        read_omega(QR)
        I(f"s_waitcnt vmcnt(4) lgkmcnt(0)")
        I(f"s_barrier")
        stamp("B B1")
        I(f"s_barrier")
        preread()
        I(f"s_mov_b32 {s(sT3)}, 8")
        v_issue(30, s(sT3), 8)
        I(f"s_lshl_b32 {s(sSOFF)}, {s(sTI)}, 14")
        for i in range(2): dma_row_instr(rQ, QR, i)
        I(f"s_waitcnt vmcnt(10)")
        vflag(0)
        pres_load("e")
        stamp("B V1 landed")
        for i in range(2, 8): dma_row_instr(rQ, QR, i)
        I(f"s_waitcnt vmcnt(8)")
        vflag(1)
        mode_check()
        stamp("B V2 landed")
        for i in range(8, 16): dma_row_instr(rQ, QR, i)
        if opt.holdst:
            I(f"s_lshl_b32 {s(sT3)}, {s(sTI)}, 2")
            I(f"s_add_u32 {s(sT3)}, {s(sT3)}, {FLG + 112}")
            lds_set(s(sT3))
        stamp("B q issued")
        I(f"s_waitcnt vmcnt(0)")
        stamp("B q landed")
    elif opt.kqv:
        I(f"s_lshl_b32 {s(sSOFF)}, {s(sTI)}, 14")
        for i in range(16): dma_row_instr(rQ, QR, i)
        I(f"s_waitcnt vmcnt(16)")
        I(f"s_barrier")
        stamp("B B1")
        read_omega(QR)
        I(f"s_waitcnt lgkmcnt(0)")
        I(f"s_barrier")
        dma_v()
        if opt.fast:
            I(f"s_cmp_eq_u32 {s(sTI)}, 0")
            I(f"s_cbranch_scc0 L_nochk0")
            I(f"s_load_dwordx8 {s(20,8)}, {s(sEPA,2)}, {O_FL + 128} glc")
            I(f"s_load_dwordx8 {s(44,8)}, {s(sEPA,2)}, {O_FL + 160} glc")
            L("L_nochk0")
        stamp("B v issued")
        I(f"s_waitcnt vmcnt(16)")
        stamp("B q landed")
        mode_check()
    else:
        if opt.bomega: read_omega(QR)
        dma_v()
        I(f"s_waitcnt vmcnt(16)")
        if opt.bomega: I(f"s_waitcnt lgkmcnt(0)")
        I(f"s_barrier")
        stamp("B B1")
        if not opt.bomega:
            read_omega(QR)
            I(f"s_waitcnt lgkmcnt(0)")
        I(f"s_barrier")
        if opt.fast:
            I(f"s_cmp_eq_u32 {s(sTI)}, 0")
            I(f"s_cbranch_scc0 L_nochk0")
            I(f"s_load_dwordx8 {s(20,8)}, {s(sEPA,2)}, {O_FL + 128} glc")
            I(f"s_load_dwordx8 {s(44,8)}, {s(sEPA,2)}, {O_FL + 160} glc")
            L("L_nochk0")
        def pace_signal():
            if not opt.stagger: return
            PS[0] += 1
            I(f"s_and_b32 {s(sT1)}, {s(sHEAD)}, 1")
            I(f"s_or_b32 {s(sT1)}, {s(sT1)}, {s(sTI)}")
            I(f"s_cmp_eq_u32 {s(sT1)}, 0")
            I(f"s_cbranch_scc0 L_nosigp{PS[0]}")
            I(f"s_lshl_b32 {s(sT1)}, {s(sCH)}, 2")
            I(f"s_add_u32 {s(sT1)}, {s(sT1)}, {O_FL + 768}")
            I(f"s_mov_b64 exec, 1")
            I(f"v_mov_b32 {v(vX+4)}, 0")
            I(f"v_mov_b32 {v(vX+5)}, {s(sNONCE)}")
            I(f"buffer_store_dword {v(vX+5)}, {v(vX+4)}, {s(rP,4)}, {s(sT1)} offen sc1")
            I(f"s_mov_b64 exec, -1")
            L(f"L_nosigp{PS[0]}")
        def pre(i):
            I(f"s_add_u32 {s(sT1)}, {s(sT0)}, {1024*i}")
            I(f"buffer_load_dwordx4 {v(32+4*(i%8),4)}, {v(vL16)}, {s(rP,4)}, {s(sT1)} offen{opt.prepol}")
        if opt.holdall:
            I(f"s_waitcnt vmcnt(8)")
            mode_check()
            vflag(0)
            stamp("B V1 landed")
            I(f"s_waitcnt vmcnt(0)")
            vflag(1)
            stamp("B V2 landed")
            lds_wait(str(FLG + 64), 4, "hq")
            I(f"s_lshl_b32 {s(sSOFF)}, {s(sTI)}, 14")
            for i in range(16): dma_row_instr(rQ, QR, i)
            stamp("B q issued")
            I(f"s_waitcnt vmcnt(0)")
            stamp("B q landed")
        if opt.pacept == "b2" and not opt.holdall: pace_signal()
        if not opt.holdall:
            if opt.prepart:
                I(f"s_lshl_b32 {s(sT0)}, {s(sCH)}, 15")
                I(f"s_lshl_b32 {s(sT1)}, {s(sTI)}, 13")
                I(f"s_add_u32 {s(sT0)}, {s(sT0)}, {s(sT1)}")
                for i in range(4): pre(i)
            else:
                I(f"s_lshl_b32 {s(sSOFF)}, {s(sTI)}, 14")
                for i in range(4): dma_row_instr(rQ, QR, i)
            I(f"s_waitcnt vmcnt(12)")
            I(f"s_lshl_b32 {s(sT3)}, {s(sTI)}, 2")
            I(f"s_add_u32 {s(sT3)}, {s(sT3)}, {FLG + 16}")
            if opt.fast:
                I(f"s_cmp_eq_u32 {s(sTI)}, 0")
                I(f"s_cbranch_scc0 L_nochk1")
                I(f"s_waitcnt lgkmcnt(0)")
                I(f"s_mov_b32 {s(sT1)}, {s(sNONCE)}")
                I(f"s_not_b32 {s(sT2)}, {s(sNONCE)}")
                for j in range(16):
                    I(f"s_cmp_eq_u32 {s((20 if j < 8 else 36) + j)}, {s(sPRES)}")
                    I(f"s_cselect_b32 {s(sT1)}, {s(sT1)}, {s(sT2)}")
                if opt.forceslow: I(f"s_mov_b32 {s(sT1)}, {s(sT2)}")
                lds_set(str(FLG + 48), val=s(sT1))
                lds_set(str(FLG + 56))
                I(f"s_waitcnt lgkmcnt(0)")
                L("L_nochk1")
            lds_set(s(sT3))
            if opt.pacept == "v1": pace_signal()
            stamp("B V1 landed")
            if opt.prepart:
                for i in range(4, 8): pre(i)
            else:
                for i in range(4, 8): dma_row_instr(rQ, QR, i)
            I(f"s_waitcnt vmcnt(8)")
            I(f"s_add_u32 {s(sT3)}, {s(sT3)}, 16")
            lds_set(s(sT3))
            if opt.pacept == "v2": pace_signal()
            stamp("B V2 landed")
            if opt.prepart:
                I(f"s_lshl_b32 {s(sSOFF)}, {s(sTI)}, 14")
                for i in range(16): dma_row_instr(rQ, QR, i)
            else:
                nh = opt.holdq
                for i in range(8, 16 - nh): dma_row_instr(rQ, QR, i)
                if nh:
                    I(f"s_lshl_b32 {s(sT3)}, {s(sTI)}, 2")
                    I(f"s_add_u32 {s(sT3)}, {s(sT3)}, {FLG + 64}")
                    lds_wait(s(sT3), 1, "hq")
                    for i in range(16 - nh, 16): dma_row_instr(rQ, QR, i)
            if opt.pacept == "q": pace_signal()
            if opt.holdst:
                I(f"s_lshl_b32 {s(sT3)}, {s(sTI)}, 2")
                I(f"s_add_u32 {s(sT3)}, {s(sT3)}, {FLG + 112}")
                lds_set(s(sT3))
            stamp("B q issued")
            I(f"s_waitcnt vmcnt(0)")
            stamp("B q landed")
    read_tile_frags()
    I(f"s_waitcnt lgkmcnt(0)")
    ssq()
    steps = ssq_reduce_steps()
    for t in range(16):
        c = "0" if t == 0 else v(vA1, 16)
        I(f"v_mfma_f32_32x32x16_bf16 {v(vA1,16)}, {v(W(0,t),4)}, {v(vKF+4*t,4)}, {c}")
        if 1 <= t <= 5:
            for x in steps[t-1]: I(x)
        if t == 6: I(f"v_mul_f32 {v(vSS)}, {s(sM132)}, {v(vSS)}")
        if not opt.mimicq:
            if t == 7: I(f"v_mul_f32 {v(vSS)}, {s(sLOG2E)}, {v(vSS)}")
            if t == 8: I(f"s_mov_b32 {s(sT2)}, 0x3eb8aa3b")
            if t == 9: I(f"v_mov_b32 {v(vSS+3)}, {s(sEPS)}")
    vY = 20
    vQ0 = 12
    vQ1 = 112
    def plain_ops(mt, dst):
        ops = []
        acc = lambda r: vA1 + 16*mt + r
        for g in range(2):
            for i in range(8): ops.append(f"v_fma_f32 {v(vY+i)}, {v(acc(8*g+i))}, {s(sT2)}, {v(vSS)}")
            for i in range(8): ops.append(f"v_exp_f32 {v(vY+i)}, {v(vY+i)}")
            for i in range(8): ops.append(f"v_fma_f32 {v(vY+i)}, {v(vY+i)}, {s(sC0125)}, {v(vSS+3)}")
            for i in range(4): ops.append(f"v_cvt_pk_bf16_f32 {v(dst+4*g+i)}, {v(vY+2*i)}, {v(vY+2*i+1)}")
        return ops
    if not opt.mimicq:
        ops0 = plain_ops(0, vQ0)
        k = 0
        for t in range(16):
            c = "0" if t == 0 else v(vA1 + 16, 16)
            I(f"v_mfma_f32_32x32x16_bf16 {v(vA1+16,16)}, {v(W(1,t),4)}, {v(vKF+4*t,4)}, {c}")
            if t >= 1:
                n = 4 if t < 15 else len(ops0) - k
                for x in ops0[k:k+n]: I(x)
                k += n
        stamp("B gemm1 done")
        if opt.kqv:
            I(f"s_waitcnt vmcnt(8)")
            VF[0](0)
        for x in plain_ops(1, vPO + 8): I(x)
        if opt.kqv:
            I(f"s_waitcnt vmcnt(0)")
            VF[0](1)
            stamp("B V2 landed")
        for i in range(8): I(f"v_mov_b32 {v(vPO+i)}, {v(vQ0+i)}")
    else:
        for t in range(16):
            c = "0" if t == 0 else v(vA1 + 16, 16)
            I(f"v_mfma_f32_32x32x16_bf16 {v(vA1+16,16)}, {v(W(1,t),4)}, {v(vKF+4*t,4)}, {c}")
        stamp("B gemm1 done")
        I(f"v_mov_b32 {v(vEPS)}, {s(sEPS)}")
        I(f"v_cvt_pk_bf16_f32 {v(vSS)}, {v(vSS)}, 0")
        I(f"v_lshlrev_b32 {v(vNQ)}, 16, {v(vSS)}")
        for mt in range(2):
            pipeline_mimic(mt, lambda r: vNQ, vP4 + 8*mt)
        for i in range(16): I(f"v_mov_b32 {v(vPO+i)}, {v(vP4+i)}")
    I(f"s_lshl_b32 {s(sT1)}, {s(sTI)}, 14")
    I(f"s_add_u32 {s(sT1)}, {s(sT1)}, {QR}")
    I(f"v_add_u32 {v(vX)}, {s(sT1)}, {v(vL16)}")
    for t in range(4):
        I(f"ds_write_b128 {v(vX)}, {v(vPO+4*t,4)} offset:{t*1024}")
    I(f"s_waitcnt lgkmcnt(0)")
    I(f"s_lshl_b32 {s(sT1)}, {s(sTI)}, 2")
    I(f"s_add_u32 {s(sT1)}, {s(sT1)}, {FLG + 80}")
    lds_set(s(sT1))
    stamp("B phiq done")
    final_setup()
    phiq_frags("b")
    C("den = phi_q . z once z is there")
    vZF = 112; vDEN = 24; vRD = 28
    lds_wait(str(FLG + 52), 1, "z", tmp=vU)
    I(f"v_lshrrev_b32 {v(vDEN)}, 5, {v(vLANE)}")
    I(f"v_lshlrev_b32 {v(vDEN)}, 3, {v(vDEN)}")
    I(f"v_add_u32 {v(vDEN)}, {ZF}, {v(vDEN)}")
    for t in range(4):
        I(f"ds_read2_b64 {v(vZF+4*t,4)}, {v(vDEN)} offset0:{4*t} offset1:{4*t+2}")
    I(f"v_mov_b32 {v(vDEN+2)}, 0")
    I(f"v_mov_b32 {v(vDEN+3)}, 0")
    I(f"s_waitcnt lgkmcnt(0)")
    for i in range(16):
        I(f"v_dot2c_f32_bf16 {v(vDEN+2+(i&1))}, {v(vPO+i)}, {v(vZF+i)}")
    I(f"v_add_f32 {v(vDEN)}, {v(vDEN+2)}, {v(vDEN+3)}")
    I(f"v_mov_b32 {v(vDEN+1)}, {v(vDEN)}")
    I(f"v_permlane32_swap_b32 {v(vDEN)}, {v(vDEN+1)}")
    I(f"v_add_f32 {v(vDEN)}, {v(vDEN)}, {v(vDEN+1)}")
    I(f"v_cvt_pk_bf16_f32 {v(vDEN)}, {v(vDEN)}, {v(vDEN)}")
    I(f"v_lshlrev_b32 {v(vDEN)}, 16, {v(vDEN)}")
    I(f"v_add_f32 {v(vDEN)}, {s(sEPS)}, {v(vDEN)}")
    I(f"v_cvt_pk_bf16_f32 {v(vDEN)}, {v(vDEN)}, {v(vDEN)}")
    I(f"v_lshlrev_b32 {v(vDEN)}, 16, {v(vDEN)}")
    I(f"v_rcp_f32 {v(vRD)}, {v(vDEN)}")
    I(f"v_fma_f32 {v(vDEN+1)}, -{v(vDEN)}, {v(vRD)}, 1.0")
    I(f"v_fma_f32 {v(vRD)}, {v(vDEN+1)}, {v(vRD)}, {v(vRD)}")
    I(f"s_lshl_b32 {s(sT1)}, {s(sTI)}, 8")
    I(f"s_add_u32 {s(sT1)}, {s(sT1)}, {RD}")
    I(f"v_lshlrev_b32 {v(vDEN)}, 2, {v(vLANE)}")
    I(f"v_add_u32 {v(vDEN)}, {s(sT1)}, {v(vDEN)}")
    I(f"ds_write_b32 {v(vDEN)}, {v(vRD)}")
    I(f"s_waitcnt lgkmcnt(0)")
    I(f"s_lshl_b32 {s(sT1)}, {s(sTI)}, 2")
    I(f"s_add_u32 {s(sT1)}, {s(sT1)}, {FLG + 96}")
    lds_set(s(sT1))
    if opt.fast:
        I(f"v_mov_b32 {v(vDEN)}, {FLG + 48}")
        I(f"ds_read_b32 {v(vDEN+1)}, {v(vDEN)}")
        I(f"s_waitcnt lgkmcnt(0)")
        I(f"v_readfirstlane_b32 {s(sFAST)}, {v(vDEN+1)}")
        I(f"s_cmp_eq_u32 {s(sFAST)}, {s(sNONCE)}")
        I(f"s_cselect_b32 {s(sFAST)}, 1, 0")
    stamp("B den done")
    STI[0] = 13

def phiq_frags(tag):
    C("phi_q of the two q tiles")
    I(f"s_lshr_b32 {s(sT1)}, {s(sWAVE)}, 2")
    I(f"s_lshl_b32 {s(sT1)}, {s(sT1)}, 3")
    I(f"s_add_u32 {s(sSOFF)}, {s(sT1)}, {FLG + 80}")
    lds_wait(s(sSOFF), 2, "pq" + tag, tmp=vU)
    for qi in range(2):
        for t in range(4):
            I(f"ds_read_b128 {v(vPQ8+16*qi+4*t,4)}, {v(vPA2)} offset:{qi*16384 + t*1024}")

def final():
    L("L_final")
    C("================= final: wave w = d tiles 2p,2p+1 x q tiles 2hq,2hq+1; no workgroup barrier =================")
    stamp("F phiq read")
    C("flags of the four reducing workgroups 4p..4p+3 (16 words)")
    I(f"s_and_b32 {s(sT3)}, {s(sWAVE)}, 3")
    I(f"s_lshl_b32 {s(sT2)}, {s(sT3)}, 6")
    I(f"s_add_u32 {s(sT2)}, {s(sT2)}, {O_FL + 512}")
    I(f"s_mov_b32 {s(sSPIN)}, 0")
    I(f"v_and_b32 {v(vU)}, 15, {v(vLANE)}")
    I(f"v_lshlrev_b32 {v(vU)}, 2, {v(vU)}")
    L("L_spin_h2")
    I(f"buffer_load_dword {v(vU+1)}, {v(vU)}, {s(rP,4)}, {s(sT2)} offen sc1")
    I(f"s_waitcnt vmcnt(0)")
    I(f"v_cmp_ne_u32 vcc, {s(sNONCE)}, {v(vU+1)}")
    I(f"s_cbranch_vccz L_spun_h2")
    I(f"s_cmp_lg_u32 {s(sFAST)}, 0")
    I(f"s_cbranch_scc1 L_nap_h2")
    I(f"s_sleep 12")
    L("L_nap_h2")
    I(f"s_add_u32 {s(sSPIN)}, {s(sSPIN)}, 1")
    I(f"s_cmp_lt_u32 {s(sSPIN)}, {opt.spin_limit}")
    I(f"s_cbranch_scc1 L_spin_h2")
    L("L_spun_h2")
    stamp("F hop2")
    I(f"s_lshl_b32 {s(sT1)}, {s(sT3)}, 13")
    I(f"s_add_u32 {s(sT1)}, {s(sT1)}, {O_F}")
    I(f"s_add_u32 {s(sT2)}, {s(sT1)}, 4096")
    for dl in range(2):
        for t in range(4):
            I(f"buffer_load_dwordx4 {v(vKA+16*dl+4*t,4)}, {v(vKG)}, {s(rP,4)}, {s(sT1 if dl == 0 else sT2)} offen offset:{t*1024} sc1")
    I(f"s_lshr_b32 {s(sT1)}, {s(sWAVE)}, 2")
    I(f"s_lshl_b32 {s(sT1)}, {s(sT1)}, 3")
    I(f"s_add_u32 {s(sSOFF)}, {s(sT1)}, {FLG + 96}")
    lds_wait(s(sSOFF), 2, "rd", tmp=vU)
    for qi in range(2):
        I(f"ds_read_b32 {v(vRDS+2*qi)}, {v(vRA)} offset:{256*qi}")
    so = [74, 75, 76, 77, 78, 79, 80, 81] if not opt.stamps else None
    def mm(qi, dl):
        acc = vAC3 + 16*(2*qi + dl)
        for t in range(4):
            c = "0" if t == 0 else v(acc, 16)
            I(f"v_mfma_f32_32x32x16_bf16 {v(acc,16)}, {v(vKA+16*dl+4*t,4)}, {v(vPQ8+16*qi+4*t,4)}, {c}")
    def epi(qi, dl):
        acc = vAC3 + 16*(2*qi + dl); op = vOP + 16*qi + 8*dl
        if opt.mimicnum:
            for k in range(8): I(f"v_cvt_pk_bf16_f32 {v(op+k)}, {v(acc+2*k)}, {v(acc+2*k+1)}")
            for k in range(8):
                I(f"v_lshlrev_b32 {v(acc+2*k)}, 16, {v(op+k)}")
                I(f"v_and_b32 {v(acc+2*k+1)}, {s(sMASKH)}, {v(op+k)}")
        for k in range(8): I(f"v_pk_mul_f32 {v(acc+2*k,2)}, {v(acc+2*k,2)}, {v(vRDS+2*qi,2)} op_sel_hi:[1,0]")
        for k in range(8): I(f"v_cvt_pk_bf16_f32 {v(op+k)}, {v(acc+2*k)}, {v(acc+2*k+1)}")
        for u in range(2):
            x = 64*dl + 16*u
            reg = vSW if x == 0 else vU + (x // 16 - 1 if x < 64 else x // 16 - 3)
            I(f"ds_write_b128 {v(reg)}, {v(op+4*u,4)} offset:{4096*qi}")
    def R(qi):
        for j in range(4):
            I(f"ds_read_b128 {v(vST+16*qi+4*j,4)}, {v(vSR)} offset:{4096*qi + 1024*j}")
    def S(qi):
        for j in range(4):
            row = 32*qi + 8*j
            I(f"s_mov_b32 {s(sSOFF)}, {row*512}")
            I(f"s_waitcnt lgkmcnt({3-j})")
            I(f"buffer_store_dwordx4 {v(vST+16*qi+4*j,4)}, {v(vOA)}, {s(rO,4)}, {s(sSOFF)} offen{opt.ost}")
    I(f"v_xor_b32 {v(vU)}, 16, {v(vSW)}")
    I(f"v_xor_b32 {v(vU+1)}, 64, {v(vSW)}")
    I(f"v_xor_b32 {v(vU+2)}, 80, {v(vSW)}")
    I(f"s_waitcnt vmcnt(4) lgkmcnt(0)")
    stamp("F kv there")
    mm(0, 0)
    I(f"s_waitcnt vmcnt(0)")
    mm(0, 1)
    epi(0, 0)
    mm(1, 0)
    epi(0, 1)
    I(f"s_waitcnt lgkmcnt(0)")
    R(0)
    mm(1, 1)
    S(0)
    epi(1, 0)
    epi(1, 1)
    I(f"s_waitcnt lgkmcnt(0)")
    R(1)
    S(1)
    STI[0] = 18
    stamp("stores issued")
    if opt.stamps: I("s_waitcnt vmcnt(0)")
    stamp("stores done")
    stamps_flush("f")

def build():
    set_regions(opt.kqv)
    common_start()
    I(f"s_cmp_ge_u32 {s(sWAVE)}, 4")
    I(f"s_cbranch_scc1 L_team_b")
    team_a()
    team_b()
    final()
    L("L_end")
    I("s_endpgm")
    body = A.render()
    hdr = f"""; fused RFA linear attention: 256 workgroups (one per CU) x 8 waves
; @launch grid=(256,1,1) block=(512,1,1) lds={LDS_BYTES}
.amdgcn_target "amdgcn-amd-amdhsa--gfx950"
.text
.globl {NAME}
.p2align 8
.type {NAME},@function
{NAME}:
"""
    ftr = f"""
.section .rodata,"a"
.p2align 6
.amdhsa_kernel {NAME}
  .amdhsa_next_free_vgpr 256
  .amdhsa_next_free_sgpr 102
  .amdhsa_accum_offset 256
  .amdhsa_group_segment_fixed_size 0
  .amdhsa_kernarg_size 56
  .amdhsa_user_sgpr_count 2
  .amdhsa_user_sgpr_kernarg_segment_ptr 1
  .amdhsa_system_sgpr_workgroup_id_x 1
  .amdhsa_float_denorm_mode_32 3
.end_amdhsa_kernel
"""
    return hdr + body + ftr

if __name__ == "__main__":
    out = sys.argv[1]
    for a in sys.argv[2:]:
        if a == "stamps": opt.stamps = True
        elif a == "light": opt.stamps = True; opt.light = True
        elif a == "nont": opt.nt = False
        elif a == "nofast": opt.fast = False
        elif a == "forceslow": opt.forceslow = True
        elif a == "nopretouch": opt.pretouch = False
        elif a == "mimicq": opt.mimicq = True
        elif a == "early": opt.early = True
        elif a == "kko": opt.kko = True; opt.bomega = False
        elif a.startswith("holdall="): opt.holdall = a.split("=")[1]
        elif a == "kok": opt.kok = True
        elif a == "nokokbar": opt.kokbar = False
        elif a == "cyc": opt.cyc = True
        elif a == "holdst": opt.holdst = True
        elif a == "nobomega": opt.bomega = False
        elif a == "nokfast": opt.kfast = False
        elif a.startswith("kshadow="): opt.kshadow = int(a.split("=")[1])
        elif a.startswith("holdq="): opt.holdq = int(a.split("=")[1])
        elif a == "kqv": opt.kqv = True
        elif a.startswith("stagger="): opt.stagger = True; opt.pacept = a.split("=")[1]
        elif a == "prepart": opt.prepart = True; opt.partplain = True
        elif a.startswith("prepol="): opt.prepol = (" " + a.split("=")[1].replace("+", " ")).rstrip()
        elif a.startswith("partpol="): opt.partpol = " " + a.split("=")[1].replace("+", " ")
        elif a == "codepf": opt.codepf = True
        elif a == "partplain": opt.partplain = True
        elif a == "nopreread": opt.preread = False
        elif a == "mimicnum": opt.mimicnum = True
        elif a.startswith("dbgwg="): opt.dbgwg = int(a.split("=")[1])
        elif a.startswith("dbgwave="): opt.dbgwave = int(a.split("=")[1])
        elif a.startswith("ost="): opt.ost = " " + a.split("=")[1].replace("+", " ")
        else: raise SystemExit("unknown option " + a)
    txt = build()
    open(out, "w").write(txt)
    if opt.stamps: json.dump(STN, open(out + ".stamps.json", "w"))
    print("wrote", out, "nops inserted:", A.nops, "lines", txt.count("\n"))
```

```python
import sys, json, struct
from asmlib import *

NAME = "standalone__linear_kernel_rfa__prompt_kernel"
class O: pass
opt = O()
opt.spin_limit = 300000
opt.stamps = False
opt.nt = True
opt.fast = True
opt.forceslow = False
opt.dbgwg = None
opt.dbgwave = 0
opt.ost = " nt"
opt.pretouch = True
opt.partplain = False
opt.preread = True
opt.codepf = False
opt.partpol = ' sc1'
opt.prepart = False
opt.prepol = ' nt'
opt.light = False
opt.stagger = False
opt.pacept = 'v2'
opt.pacemax = 40
opt.kqv = False
opt.holdq = 0
opt.bomega = True
opt.kfast = True
opt.kshadow = 6
opt.holdst = False
opt.cyc = False
opt.kok = False
opt.kokbar = True
opt.holdall = ''
opt.kko = False
opt.early = False
opt.bsetup = True
opt.mimicq = False
opt.mimicnum = False

KQ = 0
QR = 0
VR = 65536
WR = 131072
PHI = WR
ZB = WR + 16384
ZF = WR + 17408
FLG = WR + 17664
RD = WR + 18432
KVF = VR
OSA = VR + 32768
def set_regions(kqv):
    global QR, VR, KVF, OSA
    QR, VR = (65536, 0) if kqv else (0, 65536)
    KVF = VR; OSA = VR + 32768
LDS_BYTES = 163840
HS = 1 << 20
O_PART = 0
O_F = 524288
O_Z = 524288 + 32768
O_FL = 524288 + 32768 + 4096
WS_ST = 20 << 20

sQp, sKp, sVp, sWp, sOp, sDp, sSp = 4, 6, 8, 10, 12, 14, 16
sHEAD, sCH = 18, 19
rK, rV, rQ, rW, rO, rP, rL = 20, 24, 28, 32, 36, 40, 52
sWAVE, sTI = 56, 57
sT0, sT1, sT2, sT3 = 58, 59, 60, 61
sNONCE, sFAST = 62, 63
sC025L, sC025H, sLOG2E, sC0125, sMASKH, sONES = 64, 65, 66, 67, 68, 69
sSPIN, sSOFF, sEPS, sM132 = 70, 71, 72, 73
sXCC, sPRES = 94, 95
sEPA = 96
sPW = 40
sJUNK = 44

A = Asm()
I, L, C = A.I, A.L, A.C
STI = [0]; STN = []; PS = [0]; VF = [None]
def stamp(name=""):
    if not opt.stamps: return
    if opt.light and name not in ("start", "stores done"):
        STN.append((STI[0], name)); STI[0] += 1
        return
    C("stamp %s" % name)
    I("s_memtime s[98:99]" if opt.cyc else "s_memrealtime s[98:99]")
    I("s_waitcnt lgkmcnt(0)")
    I("s_mov_b32 s%d, s98" % (74 + STI[0]))
    STN.append((STI[0], name)); STI[0] += 1
def stamps_flush(tag):
    if not opt.stamps: return
    I("s_and_b32 s97, s56, 3"); I("s_cmp_eq_u32 s97, 0"); I("s_cbranch_scc0 L_nost_%s" % tag)
    I("s_lshr_b32 s97, s56, 2"); I("s_lshl_b32 s96, s2, 1"); I("s_add_u32 s96, s96, s97"); I("s_lshl_b32 s96, s96, 7")
    I("s_add_u32 s96, s96, %d" % WS_ST)
    I("s_add_u32 s40, s16, s96"); I("s_addc_u32 s41, s17, 0"); I("s_and_b32 s41, s41, 0xffff"); I("s_mov_b32 s42, 128"); I("s_mov_b32 s43, 0x20000")
    I("s_mov_b64 exec, 1"); I("v_mov_b32 v1, 0")
    for i in range(20):
        I("v_mov_b32 v2, s%d" % (74 + i)); I("buffer_store_dword v2, v1, s[40:43], 0 offen offset:%d" % (4 * i))
    I("s_waitcnt vmcnt(0)")
    if opt.dbgwg is not None:
        I("s_cmp_eq_u32 s2, %d" % opt.dbgwg); I("s_cbranch_scc0 L_nodbg")
        I("s_cmp_eq_u32 s56, %d" % opt.dbgwave); I("s_cbranch_scc0 L_nodbg")
        I("s_mov_b32 s40, s14"); I("s_and_b32 s41, s15, 0xffff"); I("s_mov_b32 s42, 256")
        I("s_sub_u32 s97, s74, s100"); I("v_mov_b32 v2, s97"); I("buffer_store_dword v2, v1, s[40:43], 0 offen offset:60")
        idx = [i for i in range(1, 14)] + [18, 19]
        for j, i in enumerate(idx):
            I("s_sub_u32 s97, s%d, s74" % (74 + i)); I("v_mov_b32 v2, s97"); I("buffer_store_dword v2, v1, s[40:43], 0 offen offset:%d" % (4 * j))
        I("s_waitcnt vmcnt(0)")
        L("L_nodbg")
    I("s_mov_b64 exec, -1")
    L("L_nost_%s" % tag)

def srd(r, ptr, off_s, size):
    if off_s is None:
        I(f"s_mov_b32 {s(r)}, {s(ptr)}")
        I(f"s_and_b32 {s(r+1)}, {s(ptr+1)}, 0xffff")
    else:
        I(f"s_add_u32 {s(r)}, {s(ptr)}, {s(off_s)}")
        I(f"s_addc_u32 {s(r+1)}, {s(ptr+1)}, 0")
        I(f"s_and_b32 {s(r+1)}, {s(r+1)}, 0xffff")
    I(f"s_mov_b32 {s(r+2)}, {size}")
    I(f"s_mov_b32 {s(r+3)}, 0x20000")

NT = lambda: " nt" if opt.nt else ""
vLANE = 0
vA = 2
vD = 10
vL16 = 11
vT = 12
vSS = 28
vW = 128
def W(mt, t): return vW + mt * 64 + t * 4
vKF = 32
vA1 = 96
vP4 = 12
vNQ = 32
vNK = 48
vONE = 52
vP1 = 56
vTT = 60
vEPS = 68
vZP = 69
vX = 72
vPQ = 32
vPO = 96

POL = [" sc1"]
def pol(): return POL[0]
DUAL = [0]
def dual(fn):
    if not opt.fast:
        POL[0] = " sc1"; fn(); return
    DUAL[0] += 1; n = DUAL[0]
    I(f"s_cmp_lg_u32 {s(sFAST)}, 0")
    I(f"s_cbranch_scc1 L_fast{n}")
    POL[0] = " sc1"; fn()
    I(f"s_branch L_join{n}")
    L(f"L_fast{n}")
    POL[0] = ""; fn()
    L(f"L_join{n}")
    POL[0] = " sc1"

def prologue():
    if opt.stamps: I("s_memrealtime s[100:101]")
    I(f"s_cmp_ge_u32 s2, 256")
    I(f"s_cbranch_scc1 L_end")
    I(f"s_load_dwordx4 s[4:7], s[0:1], 0")
    I(f"s_load_dwordx4 s[8:11], s[0:1], 16")
    I(f"s_load_dwordx4 s[12:15], s[0:1], 32")
    I(f"s_load_dwordx2 s[16:17], s[0:1], 48")
    if opt.codepf:
        C("pull the kernel's own code into L2 while the kernel arguments are on their way (128 B per lane)")
        I(f"s_getpc_b64 s[20:21]")
        I(f"v_and_b32 v1, 63, v0")
        I(f"v_lshlrev_b32 v1, 7, v1")
        I(f"global_load_dword v2, v1, s[20:21]")
        I(f"v_add_u32 v1, 8192, v1")
        I(f"v_min_u32 v1, 11648, v1")
        I(f"global_load_dword v3, v1, s[20:21]")
    I(f"v_lshrrev_b32 v1, 6, v0")
    I(f"v_and_b32 {v(vLANE)}, 63, v0")
    I(f"v_readfirstlane_b32 {s(sWAVE)}, v1")
    I(f"s_and_b32 {s(sT0)}, s2, 7")
    I(f"s_lshr_b32 {s(sT1)}, s2, 3")
    I(f"s_lshr_b32 {s(sHEAD)}, {s(sT1)}, 4")
    I(f"s_lshl_b32 {s(sT0)}, {s(sT0)}, 1")
    I(f"s_add_u32 {s(sHEAD)}, {s(sHEAD)}, {s(sT0)}")
    I(f"s_and_b32 {s(sCH)}, {s(sT1)}, 15")
    I(f"s_and_b32 {s(sTI)}, {s(sWAVE)}, 3")
    I(f"v_lshrrev_b32 {v(vT)}, 5, {v(vLANE)}")
    I(f"v_and_b32 {v(vT+1)}, 31, {v(vLANE)}")
    I(f"v_xor_b32 {v(vT+1)}, {v(vT+1)}, {v(vT)}")
    I(f"v_lshlrev_b32 {v(vT+1)}, 4, {v(vT+1)}")
    I(f"v_lshl_add_u32 {v(vD)}, {v(vT)}, 9, {v(vT+1)}")
    I(f"v_lshlrev_b32 {v(vL16)}, 4, {v(vLANE)}")
    I(f"s_lshl_b32 {s(sT0)}, {s(sHEAD)}, 20")
    I(f"s_lshl_b32 {s(sT1)}, {s(sCH)}, 16")
    I(f"s_add_u32 {s(sT0)}, {s(sT0)}, {s(sT1)}")
    I(f"s_waitcnt lgkmcnt(0)")
    srd(rW, sWp, None, 32768)
    srd(rK, sKp, sT0, 65536)

def dma_omega():
    I(f"s_and_b32 {s(sT1)}, {s(sWAVE)}, 1")
    I(f"s_lshl_b32 {s(sT1)}, {s(sT1)}, 7")
    I(f"s_lshl_b32 {s(sSOFF)}, {s(sWAVE)}, 12")
    I(f"s_add_u32 m0, {s(sSOFF)}, {WR}")
    for i in range(4):
        I(f"s_add_u32 {s(sT2)}, {s(sT1)}, {32*i}")
        I(f"v_xor_b32 {v(vT)}, {s(sT2)}, {v(vD)}")
        I(f"buffer_load_dwordx4 {v(vT)}, {s(rW,4)}, {s(sSOFF)} offen offset:{1024*i} lds")

def dma_row_instr(r, base_lds, i):
    if i % 4 == 0:
        if i: I(f"s_add_u32 {s(sSOFF)}, {s(sSOFF)}, 4096")
        I(f"s_add_u32 m0, {s(sSOFF)}, {base_lds}")
    if i & 7:
        I(f"v_xor_b32 {v(vT)}, {32*(i&7)}, {v(vD)}")
        I(f"buffer_load_dwordx4 {v(vT)}, {s(r,4)}, {s(sSOFF)} offen offset:{1024*(i%4)}{NT()} lds")
    else:
        I(f"buffer_load_dwordx4 {v(vD)}, {s(r,4)}, {s(sSOFF)} offen offset:{1024*(i%4)}{NT()} lds")

def dma_k():
    I(f"s_lshl_b32 {s(sSOFF)}, {s(sWAVE)}, 13")
    for i in range(8): dma_row_instr(rK, KQ, i)

vVD = 9
def v_setup(reg):
    I(f"v_lshrrev_b32 {v(reg)}, 4, {v(vLANE)}")
    I(f"v_and_b32 {v(reg)}, 1, {v(reg)}")
    I(f"v_lshlrev_b32 {v(reg)}, 2, {v(reg)}")
    I(f"v_and_b32 {v(vT+1)}, 7, {v(vLANE)}")
    I(f"v_xor_b32 {v(reg)}, {v(reg)}, {v(vT+1)}")
    I(f"v_lshlrev_b32 {v(reg)}, 4, {v(reg)}")
    I(f"v_lshrrev_b32 {v(vT+1)}, 3, {v(vLANE)}")
    I(f"v_lshl_add_u32 {v(reg)}, {v(vT+1)}, 9, {v(reg)}")

def v_issue(reg, first_s, n):
    I(f"s_lshl_b32 {s(sSOFF)}, {first_s}, 12")
    I(f"s_lshl_b32 {s(sT1)}, {s(sTI)}, 7")
    I(f"s_add_u32 {s(sSOFF)}, {s(sSOFF)}, {s(sT1)}")
    I(f"s_lshl_b32 {s(sT1)}, {first_s}, 10")
    I(f"s_lshl_b32 {s(sT2)}, {s(sTI)}, 14")
    I(f"s_add_u32 {s(sT1)}, {s(sT1)}, {s(sT2)}")
    I(f"s_add_u32 {s(sT1)}, {s(sT1)}, {VR}")
    for i in range(n):
        I(f"s_add_u32 m0, {s(sT1)}, {1024*i}")
        if i: I(f"s_add_u32 {s(sSOFF)}, {s(sSOFF)}, 4096")
        I(f"buffer_load_dwordx4 {v(reg)}, {s(rV,4)}, {s(sSOFF)} offen{NT()} lds")

def dma_v():
    C("team B wave b: V slice b (128 B columns), all 128 rows, 16 instructions of 8 rows")
    v_setup(vT+2)
    I(f"s_mov_b32 {s(sT3)}, 0")
    v_issue(vT+2, s(sT3), 16)

def tile_addrs():
    I(f"v_and_b32 {v(vT)}, 31, {v(vLANE)}")
    I(f"v_lshrrev_b32 {v(vT+1)}, 5, {v(vLANE)}")
    I(f"v_and_b32 {v(vT+2)}, 15, {v(vLANE)}")
    I(f"v_xor_b32 {v(vT+2)}, {v(vT+2)}, {v(vT+1)}")
    I(f"v_lshlrev_b32 {v(vT+2)}, 4, {v(vT+2)}")
    I(f"v_lshl_add_u32 {v(vT+2)}, {v(vT)}, 9, {v(vT+2)}")
    I(f"v_add_u32 {v(vA)}, {WR}, {v(vT+2)}")
    for x in range(1, 8):
        I(f"v_xor_b32 {v(vA+x)}, {32*x}, {v(vA)}")

def read_omega(base):
    for t in range(16):
        for mt in range(2):
            I(f"ds_read_b128 {v(W(mt,t),4)}, {v(vA+(t&7))} offset:{(t>>3)*256 + mt*16384}")
    I(f"s_lshl_b32 {s(sT1)}, {s(sTI)}, 14")
    I(f"s_sub_u32 {s(sT1)}, {s(sT1)}, {WR - base}")
    for x in range(8):
        I(f"v_add_u32 {v(vA+x)}, {s(sT1)}, {v(vA+x)}")

def consts():
    I(f"s_mov_b32 {s(sC025L)}, 0x00003e80")
    I(f"s_mov_b32 {s(sC025H)}, 0x3e800000")
    I(f"s_mov_b32 {s(sLOG2E)}, 0x3fb8aa3b")
    I(f"s_mov_b32 {s(sC0125)}, 0x3e000000")
    I(f"s_mov_b32 {s(sMASKH)}, 0xffff0000")
    I(f"s_mov_b32 {s(sONES)}, 0x3f803f80")
    I(f"s_mov_b32 {s(sEPS)}, 0x358637bd")
    I(f"s_mov_b32 {s(sM132)}, 0xbd000000")

def read_tile_frags():
    for t in range(16):
        I(f"ds_read_b128 {v(vKF+4*t,4)}, {v(vA+(t&7))} offset:{(t>>3)*256}")
    for i in range(4): I(f"v_mov_b32 {v(vSS+i)}, 0")

def ssq(counted=False):
    for t in range(16):
        if counted and t % 2 == 0: I(f"s_waitcnt lgkmcnt({max(0, 14 - t)})")
        for i in range(4):
            I(f"v_dot2c_f32_bf16 {v(vSS+i)}, {v(vKF+4*t+i)}, {v(vKF+4*t+i)}")

def ssq_reduce_steps():
    return [
        [f"v_add_f32 {v(vSS)}, {v(vSS)}, {v(vSS+1)}", f"v_add_f32 {v(vSS+2)}, {v(vSS+2)}, {v(vSS+3)}"],
        [f"v_add_f32 {v(vSS)}, {v(vSS)}, {v(vSS+2)}"],
        [f"v_mov_b32 {v(vSS+1)}, {v(vSS)}"],
        [f"v_permlane32_swap_b32 {v(vSS)}, {v(vSS+1)}"],
        [f"v_add_f32 {v(vSS)}, {v(vSS)}, {v(vSS+1)}"],
    ]

def pipeline_mimic(mt, nq_of, p4base):
    for g in range(2):
        prs = [4*g + i for i in range(4)]
        acc = lambda r: vA1 + 16*mt + r
        for i, p in enumerate(prs): I(f"v_cvt_pk_bf16_f32 {v(vP1+i)}, {v(acc(2*p))}, {v(acc(2*p+1))}")
        for i, p in enumerate(prs):
            I(f"v_dot2_f32_bf16 {v(vTT+2*i)}, {v(vP1+i)}, {s(sC025L)}, {v(nq_of(2*p))}")
            I(f"v_dot2_f32_bf16 {v(vTT+2*i+1)}, {v(vP1+i)}, {s(sC025H)}, {v(nq_of(2*p+1))}")
        for i, p in enumerate(prs): I(f"v_cvt_pk_bf16_f32 {v(vP1+i)}, {v(vTT+2*i)}, {v(vTT+2*i+1)}")
        for i, p in enumerate(prs):
            I(f"v_lshlrev_b32 {v(vTT+2*i)}, 16, {v(vP1+i)}")
            I(f"v_and_b32 {v(vTT+2*i+1)}, {s(sMASKH)}, {v(vP1+i)}")
        for i in range(8): I(f"v_mul_f32 {v(vTT+i)}, {s(sLOG2E)}, {v(vTT+i)}")
        for i in range(8): I(f"v_exp_f32 {v(vTT+i)}, {v(vTT+i)}")
        for i in range(8): I(f"v_fma_f32 {v(vTT+i)}, {v(vTT+i)}, {s(sC0125)}, {v(vEPS)}")
        for i, p in enumerate(prs): I(f"v_cvt_pk_bf16_f32 {v(p4base+p)}, {v(vTT+2*i)}, {v(vTT+2*i+1)}")

def lds_wait(addr, n, tag, tmp=None):
    tmp = vX + 4 if tmp is None else tmp
    I(f"s_mov_b32 {s(sSPIN)}, 0")
    if n == 1:
        I(f"v_mov_b32 {v(tmp)}, {addr}")
    else:
        I(f"v_and_b32 {v(tmp)}, {n-1}, {v(vLANE)}")
        I(f"v_lshlrev_b32 {v(tmp)}, 2, {v(tmp)}")
        I(f"v_add_u32 {v(tmp)}, {addr}, {v(tmp)}")
    L(f"L_ls_{tag}")
    I(f"ds_read_b32 {v(tmp+1)}, {v(tmp)}")
    I(f"s_waitcnt lgkmcnt(0)")
    I(f"v_cmp_ne_u32 vcc, {s(sNONCE)}, {v(tmp+1)}")
    I(f"s_cbranch_vccz L_lsd_{tag}")
    I(f"s_add_u32 {s(sSPIN)}, {s(sSPIN)}, 1")
    I(f"s_cmp_lt_u32 {s(sSPIN)}, {opt.spin_limit*16}")
    I(f"s_cbranch_scc1 L_ls_{tag}")
    L(f"L_lsd_{tag}")

def lds_set(addr, tmp=None, val=None):
    tmp = vX + 4 if tmp is None else tmp
    I(f"v_mov_b32 {v(tmp)}, {addr}")
    I(f"v_mov_b32 {v(tmp+1)}, {s(sNONCE) if val is None else val}")
    I(f"ds_write_b32 {v(tmp)}, {v(tmp+1)}")

def wave_flag(off):
    I(f"s_lshl_b32 {s(sT1)}, {s(sCH)}, 4")
    I(f"s_lshl_b32 {s(sT2)}, {s(sTI)}, 2")
    I(f"s_add_u32 {s(sT1)}, {s(sT1)}, {s(sT2)}")
    I(f"s_add_u32 {s(sT1)}, {s(sT1)}, {O_FL + off}")
    I(f"s_mov_b64 exec, 1")
    I(f"v_mov_b32 {v(vT)}, 0")
    I(f"v_mov_b32 {v(vT+1)}, {s(sNONCE)}")
    dual(lambda: I(f"buffer_store_dword {v(vT+1)}, {v(vT)}, {s(rP,4)}, {s(sT1)} offen{pol()}"))
    I(f"s_mov_b64 exec, -1")

def poll(off, tag, tmp=None):
    tmp = vT if tmp is None else tmp
    I(f"s_mov_b32 {s(sSPIN)}, 0")
    I(f"s_mov_b32 {s(sT2)}, {O_FL + off}")
    I(f"v_lshlrev_b32 {v(tmp)}, 2, {v(vLANE)}")
    L(f"L_spin_{tag}")
    I(f"buffer_load_dword {v(tmp+1)}, {v(tmp)}, {s(rP,4)}, {s(sT2)} offen sc1")
    I(f"s_waitcnt vmcnt(0)")
    I(f"v_cmp_ne_u32 vcc, {s(sNONCE)}, {v(tmp+1)}")
    I(f"s_cbranch_vccz L_spun_{tag}")
    I(f"s_cmp_lg_u32 {s(sFAST)}, 0")
    I(f"s_cbranch_scc1 L_nap_{tag}")
    I(f"s_sleep 12")
    L(f"L_nap_{tag}")
    I(f"s_add_u32 {s(sSPIN)}, {s(sSPIN)}, 1")
    I(f"s_cmp_lt_u32 {s(sSPIN)}, {opt.spin_limit}")
    I(f"s_cbranch_scc1 L_spin_{tag}")
    L(f"L_spun_{tag}")

def common_start():
    prologue()
    stamp("start")
    if opt.early:
        C("K(0..3), omega, K(4..7), then four V loads: rows 0..31 (team A) / 32..63 (team B) of slice w&3")
        I(f"s_lshl_b32 {s(sSOFF)}, {s(sWAVE)}, 13")
        for i in range(4): dma_row_instr(rK, KQ, i)
        I(f"s_mov_b32 {s(sT3)}, {s(sSOFF)}")
        dma_omega()
        I(f"s_mov_b32 {s(sSOFF)}, {s(sT3)}")
        I(f"s_barrier")
        for i in range(4, 8): dma_row_instr(rK, KQ, i)
        srd(rV, sVp, sT0, 65536)
        v_setup(30)
        I(f"s_lshr_b32 {s(sT3)}, {s(sWAVE)}, 2")
        I(f"s_lshl_b32 {s(sT3)}, {s(sT3)}, 2")
        v_issue(30, s(sT3), 4)
    elif opt.kko:
        C("omega lines -> L2 (one touch per line), then K, then omega itself (L2 hits by then)")
        I(f"v_and_b32 {v(vT+2)}, 31, {v(vLANE)}")
        I(f"v_lshlrev_b32 {v(vT+2)}, 7, {v(vT+2)}")
        I(f"s_lshl_b32 {s(sT1)}, {s(sWAVE)}, 12")
        I(f"buffer_load_dword {v(vT+3)}, {v(vT+2)}, {s(rW,4)}, {s(sT1)} offen")
        dma_k()
        dma_omega()
    elif opt.kok:
        C("issue order K(0..3), omega, K(4..7): omega rides in the first window without holding K back")
        I(f"s_lshl_b32 {s(sSOFF)}, {s(sWAVE)}, 13")
        for i in range(4): dma_row_instr(rK, KQ, i)
        I(f"s_mov_b32 {s(sT3)}, {s(sSOFF)}")
        dma_omega()
        I(f"s_mov_b32 {s(sSOFF)}, {s(sT3)}")
        if opt.kokbar: I(f"s_barrier")
        for i in range(4, 8): dma_row_instr(rK, KQ, i)
    else:
        dma_omega()
        I(f"s_barrier")
        dma_k()
    C("scalar side: epoch word, translation pre-touch, descriptors")
    I(f"s_lshl_b32 {s(sT1)}, {s(sHEAD)}, 20")
    I(f"s_add_u32 {s(sEPA)}, {s(sSp)}, {s(sT1)}")
    I(f"s_addc_u32 {s(sEPA+1)}, {s(sSp+1)}, 0")
    I(f"s_load_dword {s(sNONCE)}, {s(sEPA,2)}, {O_FL}")
    if opt.preread:
        C("bring the flag lines of this head into L2 (a store to an absent line makes the next read a memory fill)")
        for j in range(8):
            I(f"s_load_dword {s(sJUNK+3)}, {s(sEPA,2)}, {O_FL + 256 + 64*j}")
    if not opt.early: srd(rV, sVp, sT0, 65536)
    srd(rQ, sQp, sT0, 65536)
    srd(rO, sOp, sT0, 65536)
    if opt.pretouch:
        I(f"s_load_dword {s(sJUNK)}, {s(rQ,2)}, 0")
        I(f"s_load_dword {s(sJUNK+1)}, {s(rO,2)}, 0")
        I(f"s_load_dword {s(sJUNK+2)}, {s(rV,2)}, 0")
    tile_addrs()
    consts()
    stamp("K issued")
    I(f"s_waitcnt lgkmcnt(0)")
    I(f"s_add_u32 {s(sNONCE)}, {s(sNONCE)}, 1")
    I(f"s_lshl_b32 {s(sT1)}, {s(sHEAD)}, 20")
    srd(rP, sSp, sT1, HS)
    I(f"s_mov_b32 {s(sFAST)}, 0")
    I(f"s_getreg_b32 {s(sXCC)}, hwreg(HW_REG_XCC_ID, 0, 4)")
    I(f"s_lshl_b32 {s(sPRES)}, {s(sNONCE)}, 4")
    I(f"s_add_u32 {s(sPRES)}, {s(sPRES)}, {s(sXCC)}")
    nyoung = {"early": 8, "kko": None, "kok": 4}.get("early" if opt.early else "kko" if opt.kko else "kok" if opt.kok else "", 8)
    I(f"s_cmp_eq_u32 {s(sWAVE)}, 0")
    I(f"s_cbranch_scc0 L_nopres")
    if opt.fast:
        C("presence word: nonce*16 + XCC id (wave 0)")
        I(f"s_mov_b64 exec, 1")
        I(f"s_lshl_b32 {s(sT1)}, {s(sCH)}, 2")
        I(f"s_add_u32 {s(sT1)}, {s(sT1)}, {O_FL + 128}")
        I(f"v_mov_b32 {v(vT)}, 0")
        I(f"v_mov_b32 {v(vT+1)}, {s(sPRES)}")
        I(f"buffer_store_dword {v(vT+1)}, {v(vT)}, {s(rP,4)}, {s(sT1)} offen sc1")
        I(f"s_mov_b64 exec, -1")
        if nyoung is not None: I(f"s_waitcnt vmcnt({nyoung + 1})")
    else:
        if nyoung is not None: I(f"s_waitcnt vmcnt({nyoung})")
    I(f"s_branch L_presd")
    L("L_nopres")
    if nyoung is not None: I(f"s_waitcnt vmcnt({nyoung})")
    L("L_presd")
    if not opt.kko: I(f"s_barrier")

def team_a():
    C("================= team A =================")
    if not opt.kko: read_omega(KQ)
    C("K landed: own loads only (the presence store of wave 0 may still be in flight)")
    ey = 4 if opt.early else 0
    I(f"s_waitcnt vmcnt({1 + ey}) lgkmcnt(0)")
    I(f"s_cmp_eq_u32 {s(sTI)}, 0")
    I(f"s_cbranch_scc1 L_k0")
    I(f"s_waitcnt vmcnt({ey})")
    L("L_k0")
    I(f"s_barrier")
    stamp("A B1 K landed")
    if opt.kko: read_omega(KQ)
    read_tile_frags()
    I(f"s_waitcnt lgkmcnt(0)")
    I(f"s_barrier")
    if not opt.kfast:
        ssq()
        steps = ssq_reduce_steps()
        for t in range(16):
            for mt in range(2):
                c = "0" if t == 0 else v(vA1 + 16*mt, 16)
                I(f"v_mfma_f32_32x32x16_bf16 {v(vA1+16*mt,16)}, {v(vKF+4*t,4)}, {v(W(mt,t),4)}, {c}")
            if 1 <= t <= 5:
                for x in steps[t-1]: I(x)
            if t == 6:
                I(f"v_mul_f32 {v(vSS)}, {s(sM132)}, {v(vSS)}")
                I(f"v_lshrrev_b32 {v(vSS+1)}, 5, {v(vLANE)}")
            if t == 7:
                I(f"v_cmp_eq_u32 vcc, 0, {v(vSS+1)}")
            if t == 8:
                I(f"v_cndmask_b32 {v(vSS)}, 0, {v(vSS)}, vcc")
            if t == 9:
                I(f"v_cvt_pk_bf16_f32 {v(vSS)}, {v(vSS)}, 0")
        stamp("A gemm1 done")
        I(f"v_mov_b32 {v(vEPS)}, {s(sEPS)}")
        I(f"v_mov_b32 {v(vNK)}, {v(vSS)}")
        I(f"v_mov_b32 {v(vONE)}, 0x3f80")
        for i in range(1, 4):
            I(f"v_mov_b32 {v(vONE+i)}, 0")
            I(f"v_mov_b32 {v(vNK+i)}, 0")
        I(f"v_mfma_f32_32x32x16_bf16 {v(vNQ,16)}, {v(vNK,4)}, {v(vONE,4)}, 0")
        I(f"v_lshl_add_u32 {v(vX)}, {s(sTI)}, 12, {v(vL16)}")
        I(f"v_add_u32 {v(vX)}, {PHI}, {v(vX)}")
        for mt in range(2):
            pipeline_mimic(mt, lambda r: vNQ + r, vP4 + 8*mt)
            for u in range(2):
                I(f"ds_write_b128 {v(vX)}, {v(vP4+8*mt+4*u,4)} offset:{u*2048 + mt*1024}")
            I(f"v_mov_b32 {v(vZP+mt)}, 0")
            for i in range(8):
                I(f"v_dot2c_f32_bf16 {v(vZP+mt)}, {s(sONES)}, {v(vP4+8*mt+i)}")
    else:
        vNQ2 = 128; vNK2 = 144; vON2 = 148; vP1b = 152; vTb = 156; vEP2 = 164; vZP2 = 165; vXb = 168
        ssq()
        steps = ssq_reduce_steps()
        for t in range(16):
            c = "0" if t == 0 else v(vA1, 16)
            I(f"v_mfma_f32_32x32x16_bf16 {v(vA1,16)}, {v(vKF+4*t,4)}, {v(W(0,t),4)}, {c}")
            if 1 <= t <= 5:
                for x in steps[t-1]: I(x)
            if t == 6:
                I(f"v_mul_f32 {v(vSS)}, {s(sM132)}, {v(vSS)}")
                I(f"v_lshrrev_b32 {v(vSS+1)}, 5, {v(vLANE)}")
            if t == 7: I(f"v_cmp_eq_u32 vcc, 0, {v(vSS+1)}")
            if t == 8: I(f"v_cndmask_b32 {v(vSS)}, 0, {v(vSS)}, vcc")
            if t == 9: I(f"v_cvt_pk_bf16_f32 {v(vSS)}, {v(vSS)}, 0")
            if t == 10: I(f"s_mov_b32 {s(sT3)}, 0x3e800000")
            if t == 12:
                I(f"v_mov_b32 {v(vNK2)}, {v(vSS)}")
                I(f"v_mov_b32 {v(vON2)}, 0x3f80")
            if t == 13:
                for i in range(1, 4):
                    I(f"v_mov_b32 {v(vON2+i)}, 0")
                    I(f"v_mov_b32 {v(vNK2+i)}, 0")
        I(f"v_mfma_f32_32x32x16_bf16 {v(vNQ2,16)}, {v(vNK2,4)}, {v(vON2,4)}, 0")
        def mimic_ops(mt, p4base):
            ops = []
            acc = lambda r: vA1 + 16*mt + r
            for g in range(2):
                prs = [4*g + i for i in range(4)]
                for i, p in enumerate(prs): ops.append(f"v_cvt_pk_bf16_f32 {v(vP1b+i)}, {v(acc(2*p))}, {v(acc(2*p+1))}")
                for i, p in enumerate(prs):
                    ops.append(f"v_lshlrev_b32 {v(vTb+2*i)}, 16, {v(vP1b+i)}")
                    ops.append(f"v_and_b32 {v(vTb+2*i+1)}, {s(sMASKH)}, {v(vP1b+i)}")
                for i, p in enumerate(prs):
                    ops.append(f"v_fma_f32 {v(vTb+2*i)}, {v(vTb+2*i)}, {s(sT3)}, {v(vNQ2+2*p)}")
                    ops.append(f"v_fma_f32 {v(vTb+2*i+1)}, {v(vTb+2*i+1)}, {s(sT3)}, {v(vNQ2+2*p+1)}")
                for i, p in enumerate(prs): ops.append(f"v_cvt_pk_bf16_f32 {v(vP1b+i)}, {v(vTb+2*i)}, {v(vTb+2*i+1)}")
                for i, p in enumerate(prs):
                    ops.append(f"v_lshlrev_b32 {v(vTb+2*i)}, 16, {v(vP1b+i)}")
                    ops.append(f"v_and_b32 {v(vTb+2*i+1)}, {s(sMASKH)}, {v(vP1b+i)}")
                for i in range(8): ops.append(f"v_mul_f32 {v(vTb+i)}, {s(sLOG2E)}, {v(vTb+i)}")
                for i in range(8): ops.append(f"v_exp_f32 {v(vTb+i)}, {v(vTb+i)}")
                for i in range(8): ops.append(f"v_fma_f32 {v(vTb+i)}, {v(vTb+i)}, {s(sC0125)}, {v(vEP2)}")
                for i, p in enumerate(prs): ops.append(f"v_cvt_pk_bf16_f32 {v(p4base+p)}, {v(vTb+2*i)}, {v(vTb+2*i+1)}")
            return ops
        ops0 = [f"v_mov_b32 {v(vEP2)}, {s(sEPS)}"] + mimic_ops(0, vP4)
        k = 0
        for t in range(16):
            c = "0" if t == 0 else v(vA1 + 16, 16)
            I(f"v_mfma_f32_32x32x16_bf16 {v(vA1+16,16)}, {v(vKF+4*t,4)}, {v(W(1,t),4)}, {c}")
            if t >= 1:
                n = opt.kshadow
                for x in ops0[k:k+n]: I(x)
                k += n
        stamp("A gemm1 done")
        for x in ops0[k:]: I(x)
        I(f"v_lshl_add_u32 {v(vX)}, {s(sTI)}, 12, {v(vL16)}")
        I(f"v_add_u32 {v(vX)}, {PHI}, {v(vX)}")
        for u in range(2):
            I(f"ds_write_b128 {v(vX)}, {v(vP4+4*u,4)} offset:{u*2048}")
        for x in mimic_ops(1, vP4 + 8): I(x)
        for u in range(2):
            I(f"ds_write_b128 {v(vX)}, {v(vP4+8+4*u,4)} offset:{u*2048 + 1024}")
        for mt in range(2):
            I(f"v_mov_b32 {v(vZP+mt)}, 0")
        for i in range(8):
            for mt in range(2):
                I(f"v_dot2c_f32_bf16 {v(vZP+mt)}, {s(sONES)}, {v(vP4+8*mt+i)}")
    for mt in range(2): I(f"v_mov_b32 {v(vX+1+mt)}, {v(vZP+mt)}")
    for mt in range(2): I(f"v_permlane32_swap_b32 {v(vZP+mt)}, {v(vX+1+mt)}")
    for mt in range(2): I(f"v_add_f32 {v(vZP+mt)}, {v(vZP+mt)}, {v(vX+1+mt)}")
    I(f"v_and_b32 {v(vX+1)}, 31, {v(vLANE)}")
    I(f"v_lshlrev_b32 {v(vX+1)}, 2, {v(vX+1)}")
    I(f"s_lshl_b32 {s(sT1)}, {s(sTI)}, 8")
    I(f"s_add_u32 {s(sT1)}, {s(sT1)}, {ZB}")
    I(f"v_add_u32 {v(vX+1)}, {s(sT1)}, {v(vX+1)}")
    I(f"ds_write_b32 {v(vX+1)}, {v(vZP)}")
    I(f"ds_write_b32 {v(vX+1)}, {v(vZP+1)} offset:128")
    I(f"s_waitcnt lgkmcnt(0)")
    stamp("A phi written")
    I(f"s_lshl_b32 {s(sT2)}, {s(sTI)}, 2")
    I(f"s_add_u32 {s(sT2)}, {s(sT2)}, {FLG}")
    lds_set(s(sT2))
    C("transposing-read addresses of the V slice (computed while waiting)")
    vPH = 128; vAC = 48; vVB = 112; vVA = 28; vPA = 30
    I(f"v_lshrrev_b32 {v(vT)}, 5, {v(vLANE)}")
    I(f"v_lshlrev_b32 {v(vT)}, 2, {v(vT)}")
    I(f"v_bfe_u32 {v(vT+1)}, {v(vLANE)}, 2, 2")
    I(f"v_add_u32 {v(vT)}, {v(vT)}, {v(vT+1)}")
    I(f"v_lshlrev_b32 {v(vT)}, 7, {v(vT)}")
    I(f"v_lshrrev_b32 {v(vT+1)}, 1, {v(vT+1)}")
    I(f"v_lshl_add_u32 {v(vT)}, {v(vT+1)}, 6, {v(vT)}")
    I(f"v_bfe_u32 {v(vT+1)}, {v(vLANE)}, 4, 1")
    I(f"v_lshl_add_u32 {v(vT)}, {v(vT+1)}, 5, {v(vT)}")
    I(f"v_and_b32 {v(vT+1)}, 3, {v(vLANE)}")
    I(f"v_lshl_add_u32 {v(vT)}, {v(vT+1)}, 3, {v(vT)}")
    I(f"s_lshl_b32 {s(sT1)}, {s(sTI)}, 14")
    I(f"s_add_u32 {s(sT1)}, {s(sT1)}, {VR}")
    I(f"v_add_u32 {v(vVA)}, {s(sT1)}, {v(vT)}")
    I(f"v_xor_b32 {v(vVA+1)}, 64, {v(vVA)}")
    I(f"v_add_u32 {v(vPA)}, {PHI}, {v(vL16)}")
    lds_wait(str(FLG), 4, "phi")
    stamp("A phi all")
    for f in range(16):
        I(f"ds_read_b128 {v(vPH+4*f,4)}, {v(vPA)} offset:{1024*f}")
    vVB = 192
    def vread(kk):
        b = vVB + 8*(kk % 4)
        for dl in range(2):
            for ap in range(2):
                I(f"ds_read_b64_tr_b16 {v(b+4*dl+2*ap,2)}, {v(vVA+dl)} offset:{kk*2048 + ap*1024}")
    def mm(kk, first):
        b = vVB + 8*(kk % 4)
        for dl in range(2):
            for mt in range(2):
                acc = vAC + (dl*2 + mt)*16
                c = "0" if first else v(acc, 16)
                I(f"v_mfma_f32_32x32x16_bf16 {v(acc,16)}, {v(vPH+4*(kk*2+mt),4)}, {v(b+4*dl,4)}, {c}")
    I(f"s_lshl_b32 {s(sT2)}, {s(sTI)}, 2")
    I(f"s_add_u32 {s(sT2)}, {s(sT2)}, {FLG + 16}")
    if opt.early: I(f"s_waitcnt vmcnt(0)")
    lds_wait(s(sT2), 1, "v1", tmp=26)
    stamp("A V1 ready")
    vread(0); vread(1); vread(2)
    for kk in range(8):
        rem = min(2, 7 - kk)
        if kk == 2:
            I(f"s_waitcnt lgkmcnt(4)")
        else:
            I(f"s_waitcnt lgkmcnt({4*rem})")
        mm(kk, kk == 0)
        if kk == 1:
            I(f"s_add_u32 {s(sT2)}, {s(sT2)}, 16")
            lds_wait(s(sT2), 1, "v2", tmp=26)
        if kk + 3 < 8: vread(kk + 3)
    stamp("A gemm2 done")
    if opt.fast:
        lds_wait(str(FLG + 56), 1, "md", tmp=26)
        I(f"v_mov_b32 {v(vT+1)}, {FLG + 48}")
        I(f"ds_read_b32 {v(vT+2)}, {v(vT+1)}")
    C("z partial inputs (wave 0)")
    I(f"v_lshlrev_b32 {v(vT+3)}, 2, {v(vLANE)}")
    I(f"v_add_u32 {v(vT+4)}, {ZB}, {v(vT+3)}")
    for a in range(4): I(f"ds_read_b32 {v(vT+6+a)}, {v(vT+4)} offset:{256*a}")
    vPK = 128
    for j in range(4):
        for i in range(8):
            I(f"v_cvt_pk_bf16_f32 {v(vPK+8*j+i)}, {v(vAC+16*j+2*i)}, {v(vAC+16*j+2*i+1)}")
    I(f"s_lshl_b32 {s(sT1)}, {s(sTI)}, 13")
    I(f"v_add_u32 {v(vT)}, {s(sT1)}, {v(vL16)}")
    I(f"s_lshl_b32 {s(sSOFF)}, {s(sCH)}, 15")
    I(f"s_add_u32 {s(sT2)}, {s(sSOFF)}, 4096")
    I(f"s_waitcnt lgkmcnt(0)")
    if opt.fast:
        I(f"v_readfirstlane_b32 {s(sFAST)}, {v(vT+2)}")
        I(f"s_cmp_eq_u32 {s(sFAST)}, {s(sNONCE)}")
        I(f"s_cselect_b32 {s(sFAST)}, 1, 0")
        if opt.stamps: I(f"s_mov_b32 s91, {s(sFAST)}")
    if opt.holdst:
        lds_wait(str(FLG + 112), 4, "qi", tmp=26)
    def st():
        for f in range(8):
            so = s(sSOFF) if f < 4 else s(sT2)
            I(f"buffer_store_dwordx4 {v(vPK+4*f,4)}, {v(vT)}, {s(rP,4)}, {so} offen offset:{(f%4)*1024}{pol()}")
    if opt.partplain: dual(st)
    else:
        POL[0] = opt.partpol; st(); POL[0] = " sc1"
    def psflag():
        I(f"s_lshl_b32 {s(sT1)}, {s(sTI)}, 2")
        I(f"s_add_u32 {s(sT1)}, {s(sT1)}, {FLG + 64}")
        lds_set(s(sT1), tmp=26)
    if opt.holdq or opt.holdall == "issued": psflag()
    I(f"s_cmp_eq_u32 {s(sTI)}, 0")
    I(f"s_cbranch_scc0 L_noz")
    I(f"v_add_f32 {v(vT+6)}, {v(vT+6)}, {v(vT+7)}")
    I(f"v_add_f32 {v(vT+8)}, {v(vT+8)}, {v(vT+9)}")
    I(f"v_add_f32 {v(vT+6)}, {v(vT+6)}, {v(vT+8)}")
    I(f"s_lshl_b32 {s(sSOFF)}, {s(sCH)}, 8")
    I(f"s_add_u32 {s(sSOFF)}, {s(sSOFF)}, {O_Z}")
    I(f"buffer_store_dword {v(vT+6)}, {v(vT+3)}, {s(rP,4)}, {s(sSOFF)} offen sc1")
    L("L_noz")
    C("addresses for the reduction: quarter tile a of tile 'chunk': fragment 2*chunk + (a>>1), lanes (a&1)*32 + (l&31); producer parity = l>>5")
    vR = 128
    I(f"s_lshl_b32 {s(sT1)}, {s(sCH)}, 11")
    I(f"s_lshl_b32 {s(sT2)}, {s(sTI)}, 9")
    I(f"s_add_u32 {s(sT3)}, {s(sT1)}, {s(sT2)}")
    I(f"v_and_b32 {v(vX)}, 31, {v(vLANE)}")
    I(f"v_lshlrev_b32 {v(vX)}, 4, {v(vX)}")
    I(f"v_add_u32 {v(vX)}, {s(sT3)}, {v(vX)}")
    I(f"v_lshrrev_b32 {v(vX+1)}, 5, {v(vLANE)}")
    I(f"v_lshl_add_u32 {v(vX+1)}, {v(vX+1)}, 15, {v(vX)}")
    I(f"s_waitcnt vmcnt(0)")
    stamp("A part drained")
    wave_flag(256)
    if opt.holdall == "drained": psflag()
    final_setup()
    poll(256, "h1")
    stamp("A hop1")
    I(f"s_mov_b32 {s(sSOFF)}, 0")
    for c in range(8):
        I(f"buffer_load_dwordx4 {v(vR+4*c,4)}, {v(vX+1)}, {s(rP,4)}, {s(sSOFF)} offen sc1")
        if c < 7: I(f"s_add_u32 {s(sSOFF)}, {s(sSOFF)}, 65536")
    if opt.holdall == "reduce": psflag()
    vZ = 192
    I(f"s_cmp_eq_u32 {s(sTI)}, 3")
    I(f"s_cbranch_scc0 L_noz2")
    I(f"s_mov_b32 {s(sSOFF)}, {O_Z}")
    for j in range(4):
        I(f"buffer_load_dwordx4 {v(vZ+4*j,4)}, {v(vL16)}, {s(rP,4)}, {s(sSOFF)} offen offset:{1024*j} sc1")
    L("L_noz2")
    vS = 176
    I(f"s_mov_b32 {s(sT1)}, 0x3f80")
    I(f"s_mov_b32 {s(sT2)}, 0x3f800000")
    for i in range(8): I(f"v_mov_b32 {v(vS+i)}, 0")
    C("(wave 3 has 4 younger loads in flight: its counted waits are conservative only if we wait for more, so wait per wave)")
    I(f"s_cmp_eq_u32 {s(sTI)}, 3")
    I(f"s_cbranch_scc1 L_red3")
    def red(extra):
        for c in range(8):
            I(f"s_waitcnt vmcnt({7-c+extra})")
            for i in range(4):
                I(f"v_dot2_f32_bf16 {v(vS+2*i)}, {v(vR+4*c+i)}, {s(sT1)}, {v(vS+2*i)}")
                I(f"v_dot2_f32_bf16 {v(vS+2*i+1)}, {v(vR+4*c+i)}, {s(sT2)}, {v(vS+2*i+1)}")
    red(0)
    I(f"s_branch L_redd")
    L("L_red3")
    red(4)
    L("L_redd")
    stamp("A red summed")
    for i in range(8): I(f"v_mov_b32 {v(vS+8+i)}, {v(vS+i)}")
    for i in range(8): I(f"v_permlane32_swap_b32 {v(vS+i)}, {v(vS+8+i)}")
    for i in range(8): I(f"v_add_f32 {v(vS+i)}, {v(vS+i)}, {v(vS+8+i)}")
    for i in range(4): I(f"v_cvt_pk_bf16_f32 {v(vS+i)}, {v(vS+2*i)}, {v(vS+2*i+1)}")
    I(f"s_mov_b32 {s(sSOFF)}, {O_F}")
    I(f"s_mov_b32 exec_hi, 0")
    dual(lambda: I(f"buffer_store_dwordx4 {v(vS,4)}, {v(vX)}, {s(rP,4)}, {s(sSOFF)} offen{pol()}"))
    I(f"s_mov_b64 exec, -1")
    C("z (wave 3): lane l holds m = 4*(l&15)..+3 of producer 4j + (l>>4)")
    I(f"s_cmp_eq_u32 {s(sTI)}, 3")
    I(f"s_cbranch_scc0 L_noz3")
    I(f"s_waitcnt vmcnt(1)")
    for i in range(4):
        I(f"v_add_f32 {v(vZ+i)}, {v(vZ+i)}, {v(vZ+4+i)}")
        I(f"v_add_f32 {v(vZ+8+i)}, {v(vZ+8+i)}, {v(vZ+12+i)}")
    for i in range(4): I(f"v_add_f32 {v(vZ+i)}, {v(vZ+i)}, {v(vZ+8+i)}")
    for i in range(4): I(f"v_mov_b32 {v(vZ+4+i)}, {v(vZ+i)}")
    for i in range(4): I(f"v_permlane32_swap_b32 {v(vZ+i)}, {v(vZ+4+i)}")
    for i in range(4): I(f"v_add_f32 {v(vZ+i)}, {v(vZ+i)}, {v(vZ+4+i)}")
    for i in range(4): I(f"v_mov_b32 {v(vZ+4+i)}, {v(vZ+i)}")
    for i in range(4): I(f"v_permlane16_swap_b32 {v(vZ+i)}, {v(vZ+4+i)}")
    for i in range(4): I(f"v_add_f32 {v(vZ+i)}, {v(vZ+i)}, {v(vZ+4+i)}")
    I(f"v_cvt_pk_bf16_f32 {v(vZ)}, {v(vZ)}, {v(vZ+1)}")
    I(f"v_cvt_pk_bf16_f32 {v(vZ+1)}, {v(vZ+2)}, {v(vZ+3)}")
    I(f"v_and_b32 {v(vZ+2)}, 15, {v(vLANE)}")
    I(f"v_lshlrev_b32 {v(vZ+2)}, 3, {v(vZ+2)}")
    I(f"v_add_u32 {v(vZ+2)}, {ZF}, {v(vZ+2)}")
    I(f"ds_write_b64 {v(vZ+2)}, {v(vZ,2)}")
    I(f"s_waitcnt lgkmcnt(0)")
    lds_set(str(FLG + 52))
    L("L_noz3")
    I(f"s_waitcnt vmcnt(0)")
    stamp("A reduced+drained")
    wave_flag(512)
    C("chunk 0 advances the epoch (all 16 workgroups of the head have read it)")
    I(f"s_cmp_eq_u32 {s(sCH)}, 0")
    I(f"s_cbranch_scc0 L_noep")
    I(f"s_cmp_eq_u32 {s(sTI)}, 1")
    I(f"s_cbranch_scc0 L_noep")
    I(f"s_mov_b64 exec, 1")
    I(f"v_mov_b32 {v(vT)}, 0")
    I(f"v_mov_b32 {v(vT+1)}, {s(sNONCE)}")
    I(f"s_mov_b32 {s(sT1)}, {O_FL}")
    I(f"buffer_store_dword {v(vT+1)}, {v(vT)}, {s(rP,4)}, {s(sT1)} offen sc1")
    I(f"s_mov_b64 exec, -1")
    L("L_noep")
    phiq_frags("a")
    STI[0] = 13
    I(f"s_branch L_final")

vPQ8 = 32
vKA = 64
vOP = 96
vAC3 = 128
vST = 192
vKG, vPA2, vRA, vSW, vSR, vOA, vU = 2, 3, 4, 5, 6, 7, 20
vRDS = 12
vRD = 4

def capture(fn):
    n = len(A.items)
    fn()
    got = [x.text for k, x in A.items[n:] if k == "i"]
    del A.items[n:]
    return got

def final_setup():
    I(f"s_and_b32 {s(sT3)}, {s(sWAVE)}, 3")
    I(f"s_lshr_b32 {s(sT2)}, {s(sWAVE)}, 2")
    I(f"v_bfe_u32 {v(vU+1)}, {v(vLANE)}, 2, 1")
    I(f"v_lshlrev_b32 {v(vU+1)}, 4, {v(vU+1)}")
    I(f"v_bfe_u32 {v(vU+2)}, {v(vLANE)}, 3, 2")
    I(f"v_lshl_add_u32 {v(vU+1)}, {v(vU+2)}, 2, {v(vU+1)}")
    I(f"v_and_b32 {v(vU+2)}, 3, {v(vLANE)}")
    I(f"v_add_u32 {v(vU+1)}, {v(vU+1)}, {v(vU+2)}")
    I(f"v_and_b32 {v(vU+2)}, 32, {v(vLANE)}")
    I(f"v_add_u32 {v(vU+1)}, {v(vU+1)}, {v(vU+2)}")
    I(f"v_lshlrev_b32 {v(vKG)}, 4, {v(vU+1)}")
    C("phi_q fragments of q tiles 2hq, 2hq+1; 1/den")
    I(f"s_lshl_b32 {s(sT1)}, {s(sT2)}, 15")
    I(f"s_add_u32 {s(sT1)}, {s(sT1)}, {QR}")
    I(f"v_add_u32 {v(vPA2)}, {s(sT1)}, {v(vL16)}")
    I(f"s_lshl_b32 {s(sT1)}, {s(sT2)}, 9")
    I(f"s_add_u32 {s(sT1)}, {s(sT1)}, {RD}")
    I(f"v_lshlrev_b32 {v(vRA)}, 2, {v(vLANE)}")
    I(f"v_add_u32 {v(vRA)}, {s(sT1)}, {v(vRA)}")
    C("private staging [2 q tiles][32 rows][128 B]: piece = 4 dl + 2 h + u, slot = piece ^ (row & 7)")
    I(f"s_lshl_b32 {s(sT1)}, {s(sWAVE)}, 13")
    I(f"s_add_u32 {s(sT1)}, {s(sT1)}, {VR}")
    I(f"v_lshrrev_b32 {v(vU+1)}, 5, {v(vLANE)}")
    I(f"v_lshlrev_b32 {v(vU+2)}, 1, {v(vU+1)}")
    I(f"v_and_b32 {v(vU+3)}, 7, {v(vLANE)}")
    I(f"v_xor_b32 {v(vU+2)}, {v(vU+2)}, {v(vU+3)}")
    I(f"v_lshlrev_b32 {v(vU+2)}, 4, {v(vU+2)}")
    I(f"v_and_b32 {v(vU+3)}, 31, {v(vLANE)}")
    I(f"v_lshl_add_u32 {v(vSW)}, {v(vU+3)}, 7, {v(vU+2)}")
    I(f"v_add_u32 {v(vSW)}, {s(sT1)}, {v(vSW)}")
    C("read back: row 8j + (l>>3), piece l&7")
    I(f"v_lshrrev_b32 {v(vU+1)}, 3, {v(vLANE)}")
    I(f"v_and_b32 {v(vU+2)}, 7, {v(vLANE)}")
    I(f"v_xor_b32 {v(vU+3)}, {v(vU+2)}, {v(vU+1)}")
    I(f"v_lshlrev_b32 {v(vU+3)}, 4, {v(vU+3)}")
    I(f"v_lshl_add_u32 {v(vSR)}, {v(vU+1)}, 7, {v(vU+3)}")
    I(f"v_add_u32 {v(vSR)}, {s(sT1)}, {v(vSR)}")
    C("output offset: (64 hq + (l>>3))*512 + p*128 + (l&7)*16")
    I(f"v_lshlrev_b32 {v(vU+2)}, 4, {v(vU+2)}")
    I(f"v_lshl_add_u32 {v(vOA)}, {v(vU+1)}, 9, {v(vU+2)}")
    I(f"s_lshl_b32 {s(sT1)}, {s(sT2)}, 15")
    I(f"s_lshl_b32 {s(sT2)}, {s(sT3)}, 7")
    I(f"s_add_u32 {s(sT1)}, {s(sT1)}, {s(sT2)}")
    I(f"v_add_u32 {v(vOA)}, {s(sT1)}, {v(vOA)}")

def team_b():
    C("================= team B =================")
    L("L_team_b")
    STI[0] = 2
    def preread():
        if opt.preread:
            C("bring the 2 KiB of the final kv image this workgroup writes into L2 (waves B0, B1: 1 KiB each)")
            I(f"s_cmp_lt_u32 {s(sTI)}, 2")
            I(f"s_cbranch_scc0 L_nopre")
            I(f"s_lshl_b32 {s(sT1)}, {s(sCH)}, 11")
            I(f"s_lshl_b32 {s(sT2)}, {s(sTI)}, 10")
            I(f"s_add_u32 {s(sT1)}, {s(sT1)}, {s(sT2)}")
            I(f"s_add_u32 {s(sT1)}, {s(sT1)}, {O_F}")
            I(f"buffer_load_dwordx4 {v(32,4)}, {v(vL16)}, {s(rP,4)}, {s(sT1)} offen")
            L("L_nopre")
    if not opt.early: preread()
    def pres_load(tag):
        if not opt.fast: return
        I(f"s_cmp_eq_u32 {s(sTI)}, 0")
        I(f"s_cbranch_scc0 L_nochk0{tag}")
        I(f"s_load_dwordx8 {s(20,8)}, {s(sEPA,2)}, {O_FL + 128} glc")
        I(f"s_load_dwordx8 {s(44,8)}, {s(sEPA,2)}, {O_FL + 160} glc")
        L(f"L_nochk0{tag}")
    def mode_check():
        if not opt.fast: return
        I(f"s_cmp_eq_u32 {s(sTI)}, 0")
        I(f"s_cbranch_scc0 L_nochk1")
        I(f"s_mov_b32 {s(sSPIN)}, 0")
        L("L_chk")
        I(f"s_waitcnt lgkmcnt(0)")
        I(f"s_mov_b32 {s(sT1)}, {s(sNONCE)}")
        I(f"s_not_b32 {s(sT2)}, {s(sNONCE)}")
        I(f"s_mov_b32 {s(sT3)}, 1")
        for j in range(16):
            r = (20 if j < 8 else 36) + j
            I(f"s_cmp_eq_u32 {s(r)}, {s(sPRES)}")
            I(f"s_cselect_b32 {s(sT1)}, {s(sT1)}, {s(sT2)}")
            I(f"s_lshr_b32 {s(r)}, {s(r)}, 4")
            I(f"s_lshr_b32 {s(sFAST)}, {s(sPRES)}, 4")
            I(f"s_cmp_eq_u32 {s(r)}, {s(sFAST)}")
            I(f"s_cselect_b32 {s(sT3)}, {s(sT3)}, 0")
        I(f"s_cmp_eq_u32 {s(sT3)}, 1")
        I(f"s_cbranch_scc1 L_chkd")
        I(f"s_add_u32 {s(sSPIN)}, {s(sSPIN)}, 1")
        I(f"s_cmp_ge_u32 {s(sSPIN)}, 12")
        I(f"s_cbranch_scc1 L_chkd")
        I(f"s_load_dwordx8 {s(20,8)}, {s(sEPA,2)}, {O_FL + 128} glc")
        I(f"s_load_dwordx8 {s(44,8)}, {s(sEPA,2)}, {O_FL + 160} glc")
        I(f"s_branch L_chk")
        L("L_chkd")
        if opt.forceslow: I(f"s_mov_b32 {s(sT1)}, {s(sT2)}")
        lds_set(str(FLG + 48), val=s(sT1))
        lds_set(str(FLG + 56))
        I(f"s_waitcnt lgkmcnt(0)")
        L("L_nochk1")
    def vflag(k):
        I(f"s_lshl_b32 {s(sT3)}, {s(sTI)}, 2")
        I(f"s_add_u32 {s(sT3)}, {s(sT3)}, {FLG + 16 + 16*k}")
        lds_set(s(sT3))
    VF[0] = vflag
    if opt.early:
        read_omega(QR)
        I(f"s_waitcnt vmcnt(4) lgkmcnt(0)")
        I(f"s_barrier")
        stamp("B B1")
        I(f"s_barrier")
        preread()
        I(f"s_mov_b32 {s(sT3)}, 8")
        v_issue(30, s(sT3), 8)
        I(f"s_lshl_b32 {s(sSOFF)}, {s(sTI)}, 14")
        for i in range(2): dma_row_instr(rQ, QR, i)
        I(f"s_waitcnt vmcnt(10)")
        vflag(0)
        pres_load("e")
        stamp("B V1 landed")
        for i in range(2, 8): dma_row_instr(rQ, QR, i)
        I(f"s_waitcnt vmcnt(8)")
        vflag(1)
        mode_check()
        stamp("B V2 landed")
        nh = opt.holdq
        for i in range(8, 16 - nh): dma_row_instr(rQ, QR, i)
        if opt.holdst:
            I(f"s_lshl_b32 {s(sT3)}, {s(sTI)}, 2")
            I(f"s_add_u32 {s(sT3)}, {s(sT3)}, {FLG + 112}")
            lds_set(s(sT3))
        if nh:
            lds_wait(str(FLG + 64), 4, "hq")
            for i in range(16 - nh, 16): dma_row_instr(rQ, QR, i)
        stamp("B q issued")
        I(f"s_waitcnt vmcnt(0)")
        stamp("B q landed")
    elif opt.kqv:
        I(f"s_lshl_b32 {s(sSOFF)}, {s(sTI)}, 14")
        for i in range(16): dma_row_instr(rQ, QR, i)
        I(f"s_waitcnt vmcnt(16)")
        I(f"s_barrier")
        stamp("B B1")
        read_omega(QR)
        I(f"s_waitcnt lgkmcnt(0)")
        I(f"s_barrier")
        dma_v()
        if opt.fast:
            I(f"s_cmp_eq_u32 {s(sTI)}, 0")
            I(f"s_cbranch_scc0 L_nochk0")
            I(f"s_load_dwordx8 {s(20,8)}, {s(sEPA,2)}, {O_FL + 128} glc")
            I(f"s_load_dwordx8 {s(44,8)}, {s(sEPA,2)}, {O_FL + 160} glc")
            L("L_nochk0")
        stamp("B v issued")
        I(f"s_waitcnt vmcnt(16)")
        stamp("B q landed")
        mode_check()
    else:
        if opt.bomega: read_omega(QR)
        dma_v()
        I(f"s_waitcnt vmcnt(16)")
        if opt.bomega: I(f"s_waitcnt lgkmcnt(0)")
        I(f"s_barrier")
        stamp("B B1")
        if not opt.bomega:
            read_omega(QR)
            I(f"s_waitcnt lgkmcnt(0)")
        I(f"s_barrier")
        if opt.fast:
            I(f"s_cmp_eq_u32 {s(sTI)}, 0")
            I(f"s_cbranch_scc0 L_nochk0")
            I(f"s_load_dwordx8 {s(20,8)}, {s(sEPA,2)}, {O_FL + 128} glc")
            I(f"s_load_dwordx8 {s(44,8)}, {s(sEPA,2)}, {O_FL + 160} glc")
            L("L_nochk0")
        def pace_signal():
            if not opt.stagger: return
            PS[0] += 1
            I(f"s_and_b32 {s(sT1)}, {s(sHEAD)}, 1")
            I(f"s_or_b32 {s(sT1)}, {s(sT1)}, {s(sTI)}")
            I(f"s_cmp_eq_u32 {s(sT1)}, 0")
            I(f"s_cbranch_scc0 L_nosigp{PS[0]}")
            I(f"s_lshl_b32 {s(sT1)}, {s(sCH)}, 2")
            I(f"s_add_u32 {s(sT1)}, {s(sT1)}, {O_FL + 768}")
            I(f"s_mov_b64 exec, 1")
            I(f"v_mov_b32 {v(vX+4)}, 0")
            I(f"v_mov_b32 {v(vX+5)}, {s(sNONCE)}")
            I(f"buffer_store_dword {v(vX+5)}, {v(vX+4)}, {s(rP,4)}, {s(sT1)} offen sc1")
            I(f"s_mov_b64 exec, -1")
            L(f"L_nosigp{PS[0]}")
        def pre(i):
            I(f"s_add_u32 {s(sT1)}, {s(sT0)}, {1024*i}")
            I(f"buffer_load_dwordx4 {v(32+4*(i%8),4)}, {v(vL16)}, {s(rP,4)}, {s(sT1)} offen{opt.prepol}")
        if opt.holdall:
            I(f"s_waitcnt vmcnt(8)")
            mode_check()
            vflag(0)
            stamp("B V1 landed")
            I(f"s_waitcnt vmcnt(0)")
            vflag(1)
            stamp("B V2 landed")
            lds_wait(str(FLG + 64), 4, "hq")
            I(f"s_lshl_b32 {s(sSOFF)}, {s(sTI)}, 14")
            for i in range(16): dma_row_instr(rQ, QR, i)
            stamp("B q issued")
            I(f"s_waitcnt vmcnt(0)")
            stamp("B q landed")
        if opt.pacept == "b2" and not opt.holdall: pace_signal()
        if not opt.holdall:
            if opt.prepart:
                I(f"s_lshl_b32 {s(sT0)}, {s(sCH)}, 15")
                I(f"s_lshl_b32 {s(sT1)}, {s(sTI)}, 13")
                I(f"s_add_u32 {s(sT0)}, {s(sT0)}, {s(sT1)}")
                for i in range(4): pre(i)
            else:
                I(f"s_lshl_b32 {s(sSOFF)}, {s(sTI)}, 14")
                for i in range(4): dma_row_instr(rQ, QR, i)
            I(f"s_waitcnt vmcnt(12)")
            I(f"s_lshl_b32 {s(sT3)}, {s(sTI)}, 2")
            I(f"s_add_u32 {s(sT3)}, {s(sT3)}, {FLG + 16}")
            if opt.fast:
                I(f"s_cmp_eq_u32 {s(sTI)}, 0")
                I(f"s_cbranch_scc0 L_nochk1")
                I(f"s_waitcnt lgkmcnt(0)")
                I(f"s_mov_b32 {s(sT1)}, {s(sNONCE)}")
                I(f"s_not_b32 {s(sT2)}, {s(sNONCE)}")
                for j in range(16):
                    I(f"s_cmp_eq_u32 {s((20 if j < 8 else 36) + j)}, {s(sPRES)}")
                    I(f"s_cselect_b32 {s(sT1)}, {s(sT1)}, {s(sT2)}")
                if opt.forceslow: I(f"s_mov_b32 {s(sT1)}, {s(sT2)}")
                lds_set(str(FLG + 48), val=s(sT1))
                lds_set(str(FLG + 56))
                I(f"s_waitcnt lgkmcnt(0)")
                L("L_nochk1")
            lds_set(s(sT3))
            if opt.pacept == "v1": pace_signal()
            stamp("B V1 landed")
            if opt.prepart:
                for i in range(4, 8): pre(i)
            else:
                for i in range(4, 8): dma_row_instr(rQ, QR, i)
            I(f"s_waitcnt vmcnt(8)")
            I(f"s_add_u32 {s(sT3)}, {s(sT3)}, 16")
            lds_set(s(sT3))
            if opt.pacept == "v2": pace_signal()
            stamp("B V2 landed")
            if opt.prepart:
                I(f"s_lshl_b32 {s(sSOFF)}, {s(sTI)}, 14")
                for i in range(16): dma_row_instr(rQ, QR, i)
            else:
                nh = opt.holdq
                for i in range(8, 16 - nh): dma_row_instr(rQ, QR, i)
                if nh:
                    I(f"s_lshl_b32 {s(sT3)}, {s(sTI)}, 2")
                    I(f"s_add_u32 {s(sT3)}, {s(sT3)}, {FLG + 64}")
                    lds_wait(s(sT3), 1, "hq")
                    for i in range(16 - nh, 16): dma_row_instr(rQ, QR, i)
            if opt.pacept == "q": pace_signal()
            if opt.holdst:
                I(f"s_lshl_b32 {s(sT3)}, {s(sTI)}, 2")
                I(f"s_add_u32 {s(sT3)}, {s(sT3)}, {FLG + 112}")
                lds_set(s(sT3))
            stamp("B q issued")
            I(f"s_waitcnt vmcnt(0)")
            stamp("B q landed")
    read_tile_frags()
    I(f"s_waitcnt lgkmcnt(0)")
    ssq()
    steps = ssq_reduce_steps()
    fs = capture(final_setup) if opt.bsetup else []
    kf = 0
    for t in range(16):
        c = "0" if t == 0 else v(vA1, 16)
        I(f"v_mfma_f32_32x32x16_bf16 {v(vA1,16)}, {v(W(0,t),4)}, {v(vKF+4*t,4)}, {c}")
        if 1 <= t <= 5:
            for x in steps[t-1]: I(x)
        if t == 6: I(f"v_mul_f32 {v(vSS)}, {s(sM132)}, {v(vSS)}")
        if not opt.mimicq:
            if t == 7: I(f"v_mul_f32 {v(vSS)}, {s(sLOG2E)}, {v(vSS)}")
            if t == 8: I(f"s_mov_b32 {s(sC025L)}, 0x3eb8aa3b")
            if t == 9: I(f"v_mov_b32 {v(vSS+3)}, {s(sEPS)}")
        n = 3 if t < 15 else len(fs) - kf
        for x in fs[kf:kf+n]: I(x)
        kf += n
    vY = 20
    vQ0 = 12
    vQ1 = 112
    def plain_ops(mt, dst):
        ops = []
        acc = lambda r: vA1 + 16*mt + r
        for g in range(2):
            for i in range(8): ops.append(f"v_fma_f32 {v(vY+i)}, {v(acc(8*g+i))}, {s(sC025L)}, {v(vSS)}")
            for i in range(8): ops.append(f"v_exp_f32 {v(vY+i)}, {v(vY+i)}")
            for i in range(8): ops.append(f"v_fma_f32 {v(vY+i)}, {v(vY+i)}, {s(sC0125)}, {v(vSS+3)}")
            for i in range(4): ops.append(f"v_cvt_pk_bf16_f32 {v(dst+4*g+i)}, {v(vY+2*i)}, {v(vY+2*i+1)}")
        return ops
    if not opt.mimicq:
        ops0 = plain_ops(0, vQ0)
        k = 0
        for t in range(16):
            c = "0" if t == 0 else v(vA1 + 16, 16)
            I(f"v_mfma_f32_32x32x16_bf16 {v(vA1+16,16)}, {v(W(1,t),4)}, {v(vKF+4*t,4)}, {c}")
            if t >= 1:
                n = 4 if t < 15 else len(ops0) - k
                for x in ops0[k:k+n]: I(x)
                k += n
        stamp("B gemm1 done")
        if opt.kqv:
            I(f"s_waitcnt vmcnt(8)")
            VF[0](0)
        for x in plain_ops(1, vPO + 8): I(x)
        if opt.kqv:
            I(f"s_waitcnt vmcnt(0)")
            VF[0](1)
            stamp("B V2 landed")
        for i in range(8): I(f"v_mov_b32 {v(vPO+i)}, {v(vQ0+i)}")
    else:
        for t in range(16):
            c = "0" if t == 0 else v(vA1 + 16, 16)
            I(f"v_mfma_f32_32x32x16_bf16 {v(vA1+16,16)}, {v(W(1,t),4)}, {v(vKF+4*t,4)}, {c}")
        stamp("B gemm1 done")
        I(f"v_mov_b32 {v(vEPS)}, {s(sEPS)}")
        I(f"v_cvt_pk_bf16_f32 {v(vSS)}, {v(vSS)}, 0")
        I(f"v_lshlrev_b32 {v(vNQ)}, 16, {v(vSS)}")
        for mt in range(2):
            pipeline_mimic(mt, lambda r: vNQ, vP4 + 8*mt)
        for i in range(16): I(f"v_mov_b32 {v(vPO+i)}, {v(vP4+i)}")
    I(f"s_lshl_b32 {s(sT1)}, {s(sTI)}, 14")
    I(f"s_add_u32 {s(sT1)}, {s(sT1)}, {QR}")
    I(f"v_add_u32 {v(vX)}, {s(sT1)}, {v(vL16)}")
    for t in range(4):
        I(f"ds_write_b128 {v(vX)}, {v(vPO+4*t,4)} offset:{t*1024}")
    I(f"s_waitcnt lgkmcnt(0)")
    I(f"s_lshl_b32 {s(sT1)}, {s(sTI)}, 2")
    I(f"s_add_u32 {s(sT1)}, {s(sT1)}, {FLG + 80}")
    lds_set(s(sT1))
    stamp("B phiq done")
    if not opt.bsetup: final_setup()
    phiq_frags("b")
    C("den = phi_q . z once z is there")
    vZF = 112; vDEN = 24; vRD = 28
    lds_wait(str(FLG + 52), 1, "z", tmp=vU)
    I(f"v_lshrrev_b32 {v(vDEN)}, 5, {v(vLANE)}")
    I(f"v_lshlrev_b32 {v(vDEN)}, 3, {v(vDEN)}")
    I(f"v_add_u32 {v(vDEN)}, {ZF}, {v(vDEN)}")
    for t in range(4):
        I(f"ds_read2_b64 {v(vZF+4*t,4)}, {v(vDEN)} offset0:{4*t} offset1:{4*t+2}")
    I(f"v_mov_b32 {v(vDEN+2)}, 0")
    I(f"v_mov_b32 {v(vDEN+3)}, 0")
    I(f"s_waitcnt lgkmcnt(0)")
    for i in range(16):
        I(f"v_dot2c_f32_bf16 {v(vDEN+2+(i&1))}, {v(vPO+i)}, {v(vZF+i)}")
    I(f"v_add_f32 {v(vDEN)}, {v(vDEN+2)}, {v(vDEN+3)}")
    I(f"v_mov_b32 {v(vDEN+1)}, {v(vDEN)}")
    I(f"v_permlane32_swap_b32 {v(vDEN)}, {v(vDEN+1)}")
    I(f"v_add_f32 {v(vDEN)}, {v(vDEN)}, {v(vDEN+1)}")
    I(f"v_cvt_pk_bf16_f32 {v(vDEN)}, {v(vDEN)}, {v(vDEN)}")
    I(f"v_lshlrev_b32 {v(vDEN)}, 16, {v(vDEN)}")
    I(f"v_add_f32 {v(vDEN)}, {s(sEPS)}, {v(vDEN)}")
    I(f"v_cvt_pk_bf16_f32 {v(vDEN)}, {v(vDEN)}, {v(vDEN)}")
    I(f"v_lshlrev_b32 {v(vDEN)}, 16, {v(vDEN)}")
    I(f"v_rcp_f32 {v(vRD)}, {v(vDEN)}")
    I(f"v_fma_f32 {v(vDEN+1)}, -{v(vDEN)}, {v(vRD)}, 1.0")
    I(f"v_fma_f32 {v(vRD)}, {v(vDEN+1)}, {v(vRD)}, {v(vRD)}")
    I(f"s_lshl_b32 {s(sT1)}, {s(sTI)}, 8")
    I(f"s_add_u32 {s(sT1)}, {s(sT1)}, {RD}")
    I(f"v_lshlrev_b32 {v(vDEN)}, 2, {v(vLANE)}")
    I(f"v_add_u32 {v(vDEN)}, {s(sT1)}, {v(vDEN)}")
    I(f"ds_write_b32 {v(vDEN)}, {v(vRD)}")
    I(f"s_waitcnt lgkmcnt(0)")
    I(f"s_lshl_b32 {s(sT1)}, {s(sTI)}, 2")
    I(f"s_add_u32 {s(sT1)}, {s(sT1)}, {FLG + 96}")
    lds_set(s(sT1))
    if opt.fast:
        I(f"v_mov_b32 {v(vDEN)}, {FLG + 48}")
        I(f"ds_read_b32 {v(vDEN+1)}, {v(vDEN)}")
        I(f"s_waitcnt lgkmcnt(0)")
        I(f"v_readfirstlane_b32 {s(sFAST)}, {v(vDEN+1)}")
        I(f"s_cmp_eq_u32 {s(sFAST)}, {s(sNONCE)}")
        I(f"s_cselect_b32 {s(sFAST)}, 1, 0")
    stamp("B den done")
    STI[0] = 13

def phiq_frags(tag):
    C("phi_q of the two q tiles")
    I(f"s_lshr_b32 {s(sT1)}, {s(sWAVE)}, 2")
    I(f"s_lshl_b32 {s(sT1)}, {s(sT1)}, 3")
    I(f"s_add_u32 {s(sSOFF)}, {s(sT1)}, {FLG + 80}")
    lds_wait(s(sSOFF), 2, "pq" + tag, tmp=vU)
    for qi in range(2):
        for t in range(4):
            I(f"ds_read_b128 {v(vPQ8+16*qi+4*t,4)}, {v(vPA2)} offset:{qi*16384 + t*1024}")

def final():
    L("L_final")
    C("================= final: wave w = d tiles 2p,2p+1 x q tiles 2hq,2hq+1; no workgroup barrier =================")
    stamp("F phiq read")
    C("flags of the four reducing workgroups 4p..4p+3 (16 words)")
    I(f"s_and_b32 {s(sT3)}, {s(sWAVE)}, 3")
    I(f"s_lshl_b32 {s(sT2)}, {s(sT3)}, 6")
    I(f"s_add_u32 {s(sT2)}, {s(sT2)}, {O_FL + 512}")
    I(f"s_mov_b32 {s(sSPIN)}, 0")
    I(f"v_and_b32 {v(vU)}, 15, {v(vLANE)}")
    I(f"v_lshlrev_b32 {v(vU)}, 2, {v(vU)}")
    L("L_spin_h2")
    I(f"buffer_load_dword {v(vU+1)}, {v(vU)}, {s(rP,4)}, {s(sT2)} offen sc1")
    I(f"s_waitcnt vmcnt(0)")
    I(f"v_cmp_ne_u32 vcc, {s(sNONCE)}, {v(vU+1)}")
    I(f"s_cbranch_vccz L_spun_h2")
    I(f"s_cmp_lg_u32 {s(sFAST)}, 0")
    I(f"s_cbranch_scc1 L_nap_h2")
    I(f"s_sleep 12")
    L("L_nap_h2")
    I(f"s_add_u32 {s(sSPIN)}, {s(sSPIN)}, 1")
    I(f"s_cmp_lt_u32 {s(sSPIN)}, {opt.spin_limit}")
    I(f"s_cbranch_scc1 L_spin_h2")
    L("L_spun_h2")
    stamp("F hop2")
    I(f"s_lshl_b32 {s(sT1)}, {s(sT3)}, 13")
    I(f"s_add_u32 {s(sT1)}, {s(sT1)}, {O_F}")
    I(f"s_add_u32 {s(sT2)}, {s(sT1)}, 4096")
    for dl in range(2):
        for t in range(4):
            I(f"buffer_load_dwordx4 {v(vKA+16*dl+4*t,4)}, {v(vKG)}, {s(rP,4)}, {s(sT1 if dl == 0 else sT2)} offen offset:{t*1024} sc1")
    I(f"s_lshr_b32 {s(sT1)}, {s(sWAVE)}, 2")
    I(f"s_lshl_b32 {s(sT1)}, {s(sT1)}, 3")
    I(f"s_add_u32 {s(sSOFF)}, {s(sT1)}, {FLG + 96}")
    lds_wait(s(sSOFF), 2, "rd", tmp=vU)
    for qi in range(2):
        I(f"ds_read_b32 {v(vRDS+2*qi)}, {v(vRA)} offset:{256*qi}")
    so = [74, 75, 76, 77, 78, 79, 80, 81] if not opt.stamps else None
    def mm(qi, dl):
        acc = vAC3 + 16*(2*qi + dl)
        for t in range(4):
            c = "0" if t == 0 else v(acc, 16)
            I(f"v_mfma_f32_32x32x16_bf16 {v(acc,16)}, {v(vKA+16*dl+4*t,4)}, {v(vPQ8+16*qi+4*t,4)}, {c}")
    def epi(qi, dl):
        acc = vAC3 + 16*(2*qi + dl); op = vOP + 16*qi + 8*dl
        if opt.mimicnum:
            for k in range(8): I(f"v_cvt_pk_bf16_f32 {v(op+k)}, {v(acc+2*k)}, {v(acc+2*k+1)}")
            for k in range(8):
                I(f"v_lshlrev_b32 {v(acc+2*k)}, 16, {v(op+k)}")
                I(f"v_and_b32 {v(acc+2*k+1)}, {s(sMASKH)}, {v(op+k)}")
        for k in range(8): I(f"v_pk_mul_f32 {v(acc+2*k,2)}, {v(acc+2*k,2)}, {v(vRDS+2*qi,2)} op_sel_hi:[1,0]")
        for k in range(8): I(f"v_cvt_pk_bf16_f32 {v(op+k)}, {v(acc+2*k)}, {v(acc+2*k+1)}")
        for u in range(2):
            x = 64*dl + 16*u
            reg = vSW if x == 0 else vU + (x // 16 - 1 if x < 64 else x // 16 - 3)
            I(f"ds_write_b128 {v(reg)}, {v(op+4*u,4)} offset:{4096*qi}")
    def R(qi):
        for j in range(4):
            I(f"ds_read_b128 {v(vST+16*qi+4*j,4)}, {v(vSR)} offset:{4096*qi + 1024*j}")
    def S(qi):
        for j in range(4):
            row = 32*qi + 8*j
            I(f"s_mov_b32 {s(sSOFF)}, {row*512}")
            I(f"s_waitcnt lgkmcnt({3-j})")
            I(f"buffer_store_dwordx4 {v(vST+16*qi+4*j,4)}, {v(vOA)}, {s(rO,4)}, {s(sSOFF)} offen{opt.ost}")
    I(f"v_xor_b32 {v(vU)}, 16, {v(vSW)}")
    I(f"v_xor_b32 {v(vU+1)}, 64, {v(vSW)}")
    I(f"v_xor_b32 {v(vU+2)}, 80, {v(vSW)}")
    I(f"s_waitcnt vmcnt(4) lgkmcnt(0)")
    stamp("F kv there")
    mm(0, 0)
    I(f"s_waitcnt vmcnt(0)")
    mm(0, 1)
    epi(0, 0)
    mm(1, 0)
    epi(0, 1)
    I(f"s_waitcnt lgkmcnt(0)")
    R(0)
    mm(1, 1)
    S(0)
    epi(1, 0)
    epi(1, 1)
    I(f"s_waitcnt lgkmcnt(0)")
    R(1)
    S(1)
    STI[0] = 18
    stamp("stores issued")
    if opt.stamps: I("s_waitcnt vmcnt(0)")
    stamp("stores done")
    stamps_flush("f")

def build():
    set_regions(opt.kqv)
    common_start()
    I(f"s_cmp_ge_u32 {s(sWAVE)}, 4")
    I(f"s_cbranch_scc1 L_team_b")
    team_a()
    team_b()
    final()
    L("L_end")
    I("s_endpgm")
    body = A.render()
    hdr = f"""; fused RFA linear attention: 256 workgroups (one per CU) x 8 waves
; @launch grid=(256,1,1) block=(512,1,1) lds={LDS_BYTES}
.amdgcn_target "amdgcn-amd-amdhsa--gfx950"
.text
.globl {NAME}
.p2align 8
.type {NAME},@function
{NAME}:
"""
    ftr = f"""
.section .rodata,"a"
.p2align 6
.amdhsa_kernel {NAME}
  .amdhsa_next_free_vgpr 256
  .amdhsa_next_free_sgpr 102
  .amdhsa_accum_offset 256
  .amdhsa_group_segment_fixed_size 0
  .amdhsa_kernarg_size 56
  .amdhsa_user_sgpr_count 2
  .amdhsa_user_sgpr_kernarg_segment_ptr 1
  .amdhsa_system_sgpr_workgroup_id_x 1
  .amdhsa_float_denorm_mode_32 3
.end_amdhsa_kernel
"""
    return hdr + body + ftr

if __name__ == "__main__":
    out = sys.argv[1]
    for a in sys.argv[2:]:
        if a == "stamps": opt.stamps = True
        elif a == "light": opt.stamps = True; opt.light = True
        elif a == "nont": opt.nt = False
        elif a == "nofast": opt.fast = False
        elif a == "forceslow": opt.forceslow = True
        elif a == "nopretouch": opt.pretouch = False
        elif a == "mimicq": opt.mimicq = True; opt.bsetup = False
        elif a == "nobsetup": opt.bsetup = False
        elif a == "early": opt.early = True
        elif a == "kko": opt.kko = True; opt.bomega = False
        elif a.startswith("holdall="): opt.holdall = a.split("=")[1]
        elif a == "kok": opt.kok = True
        elif a == "nokokbar": opt.kokbar = False
        elif a == "cyc": opt.cyc = True
        elif a == "holdst": opt.holdst = True
        elif a == "nobomega": opt.bomega = False
        elif a == "nokfast": opt.kfast = False
        elif a.startswith("kshadow="): opt.kshadow = int(a.split("=")[1])
        elif a.startswith("holdq="): opt.holdq = int(a.split("=")[1])
        elif a == "kqv": opt.kqv = True
        elif a.startswith("stagger="): opt.stagger = True; opt.pacept = a.split("=")[1]
        elif a == "prepart": opt.prepart = True; opt.partplain = True
        elif a.startswith("prepol="): opt.prepol = (" " + a.split("=")[1].replace("+", " ")).rstrip()
        elif a.startswith("partpol="): opt.partpol = " " + a.split("=")[1].replace("+", " ")
        elif a == "codepf": opt.codepf = True
        elif a == "partplain": opt.partplain = True
        elif a == "nopreread": opt.preread = False
        elif a == "mimicnum": opt.mimicnum = True
        elif a.startswith("dbgwg="): opt.dbgwg = int(a.split("=")[1])
        elif a.startswith("dbgwave="): opt.dbgwave = int(a.split("=")[1])
        elif a.startswith("ost="): opt.ost = " " + a.split("=")[1].replace("+", " ")
        else: raise SystemExit("unknown option " + a)
    txt = build()
    open(out, "w").write(txt)
    if opt.stamps: json.dump(STN, open(out + ".stamps.json", "w"))
    print("wrote", out, "nops inserted:", A.nops, "lines", txt.count("\n"))
```

```python
import sys, json, struct
from asmlib import *

NAME = "standalone__linear_kernel_rfa__prompt_kernel"
class O: pass
opt = O()
opt.spin_limit = 300000
opt.stamps = False
opt.nt = True
opt.fast = True
opt.forceslow = False
opt.dbgwg = None
opt.dbgwave = 0
opt.ost = " nt"
opt.pretouch = True
opt.partplain = False
opt.preread = True
opt.codepf = False
opt.partpol = ' sc1'
opt.prepart = False
opt.prepol = ' nt'
opt.light = False
opt.stagger = False
opt.pacept = 'v2'
opt.pacemax = 40
opt.kqv = False
opt.holdq = 0
opt.bomega = True
opt.kfast = True
opt.kshadow = 6
opt.holdst = False
opt.cyc = False
opt.kok = False
opt.kokbar = True
opt.holdall = ''
opt.kko = False
opt.early = False
opt.bsetup = True
opt.mred = True
opt.forder = 0
opt.mimicq = False
opt.mimicnum = False

KQ = 0
QR = 0
VR = 65536
WR = 131072
PHI = WR
ZB = WR + 16384
ZF = WR + 17408
FLG = WR + 17664
RD = WR + 18432
KVF = VR
OSA = VR + 32768
def set_regions(kqv):
    global QR, VR, KVF, OSA
    QR, VR = (65536, 0) if kqv else (0, 65536)
    KVF = VR; OSA = VR + 32768
LDS_BYTES = 163840
HS = 1 << 20
O_PART = 0
O_F = 524288
O_Z = 524288 + 32768
O_FL = 524288 + 32768 + 4096
WS_ST = 20 << 20

sQp, sKp, sVp, sWp, sOp, sDp, sSp = 4, 6, 8, 10, 12, 14, 16
sHEAD, sCH = 18, 19
rK, rV, rQ, rW, rO, rP, rL = 20, 24, 28, 32, 36, 40, 52
sWAVE, sTI = 56, 57
sT0, sT1, sT2, sT3 = 58, 59, 60, 61
sNONCE, sFAST = 62, 63
sC025L, sC025H, sLOG2E, sC0125, sMASKH, sONES = 64, 65, 66, 67, 68, 69
sSPIN, sSOFF, sEPS, sM132 = 70, 71, 72, 73
sXCC, sPRES = 94, 95
sPQ = 73
sEPA = 96
sPW = 40
sJUNK = 44

A = Asm()
I, L, C = A.I, A.L, A.C
STI = [0]; STN = []; PS = [0]; VF = [None]
def stamp(name=""):
    if not opt.stamps: return
    if opt.light and name not in ("start", "stores done"):
        STN.append((STI[0], name)); STI[0] += 1
        return
    C("stamp %s" % name)
    I("s_memtime s[98:99]" if opt.cyc else "s_memrealtime s[98:99]")
    I("s_waitcnt lgkmcnt(0)")
    I("s_mov_b32 s%d, s98" % (74 + STI[0]))
    STN.append((STI[0], name)); STI[0] += 1
def stamps_flush(tag):
    if not opt.stamps: return
    I("s_and_b32 s97, s56, 3"); I("s_cmp_eq_u32 s97, 0"); I("s_cbranch_scc0 L_nost_%s" % tag)
    I("s_lshr_b32 s97, s56, 2"); I("s_lshl_b32 s96, s2, 1"); I("s_add_u32 s96, s96, s97"); I("s_lshl_b32 s96, s96, 7")
    I("s_add_u32 s96, s96, %d" % WS_ST)
    I("s_add_u32 s40, s16, s96"); I("s_addc_u32 s41, s17, 0"); I("s_and_b32 s41, s41, 0xffff"); I("s_mov_b32 s42, 128"); I("s_mov_b32 s43, 0x20000")
    I("s_mov_b64 exec, 1"); I("v_mov_b32 v1, 0")
    for i in range(20):
        I("v_mov_b32 v2, s%d" % (74 + i)); I("buffer_store_dword v2, v1, s[40:43], 0 offen offset:%d" % (4 * i))
    I("s_waitcnt vmcnt(0)")
    if opt.dbgwg is not None:
        I("s_cmp_eq_u32 s2, %d" % opt.dbgwg); I("s_cbranch_scc0 L_nodbg")
        I("s_cmp_eq_u32 s56, %d" % opt.dbgwave); I("s_cbranch_scc0 L_nodbg")
        I("s_mov_b32 s40, s14"); I("s_and_b32 s41, s15, 0xffff"); I("s_mov_b32 s42, 256")
        I("s_sub_u32 s97, s74, s100"); I("v_mov_b32 v2, s97"); I("buffer_store_dword v2, v1, s[40:43], 0 offen offset:60")
        idx = [i for i in range(1, 14)] + [18, 19]
        for j, i in enumerate(idx):
            I("s_sub_u32 s97, s%d, s74" % (74 + i)); I("v_mov_b32 v2, s97"); I("buffer_store_dword v2, v1, s[40:43], 0 offen offset:%d" % (4 * j))
        I("s_waitcnt vmcnt(0)")
        L("L_nodbg")
    I("s_mov_b64 exec, -1")
    L("L_nost_%s" % tag)

def srd(r, ptr, off_s, size):
    if off_s is None:
        I(f"s_mov_b32 {s(r)}, {s(ptr)}")
        I(f"s_and_b32 {s(r+1)}, {s(ptr+1)}, 0xffff")
    else:
        I(f"s_add_u32 {s(r)}, {s(ptr)}, {s(off_s)}")
        I(f"s_addc_u32 {s(r+1)}, {s(ptr+1)}, 0")
        I(f"s_and_b32 {s(r+1)}, {s(r+1)}, 0xffff")
    I(f"s_mov_b32 {s(r+2)}, {size}")
    I(f"s_mov_b32 {s(r+3)}, 0x20000")

NT = lambda: " nt" if opt.nt else ""
vLANE = 0
vA = 2
vD = 10
vL16 = 11
vT = 12
vSS = 28
vW = 128
def W(mt, t): return vW + mt * 64 + t * 4
vKF = 32
vA1 = 96
vP4 = 12
vNQ = 32
vNK = 48
vONE = 52
vP1 = 56
vTT = 60
vEPS = 68
vZP = 69
vX = 72
vPQ = 32
vPO = 96
vID = 80

POL = [" sc1"]
def pol(): return POL[0]
DUAL = [0]
def dual(fn):
    if not opt.fast:
        POL[0] = " sc1"; fn(); return
    DUAL[0] += 1; n = DUAL[0]
    I(f"s_cmp_lg_u32 {s(sFAST)}, 0")
    I(f"s_cbranch_scc1 L_fast{n}")
    POL[0] = " sc1"; fn()
    I(f"s_branch L_join{n}")
    L(f"L_fast{n}")
    POL[0] = ""; fn()
    L(f"L_join{n}")
    POL[0] = " sc1"

def prologue():
    if opt.stamps: I("s_memrealtime s[100:101]")
    I(f"s_cmp_ge_u32 s2, 256")
    I(f"s_cbranch_scc1 L_end")
    I(f"s_load_dwordx4 s[4:7], s[0:1], 0")
    I(f"s_load_dwordx4 s[8:11], s[0:1], 16")
    I(f"s_load_dwordx4 s[12:15], s[0:1], 32")
    I(f"s_load_dwordx2 s[16:17], s[0:1], 48")
    if opt.codepf:
        C("pull the kernel's own code into L2 while the kernel arguments are on their way (128 B per lane)")
        I(f"s_getpc_b64 s[20:21]")
        I(f"v_and_b32 v1, 63, v0")
        I(f"v_lshlrev_b32 v1, 7, v1")
        I(f"global_load_dword v2, v1, s[20:21]")
        I(f"v_add_u32 v1, 8192, v1")
        I(f"v_min_u32 v1, 11648, v1")
        I(f"global_load_dword v3, v1, s[20:21]")
    I(f"v_lshrrev_b32 v1, 6, v0")
    I(f"v_and_b32 {v(vLANE)}, 63, v0")
    I(f"v_readfirstlane_b32 {s(sWAVE)}, v1")
    I(f"s_and_b32 {s(sT0)}, s2, 7")
    I(f"s_lshr_b32 {s(sT1)}, s2, 3")
    I(f"s_lshr_b32 {s(sHEAD)}, {s(sT1)}, 4")
    I(f"s_lshl_b32 {s(sT0)}, {s(sT0)}, 1")
    I(f"s_add_u32 {s(sHEAD)}, {s(sHEAD)}, {s(sT0)}")
    I(f"s_and_b32 {s(sCH)}, {s(sT1)}, 15")
    I(f"s_and_b32 {s(sTI)}, {s(sWAVE)}, 3")
    I(f"v_lshrrev_b32 {v(vT)}, 5, {v(vLANE)}")
    I(f"v_and_b32 {v(vT+1)}, 31, {v(vLANE)}")
    I(f"v_xor_b32 {v(vT+1)}, {v(vT+1)}, {v(vT)}")
    I(f"v_lshlrev_b32 {v(vT+1)}, 4, {v(vT+1)}")
    I(f"v_lshl_add_u32 {v(vD)}, {v(vT)}, 9, {v(vT+1)}")
    I(f"v_lshlrev_b32 {v(vL16)}, 4, {v(vLANE)}")
    I(f"s_lshl_b32 {s(sT0)}, {s(sHEAD)}, 20")
    I(f"s_lshl_b32 {s(sT1)}, {s(sCH)}, 16")
    I(f"s_add_u32 {s(sT0)}, {s(sT0)}, {s(sT1)}")
    I(f"s_waitcnt lgkmcnt(0)")
    srd(rW, sWp, None, 32768)
    srd(rK, sKp, sT0, 65536)

def dma_omega():
    I(f"s_and_b32 {s(sT1)}, {s(sWAVE)}, 1")
    I(f"s_lshl_b32 {s(sT1)}, {s(sT1)}, 7")
    I(f"s_lshl_b32 {s(sSOFF)}, {s(sWAVE)}, 12")
    I(f"s_add_u32 m0, {s(sSOFF)}, {WR}")
    for i in range(4):
        I(f"s_add_u32 {s(sT2)}, {s(sT1)}, {32*i}")
        I(f"v_xor_b32 {v(vT)}, {s(sT2)}, {v(vD)}")
        I(f"buffer_load_dwordx4 {v(vT)}, {s(rW,4)}, {s(sSOFF)} offen offset:{1024*i} lds")

def dma_row_instr(r, base_lds, i):
    if i % 4 == 0:
        if i: I(f"s_add_u32 {s(sSOFF)}, {s(sSOFF)}, 4096")
        I(f"s_add_u32 m0, {s(sSOFF)}, {base_lds}")
    if i & 7:
        I(f"v_xor_b32 {v(vT)}, {32*(i&7)}, {v(vD)}")
        I(f"buffer_load_dwordx4 {v(vT)}, {s(r,4)}, {s(sSOFF)} offen offset:{1024*(i%4)}{NT()} lds")
    else:
        I(f"buffer_load_dwordx4 {v(vD)}, {s(r,4)}, {s(sSOFF)} offen offset:{1024*(i%4)}{NT()} lds")

def dma_k():
    I(f"s_lshl_b32 {s(sSOFF)}, {s(sWAVE)}, 13")
    for i in range(8): dma_row_instr(rK, KQ, i)

vVD = 9
def v_setup(reg):
    I(f"v_lshrrev_b32 {v(reg)}, 4, {v(vLANE)}")
    I(f"v_and_b32 {v(reg)}, 1, {v(reg)}")
    I(f"v_lshlrev_b32 {v(reg)}, 2, {v(reg)}")
    I(f"v_and_b32 {v(vT+1)}, 7, {v(vLANE)}")
    I(f"v_xor_b32 {v(reg)}, {v(reg)}, {v(vT+1)}")
    I(f"v_lshlrev_b32 {v(reg)}, 4, {v(reg)}")
    I(f"v_lshrrev_b32 {v(vT+1)}, 3, {v(vLANE)}")
    I(f"v_lshl_add_u32 {v(reg)}, {v(vT+1)}, 9, {v(reg)}")

def v_issue(reg, first_s, n):
    I(f"s_lshl_b32 {s(sSOFF)}, {first_s}, 12")
    I(f"s_lshl_b32 {s(sT1)}, {s(sTI)}, 7")
    I(f"s_add_u32 {s(sSOFF)}, {s(sSOFF)}, {s(sT1)}")
    I(f"s_lshl_b32 {s(sT1)}, {first_s}, 10")
    I(f"s_lshl_b32 {s(sT2)}, {s(sTI)}, 14")
    I(f"s_add_u32 {s(sT1)}, {s(sT1)}, {s(sT2)}")
    I(f"s_add_u32 {s(sT1)}, {s(sT1)}, {VR}")
    for i in range(n):
        I(f"s_add_u32 m0, {s(sT1)}, {1024*i}")
        if i: I(f"s_add_u32 {s(sSOFF)}, {s(sSOFF)}, 4096")
        I(f"buffer_load_dwordx4 {v(reg)}, {s(rV,4)}, {s(sSOFF)} offen{NT()} lds")

def dma_v():
    C("team B wave b: V slice b (128 B columns), all 128 rows, 16 instructions of 8 rows")
    v_setup(vT+2)
    I(f"s_mov_b32 {s(sT3)}, 0")
    v_issue(vT+2, s(sT3), 16)

def tile_addrs():
    I(f"v_and_b32 {v(vT)}, 31, {v(vLANE)}")
    I(f"v_lshrrev_b32 {v(vT+1)}, 5, {v(vLANE)}")
    I(f"v_and_b32 {v(vT+2)}, 15, {v(vLANE)}")
    I(f"v_xor_b32 {v(vT+2)}, {v(vT+2)}, {v(vT+1)}")
    I(f"v_lshlrev_b32 {v(vT+2)}, 4, {v(vT+2)}")
    I(f"v_lshl_add_u32 {v(vT+2)}, {v(vT)}, 9, {v(vT+2)}")
    I(f"v_add_u32 {v(vA)}, {WR}, {v(vT+2)}")
    for x in range(1, 8):
        I(f"v_xor_b32 {v(vA+x)}, {32*x}, {v(vA)}")

def read_omega(base):
    for t in range(16):
        for mt in range(2):
            I(f"ds_read_b128 {v(W(mt,t),4)}, {v(vA+(t&7))} offset:{(t>>3)*256 + mt*16384}")
    I(f"s_lshl_b32 {s(sT1)}, {s(sTI)}, 14")
    I(f"s_sub_u32 {s(sT1)}, {s(sT1)}, {WR - base}")
    for x in range(8):
        I(f"v_add_u32 {v(vA+x)}, {s(sT1)}, {v(vA+x)}")

def consts():
    I(f"s_mov_b32 {s(sC025L)}, 0x00003e80")
    I(f"s_mov_b32 {s(sC025H)}, 0x3e800000")
    I(f"s_mov_b32 {s(sLOG2E)}, 0x3fb8aa3b")
    I(f"s_mov_b32 {s(sC0125)}, 0x3e000000")
    I(f"s_mov_b32 {s(sMASKH)}, 0xffff0000")
    I(f"s_mov_b32 {s(sONES)}, 0x3f803f80")
    I(f"s_mov_b32 {s(sEPS)}, 0x358637bd")
    I(f"s_mov_b32 {s(sM132)}, 0xbd000000")

def read_tile_frags():
    for t in range(16):
        I(f"ds_read_b128 {v(vKF+4*t,4)}, {v(vA+(t&7))} offset:{(t>>3)*256}")
    for i in range(4): I(f"v_mov_b32 {v(vSS+i)}, 0")

def ssq(counted=False):
    for t in range(16):
        if counted and t % 2 == 0: I(f"s_waitcnt lgkmcnt({max(0, 14 - t)})")
        for i in range(4):
            I(f"v_dot2c_f32_bf16 {v(vSS+i)}, {v(vKF+4*t+i)}, {v(vKF+4*t+i)}")

def ssq_reduce_steps():
    return [
        [f"v_add_f32 {v(vSS)}, {v(vSS)}, {v(vSS+1)}", f"v_add_f32 {v(vSS+2)}, {v(vSS+2)}, {v(vSS+3)}"],
        [f"v_add_f32 {v(vSS)}, {v(vSS)}, {v(vSS+2)}"],
        [f"v_mov_b32 {v(vSS+1)}, {v(vSS)}"],
        [f"v_permlane32_swap_b32 {v(vSS)}, {v(vSS+1)}"],
        [f"v_add_f32 {v(vSS)}, {v(vSS)}, {v(vSS+1)}"],
    ]

def pipeline_mimic(mt, nq_of, p4base):
    for g in range(2):
        prs = [4*g + i for i in range(4)]
        acc = lambda r: vA1 + 16*mt + r
        for i, p in enumerate(prs): I(f"v_cvt_pk_bf16_f32 {v(vP1+i)}, {v(acc(2*p))}, {v(acc(2*p+1))}")
        for i, p in enumerate(prs):
            I(f"v_dot2_f32_bf16 {v(vTT+2*i)}, {v(vP1+i)}, {s(sC025L)}, {v(nq_of(2*p))}")
            I(f"v_dot2_f32_bf16 {v(vTT+2*i+1)}, {v(vP1+i)}, {s(sC025H)}, {v(nq_of(2*p+1))}")
        for i, p in enumerate(prs): I(f"v_cvt_pk_bf16_f32 {v(vP1+i)}, {v(vTT+2*i)}, {v(vTT+2*i+1)}")
        for i, p in enumerate(prs):
            I(f"v_lshlrev_b32 {v(vTT+2*i)}, 16, {v(vP1+i)}")
            I(f"v_and_b32 {v(vTT+2*i+1)}, {s(sMASKH)}, {v(vP1+i)}")
        for i in range(8): I(f"v_mul_f32 {v(vTT+i)}, {s(sLOG2E)}, {v(vTT+i)}")
        for i in range(8): I(f"v_exp_f32 {v(vTT+i)}, {v(vTT+i)}")
        for i in range(8): I(f"v_fma_f32 {v(vTT+i)}, {v(vTT+i)}, {s(sC0125)}, {v(vEPS)}")
        for i, p in enumerate(prs): I(f"v_cvt_pk_bf16_f32 {v(p4base+p)}, {v(vTT+2*i)}, {v(vTT+2*i+1)}")

def lds_wait(addr, n, tag, tmp=None):
    tmp = vX + 4 if tmp is None else tmp
    I(f"s_mov_b32 {s(sSPIN)}, 0")
    if n == 1:
        I(f"v_mov_b32 {v(tmp)}, {addr}")
    else:
        I(f"v_and_b32 {v(tmp)}, {n-1}, {v(vLANE)}")
        I(f"v_lshlrev_b32 {v(tmp)}, 2, {v(tmp)}")
        I(f"v_add_u32 {v(tmp)}, {addr}, {v(tmp)}")
    L(f"L_ls_{tag}")
    I(f"ds_read_b32 {v(tmp+1)}, {v(tmp)}")
    I(f"s_waitcnt lgkmcnt(0)")
    I(f"v_cmp_ne_u32 vcc, {s(sNONCE)}, {v(tmp+1)}")
    I(f"s_cbranch_vccz L_lsd_{tag}")
    I(f"s_add_u32 {s(sSPIN)}, {s(sSPIN)}, 1")
    I(f"s_cmp_lt_u32 {s(sSPIN)}, {opt.spin_limit*16}")
    I(f"s_cbranch_scc1 L_ls_{tag}")
    L(f"L_lsd_{tag}")

def lds_set(addr, tmp=None, val=None):
    tmp = vX + 4 if tmp is None else tmp
    I(f"v_mov_b32 {v(tmp)}, {addr}")
    I(f"v_mov_b32 {v(tmp+1)}, {s(sNONCE) if val is None else val}")
    I(f"ds_write_b32 {v(tmp)}, {v(tmp+1)}")

vFL = 8
sFL1, sFL2 = 92, 93
def flag_prepare():
    global sFL1, sFL2
    if opt.stamps: sFL1, sFL2 = 48, 49
    I(f"s_lshl_b32 {s(sFL1)}, {s(sCH)}, 4")
    I(f"s_lshl_b32 {s(sFL2)}, {s(sTI)}, 2")
    I(f"s_add_u32 {s(sFL1)}, {s(sFL1)}, {s(sFL2)}")
    I(f"s_add_u32 {s(sFL2)}, {s(sFL1)}, {O_FL + 512}")
    I(f"s_add_u32 {s(sFL1)}, {s(sFL1)}, {O_FL + 256}")
    I(f"v_mov_b32 {v(vFL)}, 0")
    I(f"v_mov_b32 {v(vFL+1)}, {s(sNONCE)}")

def wave_flag(off):
    so = sFL1 if off == 256 else sFL2
    I(f"s_mov_b64 exec, 1")
    dual(lambda: I(f"buffer_store_dword {v(vFL+1)}, {v(vFL)}, {s(rP,4)}, {s(so)} offen{pol()}"))
    I(f"s_mov_b64 exec, -1")

def poll(off, tag, tmp=None):
    tmp = vT if tmp is None else tmp
    I(f"s_mov_b32 {s(sSPIN)}, 0")
    I(f"s_mov_b32 {s(sT2)}, {O_FL + off}")
    I(f"v_lshlrev_b32 {v(tmp)}, 2, {v(vLANE)}")
    L(f"L_spin_{tag}")
    I(f"buffer_load_dword {v(tmp+1)}, {v(tmp)}, {s(rP,4)}, {s(sT2)} offen sc1")
    I(f"s_waitcnt vmcnt(0)")
    I(f"v_cmp_ne_u32 vcc, {s(sNONCE)}, {v(tmp+1)}")
    I(f"s_cbranch_vccz L_spun_{tag}")
    I(f"s_cmp_lg_u32 {s(sFAST)}, 0")
    I(f"s_cbranch_scc1 L_nap_{tag}")
    I(f"s_sleep 12")
    L(f"L_nap_{tag}")
    I(f"s_add_u32 {s(sSPIN)}, {s(sSPIN)}, 1")
    I(f"s_cmp_lt_u32 {s(sSPIN)}, {opt.spin_limit}")
    I(f"s_cbranch_scc1 L_spin_{tag}")
    L(f"L_spun_{tag}")

def common_start():
    prologue()
    stamp("start")
    if opt.early:
        C("K(0..3), omega, K(4..7), then four V loads: rows 0..31 (team A) / 32..63 (team B) of slice w&3")
        I(f"s_lshl_b32 {s(sSOFF)}, {s(sWAVE)}, 13")
        for i in range(4): dma_row_instr(rK, KQ, i)
        I(f"s_mov_b32 {s(sT3)}, {s(sSOFF)}")
        dma_omega()
        I(f"s_mov_b32 {s(sSOFF)}, {s(sT3)}")
        I(f"s_barrier")
        for i in range(4, 8): dma_row_instr(rK, KQ, i)
        srd(rV, sVp, sT0, 65536)
        v_setup(30)
        I(f"s_lshr_b32 {s(sT3)}, {s(sWAVE)}, 2")
        I(f"s_lshl_b32 {s(sT3)}, {s(sT3)}, 2")
        v_issue(30, s(sT3), 4)
    elif opt.kko:
        C("omega lines -> L2 (one touch per line), then K, then omega itself (L2 hits by then)")
        I(f"v_and_b32 {v(vT+2)}, 31, {v(vLANE)}")
        I(f"v_lshlrev_b32 {v(vT+2)}, 7, {v(vT+2)}")
        I(f"s_lshl_b32 {s(sT1)}, {s(sWAVE)}, 12")
        I(f"buffer_load_dword {v(vT+3)}, {v(vT+2)}, {s(rW,4)}, {s(sT1)} offen")
        dma_k()
        dma_omega()
    elif opt.kok:
        C("issue order K(0..3), omega, K(4..7): omega rides in the first window without holding K back")
        I(f"s_lshl_b32 {s(sSOFF)}, {s(sWAVE)}, 13")
        for i in range(4): dma_row_instr(rK, KQ, i)
        I(f"s_mov_b32 {s(sT3)}, {s(sSOFF)}")
        dma_omega()
        I(f"s_mov_b32 {s(sSOFF)}, {s(sT3)}")
        if opt.kokbar: I(f"s_barrier")
        for i in range(4, 8): dma_row_instr(rK, KQ, i)
    else:
        dma_omega()
        I(f"s_barrier")
        dma_k()
    C("scalar side: epoch word, translation pre-touch, descriptors")
    I(f"s_lshl_b32 {s(sT1)}, {s(sHEAD)}, 20")
    I(f"s_add_u32 {s(sEPA)}, {s(sSp)}, {s(sT1)}")
    I(f"s_addc_u32 {s(sEPA+1)}, {s(sSp+1)}, 0")
    I(f"s_load_dword {s(sNONCE)}, {s(sEPA,2)}, {O_FL}")
    if opt.preread:
        C("bring the flag lines of this head into L2 (a store to an absent line makes the next read a memory fill)")
        for j in range(8):
            I(f"s_load_dword {s(sJUNK+3)}, {s(sEPA,2)}, {O_FL + 256 + 64*j}")
    if not opt.early: srd(rV, sVp, sT0, 65536)
    srd(rQ, sQp, sT0, 65536)
    srd(rO, sOp, sT0, 65536)
    if opt.pretouch:
        I(f"s_load_dword {s(sJUNK)}, {s(rQ,2)}, 0")
        I(f"s_load_dword {s(sJUNK+1)}, {s(rO,2)}, 0")
        I(f"s_load_dword {s(sJUNK+2)}, {s(rV,2)}, 0")
    tile_addrs()
    consts()
    stamp("K issued")
    I(f"s_waitcnt lgkmcnt(0)")
    I(f"s_add_u32 {s(sNONCE)}, {s(sNONCE)}, 1")
    I(f"s_lshl_b32 {s(sT1)}, {s(sHEAD)}, 20")
    srd(rP, sSp, sT1, HS)
    I(f"s_mov_b32 {s(sFAST)}, 0")
    I(f"s_getreg_b32 {s(sXCC)}, hwreg(HW_REG_XCC_ID, 0, 4)")
    I(f"s_lshl_b32 {s(sPRES)}, {s(sNONCE)}, 4")
    I(f"s_add_u32 {s(sPRES)}, {s(sPRES)}, {s(sXCC)}")
    nyoung = {"early": 8, "kko": None, "kok": 4}.get("early" if opt.early else "kko" if opt.kko else "kok" if opt.kok else "", 8)
    I(f"s_cmp_eq_u32 {s(sWAVE)}, 0")
    I(f"s_cbranch_scc0 L_nopres")
    if opt.fast:
        C("presence word: nonce*16 + XCC id (wave 0)")
        I(f"s_mov_b64 exec, 1")
        I(f"s_lshl_b32 {s(sT1)}, {s(sCH)}, 2")
        I(f"s_add_u32 {s(sT1)}, {s(sT1)}, {O_FL + 128}")
        I(f"v_mov_b32 {v(vT)}, 0")
        I(f"v_mov_b32 {v(vT+1)}, {s(sPRES)}")
        I(f"buffer_store_dword {v(vT+1)}, {v(vT)}, {s(rP,4)}, {s(sT1)} offen sc1")
        I(f"s_mov_b64 exec, -1")
        if nyoung is not None: I(f"s_waitcnt vmcnt({nyoung + 1})")
    else:
        if nyoung is not None: I(f"s_waitcnt vmcnt({nyoung})")
    I(f"s_branch L_presd")
    L("L_nopres")
    if nyoung is not None: I(f"s_waitcnt vmcnt({nyoung})")
    L("L_presd")
    if not opt.kko: I(f"s_barrier")

def team_a():
    C("================= team A =================")
    if not opt.kko: read_omega(KQ)
    C("K landed: own loads only (the presence store of wave 0 may still be in flight)")
    ey = 4 if opt.early else 0
    I(f"s_waitcnt vmcnt({1 + ey}) lgkmcnt(0)")
    I(f"s_cmp_eq_u32 {s(sTI)}, 0")
    I(f"s_cbranch_scc1 L_k0")
    I(f"s_waitcnt vmcnt({ey})")
    L("L_k0")
    I(f"s_barrier")
    stamp("A B1 K landed")
    if opt.kko: read_omega(KQ)
    read_tile_frags()
    I(f"s_waitcnt lgkmcnt(0)")
    I(f"s_barrier")
    if not opt.kfast:
        ssq()
        steps = ssq_reduce_steps()
        for t in range(16):
            for mt in range(2):
                c = "0" if t == 0 else v(vA1 + 16*mt, 16)
                I(f"v_mfma_f32_32x32x16_bf16 {v(vA1+16*mt,16)}, {v(vKF+4*t,4)}, {v(W(mt,t),4)}, {c}")
            if 1 <= t <= 5:
                for x in steps[t-1]: I(x)
            if t == 6:
                I(f"v_mul_f32 {v(vSS)}, {s(sM132)}, {v(vSS)}")
                I(f"v_lshrrev_b32 {v(vSS+1)}, 5, {v(vLANE)}")
            if t == 7:
                I(f"v_cmp_eq_u32 vcc, 0, {v(vSS+1)}")
            if t == 8:
                I(f"v_cndmask_b32 {v(vSS)}, 0, {v(vSS)}, vcc")
            if t == 9:
                I(f"v_cvt_pk_bf16_f32 {v(vSS)}, {v(vSS)}, 0")
        stamp("A gemm1 done")
        I(f"v_mov_b32 {v(vEPS)}, {s(sEPS)}")
        I(f"v_mov_b32 {v(vNK)}, {v(vSS)}")
        I(f"v_mov_b32 {v(vONE)}, 0x3f80")
        for i in range(1, 4):
            I(f"v_mov_b32 {v(vONE+i)}, 0")
            I(f"v_mov_b32 {v(vNK+i)}, 0")
        I(f"v_mfma_f32_32x32x16_bf16 {v(vNQ,16)}, {v(vNK,4)}, {v(vONE,4)}, 0")
        I(f"v_lshl_add_u32 {v(vX)}, {s(sTI)}, 12, {v(vL16)}")
        I(f"v_add_u32 {v(vX)}, {PHI}, {v(vX)}")
        for mt in range(2):
            pipeline_mimic(mt, lambda r: vNQ + r, vP4 + 8*mt)
            for u in range(2):
                I(f"ds_write_b128 {v(vX)}, {v(vP4+8*mt+4*u,4)} offset:{u*2048 + mt*1024}")
            I(f"v_mov_b32 {v(vZP+mt)}, 0")
            for i in range(8):
                I(f"v_dot2c_f32_bf16 {v(vZP+mt)}, {s(sONES)}, {v(vP4+8*mt+i)}")
    else:
        vNQ2 = 128; vNK2 = 144; vON2 = 148; vP1b = 152; vTb = 156; vEP2 = 164; vZP2 = 165; vXb = 168
        ssq()
        steps = ssq_reduce_steps()
        for t in range(16):
            c = "0" if t == 0 else v(vA1, 16)
            I(f"v_mfma_f32_32x32x16_bf16 {v(vA1,16)}, {v(vKF+4*t,4)}, {v(W(0,t),4)}, {c}")
            if 1 <= t <= 5:
                for x in steps[t-1]: I(x)
            if t == 6:
                I(f"v_mul_f32 {v(vSS)}, {s(sM132)}, {v(vSS)}")
                I(f"v_lshrrev_b32 {v(vSS+1)}, 5, {v(vLANE)}")
            if t == 7: I(f"v_cmp_eq_u32 vcc, 0, {v(vSS+1)}")
            if t == 8: I(f"v_cndmask_b32 {v(vSS)}, 0, {v(vSS)}, vcc")
            if t == 9: I(f"v_cvt_pk_bf16_f32 {v(vSS)}, {v(vSS)}, 0")
            if t == 10: I(f"s_mov_b32 {s(sT3)}, 0x3e800000")
            if t == 12:
                I(f"v_mov_b32 {v(vNK2)}, {v(vSS)}")
                I(f"v_mov_b32 {v(vON2)}, 0x3f80")
            if t == 13:
                for i in range(1, 4):
                    I(f"v_mov_b32 {v(vON2+i)}, 0")
                    I(f"v_mov_b32 {v(vNK2+i)}, 0")
        I(f"v_mfma_f32_32x32x16_bf16 {v(vNQ2,16)}, {v(vNK2,4)}, {v(vON2,4)}, 0")
        def mimic_ops(mt, p4base):
            ops = []
            acc = lambda r: vA1 + 16*mt + r
            for g in range(2):
                prs = [4*g + i for i in range(4)]
                for i, p in enumerate(prs): ops.append(f"v_cvt_pk_bf16_f32 {v(vP1b+i)}, {v(acc(2*p))}, {v(acc(2*p+1))}")
                for i, p in enumerate(prs):
                    ops.append(f"v_lshlrev_b32 {v(vTb+2*i)}, 16, {v(vP1b+i)}")
                    ops.append(f"v_and_b32 {v(vTb+2*i+1)}, {s(sMASKH)}, {v(vP1b+i)}")
                for i, p in enumerate(prs):
                    ops.append(f"v_fma_f32 {v(vTb+2*i)}, {v(vTb+2*i)}, {s(sT3)}, {v(vNQ2+2*p)}")
                    ops.append(f"v_fma_f32 {v(vTb+2*i+1)}, {v(vTb+2*i+1)}, {s(sT3)}, {v(vNQ2+2*p+1)}")
                for i, p in enumerate(prs): ops.append(f"v_cvt_pk_bf16_f32 {v(vP1b+i)}, {v(vTb+2*i)}, {v(vTb+2*i+1)}")
                for i, p in enumerate(prs):
                    ops.append(f"v_lshlrev_b32 {v(vTb+2*i)}, 16, {v(vP1b+i)}")
                    ops.append(f"v_and_b32 {v(vTb+2*i+1)}, {s(sMASKH)}, {v(vP1b+i)}")
                for i in range(8): ops.append(f"v_mul_f32 {v(vTb+i)}, {s(sLOG2E)}, {v(vTb+i)}")
                for i in range(8): ops.append(f"v_exp_f32 {v(vTb+i)}, {v(vTb+i)}")
                for i in range(8): ops.append(f"v_fma_f32 {v(vTb+i)}, {v(vTb+i)}, {s(sC0125)}, {v(vEP2)}")
                for i, p in enumerate(prs): ops.append(f"v_cvt_pk_bf16_f32 {v(p4base+p)}, {v(vTb+2*i)}, {v(vTb+2*i+1)}")
            return ops
        ops0 = [f"v_mov_b32 {v(vEP2)}, {s(sEPS)}"] + mimic_ops(0, vP4)
        k = 0
        for t in range(16):
            c = "0" if t == 0 else v(vA1 + 16, 16)
            I(f"v_mfma_f32_32x32x16_bf16 {v(vA1+16,16)}, {v(vKF+4*t,4)}, {v(W(1,t),4)}, {c}")
            if t >= 1:
                n = opt.kshadow
                for x in ops0[k:k+n]: I(x)
                k += n
        stamp("A gemm1 done")
        for x in ops0[k:]: I(x)
        I(f"v_lshl_add_u32 {v(vX)}, {s(sTI)}, 12, {v(vL16)}")
        I(f"v_add_u32 {v(vX)}, {PHI}, {v(vX)}")
        for u in range(2):
            I(f"ds_write_b128 {v(vX)}, {v(vP4+4*u,4)} offset:{u*2048}")
        for x in mimic_ops(1, vP4 + 8): I(x)
        for u in range(2):
            I(f"ds_write_b128 {v(vX)}, {v(vP4+8+4*u,4)} offset:{u*2048 + 1024}")
        for mt in range(2):
            I(f"v_mov_b32 {v(vZP+mt)}, 0")
        for i in range(8):
            for mt in range(2):
                I(f"v_dot2c_f32_bf16 {v(vZP+mt)}, {s(sONES)}, {v(vP4+8*mt+i)}")
    for mt in range(2): I(f"v_mov_b32 {v(vX+1+mt)}, {v(vZP+mt)}")
    for mt in range(2): I(f"v_permlane32_swap_b32 {v(vZP+mt)}, {v(vX+1+mt)}")
    for mt in range(2): I(f"v_add_f32 {v(vZP+mt)}, {v(vZP+mt)}, {v(vX+1+mt)}")
    I(f"v_and_b32 {v(vX+1)}, 31, {v(vLANE)}")
    I(f"v_lshlrev_b32 {v(vX+1)}, 2, {v(vX+1)}")
    I(f"s_lshl_b32 {s(sT1)}, {s(sTI)}, 8")
    I(f"s_add_u32 {s(sT1)}, {s(sT1)}, {ZB}")
    I(f"v_add_u32 {v(vX+1)}, {s(sT1)}, {v(vX+1)}")
    I(f"ds_write_b32 {v(vX+1)}, {v(vZP)}")
    I(f"ds_write_b32 {v(vX+1)}, {v(vZP+1)} offset:128")
    I(f"s_waitcnt lgkmcnt(0)")
    stamp("A phi written")
    I(f"s_lshl_b32 {s(sT2)}, {s(sTI)}, 2")
    I(f"s_add_u32 {s(sT2)}, {s(sT2)}, {FLG}")
    lds_set(s(sT2))
    C("transposing-read addresses of the V slice (computed while waiting)")
    vPH = 128; vAC = 48; vVB = 112; vVA = 28; vPA = 30
    I(f"v_lshrrev_b32 {v(vT)}, 5, {v(vLANE)}")
    I(f"v_lshlrev_b32 {v(vT)}, 2, {v(vT)}")
    I(f"v_bfe_u32 {v(vT+1)}, {v(vLANE)}, 2, 2")
    I(f"v_add_u32 {v(vT)}, {v(vT)}, {v(vT+1)}")
    I(f"v_lshlrev_b32 {v(vT)}, 7, {v(vT)}")
    I(f"v_lshrrev_b32 {v(vT+1)}, 1, {v(vT+1)}")
    I(f"v_lshl_add_u32 {v(vT)}, {v(vT+1)}, 6, {v(vT)}")
    I(f"v_bfe_u32 {v(vT+1)}, {v(vLANE)}, 4, 1")
    I(f"v_lshl_add_u32 {v(vT)}, {v(vT+1)}, 5, {v(vT)}")
    I(f"v_and_b32 {v(vT+1)}, 3, {v(vLANE)}")
    I(f"v_lshl_add_u32 {v(vT)}, {v(vT+1)}, 3, {v(vT)}")
    I(f"s_lshl_b32 {s(sT1)}, {s(sTI)}, 14")
    I(f"s_add_u32 {s(sT1)}, {s(sT1)}, {VR}")
    I(f"v_add_u32 {v(vVA)}, {s(sT1)}, {v(vT)}")
    I(f"v_xor_b32 {v(vVA+1)}, 64, {v(vVA)}")
    I(f"v_add_u32 {v(vPA)}, {PHI}, {v(vL16)}")
    lds_wait(str(FLG), 4, "phi")
    stamp("A phi all")
    for f in range(16):
        I(f"ds_read_b128 {v(vPH+4*f,4)}, {v(vPA)} offset:{1024*f}")
    vVB = 192
    def vread(kk):
        b = vVB + 8*(kk % 4)
        for dl in range(2):
            for ap in range(2):
                I(f"ds_read_b64_tr_b16 {v(b+4*dl+2*ap,2)}, {v(vVA+dl)} offset:{kk*2048 + ap*1024}")
    def mm(kk, first):
        b = vVB + 8*(kk % 4)
        for dl in range(2):
            for mt in range(2):
                acc = vAC + (dl*2 + mt)*16
                c = "0" if first else v(acc, 16)
                I(f"v_mfma_f32_32x32x16_bf16 {v(acc,16)}, {v(vPH+4*(kk*2+mt),4)}, {v(b+4*dl,4)}, {c}")
    I(f"s_lshl_b32 {s(sT2)}, {s(sTI)}, 2")
    I(f"s_add_u32 {s(sT2)}, {s(sT2)}, {FLG + 16}")
    if opt.early: I(f"s_waitcnt vmcnt(0)")
    lds_wait(s(sT2), 1, "v1", tmp=26)
    stamp("A V1 ready")
    vread(0); vread(1); vread(2)
    for kk in range(8):
        rem = min(2, 7 - kk)
        if kk == 2:
            I(f"s_waitcnt lgkmcnt(4)")
        else:
            I(f"s_waitcnt lgkmcnt({4*rem})")
        mm(kk, kk == 0)
        if kk == 1:
            I(f"s_add_u32 {s(sT2)}, {s(sT2)}, 16")
            lds_wait(s(sT2), 1, "v2", tmp=26)
        if kk + 3 < 8: vread(kk + 3)
    stamp("A gemm2 done")
    if opt.fast:
        lds_wait(str(FLG + 56), 1, "md", tmp=26)
        I(f"v_mov_b32 {v(vT+1)}, {FLG + 48}")
        I(f"ds_read_b32 {v(vT+2)}, {v(vT+1)}")
    C("z partial inputs (wave 0)")
    I(f"v_lshlrev_b32 {v(vT+3)}, 2, {v(vLANE)}")
    I(f"v_add_u32 {v(vT+4)}, {ZB}, {v(vT+3)}")
    for a in range(4): I(f"ds_read_b32 {v(vT+6+a)}, {v(vT+4)} offset:{256*a}")
    vPK = 128
    for j in range(4):
        for i in range(8):
            I(f"v_cvt_pk_bf16_f32 {v(vPK+8*j+i)}, {v(vAC+16*j+2*i)}, {v(vAC+16*j+2*i+1)}")
    I(f"s_lshl_b32 {s(sT1)}, {s(sTI)}, 13")
    I(f"v_add_u32 {v(vT)}, {s(sT1)}, {v(vL16)}")
    I(f"s_lshl_b32 {s(sSOFF)}, {s(sCH)}, 15")
    I(f"s_add_u32 {s(sT2)}, {s(sSOFF)}, 4096")
    I(f"s_waitcnt lgkmcnt(0)")
    if opt.fast:
        I(f"v_readfirstlane_b32 {s(sFAST)}, {v(vT+2)}")
        I(f"s_cmp_eq_u32 {s(sFAST)}, {s(sNONCE)}")
        I(f"s_cselect_b32 {s(sFAST)}, 1, 0")
        if opt.stamps: I(f"s_mov_b32 s91, {s(sFAST)}")
    if opt.holdst:
        lds_wait(str(FLG + 112), 4, "qi", tmp=26)
    def st():
        for f in range(8):
            so = s(sSOFF) if f < 4 else s(sT2)
            I(f"buffer_store_dwordx4 {v(vPK+4*f,4)}, {v(vT)}, {s(rP,4)}, {so} offen offset:{(f%4)*1024}{pol()}")
    if opt.partplain: dual(st)
    else:
        POL[0] = opt.partpol; st(); POL[0] = " sc1"
    def psflag():
        I(f"s_lshl_b32 {s(sT1)}, {s(sTI)}, 2")
        I(f"s_add_u32 {s(sT1)}, {s(sT1)}, {FLG + 64}")
        lds_set(s(sT1), tmp=26)
    if opt.holdq or opt.holdall == "issued": psflag()
    I(f"s_cmp_eq_u32 {s(sTI)}, 0")
    I(f"s_cbranch_scc0 L_noz")
    I(f"v_add_f32 {v(vT+6)}, {v(vT+6)}, {v(vT+7)}")
    I(f"v_add_f32 {v(vT+8)}, {v(vT+8)}, {v(vT+9)}")
    I(f"v_add_f32 {v(vT+6)}, {v(vT+6)}, {v(vT+8)}")
    I(f"s_lshl_b32 {s(sSOFF)}, {s(sCH)}, 8")
    I(f"s_add_u32 {s(sSOFF)}, {s(sSOFF)}, {O_Z}")
    I(f"buffer_store_dword {v(vT+6)}, {v(vT+3)}, {s(rP,4)}, {s(sSOFF)} offen sc1")
    L("L_noz")
    C("addresses for the reduction: quarter tile a of tile 'chunk': fragment 2*chunk + (a>>1), lanes (a&1)*32 + (l&31); producer parity = l>>5")
    vR = 128
    I(f"s_lshl_b32 {s(sT1)}, {s(sCH)}, 11")
    I(f"s_lshl_b32 {s(sT2)}, {s(sTI)}, 9")
    I(f"s_add_u32 {s(sT3)}, {s(sT1)}, {s(sT2)}")
    I(f"v_and_b32 {v(vX)}, 31, {v(vLANE)}")
    I(f"v_lshlrev_b32 {v(vX)}, 4, {v(vX)}")
    I(f"v_add_u32 {v(vX)}, {s(sT3)}, {v(vX)}")
    I(f"v_lshrrev_b32 {v(vX+1)}, 5, {v(vLANE)}")
    I(f"v_lshl_add_u32 {v(vX+1)}, {v(vX+1)}, 15, {v(vX)}")
    final_setup()
    flag_prepare()
    if opt.mred:
        I(f"v_and_b32 {v(vX+3)}, 31, {v(vLANE)}")
        I(f"v_and_b32 {v(vX+4)}, 1, {v(vX+3)}")
        I(f"v_lshlrev_b32 {v(vX+4)}, 4, {v(vX+4)}")
        I(f"v_mov_b32 {v(vX+5)}, 0x3f80")
        I(f"v_lshlrev_b32 {v(vX+4)}, {v(vX+4)}, {v(vX+5)}")
        I(f"v_lshrrev_b32 {v(vX+3)}, 1, {v(vX+3)}")
        for r in range(4):
            I(f"v_cmp_eq_u32 vcc, {r}, {v(vX+3)}")
            I(f"v_cndmask_b32 {v(vID+r)}, 0, {v(vX+4)}, vcc")
        I(f"v_lshrrev_b32 {v(vX+2)}, 5, {v(vLANE)}")
        I(f"v_lshl_add_u32 {v(vX+2)}, {v(vX+2)}, 3, {v(vX)}")
    I(f"s_waitcnt vmcnt(0)")
    stamp("A part drained")
    wave_flag(256)
    if opt.holdall == "drained": psflag()
    poll(256, "h1")
    stamp("A hop1")
    vZ = 192
    I(f"s_cmp_eq_u32 {s(sTI)}, 3")
    I(f"s_cbranch_scc0 L_noz2")
    I(f"s_mov_b32 {s(sSOFF)}, {O_Z}")
    for j in range(4):
        I(f"buffer_load_dwordx4 {v(vZ+4*j,4)}, {v(vL16)}, {s(rP,4)}, {s(sSOFF)} offen offset:{1024*j} sc1")
    L("L_noz2")
    I(f"s_mov_b32 {s(sSOFF)}, 0")
    for c in range(8):
        I(f"buffer_load_dwordx4 {v(vR+4*c,4)}, {v(vX+1)}, {s(rP,4)}, {s(sSOFF)} offen sc1")
        if c < 7: I(f"s_add_u32 {s(sSOFF)}, {s(sSOFF)}, 65536")
    if opt.holdall == "reduce": psflag()
    C("z (wave 3): lane l holds m = 4*(l&15)..+3 of producer 4j + (l>>4)")
    I(f"s_cmp_eq_u32 {s(sTI)}, 3")
    I(f"s_cbranch_scc0 L_noz3")
    I(f"s_waitcnt vmcnt(8)")
    for i in range(4):
        I(f"v_add_f32 {v(vZ+i)}, {v(vZ+i)}, {v(vZ+4+i)}")
        I(f"v_add_f32 {v(vZ+8+i)}, {v(vZ+8+i)}, {v(vZ+12+i)}")
    for i in range(4): I(f"v_add_f32 {v(vZ+i)}, {v(vZ+i)}, {v(vZ+8+i)}")
    for i in range(4): I(f"v_mov_b32 {v(vZ+4+i)}, {v(vZ+i)}")
    for i in range(4): I(f"v_permlane32_swap_b32 {v(vZ+i)}, {v(vZ+4+i)}")
    for i in range(4): I(f"v_add_f32 {v(vZ+i)}, {v(vZ+i)}, {v(vZ+4+i)}")
    for i in range(4): I(f"v_mov_b32 {v(vZ+4+i)}, {v(vZ+i)}")
    for i in range(4): I(f"v_permlane16_swap_b32 {v(vZ+i)}, {v(vZ+4+i)}")
    for i in range(4): I(f"v_add_f32 {v(vZ+i)}, {v(vZ+i)}, {v(vZ+4+i)}")
    I(f"v_cvt_pk_bf16_f32 {v(vZ)}, {v(vZ)}, {v(vZ+1)}")
    I(f"v_cvt_pk_bf16_f32 {v(vZ+1)}, {v(vZ+2)}, {v(vZ+3)}")
    I(f"v_and_b32 {v(vZ+2)}, 15, {v(vLANE)}")
    I(f"v_lshlrev_b32 {v(vZ+2)}, 3, {v(vZ+2)}")
    I(f"v_add_u32 {v(vZ+2)}, {ZF}, {v(vZ+2)}")
    I(f"ds_write_b64 {v(vZ+2)}, {v(vZ,2)}")
    I(f"s_waitcnt lgkmcnt(0)")
    lds_set(str(FLG + 52), tmp=vU)
    L("L_noz3")
    C("phi_q fragments now if they are there already")
    I(f"s_mov_b32 {s(sPQ)}, 0")
    I(f"v_and_b32 {v(vU)}, 1, {v(vLANE)}")
    I(f"v_lshlrev_b32 {v(vU)}, 2, {v(vU)}")
    I(f"v_add_u32 {v(vU)}, {FLG + 80}, {v(vU)}")
    I(f"ds_read_b32 {v(vU+1)}, {v(vU)}")
    I(f"s_waitcnt lgkmcnt(0)")
    I(f"v_cmp_ne_u32 vcc, {s(sNONCE)}, {v(vU+1)}")
    I(f"s_cbranch_vccnz L_nopq")
    for qi in range(2):
        for tt in range(4):
            I(f"ds_read_b128 {v(vPQ8+16*qi+4*tt,4)}, {v(vPA2)} offset:{qi*16384 + tt*1024}")
    I(f"s_mov_b32 {s(sPQ)}, 1")
    L("L_nopq")
    vS = 176
    C("sum of the 16 partials on the matrix pipe: D[j][n] += B[j][n] + B[8+j][n]  (A = two stacked 8x8 identities)")
    for c in range(8):
        I(f"s_waitcnt vmcnt({7-c})")
        cc = "0" if c == 0 else v(vS, 16)
        I(f"v_mfma_f32_32x32x16_bf16 {v(vS,16)}, {v(vID,4)}, {v(vR+4*c,4)}, {cc}")
    stamp("A red summed")
    I(f"v_cvt_pk_bf16_f32 {v(vS)}, {v(vS)}, {v(vS+1)}")
    I(f"v_cvt_pk_bf16_f32 {v(vS+1)}, {v(vS+2)}, {v(vS+3)}")
    I(f"s_mov_b32 {s(sSOFF)}, {O_F}")
    dual(lambda: I(f"buffer_store_dwordx2 {v(vS,2)}, {v(vX+2)}, {s(rP,4)}, {s(sSOFF)} offen{pol()}"))
    I(f"s_waitcnt vmcnt(0)")
    stamp("A reduced+drained")
    wave_flag(512)
    C("chunk 0 advances the epoch (all 16 workgroups of the head have read it)")
    I(f"s_cmp_eq_u32 {s(sCH)}, 0")
    I(f"s_cbranch_scc0 L_noep")
    I(f"s_cmp_eq_u32 {s(sTI)}, 1")
    I(f"s_cbranch_scc0 L_noep")
    I(f"s_mov_b64 exec, 1")
    I(f"v_mov_b32 {v(vT)}, 0")
    I(f"v_mov_b32 {v(vT+1)}, {s(sNONCE)}")
    I(f"s_mov_b32 {s(sT1)}, {O_FL}")
    I(f"buffer_store_dword {v(vT+1)}, {v(vT)}, {s(rP,4)}, {s(sT1)} offen sc1")
    I(f"s_mov_b64 exec, -1")
    L("L_noep")
    I(f"s_cmp_eq_u32 {s(sPQ)}, 1")
    I(f"s_cbranch_scc1 L_pqdone")
    phiq_frags("a")
    L("L_pqdone")
    STI[0] = 13
    I(f"s_branch L_final")

vPQ8 = 32
vKA = 64
vOP = 96
vAC3 = 128
vST = 192
vKG, vPA2, vRA, vSW, vSR, vOA, vU = 2, 3, 4, 5, 6, 7, 20
vRDS = 12
vRD = 4

def capture(fn):
    n = len(A.items)
    fn()
    got = [x.text for k, x in A.items[n:] if k == "i"]
    del A.items[n:]
    return got

def final_setup():
    I(f"s_and_b32 {s(sT3)}, {s(sWAVE)}, 3")
    I(f"s_lshr_b32 {s(sT2)}, {s(sWAVE)}, 2")
    I(f"v_bfe_u32 {v(vU+1)}, {v(vLANE)}, 2, 1")
    I(f"v_lshlrev_b32 {v(vU+1)}, 4, {v(vU+1)}")
    I(f"v_bfe_u32 {v(vU+2)}, {v(vLANE)}, 3, 2")
    I(f"v_lshl_add_u32 {v(vU+1)}, {v(vU+2)}, 2, {v(vU+1)}")
    I(f"v_and_b32 {v(vU+2)}, 3, {v(vLANE)}")
    I(f"v_add_u32 {v(vU+1)}, {v(vU+1)}, {v(vU+2)}")
    I(f"v_and_b32 {v(vU+2)}, 32, {v(vLANE)}")
    I(f"v_add_u32 {v(vU+1)}, {v(vU+1)}, {v(vU+2)}")
    I(f"v_lshlrev_b32 {v(vKG)}, 4, {v(vU+1)}")
    C("phi_q fragments of q tiles 2hq, 2hq+1; 1/den")
    I(f"s_lshl_b32 {s(sT1)}, {s(sT2)}, 15")
    I(f"s_add_u32 {s(sT1)}, {s(sT1)}, {QR}")
    I(f"v_add_u32 {v(vPA2)}, {s(sT1)}, {v(vL16)}")
    I(f"s_lshl_b32 {s(sT1)}, {s(sT2)}, 9")
    I(f"s_add_u32 {s(sT1)}, {s(sT1)}, {RD}")
    I(f"v_lshlrev_b32 {v(vRA)}, 2, {v(vLANE)}")
    I(f"v_add_u32 {v(vRA)}, {s(sT1)}, {v(vRA)}")
    C("private staging [2 q tiles][32 rows][128 B]: piece = 4 dl + 2 h + u, slot = piece ^ (row & 7)")
    I(f"s_lshl_b32 {s(sT1)}, {s(sWAVE)}, 13")
    I(f"s_add_u32 {s(sT1)}, {s(sT1)}, {VR}")
    I(f"v_lshrrev_b32 {v(vU+1)}, 5, {v(vLANE)}")
    I(f"v_lshlrev_b32 {v(vU+2)}, 1, {v(vU+1)}")
    I(f"v_and_b32 {v(vU+3)}, 7, {v(vLANE)}")
    I(f"v_xor_b32 {v(vU+2)}, {v(vU+2)}, {v(vU+3)}")
    I(f"v_lshlrev_b32 {v(vU+2)}, 4, {v(vU+2)}")
    I(f"v_and_b32 {v(vU+3)}, 31, {v(vLANE)}")
    I(f"v_lshl_add_u32 {v(vSW)}, {v(vU+3)}, 7, {v(vU+2)}")
    I(f"v_add_u32 {v(vSW)}, {s(sT1)}, {v(vSW)}")
    C("read back: row 8j + (l>>3), piece l&7")
    I(f"v_lshrrev_b32 {v(vU+1)}, 3, {v(vLANE)}")
    I(f"v_and_b32 {v(vU+2)}, 7, {v(vLANE)}")
    I(f"v_xor_b32 {v(vU+3)}, {v(vU+2)}, {v(vU+1)}")
    I(f"v_lshlrev_b32 {v(vU+3)}, 4, {v(vU+3)}")
    I(f"v_lshl_add_u32 {v(vSR)}, {v(vU+1)}, 7, {v(vU+3)}")
    I(f"v_add_u32 {v(vSR)}, {s(sT1)}, {v(vSR)}")
    C("output offset: (64 hq + (l>>3))*512 + p*128 + (l&7)*16")
    I(f"v_lshlrev_b32 {v(vU+2)}, 4, {v(vU+2)}")
    I(f"v_lshl_add_u32 {v(vOA)}, {v(vU+1)}, 9, {v(vU+2)}")
    I(f"s_lshl_b32 {s(sT1)}, {s(sT2)}, 15")
    I(f"s_lshl_b32 {s(sT2)}, {s(sT3)}, 7")
    I(f"s_add_u32 {s(sT1)}, {s(sT1)}, {s(sT2)}")
    I(f"v_add_u32 {v(vOA)}, {s(sT1)}, {v(vOA)}")

def team_b():
    C("================= team B =================")
    L("L_team_b")
    STI[0] = 2
    def preread():
        if opt.preread:
            C("bring the 2 KiB of the final kv image this workgroup writes into L2 (waves B0, B1: 1 KiB each)")
            I(f"s_cmp_lt_u32 {s(sTI)}, 2")
            I(f"s_cbranch_scc0 L_nopre")
            I(f"s_lshl_b32 {s(sT1)}, {s(sCH)}, 11")
            I(f"s_lshl_b32 {s(sT2)}, {s(sTI)}, 10")
            I(f"s_add_u32 {s(sT1)}, {s(sT1)}, {s(sT2)}")
            I(f"s_add_u32 {s(sT1)}, {s(sT1)}, {O_F}")
            I(f"buffer_load_dwordx4 {v(32,4)}, {v(vL16)}, {s(rP,4)}, {s(sT1)} offen")
            L("L_nopre")
    if not opt.early: preread()
    def pres_load(tag):
        if not opt.fast: return
        I(f"s_cmp_eq_u32 {s(sTI)}, 0")
        I(f"s_cbranch_scc0 L_nochk0{tag}")
        I(f"s_load_dwordx8 {s(20,8)}, {s(sEPA,2)}, {O_FL + 128} glc")
        I(f"s_load_dwordx8 {s(44,8)}, {s(sEPA,2)}, {O_FL + 160} glc")
        L(f"L_nochk0{tag}")
    def mode_check():
        if not opt.fast: return
        I(f"s_cmp_eq_u32 {s(sTI)}, 0")
        I(f"s_cbranch_scc0 L_nochk1")
        I(f"s_mov_b32 {s(sSPIN)}, 0")
        L("L_chk")
        I(f"s_waitcnt lgkmcnt(0)")
        I(f"s_mov_b32 {s(sT1)}, {s(sNONCE)}")
        I(f"s_not_b32 {s(sT2)}, {s(sNONCE)}")
        I(f"s_mov_b32 {s(sT3)}, 1")
        for j in range(16):
            r = (20 if j < 8 else 36) + j
            I(f"s_cmp_eq_u32 {s(r)}, {s(sPRES)}")
            I(f"s_cselect_b32 {s(sT1)}, {s(sT1)}, {s(sT2)}")
            I(f"s_lshr_b32 {s(r)}, {s(r)}, 4")
            I(f"s_lshr_b32 {s(sFAST)}, {s(sPRES)}, 4")
            I(f"s_cmp_eq_u32 {s(r)}, {s(sFAST)}")
            I(f"s_cselect_b32 {s(sT3)}, {s(sT3)}, 0")
        I(f"s_cmp_eq_u32 {s(sT3)}, 1")
        I(f"s_cbranch_scc1 L_chkd")
        I(f"s_add_u32 {s(sSPIN)}, {s(sSPIN)}, 1")
        I(f"s_cmp_ge_u32 {s(sSPIN)}, 12")
        I(f"s_cbranch_scc1 L_chkd")
        I(f"s_load_dwordx8 {s(20,8)}, {s(sEPA,2)}, {O_FL + 128} glc")
        I(f"s_load_dwordx8 {s(44,8)}, {s(sEPA,2)}, {O_FL + 160} glc")
        I(f"s_branch L_chk")
        L("L_chkd")
        if opt.forceslow: I(f"s_mov_b32 {s(sT1)}, {s(sT2)}")
        lds_set(str(FLG + 48), val=s(sT1))
        lds_set(str(FLG + 56))
        I(f"s_waitcnt lgkmcnt(0)")
        L("L_nochk1")
    def vflag(k):
        I(f"s_lshl_b32 {s(sT3)}, {s(sTI)}, 2")
        I(f"s_add_u32 {s(sT3)}, {s(sT3)}, {FLG + 16 + 16*k}")
        lds_set(s(sT3))
    VF[0] = vflag
    if opt.early:
        read_omega(QR)
        I(f"s_waitcnt vmcnt(4) lgkmcnt(0)")
        I(f"s_barrier")
        stamp("B B1")
        I(f"s_barrier")
        preread()
        I(f"s_mov_b32 {s(sT3)}, 8")
        v_issue(30, s(sT3), 8)
        I(f"s_lshl_b32 {s(sSOFF)}, {s(sTI)}, 14")
        for i in range(2): dma_row_instr(rQ, QR, i)
        I(f"s_waitcnt vmcnt(10)")
        vflag(0)
        pres_load("e")
        stamp("B V1 landed")
        for i in range(2, 8): dma_row_instr(rQ, QR, i)
        I(f"s_waitcnt vmcnt(8)")
        vflag(1)
        mode_check()
        stamp("B V2 landed")
        nh = opt.holdq
        for i in range(8, 16 - nh): dma_row_instr(rQ, QR, i)
        if opt.holdst:
            I(f"s_lshl_b32 {s(sT3)}, {s(sTI)}, 2")
            I(f"s_add_u32 {s(sT3)}, {s(sT3)}, {FLG + 112}")
            lds_set(s(sT3))
        if nh:
            lds_wait(str(FLG + 64), 4, "hq")
            for i in range(16 - nh, 16): dma_row_instr(rQ, QR, i)
        stamp("B q issued")
        I(f"s_waitcnt vmcnt(0)")
        stamp("B q landed")
    elif opt.kqv:
        I(f"s_lshl_b32 {s(sSOFF)}, {s(sTI)}, 14")
        for i in range(16): dma_row_instr(rQ, QR, i)
        I(f"s_waitcnt vmcnt(16)")
        I(f"s_barrier")
        stamp("B B1")
        read_omega(QR)
        I(f"s_waitcnt lgkmcnt(0)")
        I(f"s_barrier")
        dma_v()
        if opt.fast:
            I(f"s_cmp_eq_u32 {s(sTI)}, 0")
            I(f"s_cbranch_scc0 L_nochk0")
            I(f"s_load_dwordx8 {s(20,8)}, {s(sEPA,2)}, {O_FL + 128} glc")
            I(f"s_load_dwordx8 {s(44,8)}, {s(sEPA,2)}, {O_FL + 160} glc")
            L("L_nochk0")
        stamp("B v issued")
        I(f"s_waitcnt vmcnt(16)")
        stamp("B q landed")
        mode_check()
    else:
        if opt.bomega: read_omega(QR)
        dma_v()
        I(f"s_waitcnt vmcnt(16)")
        if opt.bomega: I(f"s_waitcnt lgkmcnt(0)")
        I(f"s_barrier")
        stamp("B B1")
        if not opt.bomega:
            read_omega(QR)
            I(f"s_waitcnt lgkmcnt(0)")
        I(f"s_barrier")
        if opt.fast:
            I(f"s_cmp_eq_u32 {s(sTI)}, 0")
            I(f"s_cbranch_scc0 L_nochk0")
            I(f"s_load_dwordx8 {s(20,8)}, {s(sEPA,2)}, {O_FL + 128} glc")
            I(f"s_load_dwordx8 {s(44,8)}, {s(sEPA,2)}, {O_FL + 160} glc")
            L("L_nochk0")
        def pace_signal():
            if not opt.stagger: return
            PS[0] += 1
            I(f"s_and_b32 {s(sT1)}, {s(sHEAD)}, 1")
            I(f"s_or_b32 {s(sT1)}, {s(sT1)}, {s(sTI)}")
            I(f"s_cmp_eq_u32 {s(sT1)}, 0")
            I(f"s_cbranch_scc0 L_nosigp{PS[0]}")
            I(f"s_lshl_b32 {s(sT1)}, {s(sCH)}, 2")
            I(f"s_add_u32 {s(sT1)}, {s(sT1)}, {O_FL + 768}")
            I(f"s_mov_b64 exec, 1")
            I(f"v_mov_b32 {v(vX+4)}, 0")
            I(f"v_mov_b32 {v(vX+5)}, {s(sNONCE)}")
            I(f"buffer_store_dword {v(vX+5)}, {v(vX+4)}, {s(rP,4)}, {s(sT1)} offen sc1")
            I(f"s_mov_b64 exec, -1")
            L(f"L_nosigp{PS[0]}")
        def pre(i):
            I(f"s_add_u32 {s(sT1)}, {s(sT0)}, {1024*i}")
            I(f"buffer_load_dwordx4 {v(32+4*(i%8),4)}, {v(vL16)}, {s(rP,4)}, {s(sT1)} offen{opt.prepol}")
        if opt.holdall:
            I(f"s_waitcnt vmcnt(8)")
            mode_check()
            vflag(0)
            stamp("B V1 landed")
            I(f"s_waitcnt vmcnt(0)")
            vflag(1)
            stamp("B V2 landed")
            lds_wait(str(FLG + 64), 4, "hq")
            I(f"s_lshl_b32 {s(sSOFF)}, {s(sTI)}, 14")
            for i in range(16): dma_row_instr(rQ, QR, i)
            stamp("B q issued")
            I(f"s_waitcnt vmcnt(0)")
            stamp("B q landed")
        if opt.pacept == "b2" and not opt.holdall: pace_signal()
        if not opt.holdall:
            if opt.prepart:
                I(f"s_lshl_b32 {s(sT0)}, {s(sCH)}, 15")
                I(f"s_lshl_b32 {s(sT1)}, {s(sTI)}, 13")
                I(f"s_add_u32 {s(sT0)}, {s(sT0)}, {s(sT1)}")
                for i in range(4): pre(i)
            else:
                I(f"s_lshl_b32 {s(sSOFF)}, {s(sTI)}, 14")
                for i in range(4): dma_row_instr(rQ, QR, i)
            I(f"s_waitcnt vmcnt(12)")
            I(f"s_lshl_b32 {s(sT3)}, {s(sTI)}, 2")
            I(f"s_add_u32 {s(sT3)}, {s(sT3)}, {FLG + 16}")
            if opt.fast:
                I(f"s_cmp_eq_u32 {s(sTI)}, 0")
                I(f"s_cbranch_scc0 L_nochk1")
                I(f"s_waitcnt lgkmcnt(0)")
                I(f"s_mov_b32 {s(sT1)}, {s(sNONCE)}")
                I(f"s_not_b32 {s(sT2)}, {s(sNONCE)}")
                for j in range(16):
                    I(f"s_cmp_eq_u32 {s((20 if j < 8 else 36) + j)}, {s(sPRES)}")
                    I(f"s_cselect_b32 {s(sT1)}, {s(sT1)}, {s(sT2)}")
                if opt.forceslow: I(f"s_mov_b32 {s(sT1)}, {s(sT2)}")
                lds_set(str(FLG + 48), val=s(sT1))
                lds_set(str(FLG + 56))
                I(f"s_waitcnt lgkmcnt(0)")
                L("L_nochk1")
            lds_set(s(sT3))
            if opt.pacept == "v1": pace_signal()
            stamp("B V1 landed")
            if opt.prepart:
                for i in range(4, 8): pre(i)
            else:
                for i in range(4, 8): dma_row_instr(rQ, QR, i)
            I(f"s_waitcnt vmcnt(8)")
            I(f"s_add_u32 {s(sT3)}, {s(sT3)}, 16")
            lds_set(s(sT3))
            if opt.pacept == "v2": pace_signal()
            stamp("B V2 landed")
            if opt.prepart:
                I(f"s_lshl_b32 {s(sSOFF)}, {s(sTI)}, 14")
                for i in range(16): dma_row_instr(rQ, QR, i)
            else:
                nh = opt.holdq
                for i in range(8, 16 - nh): dma_row_instr(rQ, QR, i)
                if nh:
                    I(f"s_lshl_b32 {s(sT3)}, {s(sTI)}, 2")
                    I(f"s_add_u32 {s(sT3)}, {s(sT3)}, {FLG + 64}")
                    lds_wait(s(sT3), 1, "hq")
                    for i in range(16 - nh, 16): dma_row_instr(rQ, QR, i)
            if opt.pacept == "q": pace_signal()
            if opt.holdst:
                I(f"s_lshl_b32 {s(sT3)}, {s(sTI)}, 2")
                I(f"s_add_u32 {s(sT3)}, {s(sT3)}, {FLG + 112}")
                lds_set(s(sT3))
            stamp("B q issued")
            I(f"s_waitcnt vmcnt(0)")
            stamp("B q landed")
    read_tile_frags()
    I(f"s_waitcnt lgkmcnt(0)")
    ssq()
    steps = ssq_reduce_steps()
    fs = capture(final_setup) if opt.bsetup else []
    kf = 0
    for t in range(16):
        c = "0" if t == 0 else v(vA1, 16)
        I(f"v_mfma_f32_32x32x16_bf16 {v(vA1,16)}, {v(W(0,t),4)}, {v(vKF+4*t,4)}, {c}")
        if 1 <= t <= 5:
            for x in steps[t-1]: I(x)
        if t == 6: I(f"v_mul_f32 {v(vSS)}, {s(sM132)}, {v(vSS)}")
        if not opt.mimicq:
            if t == 7: I(f"v_mul_f32 {v(vSS)}, {s(sLOG2E)}, {v(vSS)}")
            if t == 8: I(f"s_mov_b32 {s(sC025L)}, 0x3eb8aa3b")
            if t == 9: I(f"v_mov_b32 {v(vSS+3)}, {s(sEPS)}")
        n = 3 if t < 15 else len(fs) - kf
        for x in fs[kf:kf+n]: I(x)
        kf += n
    vY = 20
    vQ0 = 12
    vQ1 = 112
    def plain_ops(mt, dst):
        ops = []
        acc = lambda r: vA1 + 16*mt + r
        for g in range(2):
            for i in range(8): ops.append(f"v_fma_f32 {v(vY+i)}, {v(acc(8*g+i))}, {s(sC025L)}, {v(vSS)}")
            for i in range(8): ops.append(f"v_exp_f32 {v(vY+i)}, {v(vY+i)}")
            for i in range(8): ops.append(f"v_fma_f32 {v(vY+i)}, {v(vY+i)}, {s(sC0125)}, {v(vSS+3)}")
            for i in range(4): ops.append(f"v_cvt_pk_bf16_f32 {v(dst+4*g+i)}, {v(vY+2*i)}, {v(vY+2*i+1)}")
        return ops
    if not opt.mimicq:
        ops0 = plain_ops(0, vQ0)
        k = 0
        for t in range(16):
            c = "0" if t == 0 else v(vA1 + 16, 16)
            I(f"v_mfma_f32_32x32x16_bf16 {v(vA1+16,16)}, {v(W(1,t),4)}, {v(vKF+4*t,4)}, {c}")
            if t >= 1:
                n = 4 if t < 15 else len(ops0) - k
                for x in ops0[k:k+n]: I(x)
                k += n
        stamp("B gemm1 done")
        if opt.kqv:
            I(f"s_waitcnt vmcnt(8)")
            VF[0](0)
        for x in plain_ops(1, vPO + 8): I(x)
        if opt.kqv:
            I(f"s_waitcnt vmcnt(0)")
            VF[0](1)
            stamp("B V2 landed")
        for i in range(8): I(f"v_mov_b32 {v(vPO+i)}, {v(vQ0+i)}")
    else:
        for t in range(16):
            c = "0" if t == 0 else v(vA1 + 16, 16)
            I(f"v_mfma_f32_32x32x16_bf16 {v(vA1+16,16)}, {v(W(1,t),4)}, {v(vKF+4*t,4)}, {c}")
        stamp("B gemm1 done")
        I(f"v_mov_b32 {v(vEPS)}, {s(sEPS)}")
        I(f"v_cvt_pk_bf16_f32 {v(vSS)}, {v(vSS)}, 0")
        I(f"v_lshlrev_b32 {v(vNQ)}, 16, {v(vSS)}")
        for mt in range(2):
            pipeline_mimic(mt, lambda r: vNQ, vP4 + 8*mt)
        for i in range(16): I(f"v_mov_b32 {v(vPO+i)}, {v(vP4+i)}")
    I(f"s_lshl_b32 {s(sT1)}, {s(sTI)}, 14")
    I(f"s_add_u32 {s(sT1)}, {s(sT1)}, {QR}")
    I(f"v_add_u32 {v(vX)}, {s(sT1)}, {v(vL16)}")
    for t in range(4):
        I(f"ds_write_b128 {v(vX)}, {v(vPO+4*t,4)} offset:{t*1024}")
    I(f"s_waitcnt lgkmcnt(0)")
    I(f"s_lshl_b32 {s(sT1)}, {s(sTI)}, 2")
    I(f"s_add_u32 {s(sT1)}, {s(sT1)}, {FLG + 80}")
    lds_set(s(sT1))
    stamp("B phiq done")
    if not opt.bsetup: final_setup()
    phiq_frags("b")
    C("den = phi_q . z once z is there")
    vZF = 112; vDEN = 24; vRD = 28
    lds_wait(str(FLG + 52), 1, "z", tmp=vU)
    I(f"v_lshrrev_b32 {v(vDEN)}, 5, {v(vLANE)}")
    I(f"v_lshlrev_b32 {v(vDEN)}, 3, {v(vDEN)}")
    I(f"v_add_u32 {v(vDEN)}, {ZF}, {v(vDEN)}")
    for t in range(4):
        I(f"ds_read2_b64 {v(vZF+4*t,4)}, {v(vDEN)} offset0:{4*t} offset1:{4*t+2}")
    I(f"v_mov_b32 {v(vDEN+2)}, 0")
    I(f"v_mov_b32 {v(vDEN+3)}, 0")
    I(f"s_waitcnt lgkmcnt(0)")
    for i in range(16):
        I(f"v_dot2c_f32_bf16 {v(vDEN+2+(i&1))}, {v(vPO+i)}, {v(vZF+i)}")
    I(f"v_add_f32 {v(vDEN)}, {v(vDEN+2)}, {v(vDEN+3)}")
    I(f"v_mov_b32 {v(vDEN+1)}, {v(vDEN)}")
    I(f"v_permlane32_swap_b32 {v(vDEN)}, {v(vDEN+1)}")
    I(f"v_add_f32 {v(vDEN)}, {v(vDEN)}, {v(vDEN+1)}")
    I(f"v_cvt_pk_bf16_f32 {v(vDEN)}, {v(vDEN)}, {v(vDEN)}")
    I(f"v_lshlrev_b32 {v(vDEN)}, 16, {v(vDEN)}")
    I(f"v_add_f32 {v(vDEN)}, {s(sEPS)}, {v(vDEN)}")
    I(f"v_cvt_pk_bf16_f32 {v(vDEN)}, {v(vDEN)}, {v(vDEN)}")
    I(f"v_lshlrev_b32 {v(vDEN)}, 16, {v(vDEN)}")
    I(f"v_rcp_f32 {v(vRD)}, {v(vDEN)}")
    I(f"v_fma_f32 {v(vDEN+1)}, -{v(vDEN)}, {v(vRD)}, 1.0")
    I(f"v_fma_f32 {v(vRD)}, {v(vDEN+1)}, {v(vRD)}, {v(vRD)}")
    I(f"s_lshl_b32 {s(sT1)}, {s(sTI)}, 8")
    I(f"s_add_u32 {s(sT1)}, {s(sT1)}, {RD}")
    I(f"v_lshlrev_b32 {v(vDEN)}, 2, {v(vLANE)}")
    I(f"v_add_u32 {v(vDEN)}, {s(sT1)}, {v(vDEN)}")
    I(f"ds_write_b32 {v(vDEN)}, {v(vRD)}")
    I(f"s_waitcnt lgkmcnt(0)")
    I(f"s_lshl_b32 {s(sT1)}, {s(sTI)}, 2")
    I(f"s_add_u32 {s(sT1)}, {s(sT1)}, {FLG + 96}")
    lds_set(s(sT1))
    if opt.fast:
        I(f"v_mov_b32 {v(vDEN)}, {FLG + 48}")
        I(f"ds_read_b32 {v(vDEN+1)}, {v(vDEN)}")
        I(f"s_waitcnt lgkmcnt(0)")
        I(f"v_readfirstlane_b32 {s(sFAST)}, {v(vDEN+1)}")
        I(f"s_cmp_eq_u32 {s(sFAST)}, {s(sNONCE)}")
        I(f"s_cselect_b32 {s(sFAST)}, 1, 0")
    stamp("B den done")
    STI[0] = 13

def phiq_frags(tag):
    C("phi_q of the two q tiles")
    I(f"s_lshr_b32 {s(sT1)}, {s(sWAVE)}, 2")
    I(f"s_lshl_b32 {s(sT1)}, {s(sT1)}, 3")
    I(f"s_add_u32 {s(sSOFF)}, {s(sT1)}, {FLG + 80}")
    lds_wait(s(sSOFF), 2, "pq" + tag, tmp=vU)
    for qi in range(2):
        for t in range(4):
            I(f"ds_read_b128 {v(vPQ8+16*qi+4*t,4)}, {v(vPA2)} offset:{qi*16384 + t*1024}")

def final():
    L("L_final")
    C("================= final: wave w = d tiles 2p,2p+1 x q tiles 2hq,2hq+1; no workgroup barrier =================")
    stamp("F phiq read")
    C("flags of the four reducing workgroups 4p..4p+3 (16 words)")
    I(f"s_and_b32 {s(sT3)}, {s(sWAVE)}, 3")
    I(f"s_lshl_b32 {s(sT2)}, {s(sT3)}, 6")
    I(f"s_add_u32 {s(sT2)}, {s(sT2)}, {O_FL + 512}")
    I(f"s_mov_b32 {s(sSPIN)}, 0")
    I(f"v_and_b32 {v(vU)}, 15, {v(vLANE)}")
    I(f"v_lshlrev_b32 {v(vU)}, 2, {v(vU)}")
    L("L_spin_h2")
    I(f"buffer_load_dword {v(vU+1)}, {v(vU)}, {s(rP,4)}, {s(sT2)} offen sc1")
    I(f"s_waitcnt vmcnt(0)")
    I(f"v_cmp_ne_u32 vcc, {s(sNONCE)}, {v(vU+1)}")
    I(f"s_cbranch_vccz L_spun_h2")
    I(f"s_cmp_lg_u32 {s(sFAST)}, 0")
    I(f"s_cbranch_scc1 L_nap_h2")
    I(f"s_sleep 12")
    L("L_nap_h2")
    I(f"s_add_u32 {s(sSPIN)}, {s(sSPIN)}, 1")
    I(f"s_cmp_lt_u32 {s(sSPIN)}, {opt.spin_limit}")
    I(f"s_cbranch_scc1 L_spin_h2")
    L("L_spun_h2")
    stamp("F hop2")
    I(f"s_lshl_b32 {s(sT1)}, {s(sT3)}, 13")
    I(f"s_add_u32 {s(sT1)}, {s(sT1)}, {O_F}")
    I(f"s_add_u32 {s(sT2)}, {s(sT1)}, 4096")
    for dl in range(2):
        for t in range(4):
            I(f"buffer_load_dwordx4 {v(vKA+16*dl+4*t,4)}, {v(vKG)}, {s(rP,4)}, {s(sT1 if dl == 0 else sT2)} offen offset:{t*1024} sc1")
    I(f"s_lshr_b32 {s(sT1)}, {s(sWAVE)}, 2")
    I(f"s_lshl_b32 {s(sT1)}, {s(sT1)}, 3")
    I(f"s_add_u32 {s(sSOFF)}, {s(sT1)}, {FLG + 96}")
    lds_wait(s(sSOFF), 2, "rd", tmp=vU)
    for qi in range(2):
        I(f"ds_read_b32 {v(vRDS+2*qi)}, {v(vRA)} offset:{256*qi}")
    so = [74, 75, 76, 77, 78, 79, 80, 81] if not opt.stamps else None
    def mm(qi, dl):
        acc = vAC3 + 16*(2*qi + dl)
        for t in range(4):
            c = "0" if t == 0 else v(acc, 16)
            I(f"v_mfma_f32_32x32x16_bf16 {v(acc,16)}, {v(vKA+16*dl+4*t,4)}, {v(vPQ8+16*qi+4*t,4)}, {c}")
    def epi(qi, dl):
        acc = vAC3 + 16*(2*qi + dl); op = vOP + 16*qi + 8*dl
        if opt.mimicnum:
            for k in range(8): I(f"v_cvt_pk_bf16_f32 {v(op+k)}, {v(acc+2*k)}, {v(acc+2*k+1)}")
            for k in range(8):
                I(f"v_lshlrev_b32 {v(acc+2*k)}, 16, {v(op+k)}")
                I(f"v_and_b32 {v(acc+2*k+1)}, {s(sMASKH)}, {v(op+k)}")
        for k in range(8): I(f"v_pk_mul_f32 {v(acc+2*k,2)}, {v(acc+2*k,2)}, {v(vRDS+2*qi,2)} op_sel_hi:[1,0]")
        for k in range(8): I(f"v_cvt_pk_bf16_f32 {v(op+k)}, {v(acc+2*k)}, {v(acc+2*k+1)}")
        for u in range(2):
            x = 64*dl + 16*u
            reg = vSW if x == 0 else vU + (x // 16 - 1 if x < 64 else x // 16 - 3)
            I(f"ds_write_b128 {v(reg)}, {v(op+4*u,4)} offset:{4096*qi}")
    def R(qi):
        for j in range(4):
            I(f"ds_read_b128 {v(vST+16*qi+4*j,4)}, {v(vSR)} offset:{4096*qi + 1024*j}")
    def S(qi):
        for j in range(4):
            row = 32*qi + 8*j
            I(f"s_mov_b32 {s(sSOFF)}, {row*512}")
            I(f"s_waitcnt lgkmcnt({3-j})")
            I(f"buffer_store_dwordx4 {v(vST+16*qi+4*j,4)}, {v(vOA)}, {s(rO,4)}, {s(sSOFF)} offen{opt.ost}")
    I(f"v_xor_b32 {v(vU)}, 16, {v(vSW)}")
    I(f"v_xor_b32 {v(vU+1)}, 64, {v(vSW)}")
    I(f"v_xor_b32 {v(vU+2)}, 80, {v(vSW)}")
    I(f"s_waitcnt vmcnt(4) lgkmcnt(0)")
    stamp("F kv there")
    if opt.forder == 0:
        mm(0, 0)
        I(f"s_waitcnt vmcnt(0)")
        mm(0, 1)
        epi(0, 0)
        mm(1, 0)
        epi(0, 1)
        I(f"s_waitcnt lgkmcnt(0)")
        R(0)
        mm(1, 1)
        S(0)
        epi(1, 0)
        epi(1, 1)
        I(f"s_waitcnt lgkmcnt(0)")
        R(1)
        S(1)
    elif opt.forder == 1:
        mm(0, 0)
        I(f"s_waitcnt vmcnt(0)")
        mm(0, 1)
        epi(0, 0)
        epi(0, 1)
        mm(1, 0)
        mm(1, 1)
        I(f"s_waitcnt lgkmcnt(0)")
        R(0)
        S(0)
        epi(1, 0)
        epi(1, 1)
        I(f"s_waitcnt lgkmcnt(0)")
        R(1)
        S(1)
    else:
        mm(0, 0)
        I(f"s_waitcnt vmcnt(0)")
        mm(0, 1)
        epi(0, 0)
        epi(0, 1)
        mm(1, 0)
        I(f"s_waitcnt lgkmcnt(0)")
        R(0)
        mm(1, 1)
        S(0)
        epi(1, 0)
        epi(1, 1)
        I(f"s_waitcnt lgkmcnt(0)")
        R(1)
        S(1)
    STI[0] = 18
    stamp("stores issued")
    if opt.stamps: I("s_waitcnt vmcnt(0)")
    stamp("stores done")
    stamps_flush("f")

def build():
    set_regions(opt.kqv)
    common_start()
    I(f"s_cmp_ge_u32 {s(sWAVE)}, 4")
    I(f"s_cbranch_scc1 L_team_b")
    team_a()
    team_b()
    final()
    L("L_end")
    I("s_endpgm")
    body = A.render()
    hdr = f"""; fused RFA linear attention: 256 workgroups (one per CU) x 8 waves
; @launch grid=(256,1,1) block=(512,1,1) lds={LDS_BYTES}
.amdgcn_target "amdgcn-amd-amdhsa--gfx950"
.text
.globl {NAME}
.p2align 8
.type {NAME},@function
{NAME}:
"""
    ftr = f"""
.section .rodata,"a"
.p2align 6
.amdhsa_kernel {NAME}
  .amdhsa_next_free_vgpr 256
  .amdhsa_next_free_sgpr 102
  .amdhsa_accum_offset 256
  .amdhsa_group_segment_fixed_size 0
  .amdhsa_kernarg_size 56
  .amdhsa_user_sgpr_count 2
  .amdhsa_user_sgpr_kernarg_segment_ptr 1
  .amdhsa_system_sgpr_workgroup_id_x 1
  .amdhsa_float_denorm_mode_32 3
.end_amdhsa_kernel
"""
    return hdr + body + ftr

if __name__ == "__main__":
    out = sys.argv[1]
    for a in sys.argv[2:]:
        if a == "stamps": opt.stamps = True
        elif a == "light": opt.stamps = True; opt.light = True
        elif a == "nont": opt.nt = False
        elif a == "nofast": opt.fast = False
        elif a == "forceslow": opt.forceslow = True
        elif a == "nopretouch": opt.pretouch = False
        elif a == "mimicq": opt.mimicq = True; opt.bsetup = False
        elif a == "nomred": opt.mred = False
        elif a.startswith("forder="): opt.forder = int(a.split("=")[1])
        elif a == "nobsetup": opt.bsetup = False
        elif a == "early": opt.early = True
        elif a == "kko": opt.kko = True; opt.bomega = False
        elif a.startswith("holdall="): opt.holdall = a.split("=")[1]
        elif a == "kok": opt.kok = True
        elif a == "nokokbar": opt.kokbar = False
        elif a == "cyc": opt.cyc = True
        elif a == "holdst": opt.holdst = True
        elif a == "nobomega": opt.bomega = False
        elif a == "nokfast": opt.kfast = False
        elif a.startswith("kshadow="): opt.kshadow = int(a.split("=")[1])
        elif a.startswith("holdq="): opt.holdq = int(a.split("=")[1])
        elif a == "kqv": opt.kqv = True
        elif a.startswith("stagger="): opt.stagger = True; opt.pacept = a.split("=")[1]
        elif a == "prepart": opt.prepart = True; opt.partplain = True
        elif a.startswith("prepol="): opt.prepol = (" " + a.split("=")[1].replace("+", " ")).rstrip()
        elif a.startswith("partpol="): opt.partpol = " " + a.split("=")[1].replace("+", " ")
        elif a == "codepf": opt.codepf = True
        elif a == "partplain": opt.partplain = True
        elif a == "nopreread": opt.preread = False
        elif a == "mimicnum": opt.mimicnum = True
        elif a.startswith("dbgwg="): opt.dbgwg = int(a.split("=")[1])
        elif a.startswith("dbgwave="): opt.dbgwave = int(a.split("=")[1])
        elif a.startswith("ost="): opt.ost = " " + a.split("=")[1].replace("+", " ")
        else: raise SystemExit("unknown option " + a)
    txt = build()
    open(out, "w").write(txt)
    if opt.stamps: json.dump(STN, open(out + ".stamps.json", "w"))
    print("wrote", out, "nops inserted:", A.nops, "lines", txt.count("\n"))
```

```python
import sys, json, struct
from asmlib import *

NAME = "standalone__linear_kernel_rfa__prompt_kernel"
class O: pass
opt = O()
opt.spin_limit = 300000
opt.stamps = False
opt.nt = True
opt.fast = True
opt.forceslow = False
opt.dbgwg = None
opt.dbgwave = 0
opt.ost = " nt"
opt.pretouch = True
opt.partplain = False
opt.preread = True
opt.codepf = False
opt.partpol = ' sc1'
opt.prepart = False
opt.prepol = ' nt'
opt.light = False
opt.stagger = False
opt.pacept = 'v2'
opt.pacemax = 40
opt.kqv = False
opt.holdq = 0
opt.bomega = True
opt.kfast = True
opt.kshadow = 6
opt.holdst = False
opt.cyc = False
opt.kok = False
opt.kokbar = True
opt.holdall = ''
opt.kko = False
opt.early = False
opt.bsetup = True
opt.mred = True
opt.forder = 0
opt.codelen = 11648
opt.codepf2 = 0
opt.mimicq = False
opt.mimicnum = False

KQ = 0
QR = 0
VR = 65536
WR = 131072
PHI = WR
ZB = WR + 16384
ZF = WR + 17408
FLG = WR + 17664
RD = WR + 18432
KVF = VR
OSA = VR + 32768
def set_regions(kqv):
    global QR, VR, KVF, OSA
    QR, VR = (65536, 0) if kqv else (0, 65536)
    KVF = VR; OSA = VR + 32768
LDS_BYTES = 163840
HS = 1 << 20
O_PART = 0
O_F = 524288
O_Z = 524288 + 32768
O_FL = 524288 + 32768 + 4096
WS_ST = 20 << 20

sQp, sKp, sVp, sWp, sOp, sDp, sSp = 4, 6, 8, 10, 12, 14, 16
sHEAD, sCH = 18, 19
rK, rV, rQ, rW, rO, rP, rL = 20, 24, 28, 32, 36, 40, 52
sWAVE, sTI = 56, 57
sT0, sT1, sT2, sT3 = 58, 59, 60, 61
sNONCE, sFAST = 62, 63
sC025L, sC025H, sLOG2E, sC0125, sMASKH, sONES = 64, 65, 66, 67, 68, 69
sSPIN, sSOFF, sEPS, sM132 = 70, 71, 72, 73
sXCC, sPRES = 94, 95
sPQ = 73
sEPA = 96
sPW = 40
sJUNK = 44

A = Asm()
I, L, C = A.I, A.L, A.C
STI = [0]; STN = []; PS = [0]; VF = [None]
def stamp(name=""):
    if not opt.stamps: return
    if opt.light and name not in ("start", "stores done"):
        STN.append((STI[0], name)); STI[0] += 1
        return
    C("stamp %s" % name)
    I("s_memtime s[98:99]" if opt.cyc else "s_memrealtime s[98:99]")
    I("s_waitcnt lgkmcnt(0)")
    I("s_mov_b32 s%d, s98" % (74 + STI[0]))
    STN.append((STI[0], name)); STI[0] += 1
def stamps_flush(tag):
    if not opt.stamps: return
    I("s_and_b32 s97, s56, 3"); I("s_cmp_eq_u32 s97, 0"); I("s_cbranch_scc0 L_nost_%s" % tag)
    I("s_lshr_b32 s97, s56, 2"); I("s_lshl_b32 s96, s2, 1"); I("s_add_u32 s96, s96, s97"); I("s_lshl_b32 s96, s96, 7")
    I("s_add_u32 s96, s96, %d" % WS_ST)
    I("s_add_u32 s40, s16, s96"); I("s_addc_u32 s41, s17, 0"); I("s_and_b32 s41, s41, 0xffff"); I("s_mov_b32 s42, 128"); I("s_mov_b32 s43, 0x20000")
    I("s_mov_b64 exec, 1"); I("v_mov_b32 v1, 0")
    for i in range(20):
        I("v_mov_b32 v2, s%d" % (74 + i)); I("buffer_store_dword v2, v1, s[40:43], 0 offen offset:%d" % (4 * i))
    I("s_waitcnt vmcnt(0)")
    if opt.dbgwg is not None:
        I("s_cmp_eq_u32 s2, %d" % opt.dbgwg); I("s_cbranch_scc0 L_nodbg")
        I("s_cmp_eq_u32 s56, %d" % opt.dbgwave); I("s_cbranch_scc0 L_nodbg")
        I("s_mov_b32 s40, s14"); I("s_and_b32 s41, s15, 0xffff"); I("s_mov_b32 s42, 256")
        I("s_sub_u32 s97, s74, s100"); I("v_mov_b32 v2, s97"); I("buffer_store_dword v2, v1, s[40:43], 0 offen offset:60")
        idx = [i for i in range(1, 14)] + [18, 19]
        for j, i in enumerate(idx):
            I("s_sub_u32 s97, s%d, s74" % (74 + i)); I("v_mov_b32 v2, s97"); I("buffer_store_dword v2, v1, s[40:43], 0 offen offset:%d" % (4 * j))
        I("s_waitcnt vmcnt(0)")
        L("L_nodbg")
    I("s_mov_b64 exec, -1")
    L("L_nost_%s" % tag)

def srd(r, ptr, off_s, size):
    if off_s is None:
        I(f"s_mov_b32 {s(r)}, {s(ptr)}")
        I(f"s_and_b32 {s(r+1)}, {s(ptr+1)}, 0xffff")
    else:
        I(f"s_add_u32 {s(r)}, {s(ptr)}, {s(off_s)}")
        I(f"s_addc_u32 {s(r+1)}, {s(ptr+1)}, 0")
        I(f"s_and_b32 {s(r+1)}, {s(r+1)}, 0xffff")
    I(f"s_mov_b32 {s(r+2)}, {size}")
    I(f"s_mov_b32 {s(r+3)}, 0x20000")

NT = lambda: " nt" if opt.nt else ""
vLANE = 0
vA = 2
vD = 10
vL16 = 11
vT = 12
vSS = 28
vW = 128
def W(mt, t): return vW + mt * 64 + t * 4
vKF = 32
vA1 = 96
vP4 = 12
vNQ = 32
vNK = 48
vONE = 52
vP1 = 56
vTT = 60
vEPS = 68
vZP = 69
vX = 72
vPQ = 32
vPO = 96
vID = 80

POL = [" sc1"]
def pol(): return POL[0]
DUAL = [0]
def dual(fn):
    if not opt.fast:
        POL[0] = " sc1"; fn(); return
    DUAL[0] += 1; n = DUAL[0]
    I(f"s_cmp_lg_u32 {s(sFAST)}, 0")
    I(f"s_cbranch_scc1 L_fast{n}")
    POL[0] = " sc1"; fn()
    I(f"s_branch L_join{n}")
    L(f"L_fast{n}")
    POL[0] = ""; fn()
    L(f"L_join{n}")
    POL[0] = " sc1"

def prologue():
    if opt.stamps: I("s_memrealtime s[100:101]")
    I(f"s_cmp_ge_u32 s2, 256")
    I(f"s_cbranch_scc1 L_end")
    I(f"s_load_dwordx4 s[4:7], s[0:1], 0")
    I(f"s_load_dwordx4 s[8:11], s[0:1], 16")
    I(f"s_load_dwordx4 s[12:15], s[0:1], 32")
    I(f"s_load_dwordx2 s[16:17], s[0:1], 48")
    if opt.codepf:
        C("pull the kernel's own code into L2 while the kernel arguments are on their way (128 B per lane)")
        cb = "s[100:101]" if not opt.stamps else "s[52:53]"
        I(f"s_getpc_b64 {cb}")
        I(f"v_and_b32 v1, 63, v0")
        I(f"v_lshlrev_b32 v1, 7, v1")
        I(f"global_load_dword v32, v1, {cb}")
        I(f"v_add_u32 v1, 8192, v1")
        I(f"v_min_u32 v1, {opt.codelen}, v1")
        I(f"global_load_dword v33, v1, {cb}")
    I(f"v_lshrrev_b32 v1, 6, v0")
    I(f"v_and_b32 {v(vLANE)}, 63, v0")
    I(f"v_readfirstlane_b32 {s(sWAVE)}, v1")
    I(f"s_and_b32 {s(sT0)}, s2, 7")
    I(f"s_lshr_b32 {s(sT1)}, s2, 3")
    I(f"s_lshr_b32 {s(sHEAD)}, {s(sT1)}, 4")
    I(f"s_lshl_b32 {s(sT0)}, {s(sT0)}, 1")
    I(f"s_add_u32 {s(sHEAD)}, {s(sHEAD)}, {s(sT0)}")
    I(f"s_and_b32 {s(sCH)}, {s(sT1)}, 15")
    I(f"s_and_b32 {s(sTI)}, {s(sWAVE)}, 3")
    I(f"v_lshrrev_b32 {v(vT)}, 5, {v(vLANE)}")
    I(f"v_and_b32 {v(vT+1)}, 31, {v(vLANE)}")
    I(f"v_xor_b32 {v(vT+1)}, {v(vT+1)}, {v(vT)}")
    I(f"v_lshlrev_b32 {v(vT+1)}, 4, {v(vT+1)}")
    I(f"v_lshl_add_u32 {v(vD)}, {v(vT)}, 9, {v(vT+1)}")
    I(f"v_lshlrev_b32 {v(vL16)}, 4, {v(vLANE)}")
    I(f"s_lshl_b32 {s(sT0)}, {s(sHEAD)}, 20")
    I(f"s_lshl_b32 {s(sT1)}, {s(sCH)}, 16")
    I(f"s_add_u32 {s(sT0)}, {s(sT0)}, {s(sT1)}")
    I(f"s_waitcnt lgkmcnt(0)")
    srd(rW, sWp, None, 32768)
    srd(rK, sKp, sT0, 65536)

def dma_omega():
    I(f"s_and_b32 {s(sT1)}, {s(sWAVE)}, 1")
    I(f"s_lshl_b32 {s(sT1)}, {s(sT1)}, 7")
    I(f"s_lshl_b32 {s(sSOFF)}, {s(sWAVE)}, 12")
    I(f"s_add_u32 m0, {s(sSOFF)}, {WR}")
    for i in range(4):
        I(f"s_add_u32 {s(sT2)}, {s(sT1)}, {32*i}")
        I(f"v_xor_b32 {v(vT)}, {s(sT2)}, {v(vD)}")
        I(f"buffer_load_dwordx4 {v(vT)}, {s(rW,4)}, {s(sSOFF)} offen offset:{1024*i} lds")

def dma_row_instr(r, base_lds, i):
    if i % 4 == 0:
        if i: I(f"s_add_u32 {s(sSOFF)}, {s(sSOFF)}, 4096")
        I(f"s_add_u32 m0, {s(sSOFF)}, {base_lds}")
    if i & 7:
        I(f"v_xor_b32 {v(vT)}, {32*(i&7)}, {v(vD)}")
        I(f"buffer_load_dwordx4 {v(vT)}, {s(r,4)}, {s(sSOFF)} offen offset:{1024*(i%4)}{NT()} lds")
    else:
        I(f"buffer_load_dwordx4 {v(vD)}, {s(r,4)}, {s(sSOFF)} offen offset:{1024*(i%4)}{NT()} lds")

def dma_k():
    I(f"s_lshl_b32 {s(sSOFF)}, {s(sWAVE)}, 13")
    for i in range(8): dma_row_instr(rK, KQ, i)

vVD = 9
def v_setup(reg):
    I(f"v_lshrrev_b32 {v(reg)}, 4, {v(vLANE)}")
    I(f"v_and_b32 {v(reg)}, 1, {v(reg)}")
    I(f"v_lshlrev_b32 {v(reg)}, 2, {v(reg)}")
    I(f"v_and_b32 {v(vT+1)}, 7, {v(vLANE)}")
    I(f"v_xor_b32 {v(reg)}, {v(reg)}, {v(vT+1)}")
    I(f"v_lshlrev_b32 {v(reg)}, 4, {v(reg)}")
    I(f"v_lshrrev_b32 {v(vT+1)}, 3, {v(vLANE)}")
    I(f"v_lshl_add_u32 {v(reg)}, {v(vT+1)}, 9, {v(reg)}")

def v_issue(reg, first_s, n):
    I(f"s_lshl_b32 {s(sSOFF)}, {first_s}, 12")
    I(f"s_lshl_b32 {s(sT1)}, {s(sTI)}, 7")
    I(f"s_add_u32 {s(sSOFF)}, {s(sSOFF)}, {s(sT1)}")
    I(f"s_lshl_b32 {s(sT1)}, {first_s}, 10")
    I(f"s_lshl_b32 {s(sT2)}, {s(sTI)}, 14")
    I(f"s_add_u32 {s(sT1)}, {s(sT1)}, {s(sT2)}")
    I(f"s_add_u32 {s(sT1)}, {s(sT1)}, {VR}")
    for i in range(n):
        I(f"s_add_u32 m0, {s(sT1)}, {1024*i}")
        if i: I(f"s_add_u32 {s(sSOFF)}, {s(sSOFF)}, 4096")
        I(f"buffer_load_dwordx4 {v(reg)}, {s(rV,4)}, {s(sSOFF)} offen{NT()} lds")

def dma_v():
    C("team B wave b: V slice b (128 B columns), all 128 rows, 16 instructions of 8 rows")
    v_setup(vT+2)
    I(f"s_mov_b32 {s(sT3)}, 0")
    v_issue(vT+2, s(sT3), 16)

def tile_addrs():
    I(f"v_and_b32 {v(vT)}, 31, {v(vLANE)}")
    I(f"v_lshrrev_b32 {v(vT+1)}, 5, {v(vLANE)}")
    I(f"v_and_b32 {v(vT+2)}, 15, {v(vLANE)}")
    I(f"v_xor_b32 {v(vT+2)}, {v(vT+2)}, {v(vT+1)}")
    I(f"v_lshlrev_b32 {v(vT+2)}, 4, {v(vT+2)}")
    I(f"v_lshl_add_u32 {v(vT+2)}, {v(vT)}, 9, {v(vT+2)}")
    I(f"v_add_u32 {v(vA)}, {WR}, {v(vT+2)}")
    for x in range(1, 8):
        I(f"v_xor_b32 {v(vA+x)}, {32*x}, {v(vA)}")

def read_omega(base):
    for t in range(16):
        for mt in range(2):
            I(f"ds_read_b128 {v(W(mt,t),4)}, {v(vA+(t&7))} offset:{(t>>3)*256 + mt*16384}")
    I(f"s_lshl_b32 {s(sT1)}, {s(sTI)}, 14")
    I(f"s_sub_u32 {s(sT1)}, {s(sT1)}, {WR - base}")
    for x in range(8):
        I(f"v_add_u32 {v(vA+x)}, {s(sT1)}, {v(vA+x)}")

def consts():
    I(f"s_mov_b32 {s(sC025L)}, 0x00003e80")
    I(f"s_mov_b32 {s(sC025H)}, 0x3e800000")
    I(f"s_mov_b32 {s(sLOG2E)}, 0x3fb8aa3b")
    I(f"s_mov_b32 {s(sC0125)}, 0x3e000000")
    I(f"s_mov_b32 {s(sMASKH)}, 0xffff0000")
    I(f"s_mov_b32 {s(sONES)}, 0x3f803f80")
    I(f"s_mov_b32 {s(sEPS)}, 0x358637bd")
    I(f"s_mov_b32 {s(sM132)}, 0xbd000000")

def read_tile_frags():
    for t in range(16):
        I(f"ds_read_b128 {v(vKF+4*t,4)}, {v(vA+(t&7))} offset:{(t>>3)*256}")
    for i in range(4): I(f"v_mov_b32 {v(vSS+i)}, 0")

def ssq(counted=False):
    for t in range(16):
        if counted and t % 2 == 0: I(f"s_waitcnt lgkmcnt({max(0, 14 - t)})")
        for i in range(4):
            I(f"v_dot2c_f32_bf16 {v(vSS+i)}, {v(vKF+4*t+i)}, {v(vKF+4*t+i)}")

def ssq_reduce_steps():
    return [
        [f"v_add_f32 {v(vSS)}, {v(vSS)}, {v(vSS+1)}", f"v_add_f32 {v(vSS+2)}, {v(vSS+2)}, {v(vSS+3)}"],
        [f"v_add_f32 {v(vSS)}, {v(vSS)}, {v(vSS+2)}"],
        [f"v_mov_b32 {v(vSS+1)}, {v(vSS)}"],
        [f"v_permlane32_swap_b32 {v(vSS)}, {v(vSS+1)}"],
        [f"v_add_f32 {v(vSS)}, {v(vSS)}, {v(vSS+1)}"],
    ]

def pipeline_mimic(mt, nq_of, p4base):
    for g in range(2):
        prs = [4*g + i for i in range(4)]
        acc = lambda r: vA1 + 16*mt + r
        for i, p in enumerate(prs): I(f"v_cvt_pk_bf16_f32 {v(vP1+i)}, {v(acc(2*p))}, {v(acc(2*p+1))}")
        for i, p in enumerate(prs):
            I(f"v_dot2_f32_bf16 {v(vTT+2*i)}, {v(vP1+i)}, {s(sC025L)}, {v(nq_of(2*p))}")
            I(f"v_dot2_f32_bf16 {v(vTT+2*i+1)}, {v(vP1+i)}, {s(sC025H)}, {v(nq_of(2*p+1))}")
        for i, p in enumerate(prs): I(f"v_cvt_pk_bf16_f32 {v(vP1+i)}, {v(vTT+2*i)}, {v(vTT+2*i+1)}")
        for i, p in enumerate(prs):
            I(f"v_lshlrev_b32 {v(vTT+2*i)}, 16, {v(vP1+i)}")
            I(f"v_and_b32 {v(vTT+2*i+1)}, {s(sMASKH)}, {v(vP1+i)}")
        for i in range(8): I(f"v_mul_f32 {v(vTT+i)}, {s(sLOG2E)}, {v(vTT+i)}")
        for i in range(8): I(f"v_exp_f32 {v(vTT+i)}, {v(vTT+i)}")
        for i in range(8): I(f"v_fma_f32 {v(vTT+i)}, {v(vTT+i)}, {s(sC0125)}, {v(vEPS)}")
        for i, p in enumerate(prs): I(f"v_cvt_pk_bf16_f32 {v(p4base+p)}, {v(vTT+2*i)}, {v(vTT+2*i+1)}")

def lds_wait(addr, n, tag, tmp=None):
    tmp = vX + 4 if tmp is None else tmp
    I(f"s_mov_b32 {s(sSPIN)}, 0")
    if n == 1:
        I(f"v_mov_b32 {v(tmp)}, {addr}")
    else:
        I(f"v_and_b32 {v(tmp)}, {n-1}, {v(vLANE)}")
        I(f"v_lshlrev_b32 {v(tmp)}, 2, {v(tmp)}")
        I(f"v_add_u32 {v(tmp)}, {addr}, {v(tmp)}")
    L(f"L_ls_{tag}")
    I(f"ds_read_b32 {v(tmp+1)}, {v(tmp)}")
    I(f"s_waitcnt lgkmcnt(0)")
    I(f"v_cmp_ne_u32 vcc, {s(sNONCE)}, {v(tmp+1)}")
    I(f"s_cbranch_vccz L_lsd_{tag}")
    I(f"s_add_u32 {s(sSPIN)}, {s(sSPIN)}, 1")
    I(f"s_cmp_lt_u32 {s(sSPIN)}, {opt.spin_limit*16}")
    I(f"s_cbranch_scc1 L_ls_{tag}")
    L(f"L_lsd_{tag}")

def lds_set(addr, tmp=None, val=None):
    tmp = vX + 4 if tmp is None else tmp
    I(f"v_mov_b32 {v(tmp)}, {addr}")
    I(f"v_mov_b32 {v(tmp+1)}, {s(sNONCE) if val is None else val}")
    I(f"ds_write_b32 {v(tmp)}, {v(tmp+1)}")

vFL = 8
sFL1, sFL2 = 92, 93
def flag_prepare():
    global sFL1, sFL2
    if opt.stamps: sFL1, sFL2 = 48, 49
    I(f"s_lshl_b32 {s(sFL1)}, {s(sCH)}, 4")
    I(f"s_lshl_b32 {s(sFL2)}, {s(sTI)}, 2")
    I(f"s_add_u32 {s(sFL1)}, {s(sFL1)}, {s(sFL2)}")
    I(f"s_add_u32 {s(sFL2)}, {s(sFL1)}, {O_FL + 512}")
    I(f"s_add_u32 {s(sFL1)}, {s(sFL1)}, {O_FL + 256}")
    I(f"v_mov_b32 {v(vFL)}, 0")
    I(f"v_mov_b32 {v(vFL+1)}, {s(sNONCE)}")

def wave_flag(off):
    so = sFL1 if off == 256 else sFL2
    I(f"s_mov_b64 exec, 1")
    dual(lambda: I(f"buffer_store_dword {v(vFL+1)}, {v(vFL)}, {s(rP,4)}, {s(so)} offen{pol()}"))
    I(f"s_mov_b64 exec, -1")

def poll(off, tag, tmp=None):
    tmp = vT if tmp is None else tmp
    I(f"s_mov_b32 {s(sSPIN)}, 0")
    I(f"s_mov_b32 {s(sT2)}, {O_FL + off}")
    I(f"v_lshlrev_b32 {v(tmp)}, 2, {v(vLANE)}")
    L(f"L_spin_{tag}")
    I(f"buffer_load_dword {v(tmp+1)}, {v(tmp)}, {s(rP,4)}, {s(sT2)} offen sc1")
    I(f"s_waitcnt vmcnt(0)")
    I(f"v_cmp_ne_u32 vcc, {s(sNONCE)}, {v(tmp+1)}")
    I(f"s_cbranch_vccz L_spun_{tag}")
    I(f"s_cmp_lg_u32 {s(sFAST)}, 0")
    I(f"s_cbranch_scc1 L_nap_{tag}")
    I(f"s_sleep 12")
    L(f"L_nap_{tag}")
    I(f"s_add_u32 {s(sSPIN)}, {s(sSPIN)}, 1")
    I(f"s_cmp_lt_u32 {s(sSPIN)}, {opt.spin_limit}")
    I(f"s_cbranch_scc1 L_spin_{tag}")
    L(f"L_spun_{tag}")

def common_start():
    prologue()
    stamp("start")
    if opt.early:
        C("K(0..3), omega, K(4..7), then four V loads: rows 0..31 (team A) / 32..63 (team B) of slice w&3")
        I(f"s_lshl_b32 {s(sSOFF)}, {s(sWAVE)}, 13")
        for i in range(4): dma_row_instr(rK, KQ, i)
        I(f"s_mov_b32 {s(sT3)}, {s(sSOFF)}")
        dma_omega()
        I(f"s_mov_b32 {s(sSOFF)}, {s(sT3)}")
        I(f"s_barrier")
        for i in range(4, 8): dma_row_instr(rK, KQ, i)
        srd(rV, sVp, sT0, 65536)
        v_setup(30)
        I(f"s_lshr_b32 {s(sT3)}, {s(sWAVE)}, 2")
        I(f"s_lshl_b32 {s(sT3)}, {s(sT3)}, 2")
        v_issue(30, s(sT3), 4)
    elif opt.kko:
        C("omega lines -> L2 (one touch per line), then K, then omega itself (L2 hits by then)")
        I(f"v_and_b32 {v(vT+2)}, 31, {v(vLANE)}")
        I(f"v_lshlrev_b32 {v(vT+2)}, 7, {v(vT+2)}")
        I(f"s_lshl_b32 {s(sT1)}, {s(sWAVE)}, 12")
        I(f"buffer_load_dword {v(vT+3)}, {v(vT+2)}, {s(rW,4)}, {s(sT1)} offen")
        dma_k()
        dma_omega()
    elif opt.kok:
        C("issue order K(0..3), omega, K(4..7): omega rides in the first window without holding K back")
        I(f"s_lshl_b32 {s(sSOFF)}, {s(sWAVE)}, 13")
        for i in range(4): dma_row_instr(rK, KQ, i)
        I(f"s_mov_b32 {s(sT3)}, {s(sSOFF)}")
        dma_omega()
        I(f"s_mov_b32 {s(sSOFF)}, {s(sT3)}")
        if opt.kokbar: I(f"s_barrier")
        for i in range(4, 8): dma_row_instr(rK, KQ, i)
    else:
        dma_omega()
        I(f"s_barrier")
        dma_k()
    C("scalar side: epoch word, translation pre-touch, descriptors")
    I(f"s_lshl_b32 {s(sT1)}, {s(sHEAD)}, 20")
    I(f"s_add_u32 {s(sEPA)}, {s(sSp)}, {s(sT1)}")
    I(f"s_addc_u32 {s(sEPA+1)}, {s(sSp+1)}, 0")
    I(f"s_load_dword {s(sNONCE)}, {s(sEPA,2)}, {O_FL}")
    if opt.preread:
        C("bring the flag lines of this head into L2 (a store to an absent line makes the next read a memory fill)")
        for j in range(8):
            I(f"s_load_dword {s(sJUNK+3)}, {s(sEPA,2)}, {O_FL + 256 + 64*j}")
    if not opt.early: srd(rV, sVp, sT0, 65536)
    srd(rQ, sQp, sT0, 65536)
    srd(rO, sOp, sT0, 65536)
    if opt.pretouch:
        I(f"s_load_dword {s(sJUNK)}, {s(rQ,2)}, 0")
        I(f"s_load_dword {s(sJUNK+1)}, {s(rO,2)}, 0")
        I(f"s_load_dword {s(sJUNK+2)}, {s(rV,2)}, 0")
    tile_addrs()
    consts()
    stamp("K issued")
    I(f"s_waitcnt lgkmcnt(0)")
    I(f"s_add_u32 {s(sNONCE)}, {s(sNONCE)}, 1")
    I(f"s_lshl_b32 {s(sT1)}, {s(sHEAD)}, 20")
    srd(rP, sSp, sT1, HS)
    I(f"s_mov_b32 {s(sFAST)}, 0")
    I(f"s_getreg_b32 {s(sXCC)}, hwreg(HW_REG_XCC_ID, 0, 4)")
    I(f"s_lshl_b32 {s(sPRES)}, {s(sNONCE)}, 4")
    I(f"s_add_u32 {s(sPRES)}, {s(sPRES)}, {s(sXCC)}")
    nyoung = {"early": 8, "kko": None, "kok": 4}.get("early" if opt.early else "kko" if opt.kko else "kok" if opt.kok else "", 8)
    I(f"s_cmp_eq_u32 {s(sWAVE)}, 0")
    I(f"s_cbranch_scc0 L_nopres")
    if opt.fast:
        C("presence word: nonce*16 + XCC id (wave 0)")
        I(f"s_mov_b64 exec, 1")
        I(f"s_lshl_b32 {s(sT1)}, {s(sCH)}, 2")
        I(f"s_add_u32 {s(sT1)}, {s(sT1)}, {O_FL + 128}")
        I(f"v_mov_b32 {v(vT)}, 0")
        I(f"v_mov_b32 {v(vT+1)}, {s(sPRES)}")
        I(f"buffer_store_dword {v(vT+1)}, {v(vT)}, {s(rP,4)}, {s(sT1)} offen sc1")
        I(f"s_mov_b64 exec, -1")
        if nyoung is not None: I(f"s_waitcnt vmcnt({nyoung + 1})")
    else:
        if nyoung is not None: I(f"s_waitcnt vmcnt({nyoung})")
    I(f"s_branch L_presd")
    L("L_nopres")
    if nyoung is not None: I(f"s_waitcnt vmcnt({nyoung})")
    L("L_presd")
    if not opt.kko: I(f"s_barrier")

def team_a():
    C("================= team A =================")
    if not opt.kko: read_omega(KQ)
    C("K landed: own loads only (the presence store of wave 0 may still be in flight)")
    ey = 4 if opt.early else 0
    I(f"s_waitcnt vmcnt({1 + ey}) lgkmcnt(0)")
    I(f"s_cmp_eq_u32 {s(sTI)}, 0")
    I(f"s_cbranch_scc1 L_k0")
    I(f"s_waitcnt vmcnt({ey})")
    L("L_k0")
    I(f"s_barrier")
    stamp("A B1 K landed")
    if opt.kko: read_omega(KQ)
    read_tile_frags()
    I(f"s_waitcnt lgkmcnt(0)")
    I(f"s_barrier")
    if not opt.kfast:
        ssq()
        steps = ssq_reduce_steps()
        for t in range(16):
            for mt in range(2):
                c = "0" if t == 0 else v(vA1 + 16*mt, 16)
                I(f"v_mfma_f32_32x32x16_bf16 {v(vA1+16*mt,16)}, {v(vKF+4*t,4)}, {v(W(mt,t),4)}, {c}")
            if 1 <= t <= 5:
                for x in steps[t-1]: I(x)
            if t == 6:
                I(f"v_mul_f32 {v(vSS)}, {s(sM132)}, {v(vSS)}")
                I(f"v_lshrrev_b32 {v(vSS+1)}, 5, {v(vLANE)}")
            if t == 7:
                I(f"v_cmp_eq_u32 vcc, 0, {v(vSS+1)}")
            if t == 8:
                I(f"v_cndmask_b32 {v(vSS)}, 0, {v(vSS)}, vcc")
            if t == 9:
                I(f"v_cvt_pk_bf16_f32 {v(vSS)}, {v(vSS)}, 0")
        stamp("A gemm1 done")
        I(f"v_mov_b32 {v(vEPS)}, {s(sEPS)}")
        I(f"v_mov_b32 {v(vNK)}, {v(vSS)}")
        I(f"v_mov_b32 {v(vONE)}, 0x3f80")
        for i in range(1, 4):
            I(f"v_mov_b32 {v(vONE+i)}, 0")
            I(f"v_mov_b32 {v(vNK+i)}, 0")
        I(f"v_mfma_f32_32x32x16_bf16 {v(vNQ,16)}, {v(vNK,4)}, {v(vONE,4)}, 0")
        I(f"v_lshl_add_u32 {v(vX)}, {s(sTI)}, 12, {v(vL16)}")
        I(f"v_add_u32 {v(vX)}, {PHI}, {v(vX)}")
        for mt in range(2):
            pipeline_mimic(mt, lambda r: vNQ + r, vP4 + 8*mt)
            for u in range(2):
                I(f"ds_write_b128 {v(vX)}, {v(vP4+8*mt+4*u,4)} offset:{u*2048 + mt*1024}")
            I(f"v_mov_b32 {v(vZP+mt)}, 0")
            for i in range(8):
                I(f"v_dot2c_f32_bf16 {v(vZP+mt)}, {s(sONES)}, {v(vP4+8*mt+i)}")
    else:
        vNQ2 = 128; vNK2 = 144; vON2 = 148; vP1b = 152; vTb = 156; vEP2 = 164; vZP2 = 165; vXb = 168
        ssq()
        steps = ssq_reduce_steps()
        for t in range(16):
            c = "0" if t == 0 else v(vA1, 16)
            I(f"v_mfma_f32_32x32x16_bf16 {v(vA1,16)}, {v(vKF+4*t,4)}, {v(W(0,t),4)}, {c}")
            if 1 <= t <= 5:
                for x in steps[t-1]: I(x)
            if t == 6:
                I(f"v_mul_f32 {v(vSS)}, {s(sM132)}, {v(vSS)}")
                I(f"v_lshrrev_b32 {v(vSS+1)}, 5, {v(vLANE)}")
            if t == 7: I(f"v_cmp_eq_u32 vcc, 0, {v(vSS+1)}")
            if t == 8: I(f"v_cndmask_b32 {v(vSS)}, 0, {v(vSS)}, vcc")
            if t == 9: I(f"v_cvt_pk_bf16_f32 {v(vSS)}, {v(vSS)}, 0")
            if t == 10: I(f"s_mov_b32 {s(sT3)}, 0x3e800000")
            if t == 12:
                I(f"v_mov_b32 {v(vNK2)}, {v(vSS)}")
                I(f"v_mov_b32 {v(vON2)}, 0x3f80")
            if t == 13:
                for i in range(1, 4):
                    I(f"v_mov_b32 {v(vON2+i)}, 0")
                    I(f"v_mov_b32 {v(vNK2+i)}, 0")
        I(f"v_mfma_f32_32x32x16_bf16 {v(vNQ2,16)}, {v(vNK2,4)}, {v(vON2,4)}, 0")
        def mimic_ops(mt, p4base):
            ops = []
            acc = lambda r: vA1 + 16*mt + r
            for g in range(2):
                prs = [4*g + i for i in range(4)]
                for i, p in enumerate(prs): ops.append(f"v_cvt_pk_bf16_f32 {v(vP1b+i)}, {v(acc(2*p))}, {v(acc(2*p+1))}")
                for i, p in enumerate(prs):
                    ops.append(f"v_lshlrev_b32 {v(vTb+2*i)}, 16, {v(vP1b+i)}")
                    ops.append(f"v_and_b32 {v(vTb+2*i+1)}, {s(sMASKH)}, {v(vP1b+i)}")
                for i, p in enumerate(prs):
                    ops.append(f"v_fma_f32 {v(vTb+2*i)}, {v(vTb+2*i)}, {s(sT3)}, {v(vNQ2+2*p)}")
                    ops.append(f"v_fma_f32 {v(vTb+2*i+1)}, {v(vTb+2*i+1)}, {s(sT3)}, {v(vNQ2+2*p+1)}")
                for i, p in enumerate(prs): ops.append(f"v_cvt_pk_bf16_f32 {v(vP1b+i)}, {v(vTb+2*i)}, {v(vTb+2*i+1)}")
                for i, p in enumerate(prs):
                    ops.append(f"v_lshlrev_b32 {v(vTb+2*i)}, 16, {v(vP1b+i)}")
                    ops.append(f"v_and_b32 {v(vTb+2*i+1)}, {s(sMASKH)}, {v(vP1b+i)}")
                for i in range(8): ops.append(f"v_mul_f32 {v(vTb+i)}, {s(sLOG2E)}, {v(vTb+i)}")
                for i in range(8): ops.append(f"v_exp_f32 {v(vTb+i)}, {v(vTb+i)}")
                for i in range(8): ops.append(f"v_fma_f32 {v(vTb+i)}, {v(vTb+i)}, {s(sC0125)}, {v(vEP2)}")
                for i, p in enumerate(prs): ops.append(f"v_cvt_pk_bf16_f32 {v(p4base+p)}, {v(vTb+2*i)}, {v(vTb+2*i+1)}")
            return ops
        ops0 = [f"v_mov_b32 {v(vEP2)}, {s(sEPS)}"] + mimic_ops(0, vP4)
        k = 0
        for t in range(16):
            c = "0" if t == 0 else v(vA1 + 16, 16)
            I(f"v_mfma_f32_32x32x16_bf16 {v(vA1+16,16)}, {v(vKF+4*t,4)}, {v(W(1,t),4)}, {c}")
            if t >= 1:
                n = opt.kshadow
                for x in ops0[k:k+n]: I(x)
                k += n
        stamp("A gemm1 done")
        for x in ops0[k:]: I(x)
        I(f"v_lshl_add_u32 {v(vX)}, {s(sTI)}, 12, {v(vL16)}")
        I(f"v_add_u32 {v(vX)}, {PHI}, {v(vX)}")
        for u in range(2):
            I(f"ds_write_b128 {v(vX)}, {v(vP4+4*u,4)} offset:{u*2048}")
        for x in mimic_ops(1, vP4 + 8): I(x)
        for u in range(2):
            I(f"ds_write_b128 {v(vX)}, {v(vP4+8+4*u,4)} offset:{u*2048 + 1024}")
        for mt in range(2):
            I(f"v_mov_b32 {v(vZP+mt)}, 0")
        for i in range(8):
            for mt in range(2):
                I(f"v_dot2c_f32_bf16 {v(vZP+mt)}, {s(sONES)}, {v(vP4+8*mt+i)}")
    for mt in range(2): I(f"v_mov_b32 {v(vX+1+mt)}, {v(vZP+mt)}")
    for mt in range(2): I(f"v_permlane32_swap_b32 {v(vZP+mt)}, {v(vX+1+mt)}")
    for mt in range(2): I(f"v_add_f32 {v(vZP+mt)}, {v(vZP+mt)}, {v(vX+1+mt)}")
    I(f"v_and_b32 {v(vX+1)}, 31, {v(vLANE)}")
    I(f"v_lshlrev_b32 {v(vX+1)}, 2, {v(vX+1)}")
    I(f"s_lshl_b32 {s(sT1)}, {s(sTI)}, 8")
    I(f"s_add_u32 {s(sT1)}, {s(sT1)}, {ZB}")
    I(f"v_add_u32 {v(vX+1)}, {s(sT1)}, {v(vX+1)}")
    I(f"ds_write_b32 {v(vX+1)}, {v(vZP)}")
    I(f"ds_write_b32 {v(vX+1)}, {v(vZP+1)} offset:128")
    I(f"s_waitcnt lgkmcnt(0)")
    stamp("A phi written")
    I(f"s_lshl_b32 {s(sT2)}, {s(sTI)}, 2")
    I(f"s_add_u32 {s(sT2)}, {s(sT2)}, {FLG}")
    lds_set(s(sT2))
    C("transposing-read addresses of the V slice (computed while waiting)")
    vPH = 128; vAC = 48; vVB = 112; vVA = 28; vPA = 30
    I(f"v_lshrrev_b32 {v(vT)}, 5, {v(vLANE)}")
    I(f"v_lshlrev_b32 {v(vT)}, 2, {v(vT)}")
    I(f"v_bfe_u32 {v(vT+1)}, {v(vLANE)}, 2, 2")
    I(f"v_add_u32 {v(vT)}, {v(vT)}, {v(vT+1)}")
    I(f"v_lshlrev_b32 {v(vT)}, 7, {v(vT)}")
    I(f"v_lshrrev_b32 {v(vT+1)}, 1, {v(vT+1)}")
    I(f"v_lshl_add_u32 {v(vT)}, {v(vT+1)}, 6, {v(vT)}")
    I(f"v_bfe_u32 {v(vT+1)}, {v(vLANE)}, 4, 1")
    I(f"v_lshl_add_u32 {v(vT)}, {v(vT+1)}, 5, {v(vT)}")
    I(f"v_and_b32 {v(vT+1)}, 3, {v(vLANE)}")
    I(f"v_lshl_add_u32 {v(vT)}, {v(vT+1)}, 3, {v(vT)}")
    I(f"s_lshl_b32 {s(sT1)}, {s(sTI)}, 14")
    I(f"s_add_u32 {s(sT1)}, {s(sT1)}, {VR}")
    I(f"v_add_u32 {v(vVA)}, {s(sT1)}, {v(vT)}")
    I(f"v_xor_b32 {v(vVA+1)}, 64, {v(vVA)}")
    I(f"v_add_u32 {v(vPA)}, {PHI}, {v(vL16)}")
    lds_wait(str(FLG), 4, "phi")
    stamp("A phi all")
    for f in range(16):
        I(f"ds_read_b128 {v(vPH+4*f,4)}, {v(vPA)} offset:{1024*f}")
    vVB = 192
    def vread(kk):
        b = vVB + 8*(kk % 4)
        for dl in range(2):
            for ap in range(2):
                I(f"ds_read_b64_tr_b16 {v(b+4*dl+2*ap,2)}, {v(vVA+dl)} offset:{kk*2048 + ap*1024}")
    def mm(kk, first):
        b = vVB + 8*(kk % 4)
        for dl in range(2):
            for mt in range(2):
                acc = vAC + (dl*2 + mt)*16
                c = "0" if first else v(acc, 16)
                I(f"v_mfma_f32_32x32x16_bf16 {v(acc,16)}, {v(vPH+4*(kk*2+mt),4)}, {v(b+4*dl,4)}, {c}")
    I(f"s_lshl_b32 {s(sT2)}, {s(sTI)}, 2")
    I(f"s_add_u32 {s(sT2)}, {s(sT2)}, {FLG + 16}")
    if opt.early: I(f"s_waitcnt vmcnt(0)")
    lds_wait(s(sT2), 1, "v1", tmp=26)
    stamp("A V1 ready")
    vread(0); vread(1); vread(2)
    for kk in range(8):
        rem = min(2, 7 - kk)
        if kk == 2:
            I(f"s_waitcnt lgkmcnt(4)")
        else:
            I(f"s_waitcnt lgkmcnt({4*rem})")
        mm(kk, kk == 0)
        if kk == 1:
            I(f"s_add_u32 {s(sT2)}, {s(sT2)}, 16")
            lds_wait(s(sT2), 1, "v2", tmp=26)
        if kk + 3 < 8: vread(kk + 3)
    stamp("A gemm2 done")
    if opt.fast:
        lds_wait(str(FLG + 56), 1, "md", tmp=26)
        I(f"v_mov_b32 {v(vT+1)}, {FLG + 48}")
        I(f"ds_read_b32 {v(vT+2)}, {v(vT+1)}")
    C("z partial inputs (wave 0)")
    I(f"v_lshlrev_b32 {v(vT+3)}, 2, {v(vLANE)}")
    I(f"v_add_u32 {v(vT+4)}, {ZB}, {v(vT+3)}")
    for a in range(4): I(f"ds_read_b32 {v(vT+6+a)}, {v(vT+4)} offset:{256*a}")
    vPK = 128
    for j in range(4):
        for i in range(8):
            I(f"v_cvt_pk_bf16_f32 {v(vPK+8*j+i)}, {v(vAC+16*j+2*i)}, {v(vAC+16*j+2*i+1)}")
    I(f"s_lshl_b32 {s(sT1)}, {s(sTI)}, 13")
    I(f"v_add_u32 {v(vT)}, {s(sT1)}, {v(vL16)}")
    I(f"s_lshl_b32 {s(sSOFF)}, {s(sCH)}, 15")
    I(f"s_add_u32 {s(sT2)}, {s(sSOFF)}, 4096")
    I(f"s_waitcnt lgkmcnt(0)")
    if opt.fast:
        I(f"v_readfirstlane_b32 {s(sFAST)}, {v(vT+2)}")
        I(f"s_cmp_eq_u32 {s(sFAST)}, {s(sNONCE)}")
        I(f"s_cselect_b32 {s(sFAST)}, 1, 0")
        if opt.stamps: I(f"s_mov_b32 s91, {s(sFAST)}")
    if opt.holdst:
        lds_wait(str(FLG + 112), 4, "qi", tmp=26)
    def st():
        for f in range(8):
            so = s(sSOFF) if f < 4 else s(sT2)
            I(f"buffer_store_dwordx4 {v(vPK+4*f,4)}, {v(vT)}, {s(rP,4)}, {so} offen offset:{(f%4)*1024}{pol()}")
    if opt.partplain: dual(st)
    else:
        POL[0] = opt.partpol; st(); POL[0] = " sc1"
    def psflag():
        I(f"s_lshl_b32 {s(sT1)}, {s(sTI)}, 2")
        I(f"s_add_u32 {s(sT1)}, {s(sT1)}, {FLG + 64}")
        lds_set(s(sT1), tmp=26)
    if opt.holdq or opt.holdall == "issued": psflag()
    I(f"s_cmp_eq_u32 {s(sTI)}, 0")
    I(f"s_cbranch_scc0 L_noz")
    I(f"v_add_f32 {v(vT+6)}, {v(vT+6)}, {v(vT+7)}")
    I(f"v_add_f32 {v(vT+8)}, {v(vT+8)}, {v(vT+9)}")
    I(f"v_add_f32 {v(vT+6)}, {v(vT+6)}, {v(vT+8)}")
    I(f"s_lshl_b32 {s(sSOFF)}, {s(sCH)}, 8")
    I(f"s_add_u32 {s(sSOFF)}, {s(sSOFF)}, {O_Z}")
    I(f"buffer_store_dword {v(vT+6)}, {v(vT+3)}, {s(rP,4)}, {s(sSOFF)} offen sc1")
    L("L_noz")
    C("addresses for the reduction: quarter tile a of tile 'chunk': fragment 2*chunk + (a>>1), lanes (a&1)*32 + (l&31); producer parity = l>>5")
    vR = 128
    I(f"s_lshl_b32 {s(sT1)}, {s(sCH)}, 11")
    I(f"s_lshl_b32 {s(sT2)}, {s(sTI)}, 9")
    I(f"s_add_u32 {s(sT3)}, {s(sT1)}, {s(sT2)}")
    I(f"v_and_b32 {v(vX)}, 31, {v(vLANE)}")
    I(f"v_lshlrev_b32 {v(vX)}, 4, {v(vX)}")
    I(f"v_add_u32 {v(vX)}, {s(sT3)}, {v(vX)}")
    I(f"v_lshrrev_b32 {v(vX+1)}, 5, {v(vLANE)}")
    I(f"v_lshl_add_u32 {v(vX+1)}, {v(vX+1)}, 15, {v(vX)}")
    final_setup()
    flag_prepare()
    if opt.mred:
        I(f"v_and_b32 {v(vX+3)}, 31, {v(vLANE)}")
        I(f"v_and_b32 {v(vX+4)}, 1, {v(vX+3)}")
        I(f"v_lshlrev_b32 {v(vX+4)}, 4, {v(vX+4)}")
        I(f"v_mov_b32 {v(vX+5)}, 0x3f80")
        I(f"v_lshlrev_b32 {v(vX+4)}, {v(vX+4)}, {v(vX+5)}")
        I(f"v_lshrrev_b32 {v(vX+3)}, 1, {v(vX+3)}")
        for r in range(4):
            I(f"v_cmp_eq_u32 vcc, {r}, {v(vX+3)}")
            I(f"v_cndmask_b32 {v(vID+r)}, 0, {v(vX+4)}, vcc")
        I(f"v_lshrrev_b32 {v(vX+2)}, 5, {v(vLANE)}")
        I(f"v_lshl_add_u32 {v(vX+2)}, {v(vX+2)}, 3, {v(vX)}")
    I(f"s_waitcnt vmcnt(0)")
    stamp("A part drained")
    wave_flag(256)
    if opt.holdall == "drained": psflag()
    poll(256, "h1")
    stamp("A hop1")
    vZ = 192
    I(f"s_cmp_eq_u32 {s(sTI)}, 3")
    I(f"s_cbranch_scc0 L_noz2")
    I(f"s_mov_b32 {s(sSOFF)}, {O_Z}")
    for j in range(4):
        I(f"buffer_load_dwordx4 {v(vZ+4*j,4)}, {v(vL16)}, {s(rP,4)}, {s(sSOFF)} offen offset:{1024*j} sc1")
    L("L_noz2")
    I(f"s_mov_b32 {s(sSOFF)}, 0")
    for c in range(8):
        I(f"buffer_load_dwordx4 {v(vR+4*c,4)}, {v(vX+1)}, {s(rP,4)}, {s(sSOFF)} offen sc1")
        if c < 7: I(f"s_add_u32 {s(sSOFF)}, {s(sSOFF)}, 65536")
    if opt.holdall == "reduce": psflag()
    C("z (wave 3): lane l holds m = 4*(l&15)..+3 of producer 4j + (l>>4)")
    I(f"s_cmp_eq_u32 {s(sTI)}, 3")
    I(f"s_cbranch_scc0 L_noz3")
    I(f"s_waitcnt vmcnt(8)")
    for i in range(4):
        I(f"v_add_f32 {v(vZ+i)}, {v(vZ+i)}, {v(vZ+4+i)}")
        I(f"v_add_f32 {v(vZ+8+i)}, {v(vZ+8+i)}, {v(vZ+12+i)}")
    for i in range(4): I(f"v_add_f32 {v(vZ+i)}, {v(vZ+i)}, {v(vZ+8+i)}")
    for i in range(4): I(f"v_mov_b32 {v(vZ+4+i)}, {v(vZ+i)}")
    for i in range(4): I(f"v_permlane32_swap_b32 {v(vZ+i)}, {v(vZ+4+i)}")
    for i in range(4): I(f"v_add_f32 {v(vZ+i)}, {v(vZ+i)}, {v(vZ+4+i)}")
    for i in range(4): I(f"v_mov_b32 {v(vZ+4+i)}, {v(vZ+i)}")
    for i in range(4): I(f"v_permlane16_swap_b32 {v(vZ+i)}, {v(vZ+4+i)}")
    for i in range(4): I(f"v_add_f32 {v(vZ+i)}, {v(vZ+i)}, {v(vZ+4+i)}")
    I(f"v_cvt_pk_bf16_f32 {v(vZ)}, {v(vZ)}, {v(vZ+1)}")
    I(f"v_cvt_pk_bf16_f32 {v(vZ+1)}, {v(vZ+2)}, {v(vZ+3)}")
    I(f"v_and_b32 {v(vZ+2)}, 15, {v(vLANE)}")
    I(f"v_lshlrev_b32 {v(vZ+2)}, 3, {v(vZ+2)}")
    I(f"v_add_u32 {v(vZ+2)}, {ZF}, {v(vZ+2)}")
    I(f"ds_write_b64 {v(vZ+2)}, {v(vZ,2)}")
    I(f"s_waitcnt lgkmcnt(0)")
    lds_set(str(FLG + 52), tmp=vU)
    L("L_noz3")
    C("phi_q fragments now if they are there already")
    I(f"s_mov_b32 {s(sPQ)}, 0")
    I(f"v_and_b32 {v(vU)}, 1, {v(vLANE)}")
    I(f"v_lshlrev_b32 {v(vU)}, 2, {v(vU)}")
    I(f"v_add_u32 {v(vU)}, {FLG + 80}, {v(vU)}")
    I(f"ds_read_b32 {v(vU+1)}, {v(vU)}")
    I(f"s_waitcnt lgkmcnt(0)")
    I(f"v_cmp_ne_u32 vcc, {s(sNONCE)}, {v(vU+1)}")
    I(f"s_cbranch_vccnz L_nopq")
    for qi in range(2):
        for tt in range(4):
            I(f"ds_read_b128 {v(vPQ8+16*qi+4*tt,4)}, {v(vPA2)} offset:{qi*16384 + tt*1024}")
    I(f"s_mov_b32 {s(sPQ)}, 1")
    L("L_nopq")
    vS = 176
    C("sum of the 16 partials on the matrix pipe: D[j][n] += B[j][n] + B[8+j][n]  (A = two stacked 8x8 identities)")
    for c in range(8):
        I(f"s_waitcnt vmcnt({7-c})")
        cc = "0" if c == 0 else v(vS, 16)
        I(f"v_mfma_f32_32x32x16_bf16 {v(vS,16)}, {v(vID,4)}, {v(vR+4*c,4)}, {cc}")
    stamp("A red summed")
    I(f"v_cvt_pk_bf16_f32 {v(vS)}, {v(vS)}, {v(vS+1)}")
    I(f"v_cvt_pk_bf16_f32 {v(vS+1)}, {v(vS+2)}, {v(vS+3)}")
    I(f"s_mov_b32 {s(sSOFF)}, {O_F}")
    dual(lambda: I(f"buffer_store_dwordx2 {v(vS,2)}, {v(vX+2)}, {s(rP,4)}, {s(sSOFF)} offen{pol()}"))
    I(f"s_waitcnt vmcnt(0)")
    stamp("A reduced+drained")
    wave_flag(512)
    C("chunk 0 advances the epoch (all 16 workgroups of the head have read it)")
    I(f"s_cmp_eq_u32 {s(sCH)}, 0")
    I(f"s_cbranch_scc0 L_noep")
    I(f"s_cmp_eq_u32 {s(sTI)}, 1")
    I(f"s_cbranch_scc0 L_noep")
    I(f"s_mov_b64 exec, 1")
    I(f"v_mov_b32 {v(vT)}, 0")
    I(f"v_mov_b32 {v(vT+1)}, {s(sNONCE)}")
    I(f"s_mov_b32 {s(sT1)}, {O_FL}")
    I(f"buffer_store_dword {v(vT+1)}, {v(vT)}, {s(rP,4)}, {s(sT1)} offen sc1")
    I(f"s_mov_b64 exec, -1")
    L("L_noep")
    I(f"s_cmp_eq_u32 {s(sPQ)}, 1")
    I(f"s_cbranch_scc1 L_pqdone")
    phiq_frags("a")
    L("L_pqdone")
    STI[0] = 13
    I(f"s_branch L_final")

vPQ8 = 32
vKA = 64
vOP = 96
vAC3 = 128
vST = 192
vKG, vPA2, vRA, vSW, vSR, vOA, vU = 2, 3, 4, 5, 6, 7, 20
vRDS = 12
vRD = 4

def capture(fn):
    n = len(A.items)
    fn()
    got = [x.text for k, x in A.items[n:] if k == "i"]
    del A.items[n:]
    return got

def final_setup():
    I(f"s_and_b32 {s(sT3)}, {s(sWAVE)}, 3")
    I(f"s_lshr_b32 {s(sT2)}, {s(sWAVE)}, 2")
    I(f"v_bfe_u32 {v(vU+1)}, {v(vLANE)}, 2, 1")
    I(f"v_lshlrev_b32 {v(vU+1)}, 4, {v(vU+1)}")
    I(f"v_bfe_u32 {v(vU+2)}, {v(vLANE)}, 3, 2")
    I(f"v_lshl_add_u32 {v(vU+1)}, {v(vU+2)}, 2, {v(vU+1)}")
    I(f"v_and_b32 {v(vU+2)}, 3, {v(vLANE)}")
    I(f"v_add_u32 {v(vU+1)}, {v(vU+1)}, {v(vU+2)}")
    I(f"v_and_b32 {v(vU+2)}, 32, {v(vLANE)}")
    I(f"v_add_u32 {v(vU+1)}, {v(vU+1)}, {v(vU+2)}")
    I(f"v_lshlrev_b32 {v(vKG)}, 4, {v(vU+1)}")
    C("phi_q fragments of q tiles 2hq, 2hq+1; 1/den")
    I(f"s_lshl_b32 {s(sT1)}, {s(sT2)}, 15")
    I(f"s_add_u32 {s(sT1)}, {s(sT1)}, {QR}")
    I(f"v_add_u32 {v(vPA2)}, {s(sT1)}, {v(vL16)}")
    I(f"s_lshl_b32 {s(sT1)}, {s(sT2)}, 9")
    I(f"s_add_u32 {s(sT1)}, {s(sT1)}, {RD}")
    I(f"v_lshlrev_b32 {v(vRA)}, 2, {v(vLANE)}")
    I(f"v_add_u32 {v(vRA)}, {s(sT1)}, {v(vRA)}")
    C("private staging [2 q tiles][32 rows][128 B]: piece = 4 dl + 2 h + u, slot = piece ^ (row & 7)")
    I(f"s_lshl_b32 {s(sT1)}, {s(sWAVE)}, 13")
    I(f"s_add_u32 {s(sT1)}, {s(sT1)}, {VR}")
    I(f"v_lshrrev_b32 {v(vU+1)}, 5, {v(vLANE)}")
    I(f"v_lshlrev_b32 {v(vU+2)}, 1, {v(vU+1)}")
    I(f"v_and_b32 {v(vU+3)}, 7, {v(vLANE)}")
    I(f"v_xor_b32 {v(vU+2)}, {v(vU+2)}, {v(vU+3)}")
    I(f"v_lshlrev_b32 {v(vU+2)}, 4, {v(vU+2)}")
    I(f"v_and_b32 {v(vU+3)}, 31, {v(vLANE)}")
    I(f"v_lshl_add_u32 {v(vSW)}, {v(vU+3)}, 7, {v(vU+2)}")
    I(f"v_add_u32 {v(vSW)}, {s(sT1)}, {v(vSW)}")
    C("read back: row 8j + (l>>3), piece l&7")
    I(f"v_lshrrev_b32 {v(vU+1)}, 3, {v(vLANE)}")
    I(f"v_and_b32 {v(vU+2)}, 7, {v(vLANE)}")
    I(f"v_xor_b32 {v(vU+3)}, {v(vU+2)}, {v(vU+1)}")
    I(f"v_lshlrev_b32 {v(vU+3)}, 4, {v(vU+3)}")
    I(f"v_lshl_add_u32 {v(vSR)}, {v(vU+1)}, 7, {v(vU+3)}")
    I(f"v_add_u32 {v(vSR)}, {s(sT1)}, {v(vSR)}")
    C("output offset: (64 hq + (l>>3))*512 + p*128 + (l&7)*16")
    I(f"v_lshlrev_b32 {v(vU+2)}, 4, {v(vU+2)}")
    I(f"v_lshl_add_u32 {v(vOA)}, {v(vU+1)}, 9, {v(vU+2)}")
    I(f"s_lshl_b32 {s(sT1)}, {s(sT2)}, 15")
    I(f"s_lshl_b32 {s(sT2)}, {s(sT3)}, 7")
    I(f"s_add_u32 {s(sT1)}, {s(sT1)}, {s(sT2)}")
    I(f"v_add_u32 {v(vOA)}, {s(sT1)}, {v(vOA)}")

def team_b():
    C("================= team B =================")
    L("L_team_b")
    STI[0] = 2
    def preread():
        if opt.preread:
            C("bring the 2 KiB of the final kv image this workgroup writes into L2 (waves B0, B1: 1 KiB each)")
            I(f"s_cmp_lt_u32 {s(sTI)}, 2")
            I(f"s_cbranch_scc0 L_nopre")
            I(f"s_lshl_b32 {s(sT1)}, {s(sCH)}, 11")
            I(f"s_lshl_b32 {s(sT2)}, {s(sTI)}, 10")
            I(f"s_add_u32 {s(sT1)}, {s(sT1)}, {s(sT2)}")
            I(f"s_add_u32 {s(sT1)}, {s(sT1)}, {O_F}")
            I(f"buffer_load_dwordx4 {v(32,4)}, {v(vL16)}, {s(rP,4)}, {s(sT1)} offen")
            L("L_nopre")
    if not opt.early: preread()
    def pres_load(tag):
        if not opt.fast: return
        I(f"s_cmp_eq_u32 {s(sTI)}, 0")
        I(f"s_cbranch_scc0 L_nochk0{tag}")
        I(f"s_load_dwordx8 {s(20,8)}, {s(sEPA,2)}, {O_FL + 128} glc")
        I(f"s_load_dwordx8 {s(44,8)}, {s(sEPA,2)}, {O_FL + 160} glc")
        L(f"L_nochk0{tag}")
    def mode_check():
        if not opt.fast: return
        I(f"s_cmp_eq_u32 {s(sTI)}, 0")
        I(f"s_cbranch_scc0 L_nochk1")
        I(f"s_mov_b32 {s(sSPIN)}, 0")
        L("L_chk")
        I(f"s_waitcnt lgkmcnt(0)")
        I(f"s_mov_b32 {s(sT1)}, {s(sNONCE)}")
        I(f"s_not_b32 {s(sT2)}, {s(sNONCE)}")
        I(f"s_mov_b32 {s(sT3)}, 1")
        for j in range(16):
            r = (20 if j < 8 else 36) + j
            I(f"s_cmp_eq_u32 {s(r)}, {s(sPRES)}")
            I(f"s_cselect_b32 {s(sT1)}, {s(sT1)}, {s(sT2)}")
            I(f"s_lshr_b32 {s(r)}, {s(r)}, 4")
            I(f"s_lshr_b32 {s(sFAST)}, {s(sPRES)}, 4")
            I(f"s_cmp_eq_u32 {s(r)}, {s(sFAST)}")
            I(f"s_cselect_b32 {s(sT3)}, {s(sT3)}, 0")
        I(f"s_cmp_eq_u32 {s(sT3)}, 1")
        I(f"s_cbranch_scc1 L_chkd")
        I(f"s_add_u32 {s(sSPIN)}, {s(sSPIN)}, 1")
        I(f"s_cmp_ge_u32 {s(sSPIN)}, 12")
        I(f"s_cbranch_scc1 L_chkd")
        I(f"s_load_dwordx8 {s(20,8)}, {s(sEPA,2)}, {O_FL + 128} glc")
        I(f"s_load_dwordx8 {s(44,8)}, {s(sEPA,2)}, {O_FL + 160} glc")
        I(f"s_branch L_chk")
        L("L_chkd")
        if opt.forceslow: I(f"s_mov_b32 {s(sT1)}, {s(sT2)}")
        lds_set(str(FLG + 48), val=s(sT1))
        lds_set(str(FLG + 56))
        I(f"s_waitcnt lgkmcnt(0)")
        L("L_nochk1")
    def vflag(k):
        I(f"s_lshl_b32 {s(sT3)}, {s(sTI)}, 2")
        I(f"s_add_u32 {s(sT3)}, {s(sT3)}, {FLG + 16 + 16*k}")
        lds_set(s(sT3))
    VF[0] = vflag
    if opt.early:
        read_omega(QR)
        I(f"s_waitcnt vmcnt(4) lgkmcnt(0)")
        I(f"s_barrier")
        stamp("B B1")
        I(f"s_barrier")
        preread()
        I(f"s_mov_b32 {s(sT3)}, 8")
        v_issue(30, s(sT3), 8)
        I(f"s_lshl_b32 {s(sSOFF)}, {s(sTI)}, 14")
        for i in range(2): dma_row_instr(rQ, QR, i)
        I(f"s_waitcnt vmcnt(10)")
        vflag(0)
        pres_load("e")
        stamp("B V1 landed")
        for i in range(2, 8): dma_row_instr(rQ, QR, i)
        I(f"s_waitcnt vmcnt(8)")
        vflag(1)
        mode_check()
        stamp("B V2 landed")
        nh = opt.holdq
        for i in range(8, 16 - nh): dma_row_instr(rQ, QR, i)
        if opt.holdst:
            I(f"s_lshl_b32 {s(sT3)}, {s(sTI)}, 2")
            I(f"s_add_u32 {s(sT3)}, {s(sT3)}, {FLG + 112}")
            lds_set(s(sT3))
        if nh:
            lds_wait(str(FLG + 64), 4, "hq")
            for i in range(16 - nh, 16): dma_row_instr(rQ, QR, i)
        stamp("B q issued")
        if opt.codepf2:
            cb = "s[100:101]" if not opt.stamps else "s[52:53]"
            I(f"v_lshlrev_b32 {v(vX+6)}, 7, {v(vLANE)}")
            I(f"s_lshl_b32 {s(sT1)}, {s(sTI)}, 11")
            I(f"s_add_u32 {s(sT1)}, {s(sT1)}, {opt.codepf2}")
            I(f"v_add_u32 {v(vX+6)}, {s(sT1)}, {v(vX+6)}")
            I(f"v_min_u32 {v(vX+6)}, {opt.codelen}, {v(vX+6)}")
            I(f"global_load_dword v1, {v(vX+6)}, {cb}")
            I(f"s_waitcnt vmcnt(1)")
        else:
            I(f"s_waitcnt vmcnt(0)")
        stamp("B q landed")
    elif opt.kqv:
        I(f"s_lshl_b32 {s(sSOFF)}, {s(sTI)}, 14")
        for i in range(16): dma_row_instr(rQ, QR, i)
        I(f"s_waitcnt vmcnt(16)")
        I(f"s_barrier")
        stamp("B B1")
        read_omega(QR)
        I(f"s_waitcnt lgkmcnt(0)")
        I(f"s_barrier")
        dma_v()
        if opt.fast:
            I(f"s_cmp_eq_u32 {s(sTI)}, 0")
            I(f"s_cbranch_scc0 L_nochk0")
            I(f"s_load_dwordx8 {s(20,8)}, {s(sEPA,2)}, {O_FL + 128} glc")
            I(f"s_load_dwordx8 {s(44,8)}, {s(sEPA,2)}, {O_FL + 160} glc")
            L("L_nochk0")
        stamp("B v issued")
        I(f"s_waitcnt vmcnt(16)")
        stamp("B q landed")
        mode_check()
    else:
        if opt.bomega: read_omega(QR)
        dma_v()
        I(f"s_waitcnt vmcnt(16)")
        if opt.bomega: I(f"s_waitcnt lgkmcnt(0)")
        I(f"s_barrier")
        stamp("B B1")
        if not opt.bomega:
            read_omega(QR)
            I(f"s_waitcnt lgkmcnt(0)")
        I(f"s_barrier")
        if opt.fast:
            I(f"s_cmp_eq_u32 {s(sTI)}, 0")
            I(f"s_cbranch_scc0 L_nochk0")
            I(f"s_load_dwordx8 {s(20,8)}, {s(sEPA,2)}, {O_FL + 128} glc")
            I(f"s_load_dwordx8 {s(44,8)}, {s(sEPA,2)}, {O_FL + 160} glc")
            L("L_nochk0")
        def pace_signal():
            if not opt.stagger: return
            PS[0] += 1
            I(f"s_and_b32 {s(sT1)}, {s(sHEAD)}, 1")
            I(f"s_or_b32 {s(sT1)}, {s(sT1)}, {s(sTI)}")
            I(f"s_cmp_eq_u32 {s(sT1)}, 0")
            I(f"s_cbranch_scc0 L_nosigp{PS[0]}")
            I(f"s_lshl_b32 {s(sT1)}, {s(sCH)}, 2")
            I(f"s_add_u32 {s(sT1)}, {s(sT1)}, {O_FL + 768}")
            I(f"s_mov_b64 exec, 1")
            I(f"v_mov_b32 {v(vX+4)}, 0")
            I(f"v_mov_b32 {v(vX+5)}, {s(sNONCE)}")
            I(f"buffer_store_dword {v(vX+5)}, {v(vX+4)}, {s(rP,4)}, {s(sT1)} offen sc1")
            I(f"s_mov_b64 exec, -1")
            L(f"L_nosigp{PS[0]}")
        def pre(i):
            I(f"s_add_u32 {s(sT1)}, {s(sT0)}, {1024*i}")
            I(f"buffer_load_dwordx4 {v(32+4*(i%8),4)}, {v(vL16)}, {s(rP,4)}, {s(sT1)} offen{opt.prepol}")
        if opt.holdall:
            I(f"s_waitcnt vmcnt(8)")
            mode_check()
            vflag(0)
            stamp("B V1 landed")
            I(f"s_waitcnt vmcnt(0)")
            vflag(1)
            stamp("B V2 landed")
            lds_wait(str(FLG + 64), 4, "hq")
            I(f"s_lshl_b32 {s(sSOFF)}, {s(sTI)}, 14")
            for i in range(16): dma_row_instr(rQ, QR, i)
            stamp("B q issued")
            I(f"s_waitcnt vmcnt(0)")
            stamp("B q landed")
        if opt.pacept == "b2" and not opt.holdall: pace_signal()
        if not opt.holdall:
            if opt.prepart:
                I(f"s_lshl_b32 {s(sT0)}, {s(sCH)}, 15")
                I(f"s_lshl_b32 {s(sT1)}, {s(sTI)}, 13")
                I(f"s_add_u32 {s(sT0)}, {s(sT0)}, {s(sT1)}")
                for i in range(4): pre(i)
            else:
                I(f"s_lshl_b32 {s(sSOFF)}, {s(sTI)}, 14")
                for i in range(4): dma_row_instr(rQ, QR, i)
            I(f"s_waitcnt vmcnt(12)")
            I(f"s_lshl_b32 {s(sT3)}, {s(sTI)}, 2")
            I(f"s_add_u32 {s(sT3)}, {s(sT3)}, {FLG + 16}")
            if opt.fast:
                I(f"s_cmp_eq_u32 {s(sTI)}, 0")
                I(f"s_cbranch_scc0 L_nochk1")
                I(f"s_waitcnt lgkmcnt(0)")
                I(f"s_mov_b32 {s(sT1)}, {s(sNONCE)}")
                I(f"s_not_b32 {s(sT2)}, {s(sNONCE)}")
                for j in range(16):
                    I(f"s_cmp_eq_u32 {s((20 if j < 8 else 36) + j)}, {s(sPRES)}")
                    I(f"s_cselect_b32 {s(sT1)}, {s(sT1)}, {s(sT2)}")
                if opt.forceslow: I(f"s_mov_b32 {s(sT1)}, {s(sT2)}")
                lds_set(str(FLG + 48), val=s(sT1))
                lds_set(str(FLG + 56))
                I(f"s_waitcnt lgkmcnt(0)")
                L("L_nochk1")
            lds_set(s(sT3))
            if opt.pacept == "v1": pace_signal()
            stamp("B V1 landed")
            if opt.prepart:
                for i in range(4, 8): pre(i)
            else:
                for i in range(4, 8): dma_row_instr(rQ, QR, i)
            I(f"s_waitcnt vmcnt(8)")
            I(f"s_add_u32 {s(sT3)}, {s(sT3)}, 16")
            lds_set(s(sT3))
            if opt.pacept == "v2": pace_signal()
            stamp("B V2 landed")
            if opt.prepart:
                I(f"s_lshl_b32 {s(sSOFF)}, {s(sTI)}, 14")
                for i in range(16): dma_row_instr(rQ, QR, i)
            else:
                nh = opt.holdq
                for i in range(8, 16 - nh): dma_row_instr(rQ, QR, i)
                if nh:
                    I(f"s_lshl_b32 {s(sT3)}, {s(sTI)}, 2")
                    I(f"s_add_u32 {s(sT3)}, {s(sT3)}, {FLG + 64}")
                    lds_wait(s(sT3), 1, "hq")
                    for i in range(16 - nh, 16): dma_row_instr(rQ, QR, i)
            if opt.pacept == "q": pace_signal()
            if opt.holdst:
                I(f"s_lshl_b32 {s(sT3)}, {s(sTI)}, 2")
                I(f"s_add_u32 {s(sT3)}, {s(sT3)}, {FLG + 112}")
                lds_set(s(sT3))
            stamp("B q issued")
            I(f"s_waitcnt vmcnt(0)")
            stamp("B q landed")
    read_tile_frags()
    I(f"s_waitcnt lgkmcnt(0)")
    ssq()
    steps = ssq_reduce_steps()
    fs = capture(final_setup) if opt.bsetup else []
    kf = 0
    for t in range(16):
        c = "0" if t == 0 else v(vA1, 16)
        I(f"v_mfma_f32_32x32x16_bf16 {v(vA1,16)}, {v(W(0,t),4)}, {v(vKF+4*t,4)}, {c}")
        if 1 <= t <= 5:
            for x in steps[t-1]: I(x)
        if t == 6: I(f"v_mul_f32 {v(vSS)}, {s(sM132)}, {v(vSS)}")
        if not opt.mimicq:
            if t == 7: I(f"v_mul_f32 {v(vSS)}, {s(sLOG2E)}, {v(vSS)}")
            if t == 8: I(f"s_mov_b32 {s(sC025L)}, 0x3eb8aa3b")
            if t == 9: I(f"v_mov_b32 {v(vSS+3)}, {s(sEPS)}")
        n = 3 if t < 15 else len(fs) - kf
        for x in fs[kf:kf+n]: I(x)
        kf += n
    vY = 20
    vQ0 = 12
    vQ1 = 112
    def plain_ops(mt, dst):
        ops = []
        acc = lambda r: vA1 + 16*mt + r
        for g in range(2):
            for i in range(8): ops.append(f"v_fma_f32 {v(vY+i)}, {v(acc(8*g+i))}, {s(sC025L)}, {v(vSS)}")
            for i in range(8): ops.append(f"v_exp_f32 {v(vY+i)}, {v(vY+i)}")
            for i in range(8): ops.append(f"v_fma_f32 {v(vY+i)}, {v(vY+i)}, {s(sC0125)}, {v(vSS+3)}")
            for i in range(4): ops.append(f"v_cvt_pk_bf16_f32 {v(dst+4*g+i)}, {v(vY+2*i)}, {v(vY+2*i+1)}")
        return ops
    if not opt.mimicq:
        ops0 = plain_ops(0, vQ0)
        k = 0
        for t in range(16):
            c = "0" if t == 0 else v(vA1 + 16, 16)
            I(f"v_mfma_f32_32x32x16_bf16 {v(vA1+16,16)}, {v(W(1,t),4)}, {v(vKF+4*t,4)}, {c}")
            if t >= 1:
                n = 4 if t < 15 else len(ops0) - k
                for x in ops0[k:k+n]: I(x)
                k += n
        stamp("B gemm1 done")
        if opt.kqv:
            I(f"s_waitcnt vmcnt(8)")
            VF[0](0)
        for x in plain_ops(1, vPO + 8): I(x)
        if opt.kqv:
            I(f"s_waitcnt vmcnt(0)")
            VF[0](1)
            stamp("B V2 landed")
        for i in range(8): I(f"v_mov_b32 {v(vPO+i)}, {v(vQ0+i)}")
    else:
        for t in range(16):
            c = "0" if t == 0 else v(vA1 + 16, 16)
            I(f"v_mfma_f32_32x32x16_bf16 {v(vA1+16,16)}, {v(W(1,t),4)}, {v(vKF+4*t,4)}, {c}")
        stamp("B gemm1 done")
        I(f"v_mov_b32 {v(vEPS)}, {s(sEPS)}")
        I(f"v_cvt_pk_bf16_f32 {v(vSS)}, {v(vSS)}, 0")
        I(f"v_lshlrev_b32 {v(vNQ)}, 16, {v(vSS)}")
        for mt in range(2):
            pipeline_mimic(mt, lambda r: vNQ, vP4 + 8*mt)
        for i in range(16): I(f"v_mov_b32 {v(vPO+i)}, {v(vP4+i)}")
    I(f"s_lshl_b32 {s(sT1)}, {s(sTI)}, 14")
    I(f"s_add_u32 {s(sT1)}, {s(sT1)}, {QR}")
    I(f"v_add_u32 {v(vX)}, {s(sT1)}, {v(vL16)}")
    for t in range(4):
        I(f"ds_write_b128 {v(vX)}, {v(vPO+4*t,4)} offset:{t*1024}")
    I(f"s_waitcnt lgkmcnt(0)")
    I(f"s_lshl_b32 {s(sT1)}, {s(sTI)}, 2")
    I(f"s_add_u32 {s(sT1)}, {s(sT1)}, {FLG + 80}")
    lds_set(s(sT1))
    stamp("B phiq done")
    if not opt.bsetup: final_setup()
    phiq_frags("b")
    C("den = phi_q . z once z is there")
    vZF = 112; vDEN = 24; vRD = 28
    lds_wait(str(FLG + 52), 1, "z", tmp=vU)
    I(f"v_lshrrev_b32 {v(vDEN)}, 5, {v(vLANE)}")
    I(f"v_lshlrev_b32 {v(vDEN)}, 3, {v(vDEN)}")
    I(f"v_add_u32 {v(vDEN)}, {ZF}, {v(vDEN)}")
    for t in range(4):
        I(f"ds_read2_b64 {v(vZF+4*t,4)}, {v(vDEN)} offset0:{4*t} offset1:{4*t+2}")
    I(f"v_mov_b32 {v(vDEN+2)}, 0")
    I(f"v_mov_b32 {v(vDEN+3)}, 0")
    I(f"s_waitcnt lgkmcnt(0)")
    for i in range(16):
        I(f"v_dot2c_f32_bf16 {v(vDEN+2+(i&1))}, {v(vPO+i)}, {v(vZF+i)}")
    I(f"v_add_f32 {v(vDEN)}, {v(vDEN+2)}, {v(vDEN+3)}")
    I(f"v_mov_b32 {v(vDEN+1)}, {v(vDEN)}")
    I(f"v_permlane32_swap_b32 {v(vDEN)}, {v(vDEN+1)}")
    I(f"v_add_f32 {v(vDEN)}, {v(vDEN)}, {v(vDEN+1)}")
    I(f"v_cvt_pk_bf16_f32 {v(vDEN)}, {v(vDEN)}, {v(vDEN)}")
    I(f"v_lshlrev_b32 {v(vDEN)}, 16, {v(vDEN)}")
    I(f"v_add_f32 {v(vDEN)}, {s(sEPS)}, {v(vDEN)}")
    I(f"v_cvt_pk_bf16_f32 {v(vDEN)}, {v(vDEN)}, {v(vDEN)}")
    I(f"v_lshlrev_b32 {v(vDEN)}, 16, {v(vDEN)}")
    I(f"v_rcp_f32 {v(vRD)}, {v(vDEN)}")
    I(f"v_fma_f32 {v(vDEN+1)}, -{v(vDEN)}, {v(vRD)}, 1.0")
    I(f"v_fma_f32 {v(vRD)}, {v(vDEN+1)}, {v(vRD)}, {v(vRD)}")
    I(f"s_lshl_b32 {s(sT1)}, {s(sTI)}, 8")
    I(f"s_add_u32 {s(sT1)}, {s(sT1)}, {RD}")
    I(f"v_lshlrev_b32 {v(vDEN)}, 2, {v(vLANE)}")
    I(f"v_add_u32 {v(vDEN)}, {s(sT1)}, {v(vDEN)}")
    I(f"ds_write_b32 {v(vDEN)}, {v(vRD)}")
    I(f"s_waitcnt lgkmcnt(0)")
    I(f"s_lshl_b32 {s(sT1)}, {s(sTI)}, 2")
    I(f"s_add_u32 {s(sT1)}, {s(sT1)}, {FLG + 96}")
    lds_set(s(sT1))
    if opt.fast:
        I(f"v_mov_b32 {v(vDEN)}, {FLG + 48}")
        I(f"ds_read_b32 {v(vDEN+1)}, {v(vDEN)}")
        I(f"s_waitcnt lgkmcnt(0)")
        I(f"v_readfirstlane_b32 {s(sFAST)}, {v(vDEN+1)}")
        I(f"s_cmp_eq_u32 {s(sFAST)}, {s(sNONCE)}")
        I(f"s_cselect_b32 {s(sFAST)}, 1, 0")
    stamp("B den done")
    STI[0] = 13

def phiq_frags(tag):
    C("phi_q of the two q tiles")
    I(f"s_lshr_b32 {s(sT1)}, {s(sWAVE)}, 2")
    I(f"s_lshl_b32 {s(sT1)}, {s(sT1)}, 3")
    I(f"s_add_u32 {s(sSOFF)}, {s(sT1)}, {FLG + 80}")
    lds_wait(s(sSOFF), 2, "pq" + tag, tmp=vU)
    for qi in range(2):
        for t in range(4):
            I(f"ds_read_b128 {v(vPQ8+16*qi+4*t,4)}, {v(vPA2)} offset:{qi*16384 + t*1024}")

def final():
    L("L_final")
    C("================= final: wave w = d tiles 2p,2p+1 x q tiles 2hq,2hq+1; no workgroup barrier =================")
    stamp("F phiq read")
    C("flags of the four reducing workgroups 4p..4p+3 (16 words)")
    I(f"s_and_b32 {s(sT3)}, {s(sWAVE)}, 3")
    I(f"s_lshl_b32 {s(sT2)}, {s(sT3)}, 6")
    I(f"s_add_u32 {s(sT2)}, {s(sT2)}, {O_FL + 512}")
    I(f"s_mov_b32 {s(sSPIN)}, 0")
    I(f"v_and_b32 {v(vU)}, 15, {v(vLANE)}")
    I(f"v_lshlrev_b32 {v(vU)}, 2, {v(vU)}")
    L("L_spin_h2")
    I(f"buffer_load_dword {v(vU+1)}, {v(vU)}, {s(rP,4)}, {s(sT2)} offen sc1")
    I(f"s_waitcnt vmcnt(0)")
    I(f"v_cmp_ne_u32 vcc, {s(sNONCE)}, {v(vU+1)}")
    I(f"s_cbranch_vccz L_spun_h2")
    I(f"s_cmp_lg_u32 {s(sFAST)}, 0")
    I(f"s_cbranch_scc1 L_nap_h2")
    I(f"s_sleep 12")
    L("L_nap_h2")
    I(f"s_add_u32 {s(sSPIN)}, {s(sSPIN)}, 1")
    I(f"s_cmp_lt_u32 {s(sSPIN)}, {opt.spin_limit}")
    I(f"s_cbranch_scc1 L_spin_h2")
    L("L_spun_h2")
    stamp("F hop2")
    I(f"s_lshl_b32 {s(sT1)}, {s(sT3)}, 13")
    I(f"s_add_u32 {s(sT1)}, {s(sT1)}, {O_F}")
    I(f"s_add_u32 {s(sT2)}, {s(sT1)}, 4096")
    for dl in range(2):
        for t in range(4):
            I(f"buffer_load_dwordx4 {v(vKA+16*dl+4*t,4)}, {v(vKG)}, {s(rP,4)}, {s(sT1 if dl == 0 else sT2)} offen offset:{t*1024} sc1")
    I(f"s_lshr_b32 {s(sT1)}, {s(sWAVE)}, 2")
    I(f"s_lshl_b32 {s(sT1)}, {s(sT1)}, 3")
    I(f"s_add_u32 {s(sSOFF)}, {s(sT1)}, {FLG + 96}")
    lds_wait(s(sSOFF), 2, "rd", tmp=vU)
    for qi in range(2):
        I(f"ds_read_b32 {v(vRDS+2*qi)}, {v(vRA)} offset:{256*qi}")
    so = [74, 75, 76, 77, 78, 79, 80, 81] if not opt.stamps else None
    def mm(qi, dl):
        acc = vAC3 + 16*(2*qi + dl)
        for t in range(4):
            c = "0" if t == 0 else v(acc, 16)
            I(f"v_mfma_f32_32x32x16_bf16 {v(acc,16)}, {v(vKA+16*dl+4*t,4)}, {v(vPQ8+16*qi+4*t,4)}, {c}")
    def epi(qi, dl):
        acc = vAC3 + 16*(2*qi + dl); op = vOP + 16*qi + 8*dl
        if opt.mimicnum:
            for k in range(8): I(f"v_cvt_pk_bf16_f32 {v(op+k)}, {v(acc+2*k)}, {v(acc+2*k+1)}")
            for k in range(8):
                I(f"v_lshlrev_b32 {v(acc+2*k)}, 16, {v(op+k)}")
                I(f"v_and_b32 {v(acc+2*k+1)}, {s(sMASKH)}, {v(op+k)}")
        for k in range(8): I(f"v_pk_mul_f32 {v(acc+2*k,2)}, {v(acc+2*k,2)}, {v(vRDS+2*qi,2)} op_sel_hi:[1,0]")
        for k in range(8): I(f"v_cvt_pk_bf16_f32 {v(op+k)}, {v(acc+2*k)}, {v(acc+2*k+1)}")
        for u in range(2):
            x = 64*dl + 16*u
            reg = vSW if x == 0 else vU + (x // 16 - 1 if x < 64 else x // 16 - 3)
            I(f"ds_write_b128 {v(reg)}, {v(op+4*u,4)} offset:{4096*qi}")
    def R(qi):
        for j in range(4):
            I(f"ds_read_b128 {v(vST+16*qi+4*j,4)}, {v(vSR)} offset:{4096*qi + 1024*j}")
    def S(qi):
        for j in range(4):
            row = 32*qi + 8*j
            I(f"s_mov_b32 {s(sSOFF)}, {row*512}")
            I(f"s_waitcnt lgkmcnt({3-j})")
            I(f"buffer_store_dwordx4 {v(vST+16*qi+4*j,4)}, {v(vOA)}, {s(rO,4)}, {s(sSOFF)} offen{opt.ost}")
    I(f"v_xor_b32 {v(vU)}, 16, {v(vSW)}")
    I(f"v_xor_b32 {v(vU+1)}, 64, {v(vSW)}")
    I(f"v_xor_b32 {v(vU+2)}, 80, {v(vSW)}")
    I(f"s_waitcnt vmcnt(4) lgkmcnt(0)")
    stamp("F kv there")
    if opt.forder == 0:
        mm(0, 0)
        I(f"s_waitcnt vmcnt(0)")
        mm(0, 1)
        epi(0, 0)
        mm(1, 0)
        epi(0, 1)
        I(f"s_waitcnt lgkmcnt(0)")
        R(0)
        mm(1, 1)
        S(0)
        epi(1, 0)
        epi(1, 1)
        I(f"s_waitcnt lgkmcnt(0)")
        R(1)
        S(1)
    elif opt.forder == 1:
        mm(0, 0)
        I(f"s_waitcnt vmcnt(0)")
        mm(0, 1)
        epi(0, 0)
        epi(0, 1)
        mm(1, 0)
        mm(1, 1)
        I(f"s_waitcnt lgkmcnt(0)")
        R(0)
        S(0)
        epi(1, 0)
        epi(1, 1)
        I(f"s_waitcnt lgkmcnt(0)")
        R(1)
        S(1)
    else:
        mm(0, 0)
        I(f"s_waitcnt vmcnt(0)")
        mm(0, 1)
        epi(0, 0)
        epi(0, 1)
        mm(1, 0)
        I(f"s_waitcnt lgkmcnt(0)")
        R(0)
        mm(1, 1)
        S(0)
        epi(1, 0)
        epi(1, 1)
        I(f"s_waitcnt lgkmcnt(0)")
        R(1)
        S(1)
    STI[0] = 18
    stamp("stores issued")
    if opt.stamps: I("s_waitcnt vmcnt(0)")
    stamp("stores done")
    stamps_flush("f")

def build():
    set_regions(opt.kqv)
    common_start()
    I(f"s_cmp_ge_u32 {s(sWAVE)}, 4")
    I(f"s_cbranch_scc1 L_team_b")
    team_a()
    team_b()
    final()
    L("L_end")
    I("s_endpgm")
    body = A.render()
    hdr = f"""; fused RFA linear attention: 256 workgroups (one per CU) x 8 waves
; @launch grid=(256,1,1) block=(512,1,1) lds={LDS_BYTES}
.amdgcn_target "amdgcn-amd-amdhsa--gfx950"
.text
.globl {NAME}
.p2align 8
.type {NAME},@function
{NAME}:
"""
    ftr = f"""
.section .rodata,"a"
.p2align 6
.amdhsa_kernel {NAME}
  .amdhsa_next_free_vgpr 256
  .amdhsa_next_free_sgpr 102
  .amdhsa_accum_offset 256
  .amdhsa_group_segment_fixed_size 0
  .amdhsa_kernarg_size 56
  .amdhsa_user_sgpr_count 2
  .amdhsa_user_sgpr_kernarg_segment_ptr 1
  .amdhsa_system_sgpr_workgroup_id_x 1
  .amdhsa_float_denorm_mode_32 3
.end_amdhsa_kernel
"""
    return hdr + body + ftr

if __name__ == "__main__":
    out = sys.argv[1]
    for a in sys.argv[2:]:
        if a == "stamps": opt.stamps = True
        elif a == "light": opt.stamps = True; opt.light = True
        elif a == "nont": opt.nt = False
        elif a == "nofast": opt.fast = False
        elif a == "forceslow": opt.forceslow = True
        elif a == "nopretouch": opt.pretouch = False
        elif a == "mimicq": opt.mimicq = True; opt.bsetup = False
        elif a == "nomred": opt.mred = False
        elif a.startswith("codepf2="): opt.codepf2 = int(a.split("=")[1])
        elif a.startswith("codelen="): opt.codelen = int(a.split("=")[1])
        elif a.startswith("forder="): opt.forder = int(a.split("=")[1])
        elif a == "nobsetup": opt.bsetup = False
        elif a == "early": opt.early = True
        elif a == "kko": opt.kko = True; opt.bomega = False
        elif a.startswith("holdall="): opt.holdall = a.split("=")[1]
        elif a == "kok": opt.kok = True
        elif a == "nokokbar": opt.kokbar = False
        elif a == "cyc": opt.cyc = True
        elif a == "holdst": opt.holdst = True
        elif a == "nobomega": opt.bomega = False
        elif a == "nokfast": opt.kfast = False
        elif a.startswith("kshadow="): opt.kshadow = int(a.split("=")[1])
        elif a.startswith("holdq="): opt.holdq = int(a.split("=")[1])
        elif a == "kqv": opt.kqv = True
        elif a.startswith("stagger="): opt.stagger = True; opt.pacept = a.split("=")[1]
        elif a == "prepart": opt.prepart = True; opt.partplain = True
        elif a.startswith("prepol="): opt.prepol = (" " + a.split("=")[1].replace("+", " ")).rstrip()
        elif a.startswith("partpol="): opt.partpol = " " + a.split("=")[1].replace("+", " ")
        elif a == "codepf": opt.codepf = True
        elif a == "partplain": opt.partplain = True
        elif a == "nopreread": opt.preread = False
        elif a == "mimicnum": opt.mimicnum = True
        elif a.startswith("dbgwg="): opt.dbgwg = int(a.split("=")[1])
        elif a.startswith("dbgwave="): opt.dbgwave = int(a.split("=")[1])
        elif a.startswith("ost="): opt.ost = " " + a.split("=")[1].replace("+", " ")
        else: raise SystemExit("unknown option " + a)
    txt = build()
    open(out, "w").write(txt)
    if opt.stamps: json.dump(STN, open(out + ".stamps.json", "w"))
    print("wrote", out, "nops inserted:", A.nops, "lines", txt.count("\n"))
```

```python
import sys, json, struct
from asmlib import *

NAME = "standalone__linear_kernel_rfa__prompt_kernel"
class O: pass
opt = O()
opt.spin_limit = 60000
opt.stamps = False
opt.nt = True
opt.fast = True
opt.forceslow = False
opt.dbgwg = None
opt.dbgwave = 0
opt.ost = " nt"
opt.pretouch = True
opt.partplain = False
opt.preread = True
opt.codepf = False
opt.partpol = ' sc1'
opt.prepart = False
opt.prepol = ' nt'
opt.light = False
opt.stagger = False
opt.pacept = 'v2'
opt.pacemax = 40
opt.kqv = False
opt.holdq = 0
opt.bomega = True
opt.kfast = True
opt.kshadow = 6
opt.holdst = False
opt.cyc = False
opt.kok = False
opt.kokbar = True
opt.holdall = ''
opt.kko = False
opt.early = False
opt.bsetup = True
opt.mred = True
opt.forder = 0
opt.codelen = 11648
opt.codepf2 = 0
opt.shift = 0
opt.mimicq = False
opt.mimicnum = False

KQ = 0
QR = 0
VR = 65536
WR = 131072
PHI = WR
ZB = WR + 16384
ZF = WR + 17408
FLG = WR + 17664
RD = WR + 18432
KVF = VR
OSA = VR + 32768
def set_regions(kqv):
    global QR, VR, KVF, OSA
    QR, VR = (65536, 0) if kqv else (0, 65536)
    KVF = VR; OSA = VR + 32768
LDS_BYTES = 163840
HS = 1 << 20
O_PART = 0
O_F = 524288
O_Z = 524288 + 32768
O_FL = 524288 + 32768 + 4096
WS_ST = 20 << 20

sQp, sKp, sVp, sWp, sOp, sDp, sSp = 4, 6, 8, 10, 12, 14, 16
sHEAD, sCH = 18, 19
rK, rV, rQ, rW, rO, rP, rL = 20, 24, 28, 32, 36, 40, 52
sWAVE, sTI = 56, 57
sT0, sT1, sT2, sT3 = 58, 59, 60, 61
sNONCE, sFAST = 62, 63
sC025L, sC025H, sLOG2E, sC0125, sMASKH, sONES = 64, 65, 66, 67, 68, 69
sSPIN, sSOFF, sEPS, sM132 = 70, 71, 72, 73
sXCC, sPRES = 94, 95
sPQ = 73
sEPA = 96
sPW = 40
sJUNK = 44

A = Asm()
I, L, C = A.I, A.L, A.C
STI = [0]; STN = []; PS = [0]; VF = [None]
def stamp(name=""):
    if not opt.stamps: return
    if opt.light and name not in ("start", "stores done"):
        STN.append((STI[0], name)); STI[0] += 1
        return
    C("stamp %s" % name)
    I("s_memtime s[98:99]" if opt.cyc else "s_memrealtime s[98:99]")
    I("s_waitcnt lgkmcnt(0)")
    I("s_mov_b32 s%d, s98" % (74 + STI[0]))
    STN.append((STI[0], name)); STI[0] += 1
def stamps_flush(tag):
    if not opt.stamps: return
    I("s_and_b32 s97, s56, 3"); I("s_cmp_eq_u32 s97, 0"); I("s_cbranch_scc0 L_nost_%s" % tag)
    I("s_lshr_b32 s97, s56, 2"); I("s_lshl_b32 s96, s2, 1"); I("s_add_u32 s96, s96, s97"); I("s_lshl_b32 s96, s96, 7")
    I("s_add_u32 s96, s96, %d" % WS_ST)
    I("s_add_u32 s40, s16, s96"); I("s_addc_u32 s41, s17, 0"); I("s_and_b32 s41, s41, 0xffff"); I("s_mov_b32 s42, 128"); I("s_mov_b32 s43, 0x20000")
    I("s_mov_b64 exec, 1"); I("v_mov_b32 v1, 0")
    for i in range(20):
        I("v_mov_b32 v2, s%d" % (74 + i)); I("buffer_store_dword v2, v1, s[40:43], 0 offen offset:%d" % (4 * i))
    I("s_waitcnt vmcnt(0)")
    if opt.dbgwg is not None:
        I("s_cmp_eq_u32 s2, %d" % opt.dbgwg); I("s_cbranch_scc0 L_nodbg")
        I("s_cmp_eq_u32 s56, %d" % opt.dbgwave); I("s_cbranch_scc0 L_nodbg")
        I("s_mov_b32 s40, s14"); I("s_and_b32 s41, s15, 0xffff"); I("s_mov_b32 s42, 256")
        I("s_sub_u32 s97, s74, s100"); I("v_mov_b32 v2, s97"); I("buffer_store_dword v2, v1, s[40:43], 0 offen offset:60")
        idx = [i for i in range(1, 14)] + [18, 19]
        for j, i in enumerate(idx):
            I("s_sub_u32 s97, s%d, s74" % (74 + i)); I("v_mov_b32 v2, s97"); I("buffer_store_dword v2, v1, s[40:43], 0 offen offset:%d" % (4 * j))
        I("s_waitcnt vmcnt(0)")
        L("L_nodbg")
    I("s_mov_b64 exec, -1")
    L("L_nost_%s" % tag)

def srd(r, ptr, off_s, size):
    if off_s is None:
        I(f"s_mov_b32 {s(r)}, {s(ptr)}")
        I(f"s_and_b32 {s(r+1)}, {s(ptr+1)}, 0xffff")
    else:
        I(f"s_add_u32 {s(r)}, {s(ptr)}, {s(off_s)}")
        I(f"s_addc_u32 {s(r+1)}, {s(ptr+1)}, 0")
        I(f"s_and_b32 {s(r+1)}, {s(r+1)}, 0xffff")
    I(f"s_mov_b32 {s(r+2)}, {size}")
    I(f"s_mov_b32 {s(r+3)}, 0x20000")

NT = lambda: " nt" if opt.nt else ""
vLANE = 0
vA = 2
vD = 10
vL16 = 11
vT = 12
vSS = 28
vW = 128
def W(mt, t): return vW + mt * 64 + t * 4
vKF = 32
vA1 = 96
vP4 = 12
vNQ = 32
vNK = 48
vONE = 52
vP1 = 56
vTT = 60
vEPS = 68
vZP = 69
vX = 72
vPQ = 32
vPO = 96
vID = 80

POL = [" sc1"]
def pol(): return POL[0]
DUAL = [0]
def dual(fn):
    if not opt.fast:
        POL[0] = " sc1"; fn(); return
    DUAL[0] += 1; n = DUAL[0]
    I(f"s_cmp_lg_u32 {s(sFAST)}, 0")
    I(f"s_cbranch_scc1 L_fast{n}")
    POL[0] = " sc1"; fn()
    I(f"s_branch L_join{n}")
    L(f"L_fast{n}")
    POL[0] = ""; fn()
    L(f"L_join{n}")
    POL[0] = " sc1"

def prologue():
    for _ in range(opt.shift): I("s_nop 0")
    if opt.stamps: I("s_memrealtime s[100:101]")
    I(f"s_cmp_ge_u32 s2, 256")
    I(f"s_cbranch_scc1 L_end")
    I(f"s_load_dwordx4 s[4:7], s[0:1], 0")
    I(f"s_load_dwordx4 s[8:11], s[0:1], 16")
    I(f"s_load_dwordx4 s[12:15], s[0:1], 32")
    I(f"s_load_dwordx2 s[16:17], s[0:1], 48")
    if opt.codepf:
        C("pull the kernel's own code into L2 while the kernel arguments are on their way (128 B per lane)")
        cb = "s[100:101]" if not opt.stamps else "s[52:53]"
        I(f"s_getpc_b64 {cb}")
        I(f"v_and_b32 v1, 63, v0")
        I(f"v_lshlrev_b32 v1, 7, v1")
        I(f"global_load_dword v32, v1, {cb}")
        I(f"v_add_u32 v1, 8192, v1")
        I(f"v_min_u32 v1, {opt.codelen}, v1")
        I(f"global_load_dword v33, v1, {cb}")
    I(f"v_lshrrev_b32 v1, 6, v0")
    I(f"v_and_b32 {v(vLANE)}, 63, v0")
    I(f"v_readfirstlane_b32 {s(sWAVE)}, v1")
    I(f"s_and_b32 {s(sT0)}, s2, 7")
    I(f"s_lshr_b32 {s(sT1)}, s2, 3")
    I(f"s_lshr_b32 {s(sHEAD)}, {s(sT1)}, 4")
    I(f"s_lshl_b32 {s(sT0)}, {s(sT0)}, 1")
    I(f"s_add_u32 {s(sHEAD)}, {s(sHEAD)}, {s(sT0)}")
    I(f"s_and_b32 {s(sCH)}, {s(sT1)}, 15")
    I(f"s_and_b32 {s(sTI)}, {s(sWAVE)}, 3")
    I(f"v_lshrrev_b32 {v(vT)}, 5, {v(vLANE)}")
    I(f"v_and_b32 {v(vT+1)}, 31, {v(vLANE)}")
    I(f"v_xor_b32 {v(vT+1)}, {v(vT+1)}, {v(vT)}")
    I(f"v_lshlrev_b32 {v(vT+1)}, 4, {v(vT+1)}")
    I(f"v_lshl_add_u32 {v(vD)}, {v(vT)}, 9, {v(vT+1)}")
    I(f"v_lshlrev_b32 {v(vL16)}, 4, {v(vLANE)}")
    I(f"s_lshl_b32 {s(sT0)}, {s(sHEAD)}, 20")
    I(f"s_lshl_b32 {s(sT1)}, {s(sCH)}, 16")
    I(f"s_add_u32 {s(sT0)}, {s(sT0)}, {s(sT1)}")
    I(f"s_waitcnt lgkmcnt(0)")
    srd(rW, sWp, None, 32768)
    srd(rK, sKp, sT0, 65536)

def dma_omega():
    I(f"s_and_b32 {s(sT1)}, {s(sWAVE)}, 1")
    I(f"s_lshl_b32 {s(sT1)}, {s(sT1)}, 7")
    I(f"s_lshl_b32 {s(sSOFF)}, {s(sWAVE)}, 12")
    I(f"s_add_u32 m0, {s(sSOFF)}, {WR}")
    for i in range(4):
        I(f"s_add_u32 {s(sT2)}, {s(sT1)}, {32*i}")
        I(f"v_xor_b32 {v(vT)}, {s(sT2)}, {v(vD)}")
        I(f"buffer_load_dwordx4 {v(vT)}, {s(rW,4)}, {s(sSOFF)} offen offset:{1024*i} lds")

def dma_row_instr(r, base_lds, i):
    if i % 4 == 0:
        if i: I(f"s_add_u32 {s(sSOFF)}, {s(sSOFF)}, 4096")
        I(f"s_add_u32 m0, {s(sSOFF)}, {base_lds}")
    if i & 7:
        I(f"v_xor_b32 {v(vT)}, {32*(i&7)}, {v(vD)}")
        I(f"buffer_load_dwordx4 {v(vT)}, {s(r,4)}, {s(sSOFF)} offen offset:{1024*(i%4)}{NT()} lds")
    else:
        I(f"buffer_load_dwordx4 {v(vD)}, {s(r,4)}, {s(sSOFF)} offen offset:{1024*(i%4)}{NT()} lds")

def dma_k():
    I(f"s_lshl_b32 {s(sSOFF)}, {s(sWAVE)}, 13")
    for i in range(8): dma_row_instr(rK, KQ, i)

vVD = 9
def v_setup(reg):
    I(f"v_lshrrev_b32 {v(reg)}, 4, {v(vLANE)}")
    I(f"v_and_b32 {v(reg)}, 1, {v(reg)}")
    I(f"v_lshlrev_b32 {v(reg)}, 2, {v(reg)}")
    I(f"v_and_b32 {v(vT+1)}, 7, {v(vLANE)}")
    I(f"v_xor_b32 {v(reg)}, {v(reg)}, {v(vT+1)}")
    I(f"v_lshlrev_b32 {v(reg)}, 4, {v(reg)}")
    I(f"v_lshrrev_b32 {v(vT+1)}, 3, {v(vLANE)}")
    I(f"v_lshl_add_u32 {v(reg)}, {v(vT+1)}, 9, {v(reg)}")

def v_issue(reg, first_s, n):
    I(f"s_lshl_b32 {s(sSOFF)}, {first_s}, 12")
    I(f"s_lshl_b32 {s(sT1)}, {s(sTI)}, 7")
    I(f"s_add_u32 {s(sSOFF)}, {s(sSOFF)}, {s(sT1)}")
    I(f"s_lshl_b32 {s(sT1)}, {first_s}, 10")
    I(f"s_lshl_b32 {s(sT2)}, {s(sTI)}, 14")
    I(f"s_add_u32 {s(sT1)}, {s(sT1)}, {s(sT2)}")
    I(f"s_add_u32 {s(sT1)}, {s(sT1)}, {VR}")
    for i in range(n):
        I(f"s_add_u32 m0, {s(sT1)}, {1024*i}")
        if i: I(f"s_add_u32 {s(sSOFF)}, {s(sSOFF)}, 4096")
        I(f"buffer_load_dwordx4 {v(reg)}, {s(rV,4)}, {s(sSOFF)} offen{NT()} lds")

def dma_v():
    C("team B wave b: V slice b (128 B columns), all 128 rows, 16 instructions of 8 rows")
    v_setup(vT+2)
    I(f"s_mov_b32 {s(sT3)}, 0")
    v_issue(vT+2, s(sT3), 16)

def tile_addrs():
    I(f"v_and_b32 {v(vT)}, 31, {v(vLANE)}")
    I(f"v_lshrrev_b32 {v(vT+1)}, 5, {v(vLANE)}")
    I(f"v_and_b32 {v(vT+2)}, 15, {v(vLANE)}")
    I(f"v_xor_b32 {v(vT+2)}, {v(vT+2)}, {v(vT+1)}")
    I(f"v_lshlrev_b32 {v(vT+2)}, 4, {v(vT+2)}")
    I(f"v_lshl_add_u32 {v(vT+2)}, {v(vT)}, 9, {v(vT+2)}")
    I(f"v_add_u32 {v(vA)}, {WR}, {v(vT+2)}")
    for x in range(1, 8):
        I(f"v_xor_b32 {v(vA+x)}, {32*x}, {v(vA)}")

def read_omega(base):
    for t in range(16):
        for mt in range(2):
            I(f"ds_read_b128 {v(W(mt,t),4)}, {v(vA+(t&7))} offset:{(t>>3)*256 + mt*16384}")
    I(f"s_lshl_b32 {s(sT1)}, {s(sTI)}, 14")
    I(f"s_sub_u32 {s(sT1)}, {s(sT1)}, {WR - base}")
    for x in range(8):
        I(f"v_add_u32 {v(vA+x)}, {s(sT1)}, {v(vA+x)}")

def consts():
    I(f"s_mov_b32 {s(sC025L)}, 0x00003e80")
    I(f"s_mov_b32 {s(sC025H)}, 0x3e800000")
    I(f"s_mov_b32 {s(sLOG2E)}, 0x3fb8aa3b")
    I(f"s_mov_b32 {s(sC0125)}, 0x3e000000")
    I(f"s_mov_b32 {s(sMASKH)}, 0xffff0000")
    I(f"s_mov_b32 {s(sONES)}, 0x3f803f80")
    I(f"s_mov_b32 {s(sEPS)}, 0x358637bd")
    I(f"s_mov_b32 {s(sM132)}, 0xbd000000")

def read_tile_frags():
    for t in range(16):
        I(f"ds_read_b128 {v(vKF+4*t,4)}, {v(vA+(t&7))} offset:{(t>>3)*256}")
    for i in range(4): I(f"v_mov_b32 {v(vSS+i)}, 0")

def ssq(counted=False):
    for t in range(16):
        if counted and t % 2 == 0: I(f"s_waitcnt lgkmcnt({max(0, 14 - t)})")
        for i in range(4):
            I(f"v_dot2c_f32_bf16 {v(vSS+i)}, {v(vKF+4*t+i)}, {v(vKF+4*t+i)}")

def ssq_reduce_steps():
    return [
        [f"v_add_f32 {v(vSS)}, {v(vSS)}, {v(vSS+1)}", f"v_add_f32 {v(vSS+2)}, {v(vSS+2)}, {v(vSS+3)}"],
        [f"v_add_f32 {v(vSS)}, {v(vSS)}, {v(vSS+2)}"],
        [f"v_mov_b32 {v(vSS+1)}, {v(vSS)}"],
        [f"v_permlane32_swap_b32 {v(vSS)}, {v(vSS+1)}"],
        [f"v_add_f32 {v(vSS)}, {v(vSS)}, {v(vSS+1)}"],
    ]

def pipeline_mimic(mt, nq_of, p4base):
    for g in range(2):
        prs = [4*g + i for i in range(4)]
        acc = lambda r: vA1 + 16*mt + r
        for i, p in enumerate(prs): I(f"v_cvt_pk_bf16_f32 {v(vP1+i)}, {v(acc(2*p))}, {v(acc(2*p+1))}")
        for i, p in enumerate(prs):
            I(f"v_dot2_f32_bf16 {v(vTT+2*i)}, {v(vP1+i)}, {s(sC025L)}, {v(nq_of(2*p))}")
            I(f"v_dot2_f32_bf16 {v(vTT+2*i+1)}, {v(vP1+i)}, {s(sC025H)}, {v(nq_of(2*p+1))}")
        for i, p in enumerate(prs): I(f"v_cvt_pk_bf16_f32 {v(vP1+i)}, {v(vTT+2*i)}, {v(vTT+2*i+1)}")
        for i, p in enumerate(prs):
            I(f"v_lshlrev_b32 {v(vTT+2*i)}, 16, {v(vP1+i)}")
            I(f"v_and_b32 {v(vTT+2*i+1)}, {s(sMASKH)}, {v(vP1+i)}")
        for i in range(8): I(f"v_mul_f32 {v(vTT+i)}, {s(sLOG2E)}, {v(vTT+i)}")
        for i in range(8): I(f"v_exp_f32 {v(vTT+i)}, {v(vTT+i)}")
        for i in range(8): I(f"v_fma_f32 {v(vTT+i)}, {v(vTT+i)}, {s(sC0125)}, {v(vEPS)}")
        for i, p in enumerate(prs): I(f"v_cvt_pk_bf16_f32 {v(p4base+p)}, {v(vTT+2*i)}, {v(vTT+2*i+1)}")

def lds_wait(addr, n, tag, tmp=None):
    tmp = vX + 4 if tmp is None else tmp
    I(f"s_mov_b32 {s(sSPIN)}, 0")
    if n == 1:
        I(f"v_mov_b32 {v(tmp)}, {addr}")
    else:
        I(f"v_and_b32 {v(tmp)}, {n-1}, {v(vLANE)}")
        I(f"v_lshlrev_b32 {v(tmp)}, 2, {v(tmp)}")
        I(f"v_add_u32 {v(tmp)}, {addr}, {v(tmp)}")
    L(f"L_ls_{tag}")
    I(f"ds_read_b32 {v(tmp+1)}, {v(tmp)}")
    I(f"s_waitcnt lgkmcnt(0)")
    I(f"v_cmp_ne_u32 vcc, {s(sNONCE)}, {v(tmp+1)}")
    I(f"s_cbranch_vccz L_lsd_{tag}")
    I(f"s_add_u32 {s(sSPIN)}, {s(sSPIN)}, 1")
    I(f"s_cmp_lt_u32 {s(sSPIN)}, {opt.spin_limit*8}")
    I(f"s_cbranch_scc1 L_ls_{tag}")
    L(f"L_lsd_{tag}")

def lds_set(addr, tmp=None, val=None):
    tmp = vX + 4 if tmp is None else tmp
    I(f"v_mov_b32 {v(tmp)}, {addr}")
    I(f"v_mov_b32 {v(tmp+1)}, {s(sNONCE) if val is None else val}")
    I(f"ds_write_b32 {v(tmp)}, {v(tmp+1)}")

vFL = 8
sFL1, sFL2 = 92, 93
def flag_prepare():
    global sFL1, sFL2
    if opt.stamps: sFL1, sFL2 = 48, 49
    I(f"s_lshl_b32 {s(sFL1)}, {s(sCH)}, 4")
    I(f"s_lshl_b32 {s(sFL2)}, {s(sTI)}, 2")
    I(f"s_add_u32 {s(sFL1)}, {s(sFL1)}, {s(sFL2)}")
    I(f"s_add_u32 {s(sFL2)}, {s(sFL1)}, {O_FL + 512}")
    I(f"s_add_u32 {s(sFL1)}, {s(sFL1)}, {O_FL + 256}")
    I(f"v_mov_b32 {v(vFL)}, 0")
    I(f"v_mov_b32 {v(vFL+1)}, {s(sNONCE)}")

def wave_flag(off):
    so = sFL1 if off == 256 else sFL2
    I(f"s_mov_b64 exec, 1")
    dual(lambda: I(f"buffer_store_dword {v(vFL+1)}, {v(vFL)}, {s(rP,4)}, {s(so)} offen{pol()}"))
    I(f"s_mov_b64 exec, -1")

def poll(off, tag, tmp=None):
    tmp = vT if tmp is None else tmp
    I(f"s_mov_b32 {s(sSPIN)}, 0")
    I(f"s_mov_b32 {s(sT2)}, {O_FL + off}")
    I(f"v_lshlrev_b32 {v(tmp)}, 2, {v(vLANE)}")
    L(f"L_spin_{tag}")
    I(f"buffer_load_dword {v(tmp+1)}, {v(tmp)}, {s(rP,4)}, {s(sT2)} offen sc1")
    I(f"s_waitcnt vmcnt(0)")
    I(f"v_cmp_ne_u32 vcc, {s(sNONCE)}, {v(tmp+1)}")
    I(f"s_cbranch_vccz L_spun_{tag}")
    I(f"s_cmp_lg_u32 {s(sFAST)}, 0")
    I(f"s_cbranch_scc1 L_nap_{tag}")
    I(f"s_sleep 12")
    L(f"L_nap_{tag}")
    I(f"s_add_u32 {s(sSPIN)}, {s(sSPIN)}, 1")
    I(f"s_cmp_lt_u32 {s(sSPIN)}, {opt.spin_limit}")
    I(f"s_cbranch_scc1 L_spin_{tag}")
    L(f"L_spun_{tag}")

def common_start():
    prologue()
    stamp("start")
    if opt.early:
        C("K(0..3), omega, K(4..7), then four V loads: rows 0..31 (team A) / 32..63 (team B) of slice w&3")
        I(f"s_lshl_b32 {s(sSOFF)}, {s(sWAVE)}, 13")
        for i in range(4): dma_row_instr(rK, KQ, i)
        I(f"s_mov_b32 {s(sT3)}, {s(sSOFF)}")
        dma_omega()
        I(f"s_mov_b32 {s(sSOFF)}, {s(sT3)}")
        I(f"s_barrier")
        for i in range(4, 8): dma_row_instr(rK, KQ, i)
        srd(rV, sVp, sT0, 65536)
        v_setup(30)
        I(f"s_lshr_b32 {s(sT3)}, {s(sWAVE)}, 2")
        I(f"s_lshl_b32 {s(sT3)}, {s(sT3)}, 2")
        v_issue(30, s(sT3), 4)
    elif opt.kko:
        C("omega lines -> L2 (one touch per line), then K, then omega itself (L2 hits by then)")
        I(f"v_and_b32 {v(vT+2)}, 31, {v(vLANE)}")
        I(f"v_lshlrev_b32 {v(vT+2)}, 7, {v(vT+2)}")
        I(f"s_lshl_b32 {s(sT1)}, {s(sWAVE)}, 12")
        I(f"buffer_load_dword {v(vT+3)}, {v(vT+2)}, {s(rW,4)}, {s(sT1)} offen")
        dma_k()
        dma_omega()
    elif opt.kok:
        C("issue order K(0..3), omega, K(4..7): omega rides in the first window without holding K back")
        I(f"s_lshl_b32 {s(sSOFF)}, {s(sWAVE)}, 13")
        for i in range(4): dma_row_instr(rK, KQ, i)
        I(f"s_mov_b32 {s(sT3)}, {s(sSOFF)}")
        dma_omega()
        I(f"s_mov_b32 {s(sSOFF)}, {s(sT3)}")
        if opt.kokbar: I(f"s_barrier")
        for i in range(4, 8): dma_row_instr(rK, KQ, i)
    else:
        dma_omega()
        I(f"s_barrier")
        dma_k()
    C("scalar side: epoch word, translation pre-touch, descriptors")
    I(f"s_lshl_b32 {s(sT1)}, {s(sHEAD)}, 20")
    I(f"s_add_u32 {s(sEPA)}, {s(sSp)}, {s(sT1)}")
    I(f"s_addc_u32 {s(sEPA+1)}, {s(sSp+1)}, 0")
    I(f"s_load_dword {s(sNONCE)}, {s(sEPA,2)}, {O_FL}")
    if opt.preread:
        C("bring the flag lines of this head into L2 (a store to an absent line makes the next read a memory fill)")
        for j in range(8):
            I(f"s_load_dword {s(sJUNK+3)}, {s(sEPA,2)}, {O_FL + 256 + 64*j}")
    if not opt.early: srd(rV, sVp, sT0, 65536)
    srd(rQ, sQp, sT0, 65536)
    srd(rO, sOp, sT0, 65536)
    if opt.pretouch:
        I(f"s_load_dword {s(sJUNK)}, {s(rQ,2)}, 0")
        I(f"s_load_dword {s(sJUNK+1)}, {s(rO,2)}, 0")
        I(f"s_load_dword {s(sJUNK+2)}, {s(rV,2)}, 0")
    tile_addrs()
    consts()
    stamp("K issued")
    I(f"s_waitcnt lgkmcnt(0)")
    I(f"s_add_u32 {s(sNONCE)}, {s(sNONCE)}, 1")
    I(f"s_lshl_b32 {s(sT1)}, {s(sHEAD)}, 20")
    srd(rP, sSp, sT1, HS)
    I(f"s_mov_b32 {s(sFAST)}, 0")
    I(f"s_getreg_b32 {s(sXCC)}, hwreg(HW_REG_XCC_ID, 0, 4)")
    I(f"s_lshl_b32 {s(sPRES)}, {s(sNONCE)}, 4")
    I(f"s_add_u32 {s(sPRES)}, {s(sPRES)}, {s(sXCC)}")
    nyoung = {"early": 8, "kko": None, "kok": 4}.get("early" if opt.early else "kko" if opt.kko else "kok" if opt.kok else "", 8)
    I(f"s_cmp_eq_u32 {s(sWAVE)}, 0")
    I(f"s_cbranch_scc0 L_nopres")
    if opt.fast:
        C("presence word: nonce*16 + XCC id (wave 0)")
        I(f"s_mov_b64 exec, 1")
        I(f"s_lshl_b32 {s(sT1)}, {s(sCH)}, 2")
        I(f"s_add_u32 {s(sT1)}, {s(sT1)}, {O_FL + 128}")
        I(f"v_mov_b32 {v(vT)}, 0")
        I(f"v_mov_b32 {v(vT+1)}, {s(sPRES)}")
        I(f"buffer_store_dword {v(vT+1)}, {v(vT)}, {s(rP,4)}, {s(sT1)} offen sc1")
        I(f"s_mov_b64 exec, -1")
        if nyoung is not None: I(f"s_waitcnt vmcnt({nyoung + 1})")
    else:
        if nyoung is not None: I(f"s_waitcnt vmcnt({nyoung})")
    I(f"s_branch L_presd")
    L("L_nopres")
    if nyoung is not None: I(f"s_waitcnt vmcnt({nyoung})")
    L("L_presd")
    if not opt.kko: I(f"s_barrier")

def team_a():
    C("================= team A =================")
    if not opt.kko: read_omega(KQ)
    C("K landed: own loads only (the presence store of wave 0 may still be in flight)")
    ey = 4 if opt.early else 0
    I(f"s_waitcnt vmcnt({1 + ey}) lgkmcnt(0)")
    I(f"s_cmp_eq_u32 {s(sTI)}, 0")
    I(f"s_cbranch_scc1 L_k0")
    I(f"s_waitcnt vmcnt({ey})")
    L("L_k0")
    I(f"s_barrier")
    stamp("A B1 K landed")
    if opt.kko: read_omega(KQ)
    read_tile_frags()
    I(f"s_waitcnt lgkmcnt(0)")
    I(f"s_barrier")
    if not opt.kfast:
        ssq()
        steps = ssq_reduce_steps()
        for t in range(16):
            for mt in range(2):
                c = "0" if t == 0 else v(vA1 + 16*mt, 16)
                I(f"v_mfma_f32_32x32x16_bf16 {v(vA1+16*mt,16)}, {v(vKF+4*t,4)}, {v(W(mt,t),4)}, {c}")
            if 1 <= t <= 5:
                for x in steps[t-1]: I(x)
            if t == 6:
                I(f"v_mul_f32 {v(vSS)}, {s(sM132)}, {v(vSS)}")
                I(f"v_lshrrev_b32 {v(vSS+1)}, 5, {v(vLANE)}")
            if t == 7:
                I(f"v_cmp_eq_u32 vcc, 0, {v(vSS+1)}")
            if t == 8:
                I(f"v_cndmask_b32 {v(vSS)}, 0, {v(vSS)}, vcc")
            if t == 9:
                I(f"v_cvt_pk_bf16_f32 {v(vSS)}, {v(vSS)}, 0")
        stamp("A gemm1 done")
        I(f"v_mov_b32 {v(vEPS)}, {s(sEPS)}")
        I(f"v_mov_b32 {v(vNK)}, {v(vSS)}")
        I(f"v_mov_b32 {v(vONE)}, 0x3f80")
        for i in range(1, 4):
            I(f"v_mov_b32 {v(vONE+i)}, 0")
            I(f"v_mov_b32 {v(vNK+i)}, 0")
        I(f"v_mfma_f32_32x32x16_bf16 {v(vNQ,16)}, {v(vNK,4)}, {v(vONE,4)}, 0")
        I(f"v_lshl_add_u32 {v(vX)}, {s(sTI)}, 12, {v(vL16)}")
        I(f"v_add_u32 {v(vX)}, {PHI}, {v(vX)}")
        for mt in range(2):
            pipeline_mimic(mt, lambda r: vNQ + r, vP4 + 8*mt)
            for u in range(2):
                I(f"ds_write_b128 {v(vX)}, {v(vP4+8*mt+4*u,4)} offset:{u*2048 + mt*1024}")
            I(f"v_mov_b32 {v(vZP+mt)}, 0")
            for i in range(8):
                I(f"v_dot2c_f32_bf16 {v(vZP+mt)}, {s(sONES)}, {v(vP4+8*mt+i)}")
    else:
        vNQ2 = 128; vNK2 = 144; vON2 = 148; vP1b = 152; vTb = 156; vEP2 = 164; vZP2 = 165; vXb = 168
        ssq()
        steps = ssq_reduce_steps()
        for t in range(16):
            c = "0" if t == 0 else v(vA1, 16)
            I(f"v_mfma_f32_32x32x16_bf16 {v(vA1,16)}, {v(vKF+4*t,4)}, {v(W(0,t),4)}, {c}")
            if 1 <= t <= 5:
                for x in steps[t-1]: I(x)
            if t == 6:
                I(f"v_mul_f32 {v(vSS)}, {s(sM132)}, {v(vSS)}")
                I(f"v_lshrrev_b32 {v(vSS+1)}, 5, {v(vLANE)}")
            if t == 7: I(f"v_cmp_eq_u32 vcc, 0, {v(vSS+1)}")
            if t == 8: I(f"v_cndmask_b32 {v(vSS)}, 0, {v(vSS)}, vcc")
            if t == 9: I(f"v_cvt_pk_bf16_f32 {v(vSS)}, {v(vSS)}, 0")
            if t == 10: I(f"s_mov_b32 {s(sT3)}, 0x3e800000")
            if t == 12:
                I(f"v_mov_b32 {v(vNK2)}, {v(vSS)}")
                I(f"v_mov_b32 {v(vON2)}, 0x3f80")
            if t == 13:
                for i in range(1, 4):
                    I(f"v_mov_b32 {v(vON2+i)}, 0")
                    I(f"v_mov_b32 {v(vNK2+i)}, 0")
        I(f"v_mfma_f32_32x32x16_bf16 {v(vNQ2,16)}, {v(vNK2,4)}, {v(vON2,4)}, 0")
        def mimic_ops(mt, p4base):
            ops = []
            acc = lambda r: vA1 + 16*mt + r
            for g in range(2):
                prs = [4*g + i for i in range(4)]
                for i, p in enumerate(prs): ops.append(f"v_cvt_pk_bf16_f32 {v(vP1b+i)}, {v(acc(2*p))}, {v(acc(2*p+1))}")
                for i, p in enumerate(prs):
                    ops.append(f"v_lshlrev_b32 {v(vTb+2*i)}, 16, {v(vP1b+i)}")
                    ops.append(f"v_and_b32 {v(vTb+2*i+1)}, {s(sMASKH)}, {v(vP1b+i)}")
                for i, p in enumerate(prs):
                    ops.append(f"v_fma_f32 {v(vTb+2*i)}, {v(vTb+2*i)}, {s(sT3)}, {v(vNQ2+2*p)}")
                    ops.append(f"v_fma_f32 {v(vTb+2*i+1)}, {v(vTb+2*i+1)}, {s(sT3)}, {v(vNQ2+2*p+1)}")
                for i, p in enumerate(prs): ops.append(f"v_cvt_pk_bf16_f32 {v(vP1b+i)}, {v(vTb+2*i)}, {v(vTb+2*i+1)}")
                for i, p in enumerate(prs):
                    ops.append(f"v_lshlrev_b32 {v(vTb+2*i)}, 16, {v(vP1b+i)}")
                    ops.append(f"v_and_b32 {v(vTb+2*i+1)}, {s(sMASKH)}, {v(vP1b+i)}")
                for i in range(8): ops.append(f"v_mul_f32 {v(vTb+i)}, {s(sLOG2E)}, {v(vTb+i)}")
                for i in range(8): ops.append(f"v_exp_f32 {v(vTb+i)}, {v(vTb+i)}")
                for i in range(8): ops.append(f"v_fma_f32 {v(vTb+i)}, {v(vTb+i)}, {s(sC0125)}, {v(vEP2)}")
                for i, p in enumerate(prs): ops.append(f"v_cvt_pk_bf16_f32 {v(p4base+p)}, {v(vTb+2*i)}, {v(vTb+2*i+1)}")
            return ops
        ops0 = [f"v_mov_b32 {v(vEP2)}, {s(sEPS)}"] + mimic_ops(0, vP4)
        k = 0
        for t in range(16):
            c = "0" if t == 0 else v(vA1 + 16, 16)
            I(f"v_mfma_f32_32x32x16_bf16 {v(vA1+16,16)}, {v(vKF+4*t,4)}, {v(W(1,t),4)}, {c}")
            if t >= 1:
                n = opt.kshadow
                for x in ops0[k:k+n]: I(x)
                k += n
        stamp("A gemm1 done")
        for x in ops0[k:]: I(x)
        I(f"v_lshl_add_u32 {v(vX)}, {s(sTI)}, 12, {v(vL16)}")
        I(f"v_add_u32 {v(vX)}, {PHI}, {v(vX)}")
        for u in range(2):
            I(f"ds_write_b128 {v(vX)}, {v(vP4+4*u,4)} offset:{u*2048}")
        for x in mimic_ops(1, vP4 + 8): I(x)
        for u in range(2):
            I(f"ds_write_b128 {v(vX)}, {v(vP4+8+4*u,4)} offset:{u*2048 + 1024}")
        for mt in range(2):
            I(f"v_mov_b32 {v(vZP+mt)}, 0")
        for i in range(8):
            for mt in range(2):
                I(f"v_dot2c_f32_bf16 {v(vZP+mt)}, {s(sONES)}, {v(vP4+8*mt+i)}")
    for mt in range(2): I(f"v_mov_b32 {v(vX+1+mt)}, {v(vZP+mt)}")
    for mt in range(2): I(f"v_permlane32_swap_b32 {v(vZP+mt)}, {v(vX+1+mt)}")
    for mt in range(2): I(f"v_add_f32 {v(vZP+mt)}, {v(vZP+mt)}, {v(vX+1+mt)}")
    I(f"v_and_b32 {v(vX+1)}, 31, {v(vLANE)}")
    I(f"v_lshlrev_b32 {v(vX+1)}, 2, {v(vX+1)}")
    I(f"s_lshl_b32 {s(sT1)}, {s(sTI)}, 8")
    I(f"s_add_u32 {s(sT1)}, {s(sT1)}, {ZB}")
    I(f"v_add_u32 {v(vX+1)}, {s(sT1)}, {v(vX+1)}")
    I(f"ds_write_b32 {v(vX+1)}, {v(vZP)}")
    I(f"ds_write_b32 {v(vX+1)}, {v(vZP+1)} offset:128")
    I(f"s_waitcnt lgkmcnt(0)")
    stamp("A phi written")
    I(f"s_lshl_b32 {s(sT2)}, {s(sTI)}, 2")
    I(f"s_add_u32 {s(sT2)}, {s(sT2)}, {FLG}")
    lds_set(s(sT2))
    C("transposing-read addresses of the V slice (computed while waiting)")
    vPH = 128; vAC = 48; vVB = 112; vVA = 28; vPA = 30
    I(f"v_lshrrev_b32 {v(vT)}, 5, {v(vLANE)}")
    I(f"v_lshlrev_b32 {v(vT)}, 2, {v(vT)}")
    I(f"v_bfe_u32 {v(vT+1)}, {v(vLANE)}, 2, 2")
    I(f"v_add_u32 {v(vT)}, {v(vT)}, {v(vT+1)}")
    I(f"v_lshlrev_b32 {v(vT)}, 7, {v(vT)}")
    I(f"v_lshrrev_b32 {v(vT+1)}, 1, {v(vT+1)}")
    I(f"v_lshl_add_u32 {v(vT)}, {v(vT+1)}, 6, {v(vT)}")
    I(f"v_bfe_u32 {v(vT+1)}, {v(vLANE)}, 4, 1")
    I(f"v_lshl_add_u32 {v(vT)}, {v(vT+1)}, 5, {v(vT)}")
    I(f"v_and_b32 {v(vT+1)}, 3, {v(vLANE)}")
    I(f"v_lshl_add_u32 {v(vT)}, {v(vT+1)}, 3, {v(vT)}")
    I(f"s_lshl_b32 {s(sT1)}, {s(sTI)}, 14")
    I(f"s_add_u32 {s(sT1)}, {s(sT1)}, {VR}")
    I(f"v_add_u32 {v(vVA)}, {s(sT1)}, {v(vT)}")
    I(f"v_xor_b32 {v(vVA+1)}, 64, {v(vVA)}")
    I(f"v_add_u32 {v(vPA)}, {PHI}, {v(vL16)}")
    lds_wait(str(FLG), 4, "phi")
    stamp("A phi all")
    for f in range(16):
        I(f"ds_read_b128 {v(vPH+4*f,4)}, {v(vPA)} offset:{1024*f}")
    vVB = 192
    def vread(kk):
        b = vVB + 8*(kk % 4)
        for dl in range(2):
            for ap in range(2):
                I(f"ds_read_b64_tr_b16 {v(b+4*dl+2*ap,2)}, {v(vVA+dl)} offset:{kk*2048 + ap*1024}")
    def mm(kk, first):
        b = vVB + 8*(kk % 4)
        for dl in range(2):
            for mt in range(2):
                acc = vAC + (dl*2 + mt)*16
                c = "0" if first else v(acc, 16)
                I(f"v_mfma_f32_32x32x16_bf16 {v(acc,16)}, {v(vPH+4*(kk*2+mt),4)}, {v(b+4*dl,4)}, {c}")
    I(f"s_lshl_b32 {s(sT2)}, {s(sTI)}, 2")
    I(f"s_add_u32 {s(sT2)}, {s(sT2)}, {FLG + 16}")
    if opt.early: I(f"s_waitcnt vmcnt(0)")
    lds_wait(s(sT2), 1, "v1", tmp=26)
    stamp("A V1 ready")
    vread(0); vread(1); vread(2)
    for kk in range(8):
        rem = min(2, 7 - kk)
        if kk == 2:
            I(f"s_waitcnt lgkmcnt(4)")
        else:
            I(f"s_waitcnt lgkmcnt({4*rem})")
        mm(kk, kk == 0)
        if kk == 1:
            I(f"s_add_u32 {s(sT2)}, {s(sT2)}, 16")
            lds_wait(s(sT2), 1, "v2", tmp=26)
        if kk + 3 < 8: vread(kk + 3)
    stamp("A gemm2 done")
    if opt.fast:
        lds_wait(str(FLG + 56), 1, "md", tmp=26)
        I(f"v_mov_b32 {v(vT+1)}, {FLG + 48}")
        I(f"ds_read_b32 {v(vT+2)}, {v(vT+1)}")
    C("z partial inputs (wave 0)")
    I(f"v_lshlrev_b32 {v(vT+3)}, 2, {v(vLANE)}")
    I(f"v_add_u32 {v(vT+4)}, {ZB}, {v(vT+3)}")
    for a in range(4): I(f"ds_read_b32 {v(vT+6+a)}, {v(vT+4)} offset:{256*a}")
    vPK = 128
    for j in range(4):
        for i in range(8):
            I(f"v_cvt_pk_bf16_f32 {v(vPK+8*j+i)}, {v(vAC+16*j+2*i)}, {v(vAC+16*j+2*i+1)}")
    I(f"s_lshl_b32 {s(sT1)}, {s(sTI)}, 13")
    I(f"v_add_u32 {v(vT)}, {s(sT1)}, {v(vL16)}")
    I(f"s_lshl_b32 {s(sSOFF)}, {s(sCH)}, 15")
    I(f"s_add_u32 {s(sT2)}, {s(sSOFF)}, 4096")
    I(f"s_waitcnt lgkmcnt(0)")
    if opt.fast:
        I(f"v_readfirstlane_b32 {s(sFAST)}, {v(vT+2)}")
        I(f"s_cmp_eq_u32 {s(sFAST)}, {s(sNONCE)}")
        I(f"s_cselect_b32 {s(sFAST)}, 1, 0")
        if opt.stamps: I(f"s_mov_b32 s91, {s(sFAST)}")
    if opt.holdst:
        lds_wait(str(FLG + 112), 4, "qi", tmp=26)
    def st():
        for f in range(8):
            so = s(sSOFF) if f < 4 else s(sT2)
            I(f"buffer_store_dwordx4 {v(vPK+4*f,4)}, {v(vT)}, {s(rP,4)}, {so} offen offset:{(f%4)*1024}{pol()}")
    if opt.partplain: dual(st)
    else:
        POL[0] = opt.partpol; st(); POL[0] = " sc1"
    def psflag():
        I(f"s_lshl_b32 {s(sT1)}, {s(sTI)}, 2")
        I(f"s_add_u32 {s(sT1)}, {s(sT1)}, {FLG + 64}")
        lds_set(s(sT1), tmp=26)
    if opt.holdq or opt.holdall == "issued": psflag()
    I(f"s_cmp_eq_u32 {s(sTI)}, 0")
    I(f"s_cbranch_scc0 L_noz")
    I(f"v_add_f32 {v(vT+6)}, {v(vT+6)}, {v(vT+7)}")
    I(f"v_add_f32 {v(vT+8)}, {v(vT+8)}, {v(vT+9)}")
    I(f"v_add_f32 {v(vT+6)}, {v(vT+6)}, {v(vT+8)}")
    I(f"s_lshl_b32 {s(sSOFF)}, {s(sCH)}, 8")
    I(f"s_add_u32 {s(sSOFF)}, {s(sSOFF)}, {O_Z}")
    I(f"buffer_store_dword {v(vT+6)}, {v(vT+3)}, {s(rP,4)}, {s(sSOFF)} offen sc1")
    L("L_noz")
    C("addresses for the reduction: quarter tile a of tile 'chunk': fragment 2*chunk + (a>>1), lanes (a&1)*32 + (l&31); producer parity = l>>5")
    vR = 128
    I(f"s_lshl_b32 {s(sT1)}, {s(sCH)}, 11")
    I(f"s_lshl_b32 {s(sT2)}, {s(sTI)}, 9")
    I(f"s_add_u32 {s(sT3)}, {s(sT1)}, {s(sT2)}")
    I(f"v_and_b32 {v(vX)}, 31, {v(vLANE)}")
    I(f"v_lshlrev_b32 {v(vX)}, 4, {v(vX)}")
    I(f"v_add_u32 {v(vX)}, {s(sT3)}, {v(vX)}")
    I(f"v_lshrrev_b32 {v(vX+1)}, 5, {v(vLANE)}")
    I(f"v_lshl_add_u32 {v(vX+1)}, {v(vX+1)}, 15, {v(vX)}")
    final_setup()
    flag_prepare()
    if opt.mred:
        I(f"v_and_b32 {v(vX+3)}, 31, {v(vLANE)}")
        I(f"v_and_b32 {v(vX+4)}, 1, {v(vX+3)}")
        I(f"v_lshlrev_b32 {v(vX+4)}, 4, {v(vX+4)}")
        I(f"v_mov_b32 {v(vX+5)}, 0x3f80")
        I(f"v_lshlrev_b32 {v(vX+4)}, {v(vX+4)}, {v(vX+5)}")
        I(f"v_lshrrev_b32 {v(vX+3)}, 1, {v(vX+3)}")
        for r in range(4):
            I(f"v_cmp_eq_u32 vcc, {r}, {v(vX+3)}")
            I(f"v_cndmask_b32 {v(vID+r)}, 0, {v(vX+4)}, vcc")
        I(f"v_lshrrev_b32 {v(vX+2)}, 5, {v(vLANE)}")
        I(f"v_lshl_add_u32 {v(vX+2)}, {v(vX+2)}, 3, {v(vX)}")
    I(f"s_waitcnt vmcnt(0)")
    stamp("A part drained")
    wave_flag(256)
    if opt.holdall == "drained": psflag()
    poll(256, "h1")
    stamp("A hop1")
    vZ = 192
    I(f"s_cmp_eq_u32 {s(sTI)}, 3")
    I(f"s_cbranch_scc0 L_noz2")
    I(f"s_mov_b32 {s(sSOFF)}, {O_Z}")
    for j in range(4):
        I(f"buffer_load_dwordx4 {v(vZ+4*j,4)}, {v(vL16)}, {s(rP,4)}, {s(sSOFF)} offen offset:{1024*j} sc1")
    L("L_noz2")
    I(f"s_mov_b32 {s(sSOFF)}, 0")
    for c in range(8):
        I(f"buffer_load_dwordx4 {v(vR+4*c,4)}, {v(vX+1)}, {s(rP,4)}, {s(sSOFF)} offen sc1")
        if c < 7: I(f"s_add_u32 {s(sSOFF)}, {s(sSOFF)}, 65536")
    if opt.holdall == "reduce": psflag()
    C("z (wave 3): lane l holds m = 4*(l&15)..+3 of producer 4j + (l>>4)")
    I(f"s_cmp_eq_u32 {s(sTI)}, 3")
    I(f"s_cbranch_scc0 L_noz3")
    I(f"s_waitcnt vmcnt(8)")
    for i in range(4):
        I(f"v_add_f32 {v(vZ+i)}, {v(vZ+i)}, {v(vZ+4+i)}")
        I(f"v_add_f32 {v(vZ+8+i)}, {v(vZ+8+i)}, {v(vZ+12+i)}")
    for i in range(4): I(f"v_add_f32 {v(vZ+i)}, {v(vZ+i)}, {v(vZ+8+i)}")
    for i in range(4): I(f"v_mov_b32 {v(vZ+4+i)}, {v(vZ+i)}")
    for i in range(4): I(f"v_permlane32_swap_b32 {v(vZ+i)}, {v(vZ+4+i)}")
    for i in range(4): I(f"v_add_f32 {v(vZ+i)}, {v(vZ+i)}, {v(vZ+4+i)}")
    for i in range(4): I(f"v_mov_b32 {v(vZ+4+i)}, {v(vZ+i)}")
    for i in range(4): I(f"v_permlane16_swap_b32 {v(vZ+i)}, {v(vZ+4+i)}")
    for i in range(4): I(f"v_add_f32 {v(vZ+i)}, {v(vZ+i)}, {v(vZ+4+i)}")
    I(f"v_cvt_pk_bf16_f32 {v(vZ)}, {v(vZ)}, {v(vZ+1)}")
    I(f"v_cvt_pk_bf16_f32 {v(vZ+1)}, {v(vZ+2)}, {v(vZ+3)}")
    I(f"v_and_b32 {v(vZ+2)}, 15, {v(vLANE)}")
    I(f"v_lshlrev_b32 {v(vZ+2)}, 3, {v(vZ+2)}")
    I(f"v_add_u32 {v(vZ+2)}, {ZF}, {v(vZ+2)}")
    I(f"ds_write_b64 {v(vZ+2)}, {v(vZ,2)}")
    I(f"s_waitcnt lgkmcnt(0)")
    lds_set(str(FLG + 52), tmp=vU)
    L("L_noz3")
    C("phi_q fragments now if they are there already")
    I(f"s_mov_b32 {s(sPQ)}, 0")
    I(f"v_and_b32 {v(vU)}, 1, {v(vLANE)}")
    I(f"v_lshlrev_b32 {v(vU)}, 2, {v(vU)}")
    I(f"v_add_u32 {v(vU)}, {FLG + 80}, {v(vU)}")
    I(f"ds_read_b32 {v(vU+1)}, {v(vU)}")
    I(f"s_waitcnt lgkmcnt(0)")
    I(f"v_cmp_ne_u32 vcc, {s(sNONCE)}, {v(vU+1)}")
    I(f"s_cbranch_vccnz L_nopq")
    for qi in range(2):
        for tt in range(4):
            I(f"ds_read_b128 {v(vPQ8+16*qi+4*tt,4)}, {v(vPA2)} offset:{qi*16384 + tt*1024}")
    I(f"s_mov_b32 {s(sPQ)}, 1")
    L("L_nopq")
    vS = 176
    C("sum of the 16 partials on the matrix pipe: D[j][n] += B[j][n] + B[8+j][n]  (A = two stacked 8x8 identities)")
    for c in range(8):
        I(f"s_waitcnt vmcnt({7-c})")
        cc = "0" if c == 0 else v(vS, 16)
        I(f"v_mfma_f32_32x32x16_bf16 {v(vS,16)}, {v(vID,4)}, {v(vR+4*c,4)}, {cc}")
    stamp("A red summed")
    I(f"v_cvt_pk_bf16_f32 {v(vS)}, {v(vS)}, {v(vS+1)}")
    I(f"v_cvt_pk_bf16_f32 {v(vS+1)}, {v(vS+2)}, {v(vS+3)}")
    I(f"s_mov_b32 {s(sSOFF)}, {O_F}")
    dual(lambda: I(f"buffer_store_dwordx2 {v(vS,2)}, {v(vX+2)}, {s(rP,4)}, {s(sSOFF)} offen{pol()}"))
    I(f"s_waitcnt vmcnt(0)")
    stamp("A reduced+drained")
    wave_flag(512)
    C("chunk 0 advances the epoch (all 16 workgroups of the head have read it)")
    I(f"s_cmp_eq_u32 {s(sCH)}, 0")
    I(f"s_cbranch_scc0 L_noep")
    I(f"s_cmp_eq_u32 {s(sTI)}, 1")
    I(f"s_cbranch_scc0 L_noep")
    I(f"s_mov_b64 exec, 1")
    I(f"v_mov_b32 {v(vT)}, 0")
    I(f"v_mov_b32 {v(vT+1)}, {s(sNONCE)}")
    I(f"s_mov_b32 {s(sT1)}, {O_FL}")
    I(f"buffer_store_dword {v(vT+1)}, {v(vT)}, {s(rP,4)}, {s(sT1)} offen sc1")
    I(f"s_mov_b64 exec, -1")
    L("L_noep")
    I(f"s_cmp_eq_u32 {s(sPQ)}, 1")
    I(f"s_cbranch_scc1 L_pqdone")
    phiq_frags("a")
    L("L_pqdone")
    STI[0] = 13
    I(f"s_branch L_final")

vPQ8 = 32
vKA = 64
vOP = 96
vAC3 = 128
vST = 192
vKG, vPA2, vRA, vSW, vSR, vOA, vU = 2, 3, 4, 5, 6, 7, 20
vRDS = 12
vRD = 4

def capture(fn):
    n = len(A.items)
    fn()
    got = [x.text for k, x in A.items[n:] if k == "i"]
    del A.items[n:]
    return got

def final_setup():
    I(f"s_and_b32 {s(sT3)}, {s(sWAVE)}, 3")
    I(f"s_lshr_b32 {s(sT2)}, {s(sWAVE)}, 2")
    I(f"v_bfe_u32 {v(vU+1)}, {v(vLANE)}, 2, 1")
    I(f"v_lshlrev_b32 {v(vU+1)}, 4, {v(vU+1)}")
    I(f"v_bfe_u32 {v(vU+2)}, {v(vLANE)}, 3, 2")
    I(f"v_lshl_add_u32 {v(vU+1)}, {v(vU+2)}, 2, {v(vU+1)}")
    I(f"v_and_b32 {v(vU+2)}, 3, {v(vLANE)}")
    I(f"v_add_u32 {v(vU+1)}, {v(vU+1)}, {v(vU+2)}")
    I(f"v_and_b32 {v(vU+2)}, 32, {v(vLANE)}")
    I(f"v_add_u32 {v(vU+1)}, {v(vU+1)}, {v(vU+2)}")
    I(f"v_lshlrev_b32 {v(vKG)}, 4, {v(vU+1)}")
    C("phi_q fragments of q tiles 2hq, 2hq+1; 1/den")
    I(f"s_lshl_b32 {s(sT1)}, {s(sT2)}, 15")
    I(f"s_add_u32 {s(sT1)}, {s(sT1)}, {QR}")
    I(f"v_add_u32 {v(vPA2)}, {s(sT1)}, {v(vL16)}")
    I(f"s_lshl_b32 {s(sT1)}, {s(sT2)}, 9")
    I(f"s_add_u32 {s(sT1)}, {s(sT1)}, {RD}")
    I(f"v_lshlrev_b32 {v(vRA)}, 2, {v(vLANE)}")
    I(f"v_add_u32 {v(vRA)}, {s(sT1)}, {v(vRA)}")
    C("private staging [2 q tiles][32 rows][128 B]: piece = 4 dl + 2 h + u, slot = piece ^ (row & 7)")
    I(f"s_lshl_b32 {s(sT1)}, {s(sWAVE)}, 13")
    I(f"s_add_u32 {s(sT1)}, {s(sT1)}, {VR}")
    I(f"v_lshrrev_b32 {v(vU+1)}, 5, {v(vLANE)}")
    I(f"v_lshlrev_b32 {v(vU+2)}, 1, {v(vU+1)}")
    I(f"v_and_b32 {v(vU+3)}, 7, {v(vLANE)}")
    I(f"v_xor_b32 {v(vU+2)}, {v(vU+2)}, {v(vU+3)}")
    I(f"v_lshlrev_b32 {v(vU+2)}, 4, {v(vU+2)}")
    I(f"v_and_b32 {v(vU+3)}, 31, {v(vLANE)}")
    I(f"v_lshl_add_u32 {v(vSW)}, {v(vU+3)}, 7, {v(vU+2)}")
    I(f"v_add_u32 {v(vSW)}, {s(sT1)}, {v(vSW)}")
    C("read back: row 8j + (l>>3), piece l&7")
    I(f"v_lshrrev_b32 {v(vU+1)}, 3, {v(vLANE)}")
    I(f"v_and_b32 {v(vU+2)}, 7, {v(vLANE)}")
    I(f"v_xor_b32 {v(vU+3)}, {v(vU+2)}, {v(vU+1)}")
    I(f"v_lshlrev_b32 {v(vU+3)}, 4, {v(vU+3)}")
    I(f"v_lshl_add_u32 {v(vSR)}, {v(vU+1)}, 7, {v(vU+3)}")
    I(f"v_add_u32 {v(vSR)}, {s(sT1)}, {v(vSR)}")
    C("output offset: (64 hq + (l>>3))*512 + p*128 + (l&7)*16")
    I(f"v_lshlrev_b32 {v(vU+2)}, 4, {v(vU+2)}")
    I(f"v_lshl_add_u32 {v(vOA)}, {v(vU+1)}, 9, {v(vU+2)}")
    I(f"s_lshl_b32 {s(sT1)}, {s(sT2)}, 15")
    I(f"s_lshl_b32 {s(sT2)}, {s(sT3)}, 7")
    I(f"s_add_u32 {s(sT1)}, {s(sT1)}, {s(sT2)}")
    I(f"v_add_u32 {v(vOA)}, {s(sT1)}, {v(vOA)}")

def team_b():
    C("================= team B =================")
    L("L_team_b")
    STI[0] = 2
    def preread():
        if opt.preread:
            C("bring the 2 KiB of the final kv image this workgroup writes into L2 (waves B0, B1: 1 KiB each)")
            I(f"s_cmp_lt_u32 {s(sTI)}, 2")
            I(f"s_cbranch_scc0 L_nopre")
            I(f"s_lshl_b32 {s(sT1)}, {s(sCH)}, 11")
            I(f"s_lshl_b32 {s(sT2)}, {s(sTI)}, 10")
            I(f"s_add_u32 {s(sT1)}, {s(sT1)}, {s(sT2)}")
            I(f"s_add_u32 {s(sT1)}, {s(sT1)}, {O_F}")
            I(f"buffer_load_dwordx4 {v(32,4)}, {v(vL16)}, {s(rP,4)}, {s(sT1)} offen")
            L("L_nopre")
    if not opt.early: preread()
    def pres_load(tag):
        if not opt.fast: return
        I(f"s_cmp_eq_u32 {s(sTI)}, 0")
        I(f"s_cbranch_scc0 L_nochk0{tag}")
        I(f"s_load_dwordx8 {s(20,8)}, {s(sEPA,2)}, {O_FL + 128} glc")
        I(f"s_load_dwordx8 {s(44,8)}, {s(sEPA,2)}, {O_FL + 160} glc")
        L(f"L_nochk0{tag}")
    def mode_check():
        if not opt.fast: return
        I(f"s_cmp_eq_u32 {s(sTI)}, 0")
        I(f"s_cbranch_scc0 L_nochk1")
        I(f"s_mov_b32 {s(sSPIN)}, 0")
        L("L_chk")
        I(f"s_waitcnt lgkmcnt(0)")
        I(f"s_mov_b32 {s(sT1)}, {s(sNONCE)}")
        I(f"s_not_b32 {s(sT2)}, {s(sNONCE)}")
        I(f"s_mov_b32 {s(sT3)}, 1")
        for j in range(16):
            r = (20 if j < 8 else 36) + j
            I(f"s_cmp_eq_u32 {s(r)}, {s(sPRES)}")
            I(f"s_cselect_b32 {s(sT1)}, {s(sT1)}, {s(sT2)}")
            I(f"s_lshr_b32 {s(r)}, {s(r)}, 4")
            I(f"s_lshr_b32 {s(sFAST)}, {s(sPRES)}, 4")
            I(f"s_cmp_eq_u32 {s(r)}, {s(sFAST)}")
            I(f"s_cselect_b32 {s(sT3)}, {s(sT3)}, 0")
        I(f"s_cmp_eq_u32 {s(sT3)}, 1")
        I(f"s_cbranch_scc1 L_chkd")
        I(f"s_add_u32 {s(sSPIN)}, {s(sSPIN)}, 1")
        I(f"s_cmp_ge_u32 {s(sSPIN)}, 12")
        I(f"s_cbranch_scc1 L_chkd")
        I(f"s_load_dwordx8 {s(20,8)}, {s(sEPA,2)}, {O_FL + 128} glc")
        I(f"s_load_dwordx8 {s(44,8)}, {s(sEPA,2)}, {O_FL + 160} glc")
        I(f"s_branch L_chk")
        L("L_chkd")
        if opt.forceslow: I(f"s_mov_b32 {s(sT1)}, {s(sT2)}")
        lds_set(str(FLG + 48), val=s(sT1))
        lds_set(str(FLG + 56))
        I(f"s_waitcnt lgkmcnt(0)")
        L("L_nochk1")
    def vflag(k):
        I(f"s_lshl_b32 {s(sT3)}, {s(sTI)}, 2")
        I(f"s_add_u32 {s(sT3)}, {s(sT3)}, {FLG + 16 + 16*k}")
        lds_set(s(sT3))
    VF[0] = vflag
    if opt.early:
        read_omega(QR)
        I(f"s_waitcnt vmcnt(4) lgkmcnt(0)")
        I(f"s_barrier")
        stamp("B B1")
        I(f"s_barrier")
        preread()
        I(f"s_mov_b32 {s(sT3)}, 8")
        v_issue(30, s(sT3), 8)
        I(f"s_lshl_b32 {s(sSOFF)}, {s(sTI)}, 14")
        for i in range(2): dma_row_instr(rQ, QR, i)
        I(f"s_waitcnt vmcnt(10)")
        vflag(0)
        pres_load("e")
        stamp("B V1 landed")
        for i in range(2, 8): dma_row_instr(rQ, QR, i)
        I(f"s_waitcnt vmcnt(8)")
        vflag(1)
        mode_check()
        stamp("B V2 landed")
        nh = opt.holdq
        for i in range(8, 16 - nh): dma_row_instr(rQ, QR, i)
        if opt.holdst:
            I(f"s_lshl_b32 {s(sT3)}, {s(sTI)}, 2")
            I(f"s_add_u32 {s(sT3)}, {s(sT3)}, {FLG + 112}")
            lds_set(s(sT3))
        if nh:
            lds_wait(str(FLG + 64), 4, "hq")
            for i in range(16 - nh, 16): dma_row_instr(rQ, QR, i)
        stamp("B q issued")
        if opt.codepf2:
            cb = "s[100:101]" if not opt.stamps else "s[52:53]"
            I(f"v_lshlrev_b32 {v(vX+6)}, 7, {v(vLANE)}")
            I(f"s_lshl_b32 {s(sT1)}, {s(sTI)}, 11")
            I(f"s_add_u32 {s(sT1)}, {s(sT1)}, {opt.codepf2}")
            I(f"v_add_u32 {v(vX+6)}, {s(sT1)}, {v(vX+6)}")
            I(f"v_min_u32 {v(vX+6)}, {opt.codelen}, {v(vX+6)}")
            I(f"global_load_dword v1, {v(vX+6)}, {cb}")
            I(f"s_waitcnt vmcnt(1)")
        else:
            I(f"s_waitcnt vmcnt(0)")
        stamp("B q landed")
    elif opt.kqv:
        I(f"s_lshl_b32 {s(sSOFF)}, {s(sTI)}, 14")
        for i in range(16): dma_row_instr(rQ, QR, i)
        I(f"s_waitcnt vmcnt(16)")
        I(f"s_barrier")
        stamp("B B1")
        read_omega(QR)
        I(f"s_waitcnt lgkmcnt(0)")
        I(f"s_barrier")
        dma_v()
        if opt.fast:
            I(f"s_cmp_eq_u32 {s(sTI)}, 0")
            I(f"s_cbranch_scc0 L_nochk0")
            I(f"s_load_dwordx8 {s(20,8)}, {s(sEPA,2)}, {O_FL + 128} glc")
            I(f"s_load_dwordx8 {s(44,8)}, {s(sEPA,2)}, {O_FL + 160} glc")
            L("L_nochk0")
        stamp("B v issued")
        I(f"s_waitcnt vmcnt(16)")
        stamp("B q landed")
        mode_check()
    else:
        if opt.bomega: read_omega(QR)
        dma_v()
        I(f"s_waitcnt vmcnt(16)")
        if opt.bomega: I(f"s_waitcnt lgkmcnt(0)")
        I(f"s_barrier")
        stamp("B B1")
        if not opt.bomega:
            read_omega(QR)
            I(f"s_waitcnt lgkmcnt(0)")
        I(f"s_barrier")
        if opt.fast:
            I(f"s_cmp_eq_u32 {s(sTI)}, 0")
            I(f"s_cbranch_scc0 L_nochk0")
            I(f"s_load_dwordx8 {s(20,8)}, {s(sEPA,2)}, {O_FL + 128} glc")
            I(f"s_load_dwordx8 {s(44,8)}, {s(sEPA,2)}, {O_FL + 160} glc")
            L("L_nochk0")
        def pace_signal():
            if not opt.stagger: return
            PS[0] += 1
            I(f"s_and_b32 {s(sT1)}, {s(sHEAD)}, 1")
            I(f"s_or_b32 {s(sT1)}, {s(sT1)}, {s(sTI)}")
            I(f"s_cmp_eq_u32 {s(sT1)}, 0")
            I(f"s_cbranch_scc0 L_nosigp{PS[0]}")
            I(f"s_lshl_b32 {s(sT1)}, {s(sCH)}, 2")
            I(f"s_add_u32 {s(sT1)}, {s(sT1)}, {O_FL + 768}")
            I(f"s_mov_b64 exec, 1")
            I(f"v_mov_b32 {v(vX+4)}, 0")
            I(f"v_mov_b32 {v(vX+5)}, {s(sNONCE)}")
            I(f"buffer_store_dword {v(vX+5)}, {v(vX+4)}, {s(rP,4)}, {s(sT1)} offen sc1")
            I(f"s_mov_b64 exec, -1")
            L(f"L_nosigp{PS[0]}")
        def pre(i):
            I(f"s_add_u32 {s(sT1)}, {s(sT0)}, {1024*i}")
            I(f"buffer_load_dwordx4 {v(32+4*(i%8),4)}, {v(vL16)}, {s(rP,4)}, {s(sT1)} offen{opt.prepol}")
        if opt.holdall:
            I(f"s_waitcnt vmcnt(8)")
            mode_check()
            vflag(0)
            stamp("B V1 landed")
            I(f"s_waitcnt vmcnt(0)")
            vflag(1)
            stamp("B V2 landed")
            lds_wait(str(FLG + 64), 4, "hq")
            I(f"s_lshl_b32 {s(sSOFF)}, {s(sTI)}, 14")
            for i in range(16): dma_row_instr(rQ, QR, i)
            stamp("B q issued")
            I(f"s_waitcnt vmcnt(0)")
            stamp("B q landed")
        if opt.pacept == "b2" and not opt.holdall: pace_signal()
        if not opt.holdall:
            if opt.prepart:
                I(f"s_lshl_b32 {s(sT0)}, {s(sCH)}, 15")
                I(f"s_lshl_b32 {s(sT1)}, {s(sTI)}, 13")
                I(f"s_add_u32 {s(sT0)}, {s(sT0)}, {s(sT1)}")
                for i in range(4): pre(i)
            else:
                I(f"s_lshl_b32 {s(sSOFF)}, {s(sTI)}, 14")
                for i in range(4): dma_row_instr(rQ, QR, i)
            I(f"s_waitcnt vmcnt(12)")
            I(f"s_lshl_b32 {s(sT3)}, {s(sTI)}, 2")
            I(f"s_add_u32 {s(sT3)}, {s(sT3)}, {FLG + 16}")
            if opt.fast:
                I(f"s_cmp_eq_u32 {s(sTI)}, 0")
                I(f"s_cbranch_scc0 L_nochk1")
                I(f"s_waitcnt lgkmcnt(0)")
                I(f"s_mov_b32 {s(sT1)}, {s(sNONCE)}")
                I(f"s_not_b32 {s(sT2)}, {s(sNONCE)}")
                for j in range(16):
                    I(f"s_cmp_eq_u32 {s((20 if j < 8 else 36) + j)}, {s(sPRES)}")
                    I(f"s_cselect_b32 {s(sT1)}, {s(sT1)}, {s(sT2)}")
                if opt.forceslow: I(f"s_mov_b32 {s(sT1)}, {s(sT2)}")
                lds_set(str(FLG + 48), val=s(sT1))
                lds_set(str(FLG + 56))
                I(f"s_waitcnt lgkmcnt(0)")
                L("L_nochk1")
            lds_set(s(sT3))
            if opt.pacept == "v1": pace_signal()
            stamp("B V1 landed")
            if opt.prepart:
                for i in range(4, 8): pre(i)
            else:
                for i in range(4, 8): dma_row_instr(rQ, QR, i)
            I(f"s_waitcnt vmcnt(8)")
            I(f"s_add_u32 {s(sT3)}, {s(sT3)}, 16")
            lds_set(s(sT3))
            if opt.pacept == "v2": pace_signal()
            stamp("B V2 landed")
            if opt.prepart:
                I(f"s_lshl_b32 {s(sSOFF)}, {s(sTI)}, 14")
                for i in range(16): dma_row_instr(rQ, QR, i)
            else:
                nh = opt.holdq
                for i in range(8, 16 - nh): dma_row_instr(rQ, QR, i)
                if nh:
                    I(f"s_lshl_b32 {s(sT3)}, {s(sTI)}, 2")
                    I(f"s_add_u32 {s(sT3)}, {s(sT3)}, {FLG + 64}")
                    lds_wait(s(sT3), 1, "hq")
                    for i in range(16 - nh, 16): dma_row_instr(rQ, QR, i)
            if opt.pacept == "q": pace_signal()
            if opt.holdst:
                I(f"s_lshl_b32 {s(sT3)}, {s(sTI)}, 2")
                I(f"s_add_u32 {s(sT3)}, {s(sT3)}, {FLG + 112}")
                lds_set(s(sT3))
            stamp("B q issued")
            I(f"s_waitcnt vmcnt(0)")
            stamp("B q landed")
    read_tile_frags()
    I(f"s_waitcnt lgkmcnt(0)")
    ssq()
    steps = ssq_reduce_steps()
    fs = capture(final_setup) if opt.bsetup else []
    kf = 0
    for t in range(16):
        c = "0" if t == 0 else v(vA1, 16)
        I(f"v_mfma_f32_32x32x16_bf16 {v(vA1,16)}, {v(W(0,t),4)}, {v(vKF+4*t,4)}, {c}")
        if 1 <= t <= 5:
            for x in steps[t-1]: I(x)
        if t == 6: I(f"v_mul_f32 {v(vSS)}, {s(sM132)}, {v(vSS)}")
        if not opt.mimicq:
            if t == 7: I(f"v_mul_f32 {v(vSS)}, {s(sLOG2E)}, {v(vSS)}")
            if t == 8: I(f"s_mov_b32 {s(sC025L)}, 0x3eb8aa3b")
            if t == 9: I(f"v_mov_b32 {v(vSS+3)}, {s(sEPS)}")
        n = 3 if t < 15 else len(fs) - kf
        for x in fs[kf:kf+n]: I(x)
        kf += n
    vY = 20
    vQ0 = 12
    vQ1 = 112
    def plain_ops(mt, dst):
        ops = []
        acc = lambda r: vA1 + 16*mt + r
        for g in range(2):
            for i in range(8): ops.append(f"v_fma_f32 {v(vY+i)}, {v(acc(8*g+i))}, {s(sC025L)}, {v(vSS)}")
            for i in range(8): ops.append(f"v_exp_f32 {v(vY+i)}, {v(vY+i)}")
            for i in range(8): ops.append(f"v_fma_f32 {v(vY+i)}, {v(vY+i)}, {s(sC0125)}, {v(vSS+3)}")
            for i in range(4): ops.append(f"v_cvt_pk_bf16_f32 {v(dst+4*g+i)}, {v(vY+2*i)}, {v(vY+2*i+1)}")
        return ops
    if not opt.mimicq:
        ops0 = plain_ops(0, vQ0)
        k = 0
        for t in range(16):
            c = "0" if t == 0 else v(vA1 + 16, 16)
            I(f"v_mfma_f32_32x32x16_bf16 {v(vA1+16,16)}, {v(W(1,t),4)}, {v(vKF+4*t,4)}, {c}")
            if t >= 1:
                n = 4 if t < 15 else len(ops0) - k
                for x in ops0[k:k+n]: I(x)
                k += n
        stamp("B gemm1 done")
        if opt.kqv:
            I(f"s_waitcnt vmcnt(8)")
            VF[0](0)
        for x in plain_ops(1, vPO + 8): I(x)
        if opt.kqv:
            I(f"s_waitcnt vmcnt(0)")
            VF[0](1)
            stamp("B V2 landed")
        for i in range(8): I(f"v_mov_b32 {v(vPO+i)}, {v(vQ0+i)}")
    else:
        for t in range(16):
            c = "0" if t == 0 else v(vA1 + 16, 16)
            I(f"v_mfma_f32_32x32x16_bf16 {v(vA1+16,16)}, {v(W(1,t),4)}, {v(vKF+4*t,4)}, {c}")
        stamp("B gemm1 done")
        I(f"v_mov_b32 {v(vEPS)}, {s(sEPS)}")
        I(f"v_cvt_pk_bf16_f32 {v(vSS)}, {v(vSS)}, 0")
        I(f"v_lshlrev_b32 {v(vNQ)}, 16, {v(vSS)}")
        for mt in range(2):
            pipeline_mimic(mt, lambda r: vNQ, vP4 + 8*mt)
        for i in range(16): I(f"v_mov_b32 {v(vPO+i)}, {v(vP4+i)}")
    I(f"s_lshl_b32 {s(sT1)}, {s(sTI)}, 14")
    I(f"s_add_u32 {s(sT1)}, {s(sT1)}, {QR}")
    I(f"v_add_u32 {v(vX)}, {s(sT1)}, {v(vL16)}")
    for t in range(4):
        I(f"ds_write_b128 {v(vX)}, {v(vPO+4*t,4)} offset:{t*1024}")
    I(f"s_waitcnt lgkmcnt(0)")
    I(f"s_lshl_b32 {s(sT1)}, {s(sTI)}, 2")
    I(f"s_add_u32 {s(sT1)}, {s(sT1)}, {FLG + 80}")
    lds_set(s(sT1))
    stamp("B phiq done")
    if not opt.bsetup: final_setup()
    phiq_frags("b")
    C("den = phi_q . z once z is there")
    vZF = 112; vDEN = 24; vRD = 28
    lds_wait(str(FLG + 52), 1, "z", tmp=vU)
    I(f"v_lshrrev_b32 {v(vDEN)}, 5, {v(vLANE)}")
    I(f"v_lshlrev_b32 {v(vDEN)}, 3, {v(vDEN)}")
    I(f"v_add_u32 {v(vDEN)}, {ZF}, {v(vDEN)}")
    for t in range(4):
        I(f"ds_read2_b64 {v(vZF+4*t,4)}, {v(vDEN)} offset0:{4*t} offset1:{4*t+2}")
    I(f"v_mov_b32 {v(vDEN+2)}, 0")
    I(f"v_mov_b32 {v(vDEN+3)}, 0")
    I(f"s_waitcnt lgkmcnt(0)")
    for i in range(16):
        I(f"v_dot2c_f32_bf16 {v(vDEN+2+(i&1))}, {v(vPO+i)}, {v(vZF+i)}")
    I(f"v_add_f32 {v(vDEN)}, {v(vDEN+2)}, {v(vDEN+3)}")
    I(f"v_mov_b32 {v(vDEN+1)}, {v(vDEN)}")
    I(f"v_permlane32_swap_b32 {v(vDEN)}, {v(vDEN+1)}")
    I(f"v_add_f32 {v(vDEN)}, {v(vDEN)}, {v(vDEN+1)}")
    I(f"v_cvt_pk_bf16_f32 {v(vDEN)}, {v(vDEN)}, {v(vDEN)}")
    I(f"v_lshlrev_b32 {v(vDEN)}, 16, {v(vDEN)}")
    I(f"v_add_f32 {v(vDEN)}, {s(sEPS)}, {v(vDEN)}")
    I(f"v_cvt_pk_bf16_f32 {v(vDEN)}, {v(vDEN)}, {v(vDEN)}")
    I(f"v_lshlrev_b32 {v(vDEN)}, 16, {v(vDEN)}")
    I(f"v_rcp_f32 {v(vRD)}, {v(vDEN)}")
    I(f"v_fma_f32 {v(vDEN+1)}, -{v(vDEN)}, {v(vRD)}, 1.0")
    I(f"v_fma_f32 {v(vRD)}, {v(vDEN+1)}, {v(vRD)}, {v(vRD)}")
    I(f"s_lshl_b32 {s(sT1)}, {s(sTI)}, 8")
    I(f"s_add_u32 {s(sT1)}, {s(sT1)}, {RD}")
    I(f"v_lshlrev_b32 {v(vDEN)}, 2, {v(vLANE)}")
    I(f"v_add_u32 {v(vDEN)}, {s(sT1)}, {v(vDEN)}")
    I(f"ds_write_b32 {v(vDEN)}, {v(vRD)}")
    I(f"s_waitcnt lgkmcnt(0)")
    I(f"s_lshl_b32 {s(sT1)}, {s(sTI)}, 2")
    I(f"s_add_u32 {s(sT1)}, {s(sT1)}, {FLG + 96}")
    lds_set(s(sT1))
    if opt.fast:
        I(f"v_mov_b32 {v(vDEN)}, {FLG + 48}")
        I(f"ds_read_b32 {v(vDEN+1)}, {v(vDEN)}")
        I(f"s_waitcnt lgkmcnt(0)")
        I(f"v_readfirstlane_b32 {s(sFAST)}, {v(vDEN+1)}")
        I(f"s_cmp_eq_u32 {s(sFAST)}, {s(sNONCE)}")
        I(f"s_cselect_b32 {s(sFAST)}, 1, 0")
    stamp("B den done")
    STI[0] = 13

def phiq_frags(tag):
    C("phi_q of the two q tiles")
    I(f"s_lshr_b32 {s(sT1)}, {s(sWAVE)}, 2")
    I(f"s_lshl_b32 {s(sT1)}, {s(sT1)}, 3")
    I(f"s_add_u32 {s(sSOFF)}, {s(sT1)}, {FLG + 80}")
    lds_wait(s(sSOFF), 2, "pq" + tag, tmp=vU)
    for qi in range(2):
        for t in range(4):
            I(f"ds_read_b128 {v(vPQ8+16*qi+4*t,4)}, {v(vPA2)} offset:{qi*16384 + t*1024}")

def final():
    L("L_final")
    C("================= final: wave w = d tiles 2p,2p+1 x q tiles 2hq,2hq+1; no workgroup barrier =================")
    stamp("F phiq read")
    C("flags of the four reducing workgroups 4p..4p+3 (16 words)")
    I(f"s_and_b32 {s(sT3)}, {s(sWAVE)}, 3")
    I(f"s_lshl_b32 {s(sT2)}, {s(sT3)}, 6")
    I(f"s_add_u32 {s(sT2)}, {s(sT2)}, {O_FL + 512}")
    I(f"s_mov_b32 {s(sSPIN)}, 0")
    I(f"v_and_b32 {v(vU)}, 15, {v(vLANE)}")
    I(f"v_lshlrev_b32 {v(vU)}, 2, {v(vU)}")
    L("L_spin_h2")
    I(f"buffer_load_dword {v(vU+1)}, {v(vU)}, {s(rP,4)}, {s(sT2)} offen sc1")
    I(f"s_waitcnt vmcnt(0)")
    I(f"v_cmp_ne_u32 vcc, {s(sNONCE)}, {v(vU+1)}")
    I(f"s_cbranch_vccz L_spun_h2")
    I(f"s_cmp_lg_u32 {s(sFAST)}, 0")
    I(f"s_cbranch_scc1 L_nap_h2")
    I(f"s_sleep 12")
    L("L_nap_h2")
    I(f"s_add_u32 {s(sSPIN)}, {s(sSPIN)}, 1")
    I(f"s_cmp_lt_u32 {s(sSPIN)}, {opt.spin_limit}")
    I(f"s_cbranch_scc1 L_spin_h2")
    L("L_spun_h2")
    stamp("F hop2")
    I(f"s_lshl_b32 {s(sT1)}, {s(sT3)}, 13")
    I(f"s_add_u32 {s(sT1)}, {s(sT1)}, {O_F}")
    I(f"s_add_u32 {s(sT2)}, {s(sT1)}, 4096")
    for dl in range(2):
        for t in range(4):
            I(f"buffer_load_dwordx4 {v(vKA+16*dl+4*t,4)}, {v(vKG)}, {s(rP,4)}, {s(sT1 if dl == 0 else sT2)} offen offset:{t*1024} sc1")
    I(f"s_lshr_b32 {s(sT1)}, {s(sWAVE)}, 2")
    I(f"s_lshl_b32 {s(sT1)}, {s(sT1)}, 3")
    I(f"s_add_u32 {s(sSOFF)}, {s(sT1)}, {FLG + 96}")
    lds_wait(s(sSOFF), 2, "rd", tmp=vU)
    for qi in range(2):
        I(f"ds_read_b32 {v(vRDS+2*qi)}, {v(vRA)} offset:{256*qi}")
    so = [74, 75, 76, 77, 78, 79, 80, 81] if not opt.stamps else None
    def mm(qi, dl):
        acc = vAC3 + 16*(2*qi + dl)
        for t in range(4):
            c = "0" if t == 0 else v(acc, 16)
            I(f"v_mfma_f32_32x32x16_bf16 {v(acc,16)}, {v(vKA+16*dl+4*t,4)}, {v(vPQ8+16*qi+4*t,4)}, {c}")
    def epi(qi, dl):
        acc = vAC3 + 16*(2*qi + dl); op = vOP + 16*qi + 8*dl
        if opt.mimicnum:
            for k in range(8): I(f"v_cvt_pk_bf16_f32 {v(op+k)}, {v(acc+2*k)}, {v(acc+2*k+1)}")
            for k in range(8):
                I(f"v_lshlrev_b32 {v(acc+2*k)}, 16, {v(op+k)}")
                I(f"v_and_b32 {v(acc+2*k+1)}, {s(sMASKH)}, {v(op+k)}")
        for k in range(8): I(f"v_pk_mul_f32 {v(acc+2*k,2)}, {v(acc+2*k,2)}, {v(vRDS+2*qi,2)} op_sel_hi:[1,0]")
        for k in range(8): I(f"v_cvt_pk_bf16_f32 {v(op+k)}, {v(acc+2*k)}, {v(acc+2*k+1)}")
        for u in range(2):
            x = 64*dl + 16*u
            reg = vSW if x == 0 else vU + (x // 16 - 1 if x < 64 else x // 16 - 3)
            I(f"ds_write_b128 {v(reg)}, {v(op+4*u,4)} offset:{4096*qi}")
    def R(qi):
        for j in range(4):
            I(f"ds_read_b128 {v(vST+16*qi+4*j,4)}, {v(vSR)} offset:{4096*qi + 1024*j}")
    def S(qi):
        for j in range(4):
            row = 32*qi + 8*j
            I(f"s_mov_b32 {s(sSOFF)}, {row*512}")
            I(f"s_waitcnt lgkmcnt({3-j})")
            I(f"buffer_store_dwordx4 {v(vST+16*qi+4*j,4)}, {v(vOA)}, {s(rO,4)}, {s(sSOFF)} offen{opt.ost}")
    I(f"v_xor_b32 {v(vU)}, 16, {v(vSW)}")
    I(f"v_xor_b32 {v(vU+1)}, 64, {v(vSW)}")
    I(f"v_xor_b32 {v(vU+2)}, 80, {v(vSW)}")
    I(f"s_waitcnt vmcnt(4) lgkmcnt(0)")
    stamp("F kv there")
    if opt.forder == 0:
        mm(0, 0)
        I(f"s_waitcnt vmcnt(0)")
        mm(0, 1)
        epi(0, 0)
        mm(1, 0)
        epi(0, 1)
        I(f"s_waitcnt lgkmcnt(0)")
        R(0)
        mm(1, 1)
        S(0)
        epi(1, 0)
        epi(1, 1)
        I(f"s_waitcnt lgkmcnt(0)")
        R(1)
        S(1)
    elif opt.forder == 1:
        mm(0, 0)
        I(f"s_waitcnt vmcnt(0)")
        mm(0, 1)
        epi(0, 0)
        epi(0, 1)
        mm(1, 0)
        mm(1, 1)
        I(f"s_waitcnt lgkmcnt(0)")
        R(0)
        S(0)
        epi(1, 0)
        epi(1, 1)
        I(f"s_waitcnt lgkmcnt(0)")
        R(1)
        S(1)
    else:
        mm(0, 0)
        I(f"s_waitcnt vmcnt(0)")
        mm(0, 1)
        epi(0, 0)
        epi(0, 1)
        mm(1, 0)
        I(f"s_waitcnt lgkmcnt(0)")
        R(0)
        mm(1, 1)
        S(0)
        epi(1, 0)
        epi(1, 1)
        I(f"s_waitcnt lgkmcnt(0)")
        R(1)
        S(1)
    STI[0] = 18
    stamp("stores issued")
    if opt.stamps: I("s_waitcnt vmcnt(0)")
    stamp("stores done")
    stamps_flush("f")

def build():
    set_regions(opt.kqv)
    common_start()
    I(f"s_cmp_ge_u32 {s(sWAVE)}, 4")
    I(f"s_cbranch_scc1 L_team_b")
    team_a()
    team_b()
    final()
    L("L_end")
    I("s_endpgm")
    body = A.render()
    hdr = f"""; Fused FAVOR+ (RFA) linear attention for B=1 H=16 S=2048 D=256 M=64, bf16.
;                       publish the bf16 partial, reduce one 64x16 slice of kv over the head's 16 partials, publish it
; write-through stores + drained flag words always work; when a head's 16 workgroups report (presence words) that they
; @launch grid=(256,1,1) block=(512,1,1) lds={LDS_BYTES}
.amdgcn_target "amdgcn-amd-amdhsa--gfx950"
.text
.globl {NAME}
.p2align 8
.type {NAME},@function
{NAME}:
"""
    ftr = f"""
.section .rodata,"a"
.p2align 6
.amdhsa_kernel {NAME}
  .amdhsa_next_free_vgpr 256
  .amdhsa_next_free_sgpr 102
  .amdhsa_accum_offset 256
  .amdhsa_group_segment_fixed_size 0
  .amdhsa_kernarg_size 56
  .amdhsa_user_sgpr_count 2
  .amdhsa_user_sgpr_kernarg_segment_ptr 1
  .amdhsa_system_sgpr_workgroup_id_x 1
  .amdhsa_float_denorm_mode_32 3
.end_amdhsa_kernel
"""
    return hdr + body + ftr

if __name__ == "__main__":
    out = sys.argv[1]
    for a in sys.argv[2:]:
        if a == "stamps": opt.stamps = True
        elif a == "light": opt.stamps = True; opt.light = True
        elif a == "nont": opt.nt = False
        elif a == "nofast": opt.fast = False
        elif a == "forceslow": opt.forceslow = True
        elif a == "nopretouch": opt.pretouch = False
        elif a == "mimicq": opt.mimicq = True; opt.bsetup = False
        elif a == "nomred": opt.mred = False
        elif a.startswith("shift="): opt.shift = int(a.split("=")[1])
        elif a.startswith("codepf2="): opt.codepf2 = int(a.split("=")[1])
        elif a.startswith("codelen="): opt.codelen = int(a.split("=")[1])
        elif a.startswith("forder="): opt.forder = int(a.split("=")[1])
        elif a == "nobsetup": opt.bsetup = False
        elif a == "early": opt.early = True
        elif a == "kko": opt.kko = True; opt.bomega = False
        elif a.startswith("holdall="): opt.holdall = a.split("=")[1]
        elif a == "kok": opt.kok = True
        elif a == "nokokbar": opt.kokbar = False
        elif a == "cyc": opt.cyc = True
        elif a == "holdst": opt.holdst = True
        elif a == "nobomega": opt.bomega = False
        elif a == "nokfast": opt.kfast = False
        elif a.startswith("kshadow="): opt.kshadow = int(a.split("=")[1])
        elif a.startswith("holdq="): opt.holdq = int(a.split("=")[1])
        elif a == "kqv": opt.kqv = True
        elif a.startswith("stagger="): opt.stagger = True; opt.pacept = a.split("=")[1]
        elif a == "prepart": opt.prepart = True; opt.partplain = True
        elif a.startswith("prepol="): opt.prepol = (" " + a.split("=")[1].replace("+", " ")).rstrip()
        elif a.startswith("partpol="): opt.partpol = " " + a.split("=")[1].replace("+", " ")
        elif a == "codepf": opt.codepf = True
        elif a == "partplain": opt.partplain = True
        elif a == "nopreread": opt.preread = False
        elif a == "mimicnum": opt.mimicnum = True
        elif a.startswith("dbgwg="): opt.dbgwg = int(a.split("=")[1])
        elif a.startswith("dbgwave="): opt.dbgwave = int(a.split("=")[1])
        elif a.startswith("ost="): opt.ost = " " + a.split("=")[1].replace("+", " ")
        else: raise SystemExit("unknown option " + a)
    txt = build()
    open(out, "w").write(txt)
    if opt.stamps: json.dump(STN, open(out + ".stamps.json", "w"))
    print("wrote", out, "nops inserted:", A.nops, "lines", txt.count("\n"))
```

```python
import sys, json, struct
from asmlib import *

NAME = "standalone__linear_kernel_rfa__prompt_kernel"
class O: pass
opt = O()
opt.spin_limit = 60000
opt.stamps = False
opt.nt = True
opt.fast = True
opt.forceslow = False
opt.dbgwg = None
opt.dbgwave = 0
opt.ost = " nt"
opt.pretouch = True
opt.partplain = False
opt.preread = True
opt.codepf = False
opt.partpol = ' sc1'
opt.prepart = False
opt.prepol = ' nt'
opt.light = False
opt.stagger = False
opt.pacept = 'v2'
opt.pacemax = 40
opt.kqv = False
opt.holdq = 0
opt.bomega = True
opt.kfast = True
opt.kshadow = 6
opt.holdst = False
opt.cyc = False
opt.kok = False
opt.kokbar = True
opt.holdall = ''
opt.kko = False
opt.early = False
opt.bsetup = True
opt.mred = True
opt.forder = 0
opt.codelen = 11648
opt.codepf2 = 0
opt.shift = 0
opt.dry = False
opt.wsoff = 0
opt.mimicq = False
opt.mimicnum = False

KQ = 0
QR = 0
VR = 65536
WR = 131072
PHI = WR
ZB = WR + 16384
ZF = WR + 17408
FLG = WR + 17664
RD = WR + 18432
KVF = VR
OSA = VR + 32768
def set_regions(kqv):
    global QR, VR, KVF, OSA
    QR, VR = (65536, 0) if kqv else (0, 65536)
    KVF = VR; OSA = VR + 32768
LDS_BYTES = 163840
HS = 1 << 20
O_PART = 0
O_F = 524288
O_Z = 524288 + 32768
O_FL = 524288 + 32768 + 4096
WS_ST = 20 << 20

sQp, sKp, sVp, sWp, sOp, sDp, sSp = 4, 6, 8, 10, 12, 14, 16
sHEAD, sCH = 18, 19
rK, rV, rQ, rW, rO, rP, rL = 20, 24, 28, 32, 36, 40, 52
sWAVE, sTI = 56, 57
sT0, sT1, sT2, sT3 = 58, 59, 60, 61
sNONCE, sFAST = 62, 63
sC025L, sC025H, sLOG2E, sC0125, sMASKH, sONES = 64, 65, 66, 67, 68, 69
sSPIN, sSOFF, sEPS, sM132 = 70, 71, 72, 73
sXCC, sPRES = 94, 95
sPQ = 73
sEPA = 96
sPW = 40
sJUNK = 44

A = Asm()
I, L, C = A.I, A.L, A.C
STI = [0]; STN = []; PS = [0]; VF = [None]
def stamp(name=""):
    if not opt.stamps: return
    if opt.light and name not in ("start", "stores done"):
        STN.append((STI[0], name)); STI[0] += 1
        return
    C("stamp %s" % name)
    I("s_memtime s[98:99]" if opt.cyc else "s_memrealtime s[98:99]")
    I("s_waitcnt lgkmcnt(0)")
    I("s_mov_b32 s%d, s98" % (74 + STI[0]))
    STN.append((STI[0], name)); STI[0] += 1
def stamps_flush(tag):
    if not opt.stamps: return
    I("s_and_b32 s97, s56, 3"); I("s_cmp_eq_u32 s97, 0"); I("s_cbranch_scc0 L_nost_%s" % tag)
    I("s_lshr_b32 s97, s56, 2"); I("s_lshl_b32 s96, s2, 1"); I("s_add_u32 s96, s96, s97"); I("s_lshl_b32 s96, s96, 7")
    I("s_add_u32 s96, s96, %d" % WS_ST)
    I("s_add_u32 s40, s16, s96"); I("s_addc_u32 s41, s17, 0"); I("s_and_b32 s41, s41, 0xffff"); I("s_mov_b32 s42, 128"); I("s_mov_b32 s43, 0x20000")
    I("s_mov_b64 exec, 1"); I("v_mov_b32 v1, 0")
    for i in range(20):
        I("v_mov_b32 v2, s%d" % (74 + i)); I("buffer_store_dword v2, v1, s[40:43], 0 offen offset:%d" % (4 * i))
    I("s_waitcnt vmcnt(0)")
    if opt.dbgwg is not None:
        I("s_cmp_eq_u32 s2, %d" % opt.dbgwg); I("s_cbranch_scc0 L_nodbg")
        I("s_cmp_eq_u32 s56, %d" % opt.dbgwave); I("s_cbranch_scc0 L_nodbg")
        I("s_mov_b32 s40, s14"); I("s_and_b32 s41, s15, 0xffff"); I("s_mov_b32 s42, 256")
        I("s_sub_u32 s97, s74, s100"); I("v_mov_b32 v2, s97"); I("buffer_store_dword v2, v1, s[40:43], 0 offen offset:60")
        idx = [i for i in range(1, 14)] + [18, 19]
        for j, i in enumerate(idx):
            I("s_sub_u32 s97, s%d, s74" % (74 + i)); I("v_mov_b32 v2, s97"); I("buffer_store_dword v2, v1, s[40:43], 0 offen offset:%d" % (4 * j))
        I("s_waitcnt vmcnt(0)")
        L("L_nodbg")
    I("s_mov_b64 exec, -1")
    L("L_nost_%s" % tag)

def srd(r, ptr, off_s, size):
    if off_s is None:
        I(f"s_mov_b32 {s(r)}, {s(ptr)}")
        I(f"s_and_b32 {s(r+1)}, {s(ptr+1)}, 0xffff")
    else:
        I(f"s_add_u32 {s(r)}, {s(ptr)}, {s(off_s)}")
        I(f"s_addc_u32 {s(r+1)}, {s(ptr+1)}, 0")
        I(f"s_and_b32 {s(r+1)}, {s(r+1)}, 0xffff")
    I(f"s_mov_b32 {s(r+2)}, {size}")
    I(f"s_mov_b32 {s(r+3)}, 0x20000")

NT = lambda: " nt" if opt.nt else ""
vLANE = 0
vA = 2
vD = 10
vL16 = 11
vT = 12
vSS = 28
vW = 128
def W(mt, t): return vW + mt * 64 + t * 4
vKF = 32
vA1 = 96
vP4 = 12
vNQ = 32
vNK = 48
vONE = 52
vP1 = 56
vTT = 60
vEPS = 68
vZP = 69
vX = 72
vPQ = 32
vPO = 96
vID = 80

POL = [" sc1"]
def pol(): return POL[0]
DUAL = [0]
def dual(fn):
    if not opt.fast:
        POL[0] = " sc1"; fn(); return
    DUAL[0] += 1; n = DUAL[0]
    I(f"s_cmp_lg_u32 {s(sFAST)}, 0")
    I(f"s_cbranch_scc1 L_fast{n}")
    POL[0] = " sc1"; fn()
    I(f"s_branch L_join{n}")
    L(f"L_fast{n}")
    POL[0] = ""; fn()
    L(f"L_join{n}")
    POL[0] = " sc1"

def prologue():
    for _ in range(opt.shift): I("s_nop 0")
    if opt.stamps: I("s_memrealtime s[100:101]")
    I(f"s_cmp_ge_u32 s2, 256")
    I(f"s_cbranch_scc1 L_end")
    I(f"s_load_dwordx4 s[4:7], s[0:1], 0")
    I(f"s_load_dwordx4 s[8:11], s[0:1], 16")
    I(f"s_load_dwordx4 s[12:15], s[0:1], 32")
    I(f"s_load_dwordx2 s[16:17], s[0:1], 48")
    if opt.codepf:
        C("pull the kernel's own code into L2 while the kernel arguments are on their way (128 B per lane)")
        cb = "s[100:101]" if not opt.stamps else "s[52:53]"
        I(f"s_getpc_b64 {cb}")
        I(f"v_and_b32 v1, 63, v0")
        I(f"v_lshlrev_b32 v1, 7, v1")
        I(f"global_load_dword v32, v1, {cb}")
        I(f"v_add_u32 v1, 8192, v1")
        I(f"v_min_u32 v1, {opt.codelen}, v1")
        I(f"global_load_dword v33, v1, {cb}")
    I(f"v_lshrrev_b32 v1, 6, v0")
    I(f"v_and_b32 {v(vLANE)}, 63, v0")
    I(f"v_readfirstlane_b32 {s(sWAVE)}, v1")
    I(f"s_and_b32 {s(sT0)}, s2, 7")
    I(f"s_lshr_b32 {s(sT1)}, s2, 3")
    I(f"s_lshr_b32 {s(sHEAD)}, {s(sT1)}, 4")
    I(f"s_lshl_b32 {s(sT0)}, {s(sT0)}, 1")
    I(f"s_add_u32 {s(sHEAD)}, {s(sHEAD)}, {s(sT0)}")
    I(f"s_and_b32 {s(sCH)}, {s(sT1)}, 15")
    I(f"s_and_b32 {s(sTI)}, {s(sWAVE)}, 3")
    I(f"v_lshrrev_b32 {v(vT)}, 5, {v(vLANE)}")
    I(f"v_and_b32 {v(vT+1)}, 31, {v(vLANE)}")
    I(f"v_xor_b32 {v(vT+1)}, {v(vT+1)}, {v(vT)}")
    I(f"v_lshlrev_b32 {v(vT+1)}, 4, {v(vT+1)}")
    I(f"v_lshl_add_u32 {v(vD)}, {v(vT)}, 9, {v(vT+1)}")
    I(f"v_lshlrev_b32 {v(vL16)}, 4, {v(vLANE)}")
    I(f"s_lshl_b32 {s(sT0)}, {s(sHEAD)}, 20")
    I(f"s_lshl_b32 {s(sT1)}, {s(sCH)}, 16")
    I(f"s_add_u32 {s(sT0)}, {s(sT0)}, {s(sT1)}")
    I(f"s_waitcnt lgkmcnt(0)")
    srd(rW, sWp, None, 32768)
    srd(rK, sKp, sT0, 65536)

def dma_omega():
    I(f"s_and_b32 {s(sT1)}, {s(sWAVE)}, 1")
    I(f"s_lshl_b32 {s(sT1)}, {s(sT1)}, 7")
    I(f"s_lshl_b32 {s(sSOFF)}, {s(sWAVE)}, 12")
    I(f"s_add_u32 m0, {s(sSOFF)}, {WR}")
    for i in range(4):
        I(f"s_add_u32 {s(sT2)}, {s(sT1)}, {32*i}")
        I(f"v_xor_b32 {v(vT)}, {s(sT2)}, {v(vD)}")
        I(f"buffer_load_dwordx4 {v(vT)}, {s(rW,4)}, {s(sSOFF)} offen offset:{1024*i} lds")

def dma_row_instr(r, base_lds, i):
    if i % 4 == 0:
        if i: I(f"s_add_u32 {s(sSOFF)}, {s(sSOFF)}, 4096")
        I(f"s_add_u32 m0, {s(sSOFF)}, {base_lds}")
    if i & 7:
        I(f"v_xor_b32 {v(vT)}, {32*(i&7)}, {v(vD)}")
        I(f"buffer_load_dwordx4 {v(vT)}, {s(r,4)}, {s(sSOFF)} offen offset:{1024*(i%4)}{NT()} lds")
    else:
        I(f"buffer_load_dwordx4 {v(vD)}, {s(r,4)}, {s(sSOFF)} offen offset:{1024*(i%4)}{NT()} lds")

def dma_k():
    I(f"s_lshl_b32 {s(sSOFF)}, {s(sWAVE)}, 13")
    for i in range(8): dma_row_instr(rK, KQ, i)

vVD = 9
def v_setup(reg):
    I(f"v_lshrrev_b32 {v(reg)}, 4, {v(vLANE)}")
    I(f"v_and_b32 {v(reg)}, 1, {v(reg)}")
    I(f"v_lshlrev_b32 {v(reg)}, 2, {v(reg)}")
    I(f"v_and_b32 {v(vT+1)}, 7, {v(vLANE)}")
    I(f"v_xor_b32 {v(reg)}, {v(reg)}, {v(vT+1)}")
    I(f"v_lshlrev_b32 {v(reg)}, 4, {v(reg)}")
    I(f"v_lshrrev_b32 {v(vT+1)}, 3, {v(vLANE)}")
    I(f"v_lshl_add_u32 {v(reg)}, {v(vT+1)}, 9, {v(reg)}")

def v_issue(reg, first_s, n):
    I(f"s_lshl_b32 {s(sSOFF)}, {first_s}, 12")
    I(f"s_lshl_b32 {s(sT1)}, {s(sTI)}, 7")
    I(f"s_add_u32 {s(sSOFF)}, {s(sSOFF)}, {s(sT1)}")
    I(f"s_lshl_b32 {s(sT1)}, {first_s}, 10")
    I(f"s_lshl_b32 {s(sT2)}, {s(sTI)}, 14")
    I(f"s_add_u32 {s(sT1)}, {s(sT1)}, {s(sT2)}")
    I(f"s_add_u32 {s(sT1)}, {s(sT1)}, {VR}")
    for i in range(n):
        I(f"s_add_u32 m0, {s(sT1)}, {1024*i}")
        if i: I(f"s_add_u32 {s(sSOFF)}, {s(sSOFF)}, 4096")
        I(f"buffer_load_dwordx4 {v(reg)}, {s(rV,4)}, {s(sSOFF)} offen{NT()} lds")

def dma_v():
    C("team B wave b: V slice b (128 B columns), all 128 rows, 16 instructions of 8 rows")
    v_setup(vT+2)
    I(f"s_mov_b32 {s(sT3)}, 0")
    v_issue(vT+2, s(sT3), 16)

def tile_addrs():
    I(f"v_and_b32 {v(vT)}, 31, {v(vLANE)}")
    I(f"v_lshrrev_b32 {v(vT+1)}, 5, {v(vLANE)}")
    I(f"v_and_b32 {v(vT+2)}, 15, {v(vLANE)}")
    I(f"v_xor_b32 {v(vT+2)}, {v(vT+2)}, {v(vT+1)}")
    I(f"v_lshlrev_b32 {v(vT+2)}, 4, {v(vT+2)}")
    I(f"v_lshl_add_u32 {v(vT+2)}, {v(vT)}, 9, {v(vT+2)}")
    I(f"v_add_u32 {v(vA)}, {WR}, {v(vT+2)}")
    for x in range(1, 8):
        I(f"v_xor_b32 {v(vA+x)}, {32*x}, {v(vA)}")

def read_omega(base):
    for t in range(16):
        for mt in range(2):
            I(f"ds_read_b128 {v(W(mt,t),4)}, {v(vA+(t&7))} offset:{(t>>3)*256 + mt*16384}")
    I(f"s_lshl_b32 {s(sT1)}, {s(sTI)}, 14")
    I(f"s_sub_u32 {s(sT1)}, {s(sT1)}, {WR - base}")
    for x in range(8):
        I(f"v_add_u32 {v(vA+x)}, {s(sT1)}, {v(vA+x)}")

def consts():
    I(f"s_mov_b32 {s(sC025L)}, 0x00003e80")
    I(f"s_mov_b32 {s(sC025H)}, 0x3e800000")
    I(f"s_mov_b32 {s(sLOG2E)}, 0x3fb8aa3b")
    I(f"s_mov_b32 {s(sC0125)}, 0x3e000000")
    I(f"s_mov_b32 {s(sMASKH)}, 0xffff0000")
    I(f"s_mov_b32 {s(sONES)}, 0x3f803f80")
    I(f"s_mov_b32 {s(sEPS)}, 0x358637bd")
    I(f"s_mov_b32 {s(sM132)}, 0xbd000000")

def read_tile_frags():
    for t in range(16):
        I(f"ds_read_b128 {v(vKF+4*t,4)}, {v(vA+(t&7))} offset:{(t>>3)*256}")
    for i in range(4): I(f"v_mov_b32 {v(vSS+i)}, 0")

def ssq(counted=False):
    for t in range(16):
        if counted and t % 2 == 0: I(f"s_waitcnt lgkmcnt({max(0, 14 - t)})")
        for i in range(4):
            I(f"v_dot2c_f32_bf16 {v(vSS+i)}, {v(vKF+4*t+i)}, {v(vKF+4*t+i)}")

def ssq_reduce_steps():
    return [
        [f"v_add_f32 {v(vSS)}, {v(vSS)}, {v(vSS+1)}", f"v_add_f32 {v(vSS+2)}, {v(vSS+2)}, {v(vSS+3)}"],
        [f"v_add_f32 {v(vSS)}, {v(vSS)}, {v(vSS+2)}"],
        [f"v_mov_b32 {v(vSS+1)}, {v(vSS)}"],
        [f"v_permlane32_swap_b32 {v(vSS)}, {v(vSS+1)}"],
        [f"v_add_f32 {v(vSS)}, {v(vSS)}, {v(vSS+1)}"],
    ]

def pipeline_mimic(mt, nq_of, p4base):
    for g in range(2):
        prs = [4*g + i for i in range(4)]
        acc = lambda r: vA1 + 16*mt + r
        for i, p in enumerate(prs): I(f"v_cvt_pk_bf16_f32 {v(vP1+i)}, {v(acc(2*p))}, {v(acc(2*p+1))}")
        for i, p in enumerate(prs):
            I(f"v_dot2_f32_bf16 {v(vTT+2*i)}, {v(vP1+i)}, {s(sC025L)}, {v(nq_of(2*p))}")
            I(f"v_dot2_f32_bf16 {v(vTT+2*i+1)}, {v(vP1+i)}, {s(sC025H)}, {v(nq_of(2*p+1))}")
        for i, p in enumerate(prs): I(f"v_cvt_pk_bf16_f32 {v(vP1+i)}, {v(vTT+2*i)}, {v(vTT+2*i+1)}")
        for i, p in enumerate(prs):
            I(f"v_lshlrev_b32 {v(vTT+2*i)}, 16, {v(vP1+i)}")
            I(f"v_and_b32 {v(vTT+2*i+1)}, {s(sMASKH)}, {v(vP1+i)}")
        for i in range(8): I(f"v_mul_f32 {v(vTT+i)}, {s(sLOG2E)}, {v(vTT+i)}")
        for i in range(8): I(f"v_exp_f32 {v(vTT+i)}, {v(vTT+i)}")
        for i in range(8): I(f"v_fma_f32 {v(vTT+i)}, {v(vTT+i)}, {s(sC0125)}, {v(vEPS)}")
        for i, p in enumerate(prs): I(f"v_cvt_pk_bf16_f32 {v(p4base+p)}, {v(vTT+2*i)}, {v(vTT+2*i+1)}")

def lds_wait(addr, n, tag, tmp=None):
    tmp = vX + 4 if tmp is None else tmp
    I(f"s_mov_b32 {s(sSPIN)}, 0")
    if n == 1:
        I(f"v_mov_b32 {v(tmp)}, {addr}")
    else:
        I(f"v_and_b32 {v(tmp)}, {n-1}, {v(vLANE)}")
        I(f"v_lshlrev_b32 {v(tmp)}, 2, {v(tmp)}")
        I(f"v_add_u32 {v(tmp)}, {addr}, {v(tmp)}")
    L(f"L_ls_{tag}")
    I(f"ds_read_b32 {v(tmp+1)}, {v(tmp)}")
    I(f"s_waitcnt lgkmcnt(0)")
    I(f"v_cmp_ne_u32 vcc, {s(sNONCE)}, {v(tmp+1)}")
    I(f"s_cbranch_vccz L_lsd_{tag}")
    I(f"s_add_u32 {s(sSPIN)}, {s(sSPIN)}, 1")
    I(f"s_cmp_lt_u32 {s(sSPIN)}, {opt.spin_limit*8}")
    I(f"s_cbranch_scc1 L_ls_{tag}")
    L(f"L_lsd_{tag}")

def lds_set(addr, tmp=None, val=None):
    tmp = vX + 4 if tmp is None else tmp
    I(f"v_mov_b32 {v(tmp)}, {addr}")
    I(f"v_mov_b32 {v(tmp+1)}, {s(sNONCE) if val is None else val}")
    I(f"ds_write_b32 {v(tmp)}, {v(tmp+1)}")

vFL = 8
sFL1, sFL2 = 92, 93
def flag_prepare():
    global sFL1, sFL2
    if opt.stamps: sFL1, sFL2 = 48, 49
    I(f"s_lshl_b32 {s(sFL1)}, {s(sCH)}, 4")
    I(f"s_lshl_b32 {s(sFL2)}, {s(sTI)}, 2")
    I(f"s_add_u32 {s(sFL1)}, {s(sFL1)}, {s(sFL2)}")
    I(f"s_add_u32 {s(sFL2)}, {s(sFL1)}, {O_FL + 512}")
    I(f"s_add_u32 {s(sFL1)}, {s(sFL1)}, {O_FL + 256}")
    I(f"v_mov_b32 {v(vFL)}, 0")
    I(f"v_mov_b32 {v(vFL+1)}, {s(sNONCE)}")

def wave_flag(off):
    so = sFL1 if off == 256 else sFL2
    I(f"s_mov_b64 exec, 1")
    dual(lambda: I(f"buffer_store_dword {v(vFL+1)}, {v(vFL)}, {s(rP,4)}, {s(so)} offen{pol()}"))
    I(f"s_mov_b64 exec, -1")

def poll(off, tag, tmp=None):
    tmp = vT if tmp is None else tmp
    I(f"s_mov_b32 {s(sSPIN)}, 0")
    I(f"s_mov_b32 {s(sT2)}, {O_FL + off}")
    I(f"v_lshlrev_b32 {v(tmp)}, 2, {v(vLANE)}")
    L(f"L_spin_{tag}")
    I(f"buffer_load_dword {v(tmp+1)}, {v(tmp)}, {s(rP,4)}, {s(sT2)} offen sc1")
    I(f"s_waitcnt vmcnt(0)")
    I(f"v_cmp_ne_u32 vcc, {s(sNONCE)}, {v(tmp+1)}")
    I(f"s_cbranch_vccz L_spun_{tag}")
    I(f"s_cmp_lg_u32 {s(sFAST)}, 0")
    I(f"s_cbranch_scc1 L_nap_{tag}")
    I(f"s_sleep 12")
    L(f"L_nap_{tag}")
    I(f"s_add_u32 {s(sSPIN)}, {s(sSPIN)}, 1")
    I(f"s_cmp_lt_u32 {s(sSPIN)}, {opt.spin_limit}")
    I(f"s_cbranch_scc1 L_spin_{tag}")
    L(f"L_spun_{tag}")

def common_start():
    prologue()
    stamp("start")
    if opt.early:
        C("K(0..3), omega, K(4..7), then four V loads: rows 0..31 (team A) / 32..63 (team B) of slice w&3")
        I(f"s_lshl_b32 {s(sSOFF)}, {s(sWAVE)}, 13")
        for i in range(4): dma_row_instr(rK, KQ, i)
        I(f"s_mov_b32 {s(sT3)}, {s(sSOFF)}")
        dma_omega()
        I(f"s_mov_b32 {s(sSOFF)}, {s(sT3)}")
        I(f"s_barrier")
        for i in range(4, 8): dma_row_instr(rK, KQ, i)
        srd(rV, sVp, sT0, 65536)
        v_setup(30)
        I(f"s_lshr_b32 {s(sT3)}, {s(sWAVE)}, 2")
        I(f"s_lshl_b32 {s(sT3)}, {s(sT3)}, 2")
        v_issue(30, s(sT3), 4)
    elif opt.kko:
        C("omega lines -> L2 (one touch per line), then K, then omega itself (L2 hits by then)")
        I(f"v_and_b32 {v(vT+2)}, 31, {v(vLANE)}")
        I(f"v_lshlrev_b32 {v(vT+2)}, 7, {v(vT+2)}")
        I(f"s_lshl_b32 {s(sT1)}, {s(sWAVE)}, 12")
        I(f"buffer_load_dword {v(vT+3)}, {v(vT+2)}, {s(rW,4)}, {s(sT1)} offen")
        dma_k()
        dma_omega()
    elif opt.kok:
        C("issue order K(0..3), omega, K(4..7): omega rides in the first window without holding K back")
        I(f"s_lshl_b32 {s(sSOFF)}, {s(sWAVE)}, 13")
        for i in range(4): dma_row_instr(rK, KQ, i)
        I(f"s_mov_b32 {s(sT3)}, {s(sSOFF)}")
        dma_omega()
        I(f"s_mov_b32 {s(sSOFF)}, {s(sT3)}")
        if opt.kokbar: I(f"s_barrier")
        for i in range(4, 8): dma_row_instr(rK, KQ, i)
    else:
        dma_omega()
        I(f"s_barrier")
        dma_k()
    C("scalar side: epoch word, translation pre-touch, descriptors")
    I(f"s_lshl_b32 {s(sT1)}, {s(sHEAD)}, 20")
    if opt.wsoff: I(f"s_add_u32 {s(sT1)}, {s(sT1)}, {opt.wsoff}")
    I(f"s_add_u32 {s(sEPA)}, {s(sSp)}, {s(sT1)}")
    I(f"s_addc_u32 {s(sEPA+1)}, {s(sSp+1)}, 0")
    I(f"s_load_dword {s(sNONCE)}, {s(sEPA,2)}, {O_FL}")
    if opt.preread:
        C("bring the flag lines of this head into L2 (a store to an absent line makes the next read a memory fill)")
        for j in range(8):
            I(f"s_load_dword {s(sJUNK+3)}, {s(sEPA,2)}, {O_FL + 256 + 64*j}")
    if not opt.early: srd(rV, sVp, sT0, 65536)
    srd(rQ, sQp, sT0, 65536)
    srd(rO, sOp, sT0, 65536)
    if opt.pretouch:
        I(f"s_load_dword {s(sJUNK)}, {s(rQ,2)}, 0")
        I(f"s_load_dword {s(sJUNK+1)}, {s(rO,2)}, 0")
        I(f"s_load_dword {s(sJUNK+2)}, {s(rV,2)}, 0")
    tile_addrs()
    consts()
    stamp("K issued")
    I(f"s_waitcnt lgkmcnt(0)")
    I(f"s_add_u32 {s(sNONCE)}, {s(sNONCE)}, 1")
    I(f"s_lshl_b32 {s(sT1)}, {s(sHEAD)}, 20")
    if opt.wsoff: I(f"s_add_u32 {s(sT1)}, {s(sT1)}, {opt.wsoff}")
    srd(rP, sSp, sT1, HS)
    I(f"s_mov_b32 {s(sFAST)}, 0")
    I(f"s_getreg_b32 {s(sXCC)}, hwreg(HW_REG_XCC_ID, 0, 4)")
    I(f"s_lshl_b32 {s(sPRES)}, {s(sNONCE)}, 4")
    I(f"s_add_u32 {s(sPRES)}, {s(sPRES)}, {s(sXCC)}")
    nyoung = {"early": 8, "kko": None, "kok": 4}.get("early" if opt.early else "kko" if opt.kko else "kok" if opt.kok else "", 8)
    I(f"s_cmp_eq_u32 {s(sWAVE)}, 0")
    I(f"s_cbranch_scc0 L_nopres")
    if opt.fast:
        C("presence word: nonce*16 + XCC id (wave 0)")
        I(f"s_mov_b64 exec, 1")
        I(f"s_lshl_b32 {s(sT1)}, {s(sCH)}, 2")
        I(f"s_add_u32 {s(sT1)}, {s(sT1)}, {O_FL + 128}")
        I(f"v_mov_b32 {v(vT)}, 0")
        I(f"v_mov_b32 {v(vT+1)}, {s(sPRES)}")
        I(f"buffer_store_dword {v(vT+1)}, {v(vT)}, {s(rP,4)}, {s(sT1)} offen sc1")
        I(f"s_mov_b64 exec, -1")
        if nyoung is not None: I(f"s_waitcnt vmcnt({nyoung + 1})")
    else:
        if nyoung is not None: I(f"s_waitcnt vmcnt({nyoung})")
    I(f"s_branch L_presd")
    L("L_nopres")
    if nyoung is not None: I(f"s_waitcnt vmcnt({nyoung})")
    L("L_presd")
    if not opt.kko: I(f"s_barrier")

def team_a():
    C("================= team A =================")
    if not opt.kko: read_omega(KQ)
    C("K landed: own loads only (the presence store of wave 0 may still be in flight)")
    ey = 4 if opt.early else 0
    I(f"s_waitcnt vmcnt({1 + ey}) lgkmcnt(0)")
    I(f"s_cmp_eq_u32 {s(sTI)}, 0")
    I(f"s_cbranch_scc1 L_k0")
    I(f"s_waitcnt vmcnt({ey})")
    L("L_k0")
    I(f"s_barrier")
    stamp("A B1 K landed")
    if opt.kko: read_omega(KQ)
    read_tile_frags()
    I(f"s_waitcnt lgkmcnt(0)")
    I(f"s_barrier")
    if not opt.kfast:
        ssq()
        steps = ssq_reduce_steps()
        for t in range(16):
            for mt in range(2):
                c = "0" if t == 0 else v(vA1 + 16*mt, 16)
                I(f"v_mfma_f32_32x32x16_bf16 {v(vA1+16*mt,16)}, {v(vKF+4*t,4)}, {v(W(mt,t),4)}, {c}")
            if 1 <= t <= 5:
                for x in steps[t-1]: I(x)
            if t == 6:
                I(f"v_mul_f32 {v(vSS)}, {s(sM132)}, {v(vSS)}")
                I(f"v_lshrrev_b32 {v(vSS+1)}, 5, {v(vLANE)}")
            if t == 7:
                I(f"v_cmp_eq_u32 vcc, 0, {v(vSS+1)}")
            if t == 8:
                I(f"v_cndmask_b32 {v(vSS)}, 0, {v(vSS)}, vcc")
            if t == 9:
                I(f"v_cvt_pk_bf16_f32 {v(vSS)}, {v(vSS)}, 0")
        stamp("A gemm1 done")
        I(f"v_mov_b32 {v(vEPS)}, {s(sEPS)}")
        I(f"v_mov_b32 {v(vNK)}, {v(vSS)}")
        I(f"v_mov_b32 {v(vONE)}, 0x3f80")
        for i in range(1, 4):
            I(f"v_mov_b32 {v(vONE+i)}, 0")
            I(f"v_mov_b32 {v(vNK+i)}, 0")
        I(f"v_mfma_f32_32x32x16_bf16 {v(vNQ,16)}, {v(vNK,4)}, {v(vONE,4)}, 0")
        I(f"v_lshl_add_u32 {v(vX)}, {s(sTI)}, 12, {v(vL16)}")
        I(f"v_add_u32 {v(vX)}, {PHI}, {v(vX)}")
        for mt in range(2):
            pipeline_mimic(mt, lambda r: vNQ + r, vP4 + 8*mt)
            for u in range(2):
                I(f"ds_write_b128 {v(vX)}, {v(vP4+8*mt+4*u,4)} offset:{u*2048 + mt*1024}")
            I(f"v_mov_b32 {v(vZP+mt)}, 0")
            for i in range(8):
                I(f"v_dot2c_f32_bf16 {v(vZP+mt)}, {s(sONES)}, {v(vP4+8*mt+i)}")
    else:
        vNQ2 = 128; vNK2 = 144; vON2 = 148; vP1b = 152; vTb = 156; vEP2 = 164; vZP2 = 165; vXb = 168
        ssq()
        steps = ssq_reduce_steps()
        for t in range(16):
            c = "0" if t == 0 else v(vA1, 16)
            I(f"v_mfma_f32_32x32x16_bf16 {v(vA1,16)}, {v(vKF+4*t,4)}, {v(W(0,t),4)}, {c}")
            if 1 <= t <= 5:
                for x in steps[t-1]: I(x)
            if t == 6:
                I(f"v_mul_f32 {v(vSS)}, {s(sM132)}, {v(vSS)}")
                I(f"v_lshrrev_b32 {v(vSS+1)}, 5, {v(vLANE)}")
            if t == 7: I(f"v_cmp_eq_u32 vcc, 0, {v(vSS+1)}")
            if t == 8: I(f"v_cndmask_b32 {v(vSS)}, 0, {v(vSS)}, vcc")
            if t == 9: I(f"v_cvt_pk_bf16_f32 {v(vSS)}, {v(vSS)}, 0")
            if t == 10: I(f"s_mov_b32 {s(sT3)}, 0x3e800000")
            if t == 12:
                I(f"v_mov_b32 {v(vNK2)}, {v(vSS)}")
                I(f"v_mov_b32 {v(vON2)}, 0x3f80")
            if t == 13:
                for i in range(1, 4):
                    I(f"v_mov_b32 {v(vON2+i)}, 0")
                    I(f"v_mov_b32 {v(vNK2+i)}, 0")
        I(f"v_mfma_f32_32x32x16_bf16 {v(vNQ2,16)}, {v(vNK2,4)}, {v(vON2,4)}, 0")
        def mimic_ops(mt, p4base):
            ops = []
            acc = lambda r: vA1 + 16*mt + r
            for g in range(2):
                prs = [4*g + i for i in range(4)]
                for i, p in enumerate(prs): ops.append(f"v_cvt_pk_bf16_f32 {v(vP1b+i)}, {v(acc(2*p))}, {v(acc(2*p+1))}")
                for i, p in enumerate(prs):
                    ops.append(f"v_lshlrev_b32 {v(vTb+2*i)}, 16, {v(vP1b+i)}")
                    ops.append(f"v_and_b32 {v(vTb+2*i+1)}, {s(sMASKH)}, {v(vP1b+i)}")
                for i, p in enumerate(prs):
                    ops.append(f"v_fma_f32 {v(vTb+2*i)}, {v(vTb+2*i)}, {s(sT3)}, {v(vNQ2+2*p)}")
                    ops.append(f"v_fma_f32 {v(vTb+2*i+1)}, {v(vTb+2*i+1)}, {s(sT3)}, {v(vNQ2+2*p+1)}")
                for i, p in enumerate(prs): ops.append(f"v_cvt_pk_bf16_f32 {v(vP1b+i)}, {v(vTb+2*i)}, {v(vTb+2*i+1)}")
                for i, p in enumerate(prs):
                    ops.append(f"v_lshlrev_b32 {v(vTb+2*i)}, 16, {v(vP1b+i)}")
                    ops.append(f"v_and_b32 {v(vTb+2*i+1)}, {s(sMASKH)}, {v(vP1b+i)}")
                for i in range(8): ops.append(f"v_mul_f32 {v(vTb+i)}, {s(sLOG2E)}, {v(vTb+i)}")
                for i in range(8): ops.append(f"v_exp_f32 {v(vTb+i)}, {v(vTb+i)}")
                for i in range(8): ops.append(f"v_fma_f32 {v(vTb+i)}, {v(vTb+i)}, {s(sC0125)}, {v(vEP2)}")
                for i, p in enumerate(prs): ops.append(f"v_cvt_pk_bf16_f32 {v(p4base+p)}, {v(vTb+2*i)}, {v(vTb+2*i+1)}")
            return ops
        ops0 = [f"v_mov_b32 {v(vEP2)}, {s(sEPS)}"] + mimic_ops(0, vP4)
        k = 0
        for t in range(16):
            c = "0" if t == 0 else v(vA1 + 16, 16)
            I(f"v_mfma_f32_32x32x16_bf16 {v(vA1+16,16)}, {v(vKF+4*t,4)}, {v(W(1,t),4)}, {c}")
            if t >= 1:
                n = opt.kshadow
                for x in ops0[k:k+n]: I(x)
                k += n
        stamp("A gemm1 done")
        for x in ops0[k:]: I(x)
        I(f"v_lshl_add_u32 {v(vX)}, {s(sTI)}, 12, {v(vL16)}")
        I(f"v_add_u32 {v(vX)}, {PHI}, {v(vX)}")
        for u in range(2):
            I(f"ds_write_b128 {v(vX)}, {v(vP4+4*u,4)} offset:{u*2048}")
        for x in mimic_ops(1, vP4 + 8): I(x)
        for u in range(2):
            I(f"ds_write_b128 {v(vX)}, {v(vP4+8+4*u,4)} offset:{u*2048 + 1024}")
        for mt in range(2):
            I(f"v_mov_b32 {v(vZP+mt)}, 0")
        for i in range(8):
            for mt in range(2):
                I(f"v_dot2c_f32_bf16 {v(vZP+mt)}, {s(sONES)}, {v(vP4+8*mt+i)}")
    for mt in range(2): I(f"v_mov_b32 {v(vX+1+mt)}, {v(vZP+mt)}")
    for mt in range(2): I(f"v_permlane32_swap_b32 {v(vZP+mt)}, {v(vX+1+mt)}")
    for mt in range(2): I(f"v_add_f32 {v(vZP+mt)}, {v(vZP+mt)}, {v(vX+1+mt)}")
    I(f"v_and_b32 {v(vX+1)}, 31, {v(vLANE)}")
    I(f"v_lshlrev_b32 {v(vX+1)}, 2, {v(vX+1)}")
    I(f"s_lshl_b32 {s(sT1)}, {s(sTI)}, 8")
    I(f"s_add_u32 {s(sT1)}, {s(sT1)}, {ZB}")
    I(f"v_add_u32 {v(vX+1)}, {s(sT1)}, {v(vX+1)}")
    I(f"ds_write_b32 {v(vX+1)}, {v(vZP)}")
    I(f"ds_write_b32 {v(vX+1)}, {v(vZP+1)} offset:128")
    I(f"s_waitcnt lgkmcnt(0)")
    stamp("A phi written")
    I(f"s_lshl_b32 {s(sT2)}, {s(sTI)}, 2")
    I(f"s_add_u32 {s(sT2)}, {s(sT2)}, {FLG}")
    lds_set(s(sT2))
    C("transposing-read addresses of the V slice (computed while waiting)")
    vPH = 128; vAC = 48; vVB = 112; vVA = 28; vPA = 30
    I(f"v_lshrrev_b32 {v(vT)}, 5, {v(vLANE)}")
    I(f"v_lshlrev_b32 {v(vT)}, 2, {v(vT)}")
    I(f"v_bfe_u32 {v(vT+1)}, {v(vLANE)}, 2, 2")
    I(f"v_add_u32 {v(vT)}, {v(vT)}, {v(vT+1)}")
    I(f"v_lshlrev_b32 {v(vT)}, 7, {v(vT)}")
    I(f"v_lshrrev_b32 {v(vT+1)}, 1, {v(vT+1)}")
    I(f"v_lshl_add_u32 {v(vT)}, {v(vT+1)}, 6, {v(vT)}")
    I(f"v_bfe_u32 {v(vT+1)}, {v(vLANE)}, 4, 1")
    I(f"v_lshl_add_u32 {v(vT)}, {v(vT+1)}, 5, {v(vT)}")
    I(f"v_and_b32 {v(vT+1)}, 3, {v(vLANE)}")
    I(f"v_lshl_add_u32 {v(vT)}, {v(vT+1)}, 3, {v(vT)}")
    I(f"s_lshl_b32 {s(sT1)}, {s(sTI)}, 14")
    I(f"s_add_u32 {s(sT1)}, {s(sT1)}, {VR}")
    I(f"v_add_u32 {v(vVA)}, {s(sT1)}, {v(vT)}")
    I(f"v_xor_b32 {v(vVA+1)}, 64, {v(vVA)}")
    I(f"v_add_u32 {v(vPA)}, {PHI}, {v(vL16)}")
    lds_wait(str(FLG), 4, "phi")
    stamp("A phi all")
    for f in range(16):
        I(f"ds_read_b128 {v(vPH+4*f,4)}, {v(vPA)} offset:{1024*f}")
    vVB = 192
    def vread(kk):
        b = vVB + 8*(kk % 4)
        for dl in range(2):
            for ap in range(2):
                I(f"ds_read_b64_tr_b16 {v(b+4*dl+2*ap,2)}, {v(vVA+dl)} offset:{kk*2048 + ap*1024}")
    def mm(kk, first):
        b = vVB + 8*(kk % 4)
        for dl in range(2):
            for mt in range(2):
                acc = vAC + (dl*2 + mt)*16
                c = "0" if first else v(acc, 16)
                I(f"v_mfma_f32_32x32x16_bf16 {v(acc,16)}, {v(vPH+4*(kk*2+mt),4)}, {v(b+4*dl,4)}, {c}")
    I(f"s_lshl_b32 {s(sT2)}, {s(sTI)}, 2")
    I(f"s_add_u32 {s(sT2)}, {s(sT2)}, {FLG + 16}")
    if opt.early: I(f"s_waitcnt vmcnt(0)")
    lds_wait(s(sT2), 1, "v1", tmp=26)
    stamp("A V1 ready")
    vread(0); vread(1); vread(2)
    for kk in range(8):
        rem = min(2, 7 - kk)
        if kk == 2:
            I(f"s_waitcnt lgkmcnt(4)")
        else:
            I(f"s_waitcnt lgkmcnt({4*rem})")
        mm(kk, kk == 0)
        if kk == 1:
            I(f"s_add_u32 {s(sT2)}, {s(sT2)}, 16")
            lds_wait(s(sT2), 1, "v2", tmp=26)
        if kk + 3 < 8: vread(kk + 3)
    stamp("A gemm2 done")
    if opt.fast:
        lds_wait(str(FLG + 56), 1, "md", tmp=26)
        I(f"v_mov_b32 {v(vT+1)}, {FLG + 48}")
        I(f"ds_read_b32 {v(vT+2)}, {v(vT+1)}")
    C("z partial inputs (wave 0)")
    I(f"v_lshlrev_b32 {v(vT+3)}, 2, {v(vLANE)}")
    I(f"v_add_u32 {v(vT+4)}, {ZB}, {v(vT+3)}")
    for a in range(4): I(f"ds_read_b32 {v(vT+6+a)}, {v(vT+4)} offset:{256*a}")
    vPK = 128
    for j in range(4):
        for i in range(8):
            I(f"v_cvt_pk_bf16_f32 {v(vPK+8*j+i)}, {v(vAC+16*j+2*i)}, {v(vAC+16*j+2*i+1)}")
    I(f"s_lshl_b32 {s(sT1)}, {s(sTI)}, 13")
    I(f"v_add_u32 {v(vT)}, {s(sT1)}, {v(vL16)}")
    I(f"s_lshl_b32 {s(sSOFF)}, {s(sCH)}, 15")
    I(f"s_add_u32 {s(sT2)}, {s(sSOFF)}, 4096")
    I(f"s_waitcnt lgkmcnt(0)")
    if opt.fast:
        I(f"v_readfirstlane_b32 {s(sFAST)}, {v(vT+2)}")
        I(f"s_cmp_eq_u32 {s(sFAST)}, {s(sNONCE)}")
        I(f"s_cselect_b32 {s(sFAST)}, 1, 0")
        if opt.stamps: I(f"s_mov_b32 s91, {s(sFAST)}")
    if opt.holdst:
        lds_wait(str(FLG + 112), 4, "qi", tmp=26)
    def st():
        for f in range(8):
            so = s(sSOFF) if f < 4 else s(sT2)
            I(f"buffer_store_dwordx4 {v(vPK+4*f,4)}, {v(vT)}, {s(rP,4)}, {so} offen offset:{(f%4)*1024}{pol()}")
    if opt.partplain: dual(st)
    else:
        POL[0] = opt.partpol; st(); POL[0] = " sc1"
    def psflag():
        I(f"s_lshl_b32 {s(sT1)}, {s(sTI)}, 2")
        I(f"s_add_u32 {s(sT1)}, {s(sT1)}, {FLG + 64}")
        lds_set(s(sT1), tmp=26)
    if opt.holdq or opt.holdall == "issued": psflag()
    I(f"s_cmp_eq_u32 {s(sTI)}, 0")
    I(f"s_cbranch_scc0 L_noz")
    I(f"v_add_f32 {v(vT+6)}, {v(vT+6)}, {v(vT+7)}")
    I(f"v_add_f32 {v(vT+8)}, {v(vT+8)}, {v(vT+9)}")
    I(f"v_add_f32 {v(vT+6)}, {v(vT+6)}, {v(vT+8)}")
    I(f"s_lshl_b32 {s(sSOFF)}, {s(sCH)}, 8")
    I(f"s_add_u32 {s(sSOFF)}, {s(sSOFF)}, {O_Z}")
    I(f"buffer_store_dword {v(vT+6)}, {v(vT+3)}, {s(rP,4)}, {s(sSOFF)} offen sc1")
    L("L_noz")
    C("addresses for the reduction: quarter tile a of tile 'chunk': fragment 2*chunk + (a>>1), lanes (a&1)*32 + (l&31); producer parity = l>>5")
    vR = 128
    I(f"s_lshl_b32 {s(sT1)}, {s(sCH)}, 11")
    I(f"s_lshl_b32 {s(sT2)}, {s(sTI)}, 9")
    I(f"s_add_u32 {s(sT3)}, {s(sT1)}, {s(sT2)}")
    I(f"v_and_b32 {v(vX)}, 31, {v(vLANE)}")
    I(f"v_lshlrev_b32 {v(vX)}, 4, {v(vX)}")
    I(f"v_add_u32 {v(vX)}, {s(sT3)}, {v(vX)}")
    I(f"v_lshrrev_b32 {v(vX+1)}, 5, {v(vLANE)}")
    I(f"v_lshl_add_u32 {v(vX+1)}, {v(vX+1)}, 15, {v(vX)}")
    final_setup()
    flag_prepare()
    if opt.mred:
        I(f"v_and_b32 {v(vX+3)}, 31, {v(vLANE)}")
        I(f"v_and_b32 {v(vX+4)}, 1, {v(vX+3)}")
        I(f"v_lshlrev_b32 {v(vX+4)}, 4, {v(vX+4)}")
        I(f"v_mov_b32 {v(vX+5)}, 0x3f80")
        I(f"v_lshlrev_b32 {v(vX+4)}, {v(vX+4)}, {v(vX+5)}")
        I(f"v_lshrrev_b32 {v(vX+3)}, 1, {v(vX+3)}")
        for r in range(4):
            I(f"v_cmp_eq_u32 vcc, {r}, {v(vX+3)}")
            I(f"v_cndmask_b32 {v(vID+r)}, 0, {v(vX+4)}, vcc")
        I(f"v_lshrrev_b32 {v(vX+2)}, 5, {v(vLANE)}")
        I(f"v_lshl_add_u32 {v(vX+2)}, {v(vX+2)}, 3, {v(vX)}")
    if opt.dry:
        C("one wave walks through the final phase with EXEC = 0 (memory instructions skipped) to bring its code into the instruction cache")
        I(f"s_cmp_eq_u32 {s(sTI)}, 2")
        I(f"s_cbranch_scc0 L_nodry")
        I(f"s_mov_b64 exec, 0")
        I(f"s_branch L_dry_entry")
        L("L_dry_ret")
        I(f"s_mov_b64 exec, -1")
        L("L_nodry")
    I(f"s_waitcnt vmcnt(0)")
    stamp("A part drained")
    wave_flag(256)
    if opt.holdall == "drained": psflag()
    poll(256, "h1")
    stamp("A hop1")
    vZ = 192
    I(f"s_cmp_eq_u32 {s(sTI)}, 3")
    I(f"s_cbranch_scc0 L_noz2")
    I(f"s_mov_b32 {s(sSOFF)}, {O_Z}")
    for j in range(4):
        I(f"buffer_load_dwordx4 {v(vZ+4*j,4)}, {v(vL16)}, {s(rP,4)}, {s(sSOFF)} offen offset:{1024*j} sc1")
    L("L_noz2")
    I(f"s_mov_b32 {s(sSOFF)}, 0")
    for c in range(8):
        I(f"buffer_load_dwordx4 {v(vR+4*c,4)}, {v(vX+1)}, {s(rP,4)}, {s(sSOFF)} offen sc1")
        if c < 7: I(f"s_add_u32 {s(sSOFF)}, {s(sSOFF)}, 65536")
    if opt.holdall == "reduce": psflag()
    C("z (wave 3): lane l holds m = 4*(l&15)..+3 of producer 4j + (l>>4)")
    I(f"s_cmp_eq_u32 {s(sTI)}, 3")
    I(f"s_cbranch_scc0 L_noz3")
    I(f"s_waitcnt vmcnt(8)")
    for i in range(4):
        I(f"v_add_f32 {v(vZ+i)}, {v(vZ+i)}, {v(vZ+4+i)}")
        I(f"v_add_f32 {v(vZ+8+i)}, {v(vZ+8+i)}, {v(vZ+12+i)}")
    for i in range(4): I(f"v_add_f32 {v(vZ+i)}, {v(vZ+i)}, {v(vZ+8+i)}")
    for i in range(4): I(f"v_mov_b32 {v(vZ+4+i)}, {v(vZ+i)}")
    for i in range(4): I(f"v_permlane32_swap_b32 {v(vZ+i)}, {v(vZ+4+i)}")
    for i in range(4): I(f"v_add_f32 {v(vZ+i)}, {v(vZ+i)}, {v(vZ+4+i)}")
    for i in range(4): I(f"v_mov_b32 {v(vZ+4+i)}, {v(vZ+i)}")
    for i in range(4): I(f"v_permlane16_swap_b32 {v(vZ+i)}, {v(vZ+4+i)}")
    for i in range(4): I(f"v_add_f32 {v(vZ+i)}, {v(vZ+i)}, {v(vZ+4+i)}")
    I(f"v_cvt_pk_bf16_f32 {v(vZ)}, {v(vZ)}, {v(vZ+1)}")
    I(f"v_cvt_pk_bf16_f32 {v(vZ+1)}, {v(vZ+2)}, {v(vZ+3)}")
    I(f"v_and_b32 {v(vZ+2)}, 15, {v(vLANE)}")
    I(f"v_lshlrev_b32 {v(vZ+2)}, 3, {v(vZ+2)}")
    I(f"v_add_u32 {v(vZ+2)}, {ZF}, {v(vZ+2)}")
    I(f"ds_write_b64 {v(vZ+2)}, {v(vZ,2)}")
    I(f"s_waitcnt lgkmcnt(0)")
    lds_set(str(FLG + 52), tmp=vU)
    L("L_noz3")
    C("phi_q fragments now if they are there already")
    I(f"s_mov_b32 {s(sPQ)}, 0")
    I(f"v_and_b32 {v(vU)}, 1, {v(vLANE)}")
    I(f"v_lshlrev_b32 {v(vU)}, 2, {v(vU)}")
    I(f"v_add_u32 {v(vU)}, {FLG + 80}, {v(vU)}")
    I(f"ds_read_b32 {v(vU+1)}, {v(vU)}")
    I(f"s_waitcnt lgkmcnt(0)")
    I(f"v_cmp_ne_u32 vcc, {s(sNONCE)}, {v(vU+1)}")
    I(f"s_cbranch_vccnz L_nopq")
    for qi in range(2):
        for tt in range(4):
            I(f"ds_read_b128 {v(vPQ8+16*qi+4*tt,4)}, {v(vPA2)} offset:{qi*16384 + tt*1024}")
    I(f"s_mov_b32 {s(sPQ)}, 1")
    L("L_nopq")
    vS = 176
    C("sum of the 16 partials on the matrix pipe: D[j][n] += B[j][n] + B[8+j][n]  (A = two stacked 8x8 identities)")
    for c in range(8):
        I(f"s_waitcnt vmcnt({7-c})")
        cc = "0" if c == 0 else v(vS, 16)
        I(f"v_mfma_f32_32x32x16_bf16 {v(vS,16)}, {v(vID,4)}, {v(vR+4*c,4)}, {cc}")
    stamp("A red summed")
    I(f"v_cvt_pk_bf16_f32 {v(vS)}, {v(vS)}, {v(vS+1)}")
    I(f"v_cvt_pk_bf16_f32 {v(vS+1)}, {v(vS+2)}, {v(vS+3)}")
    I(f"s_mov_b32 {s(sSOFF)}, {O_F}")
    dual(lambda: I(f"buffer_store_dwordx2 {v(vS,2)}, {v(vX+2)}, {s(rP,4)}, {s(sSOFF)} offen{pol()}"))
    I(f"s_waitcnt vmcnt(0)")
    stamp("A reduced+drained")
    wave_flag(512)
    C("chunk 0 advances the epoch (all 16 workgroups of the head have read it)")
    I(f"s_cmp_eq_u32 {s(sCH)}, 0")
    I(f"s_cbranch_scc0 L_noep")
    I(f"s_cmp_eq_u32 {s(sTI)}, 1")
    I(f"s_cbranch_scc0 L_noep")
    I(f"s_mov_b64 exec, 1")
    I(f"v_mov_b32 {v(vT)}, 0")
    I(f"v_mov_b32 {v(vT+1)}, {s(sNONCE)}")
    I(f"s_mov_b32 {s(sT1)}, {O_FL}")
    I(f"buffer_store_dword {v(vT+1)}, {v(vT)}, {s(rP,4)}, {s(sT1)} offen sc1")
    I(f"s_mov_b64 exec, -1")
    L("L_noep")
    I(f"s_cmp_eq_u32 {s(sPQ)}, 1")
    I(f"s_cbranch_scc1 L_pqdone")
    phiq_frags("a")
    L("L_pqdone")
    STI[0] = 13
    I(f"s_branch L_final")

vPQ8 = 32
vKA = 64
vOP = 96
vAC3 = 128
vST = 192
vKG, vPA2, vRA, vSW, vSR, vOA, vU = 2, 3, 4, 5, 6, 7, 20
vRDS = 12
vRD = 4

def capture(fn):
    n = len(A.items)
    fn()
    got = [x.text for k, x in A.items[n:] if k == "i"]
    del A.items[n:]
    return got

def final_setup():
    I(f"s_and_b32 {s(sT3)}, {s(sWAVE)}, 3")
    I(f"s_lshr_b32 {s(sT2)}, {s(sWAVE)}, 2")
    I(f"v_bfe_u32 {v(vU+1)}, {v(vLANE)}, 2, 1")
    I(f"v_lshlrev_b32 {v(vU+1)}, 4, {v(vU+1)}")
    I(f"v_bfe_u32 {v(vU+2)}, {v(vLANE)}, 3, 2")
    I(f"v_lshl_add_u32 {v(vU+1)}, {v(vU+2)}, 2, {v(vU+1)}")
    I(f"v_and_b32 {v(vU+2)}, 3, {v(vLANE)}")
    I(f"v_add_u32 {v(vU+1)}, {v(vU+1)}, {v(vU+2)}")
    I(f"v_and_b32 {v(vU+2)}, 32, {v(vLANE)}")
    I(f"v_add_u32 {v(vU+1)}, {v(vU+1)}, {v(vU+2)}")
    I(f"v_lshlrev_b32 {v(vKG)}, 4, {v(vU+1)}")
    C("phi_q fragments of q tiles 2hq, 2hq+1; 1/den")
    I(f"s_lshl_b32 {s(sT1)}, {s(sT2)}, 15")
    I(f"s_add_u32 {s(sT1)}, {s(sT1)}, {QR}")
    I(f"v_add_u32 {v(vPA2)}, {s(sT1)}, {v(vL16)}")
    I(f"s_lshl_b32 {s(sT1)}, {s(sT2)}, 9")
    I(f"s_add_u32 {s(sT1)}, {s(sT1)}, {RD}")
    I(f"v_lshlrev_b32 {v(vRA)}, 2, {v(vLANE)}")
    I(f"v_add_u32 {v(vRA)}, {s(sT1)}, {v(vRA)}")
    C("private staging [2 q tiles][32 rows][128 B]: piece = 4 dl + 2 h + u, slot = piece ^ (row & 7)")
    I(f"s_lshl_b32 {s(sT1)}, {s(sWAVE)}, 13")
    I(f"s_add_u32 {s(sT1)}, {s(sT1)}, {VR}")
    I(f"v_lshrrev_b32 {v(vU+1)}, 5, {v(vLANE)}")
    I(f"v_lshlrev_b32 {v(vU+2)}, 1, {v(vU+1)}")
    I(f"v_and_b32 {v(vU+3)}, 7, {v(vLANE)}")
    I(f"v_xor_b32 {v(vU+2)}, {v(vU+2)}, {v(vU+3)}")
    I(f"v_lshlrev_b32 {v(vU+2)}, 4, {v(vU+2)}")
    I(f"v_and_b32 {v(vU+3)}, 31, {v(vLANE)}")
    I(f"v_lshl_add_u32 {v(vSW)}, {v(vU+3)}, 7, {v(vU+2)}")
    I(f"v_add_u32 {v(vSW)}, {s(sT1)}, {v(vSW)}")
    C("read back: row 8j + (l>>3), piece l&7")
    I(f"v_lshrrev_b32 {v(vU+1)}, 3, {v(vLANE)}")
    I(f"v_and_b32 {v(vU+2)}, 7, {v(vLANE)}")
    I(f"v_xor_b32 {v(vU+3)}, {v(vU+2)}, {v(vU+1)}")
    I(f"v_lshlrev_b32 {v(vU+3)}, 4, {v(vU+3)}")
    I(f"v_lshl_add_u32 {v(vSR)}, {v(vU+1)}, 7, {v(vU+3)}")
    I(f"v_add_u32 {v(vSR)}, {s(sT1)}, {v(vSR)}")
    C("output offset: (64 hq + (l>>3))*512 + p*128 + (l&7)*16")
    I(f"v_lshlrev_b32 {v(vU+2)}, 4, {v(vU+2)}")
    I(f"v_lshl_add_u32 {v(vOA)}, {v(vU+1)}, 9, {v(vU+2)}")
    I(f"s_lshl_b32 {s(sT1)}, {s(sT2)}, 15")
    I(f"s_lshl_b32 {s(sT2)}, {s(sT3)}, 7")
    I(f"s_add_u32 {s(sT1)}, {s(sT1)}, {s(sT2)}")
    I(f"v_add_u32 {v(vOA)}, {s(sT1)}, {v(vOA)}")

def team_b():
    C("================= team B =================")
    L("L_team_b")
    STI[0] = 2
    def preread():
        if opt.preread:
            C("bring the 2 KiB of the final kv image this workgroup writes into L2 (waves B0, B1: 1 KiB each)")
            I(f"s_cmp_lt_u32 {s(sTI)}, 2")
            I(f"s_cbranch_scc0 L_nopre")
            I(f"s_lshl_b32 {s(sT1)}, {s(sCH)}, 11")
            I(f"s_lshl_b32 {s(sT2)}, {s(sTI)}, 10")
            I(f"s_add_u32 {s(sT1)}, {s(sT1)}, {s(sT2)}")
            I(f"s_add_u32 {s(sT1)}, {s(sT1)}, {O_F}")
            I(f"buffer_load_dwordx4 {v(32,4)}, {v(vL16)}, {s(rP,4)}, {s(sT1)} offen")
            L("L_nopre")
    if not opt.early: preread()
    def pres_load(tag):
        if not opt.fast: return
        I(f"s_cmp_eq_u32 {s(sTI)}, 0")
        I(f"s_cbranch_scc0 L_nochk0{tag}")
        I(f"s_load_dwordx8 {s(20,8)}, {s(sEPA,2)}, {O_FL + 128} glc")
        I(f"s_load_dwordx8 {s(44,8)}, {s(sEPA,2)}, {O_FL + 160} glc")
        L(f"L_nochk0{tag}")
    def mode_check():
        if not opt.fast: return
        I(f"s_cmp_eq_u32 {s(sTI)}, 0")
        I(f"s_cbranch_scc0 L_nochk1")
        I(f"s_mov_b32 {s(sSPIN)}, 0")
        L("L_chk")
        I(f"s_waitcnt lgkmcnt(0)")
        I(f"s_mov_b32 {s(sT1)}, {s(sNONCE)}")
        I(f"s_not_b32 {s(sT2)}, {s(sNONCE)}")
        I(f"s_mov_b32 {s(sT3)}, 1")
        for j in range(16):
            r = (20 if j < 8 else 36) + j
            I(f"s_cmp_eq_u32 {s(r)}, {s(sPRES)}")
            I(f"s_cselect_b32 {s(sT1)}, {s(sT1)}, {s(sT2)}")
            I(f"s_lshr_b32 {s(r)}, {s(r)}, 4")
            I(f"s_lshr_b32 {s(sFAST)}, {s(sPRES)}, 4")
            I(f"s_cmp_eq_u32 {s(r)}, {s(sFAST)}")
            I(f"s_cselect_b32 {s(sT3)}, {s(sT3)}, 0")
        I(f"s_cmp_eq_u32 {s(sT3)}, 1")
        I(f"s_cbranch_scc1 L_chkd")
        I(f"s_add_u32 {s(sSPIN)}, {s(sSPIN)}, 1")
        I(f"s_cmp_ge_u32 {s(sSPIN)}, 12")
        I(f"s_cbranch_scc1 L_chkd")
        I(f"s_load_dwordx8 {s(20,8)}, {s(sEPA,2)}, {O_FL + 128} glc")
        I(f"s_load_dwordx8 {s(44,8)}, {s(sEPA,2)}, {O_FL + 160} glc")
        I(f"s_branch L_chk")
        L("L_chkd")
        if opt.forceslow: I(f"s_mov_b32 {s(sT1)}, {s(sT2)}")
        lds_set(str(FLG + 48), val=s(sT1))
        lds_set(str(FLG + 56))
        I(f"s_waitcnt lgkmcnt(0)")
        L("L_nochk1")
    def vflag(k):
        I(f"s_lshl_b32 {s(sT3)}, {s(sTI)}, 2")
        I(f"s_add_u32 {s(sT3)}, {s(sT3)}, {FLG + 16 + 16*k}")
        lds_set(s(sT3))
    VF[0] = vflag
    if opt.early:
        read_omega(QR)
        I(f"s_waitcnt vmcnt(4) lgkmcnt(0)")
        I(f"s_barrier")
        stamp("B B1")
        I(f"s_barrier")
        preread()
        I(f"s_mov_b32 {s(sT3)}, 8")
        v_issue(30, s(sT3), 8)
        I(f"s_lshl_b32 {s(sSOFF)}, {s(sTI)}, 14")
        for i in range(2): dma_row_instr(rQ, QR, i)
        I(f"s_waitcnt vmcnt(10)")
        vflag(0)
        pres_load("e")
        stamp("B V1 landed")
        for i in range(2, 8): dma_row_instr(rQ, QR, i)
        I(f"s_waitcnt vmcnt(8)")
        vflag(1)
        mode_check()
        stamp("B V2 landed")
        nh = opt.holdq
        for i in range(8, 16 - nh): dma_row_instr(rQ, QR, i)
        if opt.holdst:
            I(f"s_lshl_b32 {s(sT3)}, {s(sTI)}, 2")
            I(f"s_add_u32 {s(sT3)}, {s(sT3)}, {FLG + 112}")
            lds_set(s(sT3))
        if nh:
            lds_wait(str(FLG + 64), 4, "hq")
            for i in range(16 - nh, 16): dma_row_instr(rQ, QR, i)
        stamp("B q issued")
        if opt.codepf2:
            cb = "s[100:101]" if not opt.stamps else "s[52:53]"
            I(f"v_lshlrev_b32 {v(vX+6)}, 7, {v(vLANE)}")
            I(f"s_lshl_b32 {s(sT1)}, {s(sTI)}, 11")
            I(f"s_add_u32 {s(sT1)}, {s(sT1)}, {opt.codepf2}")
            I(f"v_add_u32 {v(vX+6)}, {s(sT1)}, {v(vX+6)}")
            I(f"v_min_u32 {v(vX+6)}, {opt.codelen}, {v(vX+6)}")
            I(f"global_load_dword v1, {v(vX+6)}, {cb}")
            I(f"s_waitcnt vmcnt(1)")
        else:
            I(f"s_waitcnt vmcnt(0)")
        stamp("B q landed")
    elif opt.kqv:
        I(f"s_lshl_b32 {s(sSOFF)}, {s(sTI)}, 14")
        for i in range(16): dma_row_instr(rQ, QR, i)
        I(f"s_waitcnt vmcnt(16)")
        I(f"s_barrier")
        stamp("B B1")
        read_omega(QR)
        I(f"s_waitcnt lgkmcnt(0)")
        I(f"s_barrier")
        dma_v()
        if opt.fast:
            I(f"s_cmp_eq_u32 {s(sTI)}, 0")
            I(f"s_cbranch_scc0 L_nochk0")
            I(f"s_load_dwordx8 {s(20,8)}, {s(sEPA,2)}, {O_FL + 128} glc")
            I(f"s_load_dwordx8 {s(44,8)}, {s(sEPA,2)}, {O_FL + 160} glc")
            L("L_nochk0")
        stamp("B v issued")
        I(f"s_waitcnt vmcnt(16)")
        stamp("B q landed")
        mode_check()
    else:
        if opt.bomega: read_omega(QR)
        dma_v()
        I(f"s_waitcnt vmcnt(16)")
        if opt.bomega: I(f"s_waitcnt lgkmcnt(0)")
        I(f"s_barrier")
        stamp("B B1")
        if not opt.bomega:
            read_omega(QR)
            I(f"s_waitcnt lgkmcnt(0)")
        I(f"s_barrier")
        if opt.fast:
            I(f"s_cmp_eq_u32 {s(sTI)}, 0")
            I(f"s_cbranch_scc0 L_nochk0")
            I(f"s_load_dwordx8 {s(20,8)}, {s(sEPA,2)}, {O_FL + 128} glc")
            I(f"s_load_dwordx8 {s(44,8)}, {s(sEPA,2)}, {O_FL + 160} glc")
            L("L_nochk0")
        def pace_signal():
            if not opt.stagger: return
            PS[0] += 1
            I(f"s_and_b32 {s(sT1)}, {s(sHEAD)}, 1")
            I(f"s_or_b32 {s(sT1)}, {s(sT1)}, {s(sTI)}")
            I(f"s_cmp_eq_u32 {s(sT1)}, 0")
            I(f"s_cbranch_scc0 L_nosigp{PS[0]}")
            I(f"s_lshl_b32 {s(sT1)}, {s(sCH)}, 2")
            I(f"s_add_u32 {s(sT1)}, {s(sT1)}, {O_FL + 768}")
            I(f"s_mov_b64 exec, 1")
            I(f"v_mov_b32 {v(vX+4)}, 0")
            I(f"v_mov_b32 {v(vX+5)}, {s(sNONCE)}")
            I(f"buffer_store_dword {v(vX+5)}, {v(vX+4)}, {s(rP,4)}, {s(sT1)} offen sc1")
            I(f"s_mov_b64 exec, -1")
            L(f"L_nosigp{PS[0]}")
        def pre(i):
            I(f"s_add_u32 {s(sT1)}, {s(sT0)}, {1024*i}")
            I(f"buffer_load_dwordx4 {v(32+4*(i%8),4)}, {v(vL16)}, {s(rP,4)}, {s(sT1)} offen{opt.prepol}")
        if opt.holdall:
            I(f"s_waitcnt vmcnt(8)")
            mode_check()
            vflag(0)
            stamp("B V1 landed")
            I(f"s_waitcnt vmcnt(0)")
            vflag(1)
            stamp("B V2 landed")
            lds_wait(str(FLG + 64), 4, "hq")
            I(f"s_lshl_b32 {s(sSOFF)}, {s(sTI)}, 14")
            for i in range(16): dma_row_instr(rQ, QR, i)
            stamp("B q issued")
            I(f"s_waitcnt vmcnt(0)")
            stamp("B q landed")
        if opt.pacept == "b2" and not opt.holdall: pace_signal()
        if not opt.holdall:
            if opt.prepart:
                I(f"s_lshl_b32 {s(sT0)}, {s(sCH)}, 15")
                I(f"s_lshl_b32 {s(sT1)}, {s(sTI)}, 13")
                I(f"s_add_u32 {s(sT0)}, {s(sT0)}, {s(sT1)}")
                for i in range(4): pre(i)
            else:
                I(f"s_lshl_b32 {s(sSOFF)}, {s(sTI)}, 14")
                for i in range(4): dma_row_instr(rQ, QR, i)
            I(f"s_waitcnt vmcnt(12)")
            I(f"s_lshl_b32 {s(sT3)}, {s(sTI)}, 2")
            I(f"s_add_u32 {s(sT3)}, {s(sT3)}, {FLG + 16}")
            if opt.fast:
                I(f"s_cmp_eq_u32 {s(sTI)}, 0")
                I(f"s_cbranch_scc0 L_nochk1")
                I(f"s_waitcnt lgkmcnt(0)")
                I(f"s_mov_b32 {s(sT1)}, {s(sNONCE)}")
                I(f"s_not_b32 {s(sT2)}, {s(sNONCE)}")
                for j in range(16):
                    I(f"s_cmp_eq_u32 {s((20 if j < 8 else 36) + j)}, {s(sPRES)}")
                    I(f"s_cselect_b32 {s(sT1)}, {s(sT1)}, {s(sT2)}")
                if opt.forceslow: I(f"s_mov_b32 {s(sT1)}, {s(sT2)}")
                lds_set(str(FLG + 48), val=s(sT1))
                lds_set(str(FLG + 56))
                I(f"s_waitcnt lgkmcnt(0)")
                L("L_nochk1")
            lds_set(s(sT3))
            if opt.pacept == "v1": pace_signal()
            stamp("B V1 landed")
            if opt.prepart:
                for i in range(4, 8): pre(i)
            else:
                for i in range(4, 8): dma_row_instr(rQ, QR, i)
            I(f"s_waitcnt vmcnt(8)")
            I(f"s_add_u32 {s(sT3)}, {s(sT3)}, 16")
            lds_set(s(sT3))
            if opt.pacept == "v2": pace_signal()
            stamp("B V2 landed")
            if opt.prepart:
                I(f"s_lshl_b32 {s(sSOFF)}, {s(sTI)}, 14")
                for i in range(16): dma_row_instr(rQ, QR, i)
            else:
                nh = opt.holdq
                for i in range(8, 16 - nh): dma_row_instr(rQ, QR, i)
                if nh:
                    I(f"s_lshl_b32 {s(sT3)}, {s(sTI)}, 2")
                    I(f"s_add_u32 {s(sT3)}, {s(sT3)}, {FLG + 64}")
                    lds_wait(s(sT3), 1, "hq")
                    for i in range(16 - nh, 16): dma_row_instr(rQ, QR, i)
            if opt.pacept == "q": pace_signal()
            if opt.holdst:
                I(f"s_lshl_b32 {s(sT3)}, {s(sTI)}, 2")
                I(f"s_add_u32 {s(sT3)}, {s(sT3)}, {FLG + 112}")
                lds_set(s(sT3))
            stamp("B q issued")
            I(f"s_waitcnt vmcnt(0)")
            stamp("B q landed")
    read_tile_frags()
    I(f"s_waitcnt lgkmcnt(0)")
    ssq()
    steps = ssq_reduce_steps()
    fs = capture(final_setup) if opt.bsetup else []
    kf = 0
    for t in range(16):
        c = "0" if t == 0 else v(vA1, 16)
        I(f"v_mfma_f32_32x32x16_bf16 {v(vA1,16)}, {v(W(0,t),4)}, {v(vKF+4*t,4)}, {c}")
        if 1 <= t <= 5:
            for x in steps[t-1]: I(x)
        if t == 6: I(f"v_mul_f32 {v(vSS)}, {s(sM132)}, {v(vSS)}")
        if not opt.mimicq:
            if t == 7: I(f"v_mul_f32 {v(vSS)}, {s(sLOG2E)}, {v(vSS)}")
            if t == 8: I(f"s_mov_b32 {s(sC025L)}, 0x3eb8aa3b")
            if t == 9: I(f"v_mov_b32 {v(vSS+3)}, {s(sEPS)}")
        n = 3 if t < 15 else len(fs) - kf
        for x in fs[kf:kf+n]: I(x)
        kf += n
    vY = 20
    vQ0 = 12
    vQ1 = 112
    def plain_ops(mt, dst):
        ops = []
        acc = lambda r: vA1 + 16*mt + r
        for g in range(2):
            for i in range(8): ops.append(f"v_fma_f32 {v(vY+i)}, {v(acc(8*g+i))}, {s(sC025L)}, {v(vSS)}")
            for i in range(8): ops.append(f"v_exp_f32 {v(vY+i)}, {v(vY+i)}")
            for i in range(8): ops.append(f"v_fma_f32 {v(vY+i)}, {v(vY+i)}, {s(sC0125)}, {v(vSS+3)}")
            for i in range(4): ops.append(f"v_cvt_pk_bf16_f32 {v(dst+4*g+i)}, {v(vY+2*i)}, {v(vY+2*i+1)}")
        return ops
    if not opt.mimicq:
        ops0 = plain_ops(0, vQ0)
        k = 0
        for t in range(16):
            c = "0" if t == 0 else v(vA1 + 16, 16)
            I(f"v_mfma_f32_32x32x16_bf16 {v(vA1+16,16)}, {v(W(1,t),4)}, {v(vKF+4*t,4)}, {c}")
            if t >= 1:
                n = 4 if t < 15 else len(ops0) - k
                for x in ops0[k:k+n]: I(x)
                k += n
        stamp("B gemm1 done")
        if opt.kqv:
            I(f"s_waitcnt vmcnt(8)")
            VF[0](0)
        for x in plain_ops(1, vPO + 8): I(x)
        if opt.kqv:
            I(f"s_waitcnt vmcnt(0)")
            VF[0](1)
            stamp("B V2 landed")
        for i in range(8): I(f"v_mov_b32 {v(vPO+i)}, {v(vQ0+i)}")
    else:
        for t in range(16):
            c = "0" if t == 0 else v(vA1 + 16, 16)
            I(f"v_mfma_f32_32x32x16_bf16 {v(vA1+16,16)}, {v(W(1,t),4)}, {v(vKF+4*t,4)}, {c}")
        stamp("B gemm1 done")
        I(f"v_mov_b32 {v(vEPS)}, {s(sEPS)}")
        I(f"v_cvt_pk_bf16_f32 {v(vSS)}, {v(vSS)}, 0")
        I(f"v_lshlrev_b32 {v(vNQ)}, 16, {v(vSS)}")
        for mt in range(2):
            pipeline_mimic(mt, lambda r: vNQ, vP4 + 8*mt)
        for i in range(16): I(f"v_mov_b32 {v(vPO+i)}, {v(vP4+i)}")
    I(f"s_lshl_b32 {s(sT1)}, {s(sTI)}, 14")
    I(f"s_add_u32 {s(sT1)}, {s(sT1)}, {QR}")
    I(f"v_add_u32 {v(vX)}, {s(sT1)}, {v(vL16)}")
    for t in range(4):
        I(f"ds_write_b128 {v(vX)}, {v(vPO+4*t,4)} offset:{t*1024}")
    I(f"s_waitcnt lgkmcnt(0)")
    I(f"s_lshl_b32 {s(sT1)}, {s(sTI)}, 2")
    I(f"s_add_u32 {s(sT1)}, {s(sT1)}, {FLG + 80}")
    lds_set(s(sT1))
    stamp("B phiq done")
    if not opt.bsetup: final_setup()
    phiq_frags("b")
    C("den = phi_q . z once z is there")
    vZF = 112; vDEN = 24; vRD = 28
    lds_wait(str(FLG + 52), 1, "z", tmp=vU)
    I(f"v_lshrrev_b32 {v(vDEN)}, 5, {v(vLANE)}")
    I(f"v_lshlrev_b32 {v(vDEN)}, 3, {v(vDEN)}")
    I(f"v_add_u32 {v(vDEN)}, {ZF}, {v(vDEN)}")
    for t in range(4):
        I(f"ds_read2_b64 {v(vZF+4*t,4)}, {v(vDEN)} offset0:{4*t} offset1:{4*t+2}")
    I(f"v_mov_b32 {v(vDEN+2)}, 0")
    I(f"v_mov_b32 {v(vDEN+3)}, 0")
    I(f"s_waitcnt lgkmcnt(0)")
    for i in range(16):
        I(f"v_dot2c_f32_bf16 {v(vDEN+2+(i&1))}, {v(vPO+i)}, {v(vZF+i)}")
    I(f"v_add_f32 {v(vDEN)}, {v(vDEN+2)}, {v(vDEN+3)}")
    I(f"v_mov_b32 {v(vDEN+1)}, {v(vDEN)}")
    I(f"v_permlane32_swap_b32 {v(vDEN)}, {v(vDEN+1)}")
    I(f"v_add_f32 {v(vDEN)}, {v(vDEN)}, {v(vDEN+1)}")
    I(f"v_cvt_pk_bf16_f32 {v(vDEN)}, {v(vDEN)}, {v(vDEN)}")
    I(f"v_lshlrev_b32 {v(vDEN)}, 16, {v(vDEN)}")
    I(f"v_add_f32 {v(vDEN)}, {s(sEPS)}, {v(vDEN)}")
    I(f"v_cvt_pk_bf16_f32 {v(vDEN)}, {v(vDEN)}, {v(vDEN)}")
    I(f"v_lshlrev_b32 {v(vDEN)}, 16, {v(vDEN)}")
    I(f"v_rcp_f32 {v(vRD)}, {v(vDEN)}")
    I(f"v_fma_f32 {v(vDEN+1)}, -{v(vDEN)}, {v(vRD)}, 1.0")
    I(f"v_fma_f32 {v(vRD)}, {v(vDEN+1)}, {v(vRD)}, {v(vRD)}")
    I(f"s_lshl_b32 {s(sT1)}, {s(sTI)}, 8")
    I(f"s_add_u32 {s(sT1)}, {s(sT1)}, {RD}")
    I(f"v_lshlrev_b32 {v(vDEN)}, 2, {v(vLANE)}")
    I(f"v_add_u32 {v(vDEN)}, {s(sT1)}, {v(vDEN)}")
    I(f"ds_write_b32 {v(vDEN)}, {v(vRD)}")
    I(f"s_waitcnt lgkmcnt(0)")
    I(f"s_lshl_b32 {s(sT1)}, {s(sTI)}, 2")
    I(f"s_add_u32 {s(sT1)}, {s(sT1)}, {FLG + 96}")
    lds_set(s(sT1))
    if opt.fast:
        I(f"v_mov_b32 {v(vDEN)}, {FLG + 48}")
        I(f"ds_read_b32 {v(vDEN+1)}, {v(vDEN)}")
        I(f"s_waitcnt lgkmcnt(0)")
        I(f"v_readfirstlane_b32 {s(sFAST)}, {v(vDEN+1)}")
        I(f"s_cmp_eq_u32 {s(sFAST)}, {s(sNONCE)}")
        I(f"s_cselect_b32 {s(sFAST)}, 1, 0")
    stamp("B den done")
    STI[0] = 13

def phiq_frags(tag):
    C("phi_q of the two q tiles")
    I(f"s_lshr_b32 {s(sT1)}, {s(sWAVE)}, 2")
    I(f"s_lshl_b32 {s(sT1)}, {s(sT1)}, 3")
    I(f"s_add_u32 {s(sSOFF)}, {s(sT1)}, {FLG + 80}")
    lds_wait(s(sSOFF), 2, "pq" + tag, tmp=vU)
    for qi in range(2):
        for t in range(4):
            I(f"ds_read_b128 {v(vPQ8+16*qi+4*t,4)}, {v(vPA2)} offset:{qi*16384 + t*1024}")

def G(tag):
    if opt.dry: I(f"s_cbranch_execz L_g_{tag}   ; nofence")
def GE(tag):
    if opt.dry: A.LN(f"L_g_{tag}")

def final():
    L("L_final")
    C("================= final: wave w = d tiles 2p,2p+1 x q tiles 2hq,2hq+1; no workgroup barrier =================")
    stamp("F phiq read")
    C("flags of the four reducing workgroups 4p..4p+3 (16 words)")
    I(f"s_and_b32 {s(sT3)}, {s(sWAVE)}, 3")
    I(f"s_lshl_b32 {s(sT2)}, {s(sT3)}, 6")
    I(f"s_add_u32 {s(sT2)}, {s(sT2)}, {O_FL + 512}")
    I(f"s_mov_b32 {s(sSPIN)}, 0")
    I(f"v_and_b32 {v(vU)}, 15, {v(vLANE)}")
    I(f"v_lshlrev_b32 {v(vU)}, 2, {v(vU)}")
    L("L_spin_h2")
    I(f"buffer_load_dword {v(vU+1)}, {v(vU)}, {s(rP,4)}, {s(sT2)} offen sc1")
    I(f"s_waitcnt vmcnt(0)")
    I(f"v_cmp_ne_u32 vcc, {s(sNONCE)}, {v(vU+1)}")
    I(f"s_cbranch_vccz L_spun_h2")
    I(f"s_cmp_lg_u32 {s(sFAST)}, 0")
    I(f"s_cbranch_scc1 L_nap_h2")
    I(f"s_sleep 12")
    L("L_nap_h2")
    I(f"s_add_u32 {s(sSPIN)}, {s(sSPIN)}, 1")
    I(f"s_cmp_lt_u32 {s(sSPIN)}, {opt.spin_limit}")
    I(f"s_cbranch_scc1 L_spin_h2")
    L("L_spun_h2")
    stamp("F hop2")
    A.LN("L_dry_entry")
    G("kv")
    I(f"s_lshl_b32 {s(sT1)}, {s(sT3)}, 13")
    I(f"s_add_u32 {s(sT1)}, {s(sT1)}, {O_F}")
    I(f"s_add_u32 {s(sT2)}, {s(sT1)}, 4096")
    for dl in range(2):
        for t in range(4):
            I(f"buffer_load_dwordx4 {v(vKA+16*dl+4*t,4)}, {v(vKG)}, {s(rP,4)}, {s(sT1 if dl == 0 else sT2)} offen offset:{t*1024} sc1")
    I(f"s_lshr_b32 {s(sT1)}, {s(sWAVE)}, 2")
    I(f"s_lshl_b32 {s(sT1)}, {s(sT1)}, 3")
    I(f"s_add_u32 {s(sSOFF)}, {s(sT1)}, {FLG + 96}")
    lds_wait(s(sSOFF), 2, "rd", tmp=vU)
    for qi in range(2):
        I(f"ds_read_b32 {v(vRDS+2*qi)}, {v(vRA)} offset:{256*qi}")
    GE("kv")
    so = [74, 75, 76, 77, 78, 79, 80, 81] if not opt.stamps else None
    def mm(qi, dl):
        acc = vAC3 + 16*(2*qi + dl)
        for t in range(4):
            c = "0" if t == 0 else v(acc, 16)
            I(f"v_mfma_f32_32x32x16_bf16 {v(acc,16)}, {v(vKA+16*dl+4*t,4)}, {v(vPQ8+16*qi+4*t,4)}, {c}")
    def epi(qi, dl):
        acc = vAC3 + 16*(2*qi + dl); op = vOP + 16*qi + 8*dl
        if opt.mimicnum:
            for k in range(8): I(f"v_cvt_pk_bf16_f32 {v(op+k)}, {v(acc+2*k)}, {v(acc+2*k+1)}")
            for k in range(8):
                I(f"v_lshlrev_b32 {v(acc+2*k)}, 16, {v(op+k)}")
                I(f"v_and_b32 {v(acc+2*k+1)}, {s(sMASKH)}, {v(op+k)}")
        for k in range(8): I(f"v_pk_mul_f32 {v(acc+2*k,2)}, {v(acc+2*k,2)}, {v(vRDS+2*qi,2)} op_sel_hi:[1,0]")
        for k in range(8): I(f"v_cvt_pk_bf16_f32 {v(op+k)}, {v(acc+2*k)}, {v(acc+2*k+1)}")
        G(f"w{qi}{dl}")
        for u in range(2):
            x = 64*dl + 16*u
            reg = vSW if x == 0 else vU + (x // 16 - 1 if x < 64 else x // 16 - 3)
            I(f"ds_write_b128 {v(reg)}, {v(op+4*u,4)} offset:{4096*qi}")
        GE(f"w{qi}{dl}")
    def R(qi):
        G(f"r{qi}")
        for j in range(4):
            I(f"ds_read_b128 {v(vST+16*qi+4*j,4)}, {v(vSR)} offset:{4096*qi + 1024*j}")
    def S(qi):
        for j in range(4):
            row = 32*qi + 8*j
            I(f"s_mov_b32 {s(sSOFF)}, {row*512}")
            I(f"s_waitcnt lgkmcnt({3-j})")
            I(f"buffer_store_dwordx4 {v(vST+16*qi+4*j,4)}, {v(vOA)}, {s(rO,4)}, {s(sSOFF)} offen{opt.ost}")
        GE(f"r{qi}")
    I(f"v_xor_b32 {v(vU)}, 16, {v(vSW)}")
    I(f"v_xor_b32 {v(vU+1)}, 64, {v(vSW)}")
    I(f"v_xor_b32 {v(vU+2)}, 80, {v(vSW)}")
    G("wt0")
    I(f"s_waitcnt vmcnt(4) lgkmcnt(0)")
    GE("wt0")
    stamp("F kv there")
    mm(0, 0)
    G("wt1")
    I(f"s_waitcnt vmcnt(0)")
    GE("wt1")
    mm(0, 1)
    epi(0, 0)
    epi(0, 1)
    mm(1, 0)
    mm(1, 1)
    I(f"s_waitcnt lgkmcnt(0)")
    R(0)
    S(0)
    epi(1, 0)
    epi(1, 1)
    I(f"s_waitcnt lgkmcnt(0)")
    R(1)
    S(1)
    if opt.dry: I(f"s_cbranch_execz L_dry_ret   ; nofence")
    STI[0] = 18
    stamp("stores issued")
    if opt.stamps: I("s_waitcnt vmcnt(0)")
    stamp("stores done")
    stamps_flush("f")

def build():
    set_regions(opt.kqv)
    common_start()
    I(f"s_cmp_ge_u32 {s(sWAVE)}, 4")
    I(f"s_cbranch_scc1 L_team_b")
    team_a()
    team_b()
    final()
    L("L_end")
    I("s_endpgm")
    body = A.render()
    hdr = f"""; Fused FAVOR+ (RFA) linear attention for B=1 H=16 S=2048 D=256 M=64, bf16.
;                       publish the bf16 partial, reduce one 64x16 slice of kv over the head's 16 partials, publish it
; write-through stores + drained flag words always work; when a head's 16 workgroups report (presence words) that they
; @launch grid=(256,1,1) block=(512,1,1) lds={LDS_BYTES}
.amdgcn_target "amdgcn-amd-amdhsa--gfx950"
.text
.globl {NAME}
.p2align 8
.type {NAME},@function
{NAME}:
"""
    ftr = f"""
.section .rodata,"a"
.p2align 6
.amdhsa_kernel {NAME}
  .amdhsa_next_free_vgpr 256
  .amdhsa_next_free_sgpr 102
  .amdhsa_accum_offset 256
  .amdhsa_group_segment_fixed_size 0
  .amdhsa_kernarg_size 56
  .amdhsa_user_sgpr_count 2
  .amdhsa_user_sgpr_kernarg_segment_ptr 1
  .amdhsa_system_sgpr_workgroup_id_x 1
  .amdhsa_float_denorm_mode_32 3
.end_amdhsa_kernel
"""
    return hdr + body + ftr

if __name__ == "__main__":
    out = sys.argv[1]
    for a in sys.argv[2:]:
        if a == "stamps": opt.stamps = True
        elif a == "light": opt.stamps = True; opt.light = True
        elif a == "nont": opt.nt = False
        elif a == "nofast": opt.fast = False
        elif a == "forceslow": opt.forceslow = True
        elif a == "nopretouch": opt.pretouch = False
        elif a == "mimicq": opt.mimicq = True; opt.bsetup = False
        elif a == "nomred": opt.mred = False
        elif a.startswith("wsoff="): opt.wsoff = int(a.split("=")[1]) << 20
        elif a == "dry": opt.dry = True
        elif a.startswith("shift="): opt.shift = int(a.split("=")[1])
        elif a.startswith("codepf2="): opt.codepf2 = int(a.split("=")[1])
        elif a.startswith("codelen="): opt.codelen = int(a.split("=")[1])
        elif a.startswith("forder="): opt.forder = int(a.split("=")[1])
        elif a == "nobsetup": opt.bsetup = False
        elif a == "early": opt.early = True
        elif a == "kko": opt.kko = True; opt.bomega = False
        elif a.startswith("holdall="): opt.holdall = a.split("=")[1]
        elif a == "kok": opt.kok = True
        elif a == "nokokbar": opt.kokbar = False
        elif a == "cyc": opt.cyc = True
        elif a == "holdst": opt.holdst = True
        elif a == "nobomega": opt.bomega = False
        elif a == "nokfast": opt.kfast = False
        elif a.startswith("kshadow="): opt.kshadow = int(a.split("=")[1])
        elif a.startswith("holdq="): opt.holdq = int(a.split("=")[1])
        elif a == "kqv": opt.kqv = True
        elif a.startswith("stagger="): opt.stagger = True; opt.pacept = a.split("=")[1]
        elif a == "prepart": opt.prepart = True; opt.partplain = True
        elif a.startswith("prepol="): opt.prepol = (" " + a.split("=")[1].replace("+", " ")).rstrip()
        elif a.startswith("partpol="): opt.partpol = " " + a.split("=")[1].replace("+", " ")
        elif a == "codepf": opt.codepf = True
        elif a == "partplain": opt.partplain = True
        elif a == "nopreread": opt.preread = False
        elif a == "mimicnum": opt.mimicnum = True
        elif a.startswith("dbgwg="): opt.dbgwg = int(a.split("=")[1])
        elif a.startswith("dbgwave="): opt.dbgwave = int(a.split("=")[1])
        elif a.startswith("ost="): opt.ost = " " + a.split("=")[1].replace("+", " ")
        else: raise SystemExit("unknown option " + a)
    txt = build()
    open(out, "w").write(txt)
    if opt.stamps: json.dump(STN, open(out + ".stamps.json", "w"))
    print("wrote", out, "nops inserted:", A.nops, "lines", txt.count("\n"))
```

```python
import sys, json, struct
from asmlib import *

NAME = "standalone__linear_kernel_rfa__prompt_kernel"
class O: pass
opt = O()
opt.spin_limit = 60000
opt.stamps = False
opt.nt = True
opt.fast = True
opt.forceslow = False
opt.dbgwg = None
opt.dbgwave = 0
opt.ost = " nt"
opt.pretouch = True
opt.partplain = False
opt.preread = True
opt.codepf = False
opt.partpol = ' sc1'
opt.prepart = False
opt.prepol = ' nt'
opt.light = False
opt.stagger = False
opt.pacept = 'v2'
opt.pacemax = 40
opt.kqv = False
opt.holdq = 0
opt.bomega = True
opt.kfast = True
opt.kshadow = 6
opt.holdst = False
opt.cyc = False
opt.kok = False
opt.kokbar = True
opt.holdall = ''
opt.kko = False
opt.early = False
opt.bsetup = True
opt.mred = True
opt.forder = 0
opt.codelen = 11648
opt.codepf2 = 0
opt.shift = 0
opt.dry = False
opt.wsoff = 0
opt.fsleep = 0
opt.cpfew = 0
opt.mimicq = False
opt.mimicnum = False

KQ = 0
QR = 0
VR = 65536
WR = 131072
PHI = WR
ZB = WR + 16384
ZF = WR + 17408
FLG = WR + 17664
RD = WR + 18432
KVF = VR
OSA = VR + 32768
def set_regions(kqv):
    global QR, VR, KVF, OSA
    QR, VR = (65536, 0) if kqv else (0, 65536)
    KVF = VR; OSA = VR + 32768
LDS_BYTES = 163840
HS = 1 << 20
O_PART = 0
O_F = 524288
O_Z = 524288 + 32768
O_FL = 524288 + 32768 + 4096
WS_ST = 20 << 20

sQp, sKp, sVp, sWp, sOp, sDp, sSp = 4, 6, 8, 10, 12, 14, 16
sHEAD, sCH = 18, 19
rK, rV, rQ, rW, rO, rP, rL = 20, 24, 28, 32, 36, 40, 52
sWAVE, sTI = 56, 57
sT0, sT1, sT2, sT3 = 58, 59, 60, 61
sNONCE, sFAST = 62, 63
sC025L, sC025H, sLOG2E, sC0125, sMASKH, sONES = 64, 65, 66, 67, 68, 69
sSPIN, sSOFF, sEPS, sM132 = 70, 71, 72, 73
sXCC, sPRES = 94, 95
sPQ = 73
sEPA = 96
sPW = 40
sJUNK = 44

A = Asm()
I, L, C = A.I, A.L, A.C
STI = [0]; STN = []; PS = [0]; VF = [None]
def stamp(name=""):
    if not opt.stamps: return
    if opt.light and name not in ("start", "stores done"):
        STN.append((STI[0], name)); STI[0] += 1
        return
    C("stamp %s" % name)
    I("s_memtime s[98:99]" if opt.cyc else "s_memrealtime s[98:99]")
    I("s_waitcnt lgkmcnt(0)")
    I("s_mov_b32 s%d, s98" % (74 + STI[0]))
    STN.append((STI[0], name)); STI[0] += 1
def stamps_flush(tag):
    if not opt.stamps: return
    I("s_and_b32 s97, s56, 3"); I("s_cmp_eq_u32 s97, 0"); I("s_cbranch_scc0 L_nost_%s" % tag)
    I("s_lshr_b32 s97, s56, 2"); I("s_lshl_b32 s96, s2, 1"); I("s_add_u32 s96, s96, s97"); I("s_lshl_b32 s96, s96, 7")
    I("s_add_u32 s96, s96, %d" % WS_ST)
    I("s_add_u32 s40, s16, s96"); I("s_addc_u32 s41, s17, 0"); I("s_and_b32 s41, s41, 0xffff"); I("s_mov_b32 s42, 128"); I("s_mov_b32 s43, 0x20000")
    I("s_mov_b64 exec, 1"); I("v_mov_b32 v1, 0")
    for i in range(20):
        I("v_mov_b32 v2, s%d" % (74 + i)); I("buffer_store_dword v2, v1, s[40:43], 0 offen offset:%d" % (4 * i))
    I("s_waitcnt vmcnt(0)")
    if opt.dbgwg is not None:
        I("s_cmp_eq_u32 s2, %d" % opt.dbgwg); I("s_cbranch_scc0 L_nodbg")
        I("s_cmp_eq_u32 s56, %d" % opt.dbgwave); I("s_cbranch_scc0 L_nodbg")
        I("s_mov_b32 s40, s14"); I("s_and_b32 s41, s15, 0xffff"); I("s_mov_b32 s42, 256")
        I("s_sub_u32 s97, s74, s100"); I("v_mov_b32 v2, s97"); I("buffer_store_dword v2, v1, s[40:43], 0 offen offset:60")
        idx = [i for i in range(1, 14)] + [18, 19]
        for j, i in enumerate(idx):
            I("s_sub_u32 s97, s%d, s74" % (74 + i)); I("v_mov_b32 v2, s97"); I("buffer_store_dword v2, v1, s[40:43], 0 offen offset:%d" % (4 * j))
        I("s_waitcnt vmcnt(0)")
        L("L_nodbg")
    I("s_mov_b64 exec, -1")
    L("L_nost_%s" % tag)

def srd(r, ptr, off_s, size):
    if off_s is None:
        I(f"s_mov_b32 {s(r)}, {s(ptr)}")
        I(f"s_and_b32 {s(r+1)}, {s(ptr+1)}, 0xffff")
    else:
        I(f"s_add_u32 {s(r)}, {s(ptr)}, {s(off_s)}")
        I(f"s_addc_u32 {s(r+1)}, {s(ptr+1)}, 0")
        I(f"s_and_b32 {s(r+1)}, {s(r+1)}, 0xffff")
    I(f"s_mov_b32 {s(r+2)}, {size}")
    I(f"s_mov_b32 {s(r+3)}, 0x20000")

NT = lambda: " nt" if opt.nt else ""
vLANE = 0
vA = 2
vD = 10
vL16 = 11
vT = 12
vSS = 28
vW = 128
def W(mt, t): return vW + mt * 64 + t * 4
vKF = 32
vA1 = 96
vP4 = 12
vNQ = 32
vNK = 48
vONE = 52
vP1 = 56
vTT = 60
vEPS = 68
vZP = 69
vX = 72
vPQ = 32
vPO = 96
vID = 80

POL = [" sc1"]
def pol(): return POL[0]
DUAL = [0]
def dual(fn):
    if not opt.fast:
        POL[0] = " sc1"; fn(); return
    DUAL[0] += 1; n = DUAL[0]
    I(f"s_cmp_lg_u32 {s(sFAST)}, 0")
    I(f"s_cbranch_scc1 L_fast{n}")
    POL[0] = " sc1"; fn()
    I(f"s_branch L_join{n}")
    L(f"L_fast{n}")
    POL[0] = ""; fn()
    L(f"L_join{n}")
    POL[0] = " sc1"

def prologue():
    for _ in range(opt.shift): I("s_nop 0")
    if opt.stamps: I("s_memrealtime s[100:101]")
    I(f"s_cmp_ge_u32 s2, 256")
    I(f"s_cbranch_scc1 L_end")
    I(f"s_load_dwordx4 s[4:7], s[0:1], 0")
    I(f"s_load_dwordx4 s[8:11], s[0:1], 16")
    I(f"s_load_dwordx4 s[12:15], s[0:1], 32")
    I(f"s_load_dwordx2 s[16:17], s[0:1], 48")
    if opt.codepf:
        C("pull the kernel's own code into L2 while the kernel arguments are on their way (128 B per lane)")
        cb = "s[100:101]" if not opt.stamps else "s[52:53]"
        I(f"s_getpc_b64 {cb}")
        if opt.cpfew:
            C("only the first wave of the first workgroups (two per compute die under round-robin placement) touches the code")
            I(f"s_cmp_lt_u32 s2, {opt.cpfew}")
            I(f"s_cbranch_scc0 L_nocp")
            I(f"v_cmp_gt_u32 vcc, 64, v0")
            I(f"s_cbranch_vccz L_nocp")
        I(f"v_and_b32 v1, 63, v0")
        I(f"v_lshlrev_b32 v1, 7, v1")
        I(f"global_load_dword v32, v1, {cb}")
        I(f"v_add_u32 v1, 8192, v1")
        I(f"v_min_u32 v1, {opt.codelen}, v1")
        I(f"global_load_dword v33, v1, {cb}")
        if opt.cpfew: L("L_nocp")
    I(f"v_lshrrev_b32 v1, 6, v0")
    I(f"v_and_b32 {v(vLANE)}, 63, v0")
    I(f"v_readfirstlane_b32 {s(sWAVE)}, v1")
    I(f"s_and_b32 {s(sT0)}, s2, 7")
    I(f"s_lshr_b32 {s(sT1)}, s2, 3")
    I(f"s_lshr_b32 {s(sHEAD)}, {s(sT1)}, 4")
    I(f"s_lshl_b32 {s(sT0)}, {s(sT0)}, 1")
    I(f"s_add_u32 {s(sHEAD)}, {s(sHEAD)}, {s(sT0)}")
    I(f"s_and_b32 {s(sCH)}, {s(sT1)}, 15")
    I(f"s_and_b32 {s(sTI)}, {s(sWAVE)}, 3")
    I(f"v_lshrrev_b32 {v(vT)}, 5, {v(vLANE)}")
    I(f"v_and_b32 {v(vT+1)}, 31, {v(vLANE)}")
    I(f"v_xor_b32 {v(vT+1)}, {v(vT+1)}, {v(vT)}")
    I(f"v_lshlrev_b32 {v(vT+1)}, 4, {v(vT+1)}")
    I(f"v_lshl_add_u32 {v(vD)}, {v(vT)}, 9, {v(vT+1)}")
    I(f"v_lshlrev_b32 {v(vL16)}, 4, {v(vLANE)}")
    I(f"s_lshl_b32 {s(sT0)}, {s(sHEAD)}, 20")
    I(f"s_lshl_b32 {s(sT1)}, {s(sCH)}, 16")
    I(f"s_add_u32 {s(sT0)}, {s(sT0)}, {s(sT1)}")
    I(f"s_waitcnt lgkmcnt(0)")
    srd(rW, sWp, None, 32768)
    srd(rK, sKp, sT0, 65536)

def dma_omega():
    I(f"s_and_b32 {s(sT1)}, {s(sWAVE)}, 1")
    I(f"s_lshl_b32 {s(sT1)}, {s(sT1)}, 7")
    I(f"s_lshl_b32 {s(sSOFF)}, {s(sWAVE)}, 12")
    I(f"s_add_u32 m0, {s(sSOFF)}, {WR}")
    for i in range(4):
        I(f"s_add_u32 {s(sT2)}, {s(sT1)}, {32*i}")
        I(f"v_xor_b32 {v(vT)}, {s(sT2)}, {v(vD)}")
        I(f"buffer_load_dwordx4 {v(vT)}, {s(rW,4)}, {s(sSOFF)} offen offset:{1024*i} lds")

def dma_row_instr(r, base_lds, i):
    if i % 4 == 0:
        if i: I(f"s_add_u32 {s(sSOFF)}, {s(sSOFF)}, 4096")
        I(f"s_add_u32 m0, {s(sSOFF)}, {base_lds}")
    if i & 7:
        I(f"v_xor_b32 {v(vT)}, {32*(i&7)}, {v(vD)}")
        I(f"buffer_load_dwordx4 {v(vT)}, {s(r,4)}, {s(sSOFF)} offen offset:{1024*(i%4)}{NT()} lds")
    else:
        I(f"buffer_load_dwordx4 {v(vD)}, {s(r,4)}, {s(sSOFF)} offen offset:{1024*(i%4)}{NT()} lds")

def dma_k():
    I(f"s_lshl_b32 {s(sSOFF)}, {s(sWAVE)}, 13")
    for i in range(8): dma_row_instr(rK, KQ, i)

vVD = 9
def v_setup(reg):
    I(f"v_lshrrev_b32 {v(reg)}, 4, {v(vLANE)}")
    I(f"v_and_b32 {v(reg)}, 1, {v(reg)}")
    I(f"v_lshlrev_b32 {v(reg)}, 2, {v(reg)}")
    I(f"v_and_b32 {v(vT+1)}, 7, {v(vLANE)}")
    I(f"v_xor_b32 {v(reg)}, {v(reg)}, {v(vT+1)}")
    I(f"v_lshlrev_b32 {v(reg)}, 4, {v(reg)}")
    I(f"v_lshrrev_b32 {v(vT+1)}, 3, {v(vLANE)}")
    I(f"v_lshl_add_u32 {v(reg)}, {v(vT+1)}, 9, {v(reg)}")

def v_issue(reg, first_s, n):
    I(f"s_lshl_b32 {s(sSOFF)}, {first_s}, 12")
    I(f"s_lshl_b32 {s(sT1)}, {s(sTI)}, 7")
    I(f"s_add_u32 {s(sSOFF)}, {s(sSOFF)}, {s(sT1)}")
    I(f"s_lshl_b32 {s(sT1)}, {first_s}, 10")
    I(f"s_lshl_b32 {s(sT2)}, {s(sTI)}, 14")
    I(f"s_add_u32 {s(sT1)}, {s(sT1)}, {s(sT2)}")
    I(f"s_add_u32 {s(sT1)}, {s(sT1)}, {VR}")
    for i in range(n):
        I(f"s_add_u32 m0, {s(sT1)}, {1024*i}")
        if i: I(f"s_add_u32 {s(sSOFF)}, {s(sSOFF)}, 4096")
        I(f"buffer_load_dwordx4 {v(reg)}, {s(rV,4)}, {s(sSOFF)} offen{NT()} lds")

def dma_v():
    C("team B wave b: V slice b (128 B columns), all 128 rows, 16 instructions of 8 rows")
    v_setup(vT+2)
    I(f"s_mov_b32 {s(sT3)}, 0")
    v_issue(vT+2, s(sT3), 16)

def tile_addrs():
    I(f"v_and_b32 {v(vT)}, 31, {v(vLANE)}")
    I(f"v_lshrrev_b32 {v(vT+1)}, 5, {v(vLANE)}")
    I(f"v_and_b32 {v(vT+2)}, 15, {v(vLANE)}")
    I(f"v_xor_b32 {v(vT+2)}, {v(vT+2)}, {v(vT+1)}")
    I(f"v_lshlrev_b32 {v(vT+2)}, 4, {v(vT+2)}")
    I(f"v_lshl_add_u32 {v(vT+2)}, {v(vT)}, 9, {v(vT+2)}")
    I(f"v_add_u32 {v(vA)}, {WR}, {v(vT+2)}")
    for x in range(1, 8):
        I(f"v_xor_b32 {v(vA+x)}, {32*x}, {v(vA)}")

def read_omega(base):
    for t in range(16):
        for mt in range(2):
            I(f"ds_read_b128 {v(W(mt,t),4)}, {v(vA+(t&7))} offset:{(t>>3)*256 + mt*16384}")
    I(f"s_lshl_b32 {s(sT1)}, {s(sTI)}, 14")
    I(f"s_sub_u32 {s(sT1)}, {s(sT1)}, {WR - base}")
    for x in range(8):
        I(f"v_add_u32 {v(vA+x)}, {s(sT1)}, {v(vA+x)}")

def consts():
    I(f"s_mov_b32 {s(sC025L)}, 0x00003e80")
    I(f"s_mov_b32 {s(sC025H)}, 0x3e800000")
    I(f"s_mov_b32 {s(sLOG2E)}, 0x3fb8aa3b")
    I(f"s_mov_b32 {s(sC0125)}, 0x3e000000")
    I(f"s_mov_b32 {s(sMASKH)}, 0xffff0000")
    I(f"s_mov_b32 {s(sONES)}, 0x3f803f80")
    I(f"s_mov_b32 {s(sEPS)}, 0x358637bd")
    I(f"s_mov_b32 {s(sM132)}, 0xbd000000")

def read_tile_frags():
    for t in range(16):
        I(f"ds_read_b128 {v(vKF+4*t,4)}, {v(vA+(t&7))} offset:{(t>>3)*256}")
    for i in range(4): I(f"v_mov_b32 {v(vSS+i)}, 0")

def ssq(counted=False):
    for t in range(16):
        if counted and t % 2 == 0: I(f"s_waitcnt lgkmcnt({max(0, 14 - t)})")
        for i in range(4):
            I(f"v_dot2c_f32_bf16 {v(vSS+i)}, {v(vKF+4*t+i)}, {v(vKF+4*t+i)}")

def ssq_reduce_steps():
    return [
        [f"v_add_f32 {v(vSS)}, {v(vSS)}, {v(vSS+1)}", f"v_add_f32 {v(vSS+2)}, {v(vSS+2)}, {v(vSS+3)}"],
        [f"v_add_f32 {v(vSS)}, {v(vSS)}, {v(vSS+2)}"],
        [f"v_mov_b32 {v(vSS+1)}, {v(vSS)}"],
        [f"v_permlane32_swap_b32 {v(vSS)}, {v(vSS+1)}"],
        [f"v_add_f32 {v(vSS)}, {v(vSS)}, {v(vSS+1)}"],
    ]

def pipeline_mimic(mt, nq_of, p4base):
    for g in range(2):
        prs = [4*g + i for i in range(4)]
        acc = lambda r: vA1 + 16*mt + r
        for i, p in enumerate(prs): I(f"v_cvt_pk_bf16_f32 {v(vP1+i)}, {v(acc(2*p))}, {v(acc(2*p+1))}")
        for i, p in enumerate(prs):
            I(f"v_dot2_f32_bf16 {v(vTT+2*i)}, {v(vP1+i)}, {s(sC025L)}, {v(nq_of(2*p))}")
            I(f"v_dot2_f32_bf16 {v(vTT+2*i+1)}, {v(vP1+i)}, {s(sC025H)}, {v(nq_of(2*p+1))}")
        for i, p in enumerate(prs): I(f"v_cvt_pk_bf16_f32 {v(vP1+i)}, {v(vTT+2*i)}, {v(vTT+2*i+1)}")
        for i, p in enumerate(prs):
            I(f"v_lshlrev_b32 {v(vTT+2*i)}, 16, {v(vP1+i)}")
            I(f"v_and_b32 {v(vTT+2*i+1)}, {s(sMASKH)}, {v(vP1+i)}")
        for i in range(8): I(f"v_mul_f32 {v(vTT+i)}, {s(sLOG2E)}, {v(vTT+i)}")
        for i in range(8): I(f"v_exp_f32 {v(vTT+i)}, {v(vTT+i)}")
        for i in range(8): I(f"v_fma_f32 {v(vTT+i)}, {v(vTT+i)}, {s(sC0125)}, {v(vEPS)}")
        for i, p in enumerate(prs): I(f"v_cvt_pk_bf16_f32 {v(p4base+p)}, {v(vTT+2*i)}, {v(vTT+2*i+1)}")

def lds_wait(addr, n, tag, tmp=None):
    tmp = vX + 4 if tmp is None else tmp
    I(f"s_mov_b32 {s(sSPIN)}, 0")
    if n == 1:
        I(f"v_mov_b32 {v(tmp)}, {addr}")
    else:
        I(f"v_and_b32 {v(tmp)}, {n-1}, {v(vLANE)}")
        I(f"v_lshlrev_b32 {v(tmp)}, 2, {v(tmp)}")
        I(f"v_add_u32 {v(tmp)}, {addr}, {v(tmp)}")
    L(f"L_ls_{tag}")
    I(f"ds_read_b32 {v(tmp+1)}, {v(tmp)}")
    I(f"s_waitcnt lgkmcnt(0)")
    I(f"v_cmp_ne_u32 vcc, {s(sNONCE)}, {v(tmp+1)}")
    I(f"s_cbranch_vccz L_lsd_{tag}")
    I(f"s_add_u32 {s(sSPIN)}, {s(sSPIN)}, 1")
    I(f"s_cmp_lt_u32 {s(sSPIN)}, {opt.spin_limit*8}")
    I(f"s_cbranch_scc1 L_ls_{tag}")
    L(f"L_lsd_{tag}")

def lds_set(addr, tmp=None, val=None):
    tmp = vX + 4 if tmp is None else tmp
    I(f"v_mov_b32 {v(tmp)}, {addr}")
    I(f"v_mov_b32 {v(tmp+1)}, {s(sNONCE) if val is None else val}")
    I(f"ds_write_b32 {v(tmp)}, {v(tmp+1)}")

vFL = 8
sFL1, sFL2 = 92, 93
def flag_prepare():
    global sFL1, sFL2
    if opt.stamps: sFL1, sFL2 = 48, 49
    I(f"s_lshl_b32 {s(sFL1)}, {s(sCH)}, 4")
    I(f"s_lshl_b32 {s(sFL2)}, {s(sTI)}, 2")
    I(f"s_add_u32 {s(sFL1)}, {s(sFL1)}, {s(sFL2)}")
    I(f"s_add_u32 {s(sFL2)}, {s(sFL1)}, {O_FL + 512}")
    I(f"s_add_u32 {s(sFL1)}, {s(sFL1)}, {O_FL + 256}")
    I(f"v_mov_b32 {v(vFL)}, 0")
    I(f"v_mov_b32 {v(vFL+1)}, {s(sNONCE)}")

def wave_flag(off):
    so = sFL1 if off == 256 else sFL2
    I(f"s_mov_b64 exec, 1")
    dual(lambda: I(f"buffer_store_dword {v(vFL+1)}, {v(vFL)}, {s(rP,4)}, {s(so)} offen{pol()}"))
    I(f"s_mov_b64 exec, -1")

def poll(off, tag, tmp=None):
    tmp = vT if tmp is None else tmp
    I(f"s_mov_b32 {s(sSPIN)}, 0")
    I(f"s_mov_b32 {s(sT2)}, {O_FL + off}")
    I(f"v_lshlrev_b32 {v(tmp)}, 2, {v(vLANE)}")
    L(f"L_spin_{tag}")
    I(f"buffer_load_dword {v(tmp+1)}, {v(tmp)}, {s(rP,4)}, {s(sT2)} offen sc1")
    I(f"s_waitcnt vmcnt(0)")
    I(f"v_cmp_ne_u32 vcc, {s(sNONCE)}, {v(tmp+1)}")
    I(f"s_cbranch_vccz L_spun_{tag}")
    I(f"s_cmp_lg_u32 {s(sFAST)}, 0")
    I(f"s_cbranch_scc1 L_nap_{tag}")
    I(f"s_sleep 12")
    L(f"L_nap_{tag}")
    if opt.fsleep: I(f"s_sleep {opt.fsleep}")
    I(f"s_add_u32 {s(sSPIN)}, {s(sSPIN)}, 1")
    I(f"s_cmp_lt_u32 {s(sSPIN)}, {opt.spin_limit}")
    I(f"s_cbranch_scc1 L_spin_{tag}")
    L(f"L_spun_{tag}")

def common_start():
    prologue()
    stamp("start")
    if opt.early:
        C("K(0..3), omega, K(4..7), then four V loads: rows 0..31 (team A) / 32..63 (team B) of slice w&3")
        I(f"s_lshl_b32 {s(sSOFF)}, {s(sWAVE)}, 13")
        for i in range(4): dma_row_instr(rK, KQ, i)
        I(f"s_mov_b32 {s(sT3)}, {s(sSOFF)}")
        dma_omega()
        I(f"s_mov_b32 {s(sSOFF)}, {s(sT3)}")
        I(f"s_barrier")
        for i in range(4, 8): dma_row_instr(rK, KQ, i)
        srd(rV, sVp, sT0, 65536)
        v_setup(30)
        I(f"s_lshr_b32 {s(sT3)}, {s(sWAVE)}, 2")
        I(f"s_lshl_b32 {s(sT3)}, {s(sT3)}, 2")
        v_issue(30, s(sT3), 4)
    elif opt.kko:
        C("omega lines -> L2 (one touch per line), then K, then omega itself (L2 hits by then)")
        I(f"v_and_b32 {v(vT+2)}, 31, {v(vLANE)}")
        I(f"v_lshlrev_b32 {v(vT+2)}, 7, {v(vT+2)}")
        I(f"s_lshl_b32 {s(sT1)}, {s(sWAVE)}, 12")
        I(f"buffer_load_dword {v(vT+3)}, {v(vT+2)}, {s(rW,4)}, {s(sT1)} offen")
        dma_k()
        dma_omega()
    elif opt.kok:
        C("issue order K(0..3), omega, K(4..7): omega rides in the first window without holding K back")
        I(f"s_lshl_b32 {s(sSOFF)}, {s(sWAVE)}, 13")
        for i in range(4): dma_row_instr(rK, KQ, i)
        I(f"s_mov_b32 {s(sT3)}, {s(sSOFF)}")
        dma_omega()
        I(f"s_mov_b32 {s(sSOFF)}, {s(sT3)}")
        if opt.kokbar: I(f"s_barrier")
        for i in range(4, 8): dma_row_instr(rK, KQ, i)
    else:
        dma_omega()
        I(f"s_barrier")
        dma_k()
    C("scalar side: epoch word, translation pre-touch, descriptors")
    I(f"s_lshl_b32 {s(sT1)}, {s(sHEAD)}, 20")
    if opt.wsoff: I(f"s_add_u32 {s(sT1)}, {s(sT1)}, {opt.wsoff}")
    I(f"s_add_u32 {s(sEPA)}, {s(sSp)}, {s(sT1)}")
    I(f"s_addc_u32 {s(sEPA+1)}, {s(sSp+1)}, 0")
    I(f"s_load_dword {s(sNONCE)}, {s(sEPA,2)}, {O_FL}")
    if opt.preread:
        C("bring the flag lines of this head into L2 (a store to an absent line makes the next read a memory fill)")
        for j in range(8):
            I(f"s_load_dword {s(sJUNK+3)}, {s(sEPA,2)}, {O_FL + 256 + 64*j}")
    if not opt.early: srd(rV, sVp, sT0, 65536)
    srd(rQ, sQp, sT0, 65536)
    srd(rO, sOp, sT0, 65536)
    if opt.pretouch:
        I(f"s_load_dword {s(sJUNK)}, {s(rQ,2)}, 0")
        I(f"s_load_dword {s(sJUNK+1)}, {s(rO,2)}, 0")
        I(f"s_load_dword {s(sJUNK+2)}, {s(rV,2)}, 0")
    tile_addrs()
    consts()
    stamp("K issued")
    I(f"s_waitcnt lgkmcnt(0)")
    I(f"s_add_u32 {s(sNONCE)}, {s(sNONCE)}, 1")
    I(f"s_lshl_b32 {s(sT1)}, {s(sHEAD)}, 20")
    if opt.wsoff: I(f"s_add_u32 {s(sT1)}, {s(sT1)}, {opt.wsoff}")
    srd(rP, sSp, sT1, HS)
    I(f"s_mov_b32 {s(sFAST)}, 0")
    I(f"s_getreg_b32 {s(sXCC)}, hwreg(HW_REG_XCC_ID, 0, 4)")
    I(f"s_lshl_b32 {s(sPRES)}, {s(sNONCE)}, 4")
    I(f"s_add_u32 {s(sPRES)}, {s(sPRES)}, {s(sXCC)}")
    nyoung = {"early": 8, "kko": None, "kok": 4}.get("early" if opt.early else "kko" if opt.kko else "kok" if opt.kok else "", 8)
    I(f"s_cmp_eq_u32 {s(sWAVE)}, 0")
    I(f"s_cbranch_scc0 L_nopres")
    if opt.fast:
        C("presence word: nonce*16 + XCC id (wave 0)")
        I(f"s_mov_b64 exec, 1")
        I(f"s_lshl_b32 {s(sT1)}, {s(sCH)}, 2")
        I(f"s_add_u32 {s(sT1)}, {s(sT1)}, {O_FL + 128}")
        I(f"v_mov_b32 {v(vT)}, 0")
        I(f"v_mov_b32 {v(vT+1)}, {s(sPRES)}")
        I(f"buffer_store_dword {v(vT+1)}, {v(vT)}, {s(rP,4)}, {s(sT1)} offen sc1")
        I(f"s_mov_b64 exec, -1")
        if nyoung is not None: I(f"s_waitcnt vmcnt({nyoung + 1})")
    else:
        if nyoung is not None: I(f"s_waitcnt vmcnt({nyoung})")
    I(f"s_branch L_presd")
    L("L_nopres")
    if nyoung is not None: I(f"s_waitcnt vmcnt({nyoung})")
    L("L_presd")
    if not opt.kko: I(f"s_barrier")

def team_a():
    C("================= team A =================")
    if not opt.kko: read_omega(KQ)
    C("K landed: own loads only (the presence store of wave 0 may still be in flight)")
    ey = 4 if opt.early else 0
    I(f"s_waitcnt vmcnt({1 + ey}) lgkmcnt(0)")
    I(f"s_cmp_eq_u32 {s(sTI)}, 0")
    I(f"s_cbranch_scc1 L_k0")
    I(f"s_waitcnt vmcnt({ey})")
    L("L_k0")
    I(f"s_barrier")
    stamp("A B1 K landed")
    if opt.kko: read_omega(KQ)
    read_tile_frags()
    I(f"s_waitcnt lgkmcnt(0)")
    I(f"s_barrier")
    if not opt.kfast:
        ssq()
        steps = ssq_reduce_steps()
        for t in range(16):
            for mt in range(2):
                c = "0" if t == 0 else v(vA1 + 16*mt, 16)
                I(f"v_mfma_f32_32x32x16_bf16 {v(vA1+16*mt,16)}, {v(vKF+4*t,4)}, {v(W(mt,t),4)}, {c}")
            if 1 <= t <= 5:
                for x in steps[t-1]: I(x)
            if t == 6:
                I(f"v_mul_f32 {v(vSS)}, {s(sM132)}, {v(vSS)}")
                I(f"v_lshrrev_b32 {v(vSS+1)}, 5, {v(vLANE)}")
            if t == 7:
                I(f"v_cmp_eq_u32 vcc, 0, {v(vSS+1)}")
            if t == 8:
                I(f"v_cndmask_b32 {v(vSS)}, 0, {v(vSS)}, vcc")
            if t == 9:
                I(f"v_cvt_pk_bf16_f32 {v(vSS)}, {v(vSS)}, 0")
        stamp("A gemm1 done")
        I(f"v_mov_b32 {v(vEPS)}, {s(sEPS)}")
        I(f"v_mov_b32 {v(vNK)}, {v(vSS)}")
        I(f"v_mov_b32 {v(vONE)}, 0x3f80")
        for i in range(1, 4):
            I(f"v_mov_b32 {v(vONE+i)}, 0")
            I(f"v_mov_b32 {v(vNK+i)}, 0")
        I(f"v_mfma_f32_32x32x16_bf16 {v(vNQ,16)}, {v(vNK,4)}, {v(vONE,4)}, 0")
        I(f"v_lshl_add_u32 {v(vX)}, {s(sTI)}, 12, {v(vL16)}")
        I(f"v_add_u32 {v(vX)}, {PHI}, {v(vX)}")
        for mt in range(2):
            pipeline_mimic(mt, lambda r: vNQ + r, vP4 + 8*mt)
            for u in range(2):
                I(f"ds_write_b128 {v(vX)}, {v(vP4+8*mt+4*u,4)} offset:{u*2048 + mt*1024}")
            I(f"v_mov_b32 {v(vZP+mt)}, 0")
            for i in range(8):
                I(f"v_dot2c_f32_bf16 {v(vZP+mt)}, {s(sONES)}, {v(vP4+8*mt+i)}")
    else:
        vNQ2 = 128; vNK2 = 144; vON2 = 148; vP1b = 152; vTb = 156; vEP2 = 164; vZP2 = 165; vXb = 168
        ssq()
        steps = ssq_reduce_steps()
        for t in range(16):
            c = "0" if t == 0 else v(vA1, 16)
            I(f"v_mfma_f32_32x32x16_bf16 {v(vA1,16)}, {v(vKF+4*t,4)}, {v(W(0,t),4)}, {c}")
            if 1 <= t <= 5:
                for x in steps[t-1]: I(x)
            if t == 6:
                I(f"v_mul_f32 {v(vSS)}, {s(sM132)}, {v(vSS)}")
                I(f"v_lshrrev_b32 {v(vSS+1)}, 5, {v(vLANE)}")
            if t == 7: I(f"v_cmp_eq_u32 vcc, 0, {v(vSS+1)}")
            if t == 8: I(f"v_cndmask_b32 {v(vSS)}, 0, {v(vSS)}, vcc")
            if t == 9: I(f"v_cvt_pk_bf16_f32 {v(vSS)}, {v(vSS)}, 0")
            if t == 10: I(f"s_mov_b32 {s(sT3)}, 0x3e800000")
            if t == 12:
                I(f"v_mov_b32 {v(vNK2)}, {v(vSS)}")
                I(f"v_mov_b32 {v(vON2)}, 0x3f80")
            if t == 13:
                for i in range(1, 4):
                    I(f"v_mov_b32 {v(vON2+i)}, 0")
                    I(f"v_mov_b32 {v(vNK2+i)}, 0")
        I(f"v_mfma_f32_32x32x16_bf16 {v(vNQ2,16)}, {v(vNK2,4)}, {v(vON2,4)}, 0")
        def mimic_ops(mt, p4base):
            ops = []
            acc = lambda r: vA1 + 16*mt + r
            for g in range(2):
                prs = [4*g + i for i in range(4)]
                for i, p in enumerate(prs): ops.append(f"v_cvt_pk_bf16_f32 {v(vP1b+i)}, {v(acc(2*p))}, {v(acc(2*p+1))}")
                for i, p in enumerate(prs):
                    ops.append(f"v_lshlrev_b32 {v(vTb+2*i)}, 16, {v(vP1b+i)}")
                    ops.append(f"v_and_b32 {v(vTb+2*i+1)}, {s(sMASKH)}, {v(vP1b+i)}")
                for i, p in enumerate(prs):
                    ops.append(f"v_fma_f32 {v(vTb+2*i)}, {v(vTb+2*i)}, {s(sT3)}, {v(vNQ2+2*p)}")
                    ops.append(f"v_fma_f32 {v(vTb+2*i+1)}, {v(vTb+2*i+1)}, {s(sT3)}, {v(vNQ2+2*p+1)}")
                for i, p in enumerate(prs): ops.append(f"v_cvt_pk_bf16_f32 {v(vP1b+i)}, {v(vTb+2*i)}, {v(vTb+2*i+1)}")
                for i, p in enumerate(prs):
                    ops.append(f"v_lshlrev_b32 {v(vTb+2*i)}, 16, {v(vP1b+i)}")
                    ops.append(f"v_and_b32 {v(vTb+2*i+1)}, {s(sMASKH)}, {v(vP1b+i)}")
                for i in range(8): ops.append(f"v_mul_f32 {v(vTb+i)}, {s(sLOG2E)}, {v(vTb+i)}")
                for i in range(8): ops.append(f"v_exp_f32 {v(vTb+i)}, {v(vTb+i)}")
                for i in range(8): ops.append(f"v_fma_f32 {v(vTb+i)}, {v(vTb+i)}, {s(sC0125)}, {v(vEP2)}")
                for i, p in enumerate(prs): ops.append(f"v_cvt_pk_bf16_f32 {v(p4base+p)}, {v(vTb+2*i)}, {v(vTb+2*i+1)}")
            return ops
        ops0 = [f"v_mov_b32 {v(vEP2)}, {s(sEPS)}"] + mimic_ops(0, vP4)
        k = 0
        for t in range(16):
            c = "0" if t == 0 else v(vA1 + 16, 16)
            I(f"v_mfma_f32_32x32x16_bf16 {v(vA1+16,16)}, {v(vKF+4*t,4)}, {v(W(1,t),4)}, {c}")
            if t >= 1:
                n = opt.kshadow
                for x in ops0[k:k+n]: I(x)
                k += n
        stamp("A gemm1 done")
        for x in ops0[k:]: I(x)
        I(f"v_lshl_add_u32 {v(vX)}, {s(sTI)}, 12, {v(vL16)}")
        I(f"v_add_u32 {v(vX)}, {PHI}, {v(vX)}")
        for u in range(2):
            I(f"ds_write_b128 {v(vX)}, {v(vP4+4*u,4)} offset:{u*2048}")
        for x in mimic_ops(1, vP4 + 8): I(x)
        for u in range(2):
            I(f"ds_write_b128 {v(vX)}, {v(vP4+8+4*u,4)} offset:{u*2048 + 1024}")
        for mt in range(2):
            I(f"v_mov_b32 {v(vZP+mt)}, 0")
        for i in range(8):
            for mt in range(2):
                I(f"v_dot2c_f32_bf16 {v(vZP+mt)}, {s(sONES)}, {v(vP4+8*mt+i)}")
    for mt in range(2): I(f"v_mov_b32 {v(vX+1+mt)}, {v(vZP+mt)}")
    for mt in range(2): I(f"v_permlane32_swap_b32 {v(vZP+mt)}, {v(vX+1+mt)}")
    for mt in range(2): I(f"v_add_f32 {v(vZP+mt)}, {v(vZP+mt)}, {v(vX+1+mt)}")
    I(f"v_and_b32 {v(vX+1)}, 31, {v(vLANE)}")
    I(f"v_lshlrev_b32 {v(vX+1)}, 2, {v(vX+1)}")
    I(f"s_lshl_b32 {s(sT1)}, {s(sTI)}, 8")
    I(f"s_add_u32 {s(sT1)}, {s(sT1)}, {ZB}")
    I(f"v_add_u32 {v(vX+1)}, {s(sT1)}, {v(vX+1)}")
    I(f"ds_write_b32 {v(vX+1)}, {v(vZP)}")
    I(f"ds_write_b32 {v(vX+1)}, {v(vZP+1)} offset:128")
    I(f"s_waitcnt lgkmcnt(0)")
    stamp("A phi written")
    I(f"s_lshl_b32 {s(sT2)}, {s(sTI)}, 2")
    I(f"s_add_u32 {s(sT2)}, {s(sT2)}, {FLG}")
    lds_set(s(sT2))
    C("transposing-read addresses of the V slice (computed while waiting)")
    vPH = 128; vAC = 48; vVB = 112; vVA = 28; vPA = 30
    I(f"v_lshrrev_b32 {v(vT)}, 5, {v(vLANE)}")
    I(f"v_lshlrev_b32 {v(vT)}, 2, {v(vT)}")
    I(f"v_bfe_u32 {v(vT+1)}, {v(vLANE)}, 2, 2")
    I(f"v_add_u32 {v(vT)}, {v(vT)}, {v(vT+1)}")
    I(f"v_lshlrev_b32 {v(vT)}, 7, {v(vT)}")
    I(f"v_lshrrev_b32 {v(vT+1)}, 1, {v(vT+1)}")
    I(f"v_lshl_add_u32 {v(vT)}, {v(vT+1)}, 6, {v(vT)}")
    I(f"v_bfe_u32 {v(vT+1)}, {v(vLANE)}, 4, 1")
    I(f"v_lshl_add_u32 {v(vT)}, {v(vT+1)}, 5, {v(vT)}")
    I(f"v_and_b32 {v(vT+1)}, 3, {v(vLANE)}")
    I(f"v_lshl_add_u32 {v(vT)}, {v(vT+1)}, 3, {v(vT)}")
    I(f"s_lshl_b32 {s(sT1)}, {s(sTI)}, 14")
    I(f"s_add_u32 {s(sT1)}, {s(sT1)}, {VR}")
    I(f"v_add_u32 {v(vVA)}, {s(sT1)}, {v(vT)}")
    I(f"v_xor_b32 {v(vVA+1)}, 64, {v(vVA)}")
    I(f"v_add_u32 {v(vPA)}, {PHI}, {v(vL16)}")
    lds_wait(str(FLG), 4, "phi")
    stamp("A phi all")
    for f in range(16):
        I(f"ds_read_b128 {v(vPH+4*f,4)}, {v(vPA)} offset:{1024*f}")
    vVB = 192
    def vread(kk):
        b = vVB + 8*(kk % 4)
        for dl in range(2):
            for ap in range(2):
                I(f"ds_read_b64_tr_b16 {v(b+4*dl+2*ap,2)}, {v(vVA+dl)} offset:{kk*2048 + ap*1024}")
    def mm(kk, first):
        b = vVB + 8*(kk % 4)
        for dl in range(2):
            for mt in range(2):
                acc = vAC + (dl*2 + mt)*16
                c = "0" if first else v(acc, 16)
                I(f"v_mfma_f32_32x32x16_bf16 {v(acc,16)}, {v(vPH+4*(kk*2+mt),4)}, {v(b+4*dl,4)}, {c}")
    I(f"s_lshl_b32 {s(sT2)}, {s(sTI)}, 2")
    I(f"s_add_u32 {s(sT2)}, {s(sT2)}, {FLG + 16}")
    if opt.early: I(f"s_waitcnt vmcnt(0)")
    lds_wait(s(sT2), 1, "v1", tmp=26)
    stamp("A V1 ready")
    vread(0); vread(1); vread(2)
    for kk in range(8):
        rem = min(2, 7 - kk)
        if kk == 2:
            I(f"s_waitcnt lgkmcnt(4)")
        else:
            I(f"s_waitcnt lgkmcnt({4*rem})")
        mm(kk, kk == 0)
        if kk == 1:
            I(f"s_add_u32 {s(sT2)}, {s(sT2)}, 16")
            lds_wait(s(sT2), 1, "v2", tmp=26)
        if kk + 3 < 8: vread(kk + 3)
    stamp("A gemm2 done")
    if opt.fast:
        lds_wait(str(FLG + 56), 1, "md", tmp=26)
        I(f"v_mov_b32 {v(vT+1)}, {FLG + 48}")
        I(f"ds_read_b32 {v(vT+2)}, {v(vT+1)}")
    C("z partial inputs (wave 0)")
    I(f"v_lshlrev_b32 {v(vT+3)}, 2, {v(vLANE)}")
    I(f"v_add_u32 {v(vT+4)}, {ZB}, {v(vT+3)}")
    for a in range(4): I(f"ds_read_b32 {v(vT+6+a)}, {v(vT+4)} offset:{256*a}")
    vPK = 128
    for j in range(4):
        for i in range(8):
            I(f"v_cvt_pk_bf16_f32 {v(vPK+8*j+i)}, {v(vAC+16*j+2*i)}, {v(vAC+16*j+2*i+1)}")
    I(f"s_lshl_b32 {s(sT1)}, {s(sTI)}, 13")
    I(f"v_add_u32 {v(vT)}, {s(sT1)}, {v(vL16)}")
    I(f"s_lshl_b32 {s(sSOFF)}, {s(sCH)}, 15")
    I(f"s_add_u32 {s(sT2)}, {s(sSOFF)}, 4096")
    I(f"s_waitcnt lgkmcnt(0)")
    if opt.fast:
        I(f"v_readfirstlane_b32 {s(sFAST)}, {v(vT+2)}")
        I(f"s_cmp_eq_u32 {s(sFAST)}, {s(sNONCE)}")
        I(f"s_cselect_b32 {s(sFAST)}, 1, 0")
        if opt.stamps: I(f"s_mov_b32 s91, {s(sFAST)}")
    if opt.holdst:
        lds_wait(str(FLG + 112), 4, "qi", tmp=26)
    def st():
        for f in range(8):
            so = s(sSOFF) if f < 4 else s(sT2)
            I(f"buffer_store_dwordx4 {v(vPK+4*f,4)}, {v(vT)}, {s(rP,4)}, {so} offen offset:{(f%4)*1024}{pol()}")
    if opt.partplain: dual(st)
    else:
        POL[0] = opt.partpol; st(); POL[0] = " sc1"
    def psflag():
        I(f"s_lshl_b32 {s(sT1)}, {s(sTI)}, 2")
        I(f"s_add_u32 {s(sT1)}, {s(sT1)}, {FLG + 64}")
        lds_set(s(sT1), tmp=26)
    if opt.holdq or opt.holdall == "issued": psflag()
    I(f"s_cmp_eq_u32 {s(sTI)}, 0")
    I(f"s_cbranch_scc0 L_noz")
    I(f"v_add_f32 {v(vT+6)}, {v(vT+6)}, {v(vT+7)}")
    I(f"v_add_f32 {v(vT+8)}, {v(vT+8)}, {v(vT+9)}")
    I(f"v_add_f32 {v(vT+6)}, {v(vT+6)}, {v(vT+8)}")
    I(f"s_lshl_b32 {s(sSOFF)}, {s(sCH)}, 8")
    I(f"s_add_u32 {s(sSOFF)}, {s(sSOFF)}, {O_Z}")
    I(f"buffer_store_dword {v(vT+6)}, {v(vT+3)}, {s(rP,4)}, {s(sSOFF)} offen sc1")
    L("L_noz")
    C("addresses for the reduction: quarter tile a of tile 'chunk': fragment 2*chunk + (a>>1), lanes (a&1)*32 + (l&31); producer parity = l>>5")
    vR = 128
    I(f"s_lshl_b32 {s(sT1)}, {s(sCH)}, 11")
    I(f"s_lshl_b32 {s(sT2)}, {s(sTI)}, 9")
    I(f"s_add_u32 {s(sT3)}, {s(sT1)}, {s(sT2)}")
    I(f"v_and_b32 {v(vX)}, 31, {v(vLANE)}")
    I(f"v_lshlrev_b32 {v(vX)}, 4, {v(vX)}")
    I(f"v_add_u32 {v(vX)}, {s(sT3)}, {v(vX)}")
    I(f"v_lshrrev_b32 {v(vX+1)}, 5, {v(vLANE)}")
    I(f"v_lshl_add_u32 {v(vX+1)}, {v(vX+1)}, 15, {v(vX)}")
    final_setup()
    flag_prepare()
    if opt.mred:
        I(f"v_and_b32 {v(vX+3)}, 31, {v(vLANE)}")
        I(f"v_and_b32 {v(vX+4)}, 1, {v(vX+3)}")
        I(f"v_lshlrev_b32 {v(vX+4)}, 4, {v(vX+4)}")
        I(f"v_mov_b32 {v(vX+5)}, 0x3f80")
        I(f"v_lshlrev_b32 {v(vX+4)}, {v(vX+4)}, {v(vX+5)}")
        I(f"v_lshrrev_b32 {v(vX+3)}, 1, {v(vX+3)}")
        for r in range(4):
            I(f"v_cmp_eq_u32 vcc, {r}, {v(vX+3)}")
            I(f"v_cndmask_b32 {v(vID+r)}, 0, {v(vX+4)}, vcc")
        I(f"v_lshrrev_b32 {v(vX+2)}, 5, {v(vLANE)}")
        I(f"v_lshl_add_u32 {v(vX+2)}, {v(vX+2)}, 3, {v(vX)}")
    if opt.dry:
        C("one wave walks through the final phase with EXEC = 0 (memory instructions skipped) to bring its code into the instruction cache")
        I(f"s_cmp_eq_u32 {s(sTI)}, 2")
        I(f"s_cbranch_scc0 L_nodry")
        I(f"s_mov_b64 exec, 0")
        I(f"s_branch L_dry_entry")
        L("L_dry_ret")
        I(f"s_mov_b64 exec, -1")
        L("L_nodry")
    I(f"s_waitcnt vmcnt(0)")
    stamp("A part drained")
    wave_flag(256)
    if opt.holdall == "drained": psflag()
    poll(256, "h1")
    stamp("A hop1")
    vZ = 192
    I(f"s_cmp_eq_u32 {s(sTI)}, 3")
    I(f"s_cbranch_scc0 L_noz2")
    I(f"s_mov_b32 {s(sSOFF)}, {O_Z}")
    for j in range(4):
        I(f"buffer_load_dwordx4 {v(vZ+4*j,4)}, {v(vL16)}, {s(rP,4)}, {s(sSOFF)} offen offset:{1024*j} sc1")
    L("L_noz2")
    I(f"s_mov_b32 {s(sSOFF)}, 0")
    for c in range(8):
        I(f"buffer_load_dwordx4 {v(vR+4*c,4)}, {v(vX+1)}, {s(rP,4)}, {s(sSOFF)} offen sc1")
        if c < 7: I(f"s_add_u32 {s(sSOFF)}, {s(sSOFF)}, 65536")
    if opt.holdall == "reduce": psflag()
    C("z (wave 3): lane l holds m = 4*(l&15)..+3 of producer 4j + (l>>4)")
    I(f"s_cmp_eq_u32 {s(sTI)}, 3")
    I(f"s_cbranch_scc0 L_noz3")
    I(f"s_waitcnt vmcnt(8)")
    for i in range(4):
        I(f"v_add_f32 {v(vZ+i)}, {v(vZ+i)}, {v(vZ+4+i)}")
        I(f"v_add_f32 {v(vZ+8+i)}, {v(vZ+8+i)}, {v(vZ+12+i)}")
    for i in range(4): I(f"v_add_f32 {v(vZ+i)}, {v(vZ+i)}, {v(vZ+8+i)}")
    for i in range(4): I(f"v_mov_b32 {v(vZ+4+i)}, {v(vZ+i)}")
    for i in range(4): I(f"v_permlane32_swap_b32 {v(vZ+i)}, {v(vZ+4+i)}")
    for i in range(4): I(f"v_add_f32 {v(vZ+i)}, {v(vZ+i)}, {v(vZ+4+i)}")
    for i in range(4): I(f"v_mov_b32 {v(vZ+4+i)}, {v(vZ+i)}")
    for i in range(4): I(f"v_permlane16_swap_b32 {v(vZ+i)}, {v(vZ+4+i)}")
    for i in range(4): I(f"v_add_f32 {v(vZ+i)}, {v(vZ+i)}, {v(vZ+4+i)}")
    I(f"v_cvt_pk_bf16_f32 {v(vZ)}, {v(vZ)}, {v(vZ+1)}")
    I(f"v_cvt_pk_bf16_f32 {v(vZ+1)}, {v(vZ+2)}, {v(vZ+3)}")
    I(f"v_and_b32 {v(vZ+2)}, 15, {v(vLANE)}")
    I(f"v_lshlrev_b32 {v(vZ+2)}, 3, {v(vZ+2)}")
    I(f"v_add_u32 {v(vZ+2)}, {ZF}, {v(vZ+2)}")
    I(f"ds_write_b64 {v(vZ+2)}, {v(vZ,2)}")
    I(f"s_waitcnt lgkmcnt(0)")
    lds_set(str(FLG + 52), tmp=vU)
    L("L_noz3")
    C("phi_q fragments now if they are there already")
    I(f"s_mov_b32 {s(sPQ)}, 0")
    I(f"v_and_b32 {v(vU)}, 1, {v(vLANE)}")
    I(f"v_lshlrev_b32 {v(vU)}, 2, {v(vU)}")
    I(f"v_add_u32 {v(vU)}, {FLG + 80}, {v(vU)}")
    I(f"ds_read_b32 {v(vU+1)}, {v(vU)}")
    I(f"s_waitcnt lgkmcnt(0)")
    I(f"v_cmp_ne_u32 vcc, {s(sNONCE)}, {v(vU+1)}")
    I(f"s_cbranch_vccnz L_nopq")
    for qi in range(2):
        for tt in range(4):
            I(f"ds_read_b128 {v(vPQ8+16*qi+4*tt,4)}, {v(vPA2)} offset:{qi*16384 + tt*1024}")
    I(f"s_mov_b32 {s(sPQ)}, 1")
    L("L_nopq")
    vS = 176
    C("sum of the 16 partials on the matrix pipe: D[j][n] += B[j][n] + B[8+j][n]  (A = two stacked 8x8 identities)")
    for c in range(8):
        I(f"s_waitcnt vmcnt({7-c})")
        cc = "0" if c == 0 else v(vS, 16)
        I(f"v_mfma_f32_32x32x16_bf16 {v(vS,16)}, {v(vID,4)}, {v(vR+4*c,4)}, {cc}")
    stamp("A red summed")
    I(f"v_cvt_pk_bf16_f32 {v(vS)}, {v(vS)}, {v(vS+1)}")
    I(f"v_cvt_pk_bf16_f32 {v(vS+1)}, {v(vS+2)}, {v(vS+3)}")
    I(f"s_mov_b32 {s(sSOFF)}, {O_F}")
    dual(lambda: I(f"buffer_store_dwordx2 {v(vS,2)}, {v(vX+2)}, {s(rP,4)}, {s(sSOFF)} offen{pol()}"))
    I(f"s_waitcnt vmcnt(0)")
    stamp("A reduced+drained")
    wave_flag(512)
    C("chunk 0 advances the epoch (all 16 workgroups of the head have read it)")
    I(f"s_cmp_eq_u32 {s(sCH)}, 0")
    I(f"s_cbranch_scc0 L_noep")
    I(f"s_cmp_eq_u32 {s(sTI)}, 1")
    I(f"s_cbranch_scc0 L_noep")
    I(f"s_mov_b64 exec, 1")
    I(f"v_mov_b32 {v(vT)}, 0")
    I(f"v_mov_b32 {v(vT+1)}, {s(sNONCE)}")
    I(f"s_mov_b32 {s(sT1)}, {O_FL}")
    I(f"buffer_store_dword {v(vT+1)}, {v(vT)}, {s(rP,4)}, {s(sT1)} offen sc1")
    I(f"s_mov_b64 exec, -1")
    L("L_noep")
    I(f"s_cmp_eq_u32 {s(sPQ)}, 1")
    I(f"s_cbranch_scc1 L_pqdone")
    phiq_frags("a")
    L("L_pqdone")
    STI[0] = 13
    I(f"s_branch L_final")

vPQ8 = 32
vKA = 64
vOP = 96
vAC3 = 128
vST = 192
vKG, vPA2, vRA, vSW, vSR, vOA, vU = 2, 3, 4, 5, 6, 7, 20
vRDS = 12
vRD = 4

def capture(fn):
    n = len(A.items)
    fn()
    got = [x.text for k, x in A.items[n:] if k == "i"]
    del A.items[n:]
    return got

def final_setup():
    I(f"s_and_b32 {s(sT3)}, {s(sWAVE)}, 3")
    I(f"s_lshr_b32 {s(sT2)}, {s(sWAVE)}, 2")
    I(f"v_bfe_u32 {v(vU+1)}, {v(vLANE)}, 2, 1")
    I(f"v_lshlrev_b32 {v(vU+1)}, 4, {v(vU+1)}")
    I(f"v_bfe_u32 {v(vU+2)}, {v(vLANE)}, 3, 2")
    I(f"v_lshl_add_u32 {v(vU+1)}, {v(vU+2)}, 2, {v(vU+1)}")
    I(f"v_and_b32 {v(vU+2)}, 3, {v(vLANE)}")
    I(f"v_add_u32 {v(vU+1)}, {v(vU+1)}, {v(vU+2)}")
    I(f"v_and_b32 {v(vU+2)}, 32, {v(vLANE)}")
    I(f"v_add_u32 {v(vU+1)}, {v(vU+1)}, {v(vU+2)}")
    I(f"v_lshlrev_b32 {v(vKG)}, 4, {v(vU+1)}")
    C("phi_q fragments of q tiles 2hq, 2hq+1; 1/den")
    I(f"s_lshl_b32 {s(sT1)}, {s(sT2)}, 15")
    I(f"s_add_u32 {s(sT1)}, {s(sT1)}, {QR}")
    I(f"v_add_u32 {v(vPA2)}, {s(sT1)}, {v(vL16)}")
    I(f"s_lshl_b32 {s(sT1)}, {s(sT2)}, 9")
    I(f"s_add_u32 {s(sT1)}, {s(sT1)}, {RD}")
    I(f"v_lshlrev_b32 {v(vRA)}, 2, {v(vLANE)}")
    I(f"v_add_u32 {v(vRA)}, {s(sT1)}, {v(vRA)}")
    C("private staging [2 q tiles][32 rows][128 B]: piece = 4 dl + 2 h + u, slot = piece ^ (row & 7)")
    I(f"s_lshl_b32 {s(sT1)}, {s(sWAVE)}, 13")
    I(f"s_add_u32 {s(sT1)}, {s(sT1)}, {VR}")
    I(f"v_lshrrev_b32 {v(vU+1)}, 5, {v(vLANE)}")
    I(f"v_lshlrev_b32 {v(vU+2)}, 1, {v(vU+1)}")
    I(f"v_and_b32 {v(vU+3)}, 7, {v(vLANE)}")
    I(f"v_xor_b32 {v(vU+2)}, {v(vU+2)}, {v(vU+3)}")
    I(f"v_lshlrev_b32 {v(vU+2)}, 4, {v(vU+2)}")
    I(f"v_and_b32 {v(vU+3)}, 31, {v(vLANE)}")
    I(f"v_lshl_add_u32 {v(vSW)}, {v(vU+3)}, 7, {v(vU+2)}")
    I(f"v_add_u32 {v(vSW)}, {s(sT1)}, {v(vSW)}")
    C("read back: row 8j + (l>>3), piece l&7")
    I(f"v_lshrrev_b32 {v(vU+1)}, 3, {v(vLANE)}")
    I(f"v_and_b32 {v(vU+2)}, 7, {v(vLANE)}")
    I(f"v_xor_b32 {v(vU+3)}, {v(vU+2)}, {v(vU+1)}")
    I(f"v_lshlrev_b32 {v(vU+3)}, 4, {v(vU+3)}")
    I(f"v_lshl_add_u32 {v(vSR)}, {v(vU+1)}, 7, {v(vU+3)}")
    I(f"v_add_u32 {v(vSR)}, {s(sT1)}, {v(vSR)}")
    C("output offset: (64 hq + (l>>3))*512 + p*128 + (l&7)*16")
    I(f"v_lshlrev_b32 {v(vU+2)}, 4, {v(vU+2)}")
    I(f"v_lshl_add_u32 {v(vOA)}, {v(vU+1)}, 9, {v(vU+2)}")
    I(f"s_lshl_b32 {s(sT1)}, {s(sT2)}, 15")
    I(f"s_lshl_b32 {s(sT2)}, {s(sT3)}, 7")
    I(f"s_add_u32 {s(sT1)}, {s(sT1)}, {s(sT2)}")
    I(f"v_add_u32 {v(vOA)}, {s(sT1)}, {v(vOA)}")

def team_b():
    C("================= team B =================")
    L("L_team_b")
    STI[0] = 2
    def preread():
        if opt.preread:
            C("bring the 2 KiB of the final kv image this workgroup writes into L2 (waves B0, B1: 1 KiB each)")
            I(f"s_cmp_lt_u32 {s(sTI)}, 2")
            I(f"s_cbranch_scc0 L_nopre")
            I(f"s_lshl_b32 {s(sT1)}, {s(sCH)}, 11")
            I(f"s_lshl_b32 {s(sT2)}, {s(sTI)}, 10")
            I(f"s_add_u32 {s(sT1)}, {s(sT1)}, {s(sT2)}")
            I(f"s_add_u32 {s(sT1)}, {s(sT1)}, {O_F}")
            I(f"buffer_load_dwordx4 {v(32,4)}, {v(vL16)}, {s(rP,4)}, {s(sT1)} offen")
            L("L_nopre")
    if not opt.early: preread()
    def pres_load(tag):
        if not opt.fast: return
        I(f"s_cmp_eq_u32 {s(sTI)}, 0")
        I(f"s_cbranch_scc0 L_nochk0{tag}")
        I(f"s_load_dwordx8 {s(20,8)}, {s(sEPA,2)}, {O_FL + 128} glc")
        I(f"s_load_dwordx8 {s(44,8)}, {s(sEPA,2)}, {O_FL + 160} glc")
        L(f"L_nochk0{tag}")
    def mode_check():
        if not opt.fast: return
        I(f"s_cmp_eq_u32 {s(sTI)}, 0")
        I(f"s_cbranch_scc0 L_nochk1")
        I(f"s_mov_b32 {s(sSPIN)}, 0")
        L("L_chk")
        I(f"s_waitcnt lgkmcnt(0)")
        I(f"s_mov_b32 {s(sT1)}, {s(sNONCE)}")
        I(f"s_not_b32 {s(sT2)}, {s(sNONCE)}")
        I(f"s_mov_b32 {s(sT3)}, 1")
        for j in range(16):
            r = (20 if j < 8 else 36) + j
            I(f"s_cmp_eq_u32 {s(r)}, {s(sPRES)}")
            I(f"s_cselect_b32 {s(sT1)}, {s(sT1)}, {s(sT2)}")
            I(f"s_lshr_b32 {s(r)}, {s(r)}, 4")
            I(f"s_lshr_b32 {s(sFAST)}, {s(sPRES)}, 4")
            I(f"s_cmp_eq_u32 {s(r)}, {s(sFAST)}")
            I(f"s_cselect_b32 {s(sT3)}, {s(sT3)}, 0")
        I(f"s_cmp_eq_u32 {s(sT3)}, 1")
        I(f"s_cbranch_scc1 L_chkd")
        I(f"s_add_u32 {s(sSPIN)}, {s(sSPIN)}, 1")
        I(f"s_cmp_ge_u32 {s(sSPIN)}, 12")
        I(f"s_cbranch_scc1 L_chkd")
        I(f"s_load_dwordx8 {s(20,8)}, {s(sEPA,2)}, {O_FL + 128} glc")
        I(f"s_load_dwordx8 {s(44,8)}, {s(sEPA,2)}, {O_FL + 160} glc")
        I(f"s_branch L_chk")
        L("L_chkd")
        if opt.forceslow: I(f"s_mov_b32 {s(sT1)}, {s(sT2)}")
        lds_set(str(FLG + 48), val=s(sT1))
        lds_set(str(FLG + 56))
        I(f"s_waitcnt lgkmcnt(0)")
        L("L_nochk1")
    def vflag(k):
        I(f"s_lshl_b32 {s(sT3)}, {s(sTI)}, 2")
        I(f"s_add_u32 {s(sT3)}, {s(sT3)}, {FLG + 16 + 16*k}")
        lds_set(s(sT3))
    VF[0] = vflag
    if opt.early:
        read_omega(QR)
        I(f"s_waitcnt vmcnt(4) lgkmcnt(0)")
        I(f"s_barrier")
        stamp("B B1")
        I(f"s_barrier")
        preread()
        I(f"s_mov_b32 {s(sT3)}, 8")
        v_issue(30, s(sT3), 8)
        I(f"s_lshl_b32 {s(sSOFF)}, {s(sTI)}, 14")
        for i in range(2): dma_row_instr(rQ, QR, i)
        I(f"s_waitcnt vmcnt(10)")
        vflag(0)
        pres_load("e")
        stamp("B V1 landed")
        for i in range(2, 8): dma_row_instr(rQ, QR, i)
        I(f"s_waitcnt vmcnt(8)")
        vflag(1)
        mode_check()
        stamp("B V2 landed")
        nh = opt.holdq
        for i in range(8, 16 - nh): dma_row_instr(rQ, QR, i)
        if opt.holdst:
            I(f"s_lshl_b32 {s(sT3)}, {s(sTI)}, 2")
            I(f"s_add_u32 {s(sT3)}, {s(sT3)}, {FLG + 112}")
            lds_set(s(sT3))
        if nh:
            lds_wait(str(FLG + 64), 4, "hq")
            for i in range(16 - nh, 16): dma_row_instr(rQ, QR, i)
        stamp("B q issued")
        if opt.codepf2:
            cb = "s[100:101]" if not opt.stamps else "s[52:53]"
            if opt.cpfew:
                I(f"s_cmp_lt_u32 s2, {opt.cpfew}")
                I(f"s_cbranch_scc0 L_nocp2")
                I(f"s_cmp_eq_u32 {s(sTI)}, 3")
                I(f"s_cbranch_scc0 L_nocp2")
            I(f"v_lshlrev_b32 {v(vX+6)}, 7, {v(vLANE)}")
            I(f"s_lshl_b32 {s(sT1)}, {s(sTI)}, 11")
            if opt.cpfew: I(f"s_mov_b32 {s(sT1)}, 0")
            I(f"s_add_u32 {s(sT1)}, {s(sT1)}, {opt.codepf2}")
            I(f"v_add_u32 {v(vX+6)}, {s(sT1)}, {v(vX+6)}")
            I(f"v_min_u32 {v(vX+6)}, {opt.codelen}, {v(vX+6)}")
            I(f"global_load_dword v1, {v(vX+6)}, {cb}")
            I(f"s_waitcnt vmcnt(1)")
            if opt.cpfew:
                I(f"s_branch L_cp2d")
                L("L_nocp2")
                I(f"s_waitcnt vmcnt(0)")
                L("L_cp2d")
        else:
            I(f"s_waitcnt vmcnt(0)")
        stamp("B q landed")
    elif opt.kqv:
        I(f"s_lshl_b32 {s(sSOFF)}, {s(sTI)}, 14")
        for i in range(16): dma_row_instr(rQ, QR, i)
        I(f"s_waitcnt vmcnt(16)")
        I(f"s_barrier")
        stamp("B B1")
        read_omega(QR)
        I(f"s_waitcnt lgkmcnt(0)")
        I(f"s_barrier")
        dma_v()
        if opt.fast:
            I(f"s_cmp_eq_u32 {s(sTI)}, 0")
            I(f"s_cbranch_scc0 L_nochk0")
            I(f"s_load_dwordx8 {s(20,8)}, {s(sEPA,2)}, {O_FL + 128} glc")
            I(f"s_load_dwordx8 {s(44,8)}, {s(sEPA,2)}, {O_FL + 160} glc")
            L("L_nochk0")
        stamp("B v issued")
        I(f"s_waitcnt vmcnt(16)")
        stamp("B q landed")
        mode_check()
    else:
        if opt.bomega: read_omega(QR)
        dma_v()
        I(f"s_waitcnt vmcnt(16)")
        if opt.bomega: I(f"s_waitcnt lgkmcnt(0)")
        I(f"s_barrier")
        stamp("B B1")
        if not opt.bomega:
            read_omega(QR)
            I(f"s_waitcnt lgkmcnt(0)")
        I(f"s_barrier")
        if opt.fast:
            I(f"s_cmp_eq_u32 {s(sTI)}, 0")
            I(f"s_cbranch_scc0 L_nochk0")
            I(f"s_load_dwordx8 {s(20,8)}, {s(sEPA,2)}, {O_FL + 128} glc")
            I(f"s_load_dwordx8 {s(44,8)}, {s(sEPA,2)}, {O_FL + 160} glc")
            L("L_nochk0")
        def pace_signal():
            if not opt.stagger: return
            PS[0] += 1
            I(f"s_and_b32 {s(sT1)}, {s(sHEAD)}, 1")
            I(f"s_or_b32 {s(sT1)}, {s(sT1)}, {s(sTI)}")
            I(f"s_cmp_eq_u32 {s(sT1)}, 0")
            I(f"s_cbranch_scc0 L_nosigp{PS[0]}")
            I(f"s_lshl_b32 {s(sT1)}, {s(sCH)}, 2")
            I(f"s_add_u32 {s(sT1)}, {s(sT1)}, {O_FL + 768}")
            I(f"s_mov_b64 exec, 1")
            I(f"v_mov_b32 {v(vX+4)}, 0")
            I(f"v_mov_b32 {v(vX+5)}, {s(sNONCE)}")
            I(f"buffer_store_dword {v(vX+5)}, {v(vX+4)}, {s(rP,4)}, {s(sT1)} offen sc1")
            I(f"s_mov_b64 exec, -1")
            L(f"L_nosigp{PS[0]}")
        def pre(i):
            I(f"s_add_u32 {s(sT1)}, {s(sT0)}, {1024*i}")
            I(f"buffer_load_dwordx4 {v(32+4*(i%8),4)}, {v(vL16)}, {s(rP,4)}, {s(sT1)} offen{opt.prepol}")
        if opt.holdall:
            I(f"s_waitcnt vmcnt(8)")
            mode_check()
            vflag(0)
            stamp("B V1 landed")
            I(f"s_waitcnt vmcnt(0)")
            vflag(1)
            stamp("B V2 landed")
            lds_wait(str(FLG + 64), 4, "hq")
            I(f"s_lshl_b32 {s(sSOFF)}, {s(sTI)}, 14")
            for i in range(16): dma_row_instr(rQ, QR, i)
            stamp("B q issued")
            I(f"s_waitcnt vmcnt(0)")
            stamp("B q landed")
        if opt.pacept == "b2" and not opt.holdall: pace_signal()
        if not opt.holdall:
            if opt.prepart:
                I(f"s_lshl_b32 {s(sT0)}, {s(sCH)}, 15")
                I(f"s_lshl_b32 {s(sT1)}, {s(sTI)}, 13")
                I(f"s_add_u32 {s(sT0)}, {s(sT0)}, {s(sT1)}")
                for i in range(4): pre(i)
            else:
                I(f"s_lshl_b32 {s(sSOFF)}, {s(sTI)}, 14")
                for i in range(4): dma_row_instr(rQ, QR, i)
            I(f"s_waitcnt vmcnt(12)")
            I(f"s_lshl_b32 {s(sT3)}, {s(sTI)}, 2")
            I(f"s_add_u32 {s(sT3)}, {s(sT3)}, {FLG + 16}")
            if opt.fast:
                I(f"s_cmp_eq_u32 {s(sTI)}, 0")
                I(f"s_cbranch_scc0 L_nochk1")
                I(f"s_waitcnt lgkmcnt(0)")
                I(f"s_mov_b32 {s(sT1)}, {s(sNONCE)}")
                I(f"s_not_b32 {s(sT2)}, {s(sNONCE)}")
                for j in range(16):
                    I(f"s_cmp_eq_u32 {s((20 if j < 8 else 36) + j)}, {s(sPRES)}")
                    I(f"s_cselect_b32 {s(sT1)}, {s(sT1)}, {s(sT2)}")
                if opt.forceslow: I(f"s_mov_b32 {s(sT1)}, {s(sT2)}")
                lds_set(str(FLG + 48), val=s(sT1))
                lds_set(str(FLG + 56))
                I(f"s_waitcnt lgkmcnt(0)")
                L("L_nochk1")
            lds_set(s(sT3))
            if opt.pacept == "v1": pace_signal()
            stamp("B V1 landed")
            if opt.prepart:
                for i in range(4, 8): pre(i)
            else:
                for i in range(4, 8): dma_row_instr(rQ, QR, i)
            I(f"s_waitcnt vmcnt(8)")
            I(f"s_add_u32 {s(sT3)}, {s(sT3)}, 16")
            lds_set(s(sT3))
            if opt.pacept == "v2": pace_signal()
            stamp("B V2 landed")
            if opt.prepart:
                I(f"s_lshl_b32 {s(sSOFF)}, {s(sTI)}, 14")
                for i in range(16): dma_row_instr(rQ, QR, i)
            else:
                nh = opt.holdq
                for i in range(8, 16 - nh): dma_row_instr(rQ, QR, i)
                if nh:
                    I(f"s_lshl_b32 {s(sT3)}, {s(sTI)}, 2")
                    I(f"s_add_u32 {s(sT3)}, {s(sT3)}, {FLG + 64}")
                    lds_wait(s(sT3), 1, "hq")
                    for i in range(16 - nh, 16): dma_row_instr(rQ, QR, i)
            if opt.pacept == "q": pace_signal()
            if opt.holdst:
                I(f"s_lshl_b32 {s(sT3)}, {s(sTI)}, 2")
                I(f"s_add_u32 {s(sT3)}, {s(sT3)}, {FLG + 112}")
                lds_set(s(sT3))
            stamp("B q issued")
            I(f"s_waitcnt vmcnt(0)")
            stamp("B q landed")
    read_tile_frags()
    I(f"s_waitcnt lgkmcnt(0)")
    ssq()
    steps = ssq_reduce_steps()
    fs = capture(final_setup) if opt.bsetup else []
    kf = 0
    for t in range(16):
        c = "0" if t == 0 else v(vA1, 16)
        I(f"v_mfma_f32_32x32x16_bf16 {v(vA1,16)}, {v(W(0,t),4)}, {v(vKF+4*t,4)}, {c}")
        if 1 <= t <= 5:
            for x in steps[t-1]: I(x)
        if t == 6: I(f"v_mul_f32 {v(vSS)}, {s(sM132)}, {v(vSS)}")
        if not opt.mimicq:
            if t == 7: I(f"v_mul_f32 {v(vSS)}, {s(sLOG2E)}, {v(vSS)}")
            if t == 8: I(f"s_mov_b32 {s(sC025L)}, 0x3eb8aa3b")
            if t == 9: I(f"v_mov_b32 {v(vSS+3)}, {s(sEPS)}")
        n = 3 if t < 15 else len(fs) - kf
        for x in fs[kf:kf+n]: I(x)
        kf += n
    vY = 20
    vQ0 = 12
    vQ1 = 112
    def plain_ops(mt, dst):
        ops = []
        acc = lambda r: vA1 + 16*mt + r
        for g in range(2):
            for i in range(8): ops.append(f"v_fma_f32 {v(vY+i)}, {v(acc(8*g+i))}, {s(sC025L)}, {v(vSS)}")
            for i in range(8): ops.append(f"v_exp_f32 {v(vY+i)}, {v(vY+i)}")
            for i in range(8): ops.append(f"v_fma_f32 {v(vY+i)}, {v(vY+i)}, {s(sC0125)}, {v(vSS+3)}")
            for i in range(4): ops.append(f"v_cvt_pk_bf16_f32 {v(dst+4*g+i)}, {v(vY+2*i)}, {v(vY+2*i+1)}")
        return ops
    if not opt.mimicq:
        ops0 = plain_ops(0, vQ0)
        k = 0
        for t in range(16):
            c = "0" if t == 0 else v(vA1 + 16, 16)
            I(f"v_mfma_f32_32x32x16_bf16 {v(vA1+16,16)}, {v(W(1,t),4)}, {v(vKF+4*t,4)}, {c}")
            if t >= 1:
                n = 4 if t < 15 else len(ops0) - k
                for x in ops0[k:k+n]: I(x)
                k += n
        stamp("B gemm1 done")
        if opt.kqv:
            I(f"s_waitcnt vmcnt(8)")
            VF[0](0)
        for x in plain_ops(1, vPO + 8): I(x)
        if opt.kqv:
            I(f"s_waitcnt vmcnt(0)")
            VF[0](1)
            stamp("B V2 landed")
        for i in range(8): I(f"v_mov_b32 {v(vPO+i)}, {v(vQ0+i)}")
    else:
        for t in range(16):
            c = "0" if t == 0 else v(vA1 + 16, 16)
            I(f"v_mfma_f32_32x32x16_bf16 {v(vA1+16,16)}, {v(W(1,t),4)}, {v(vKF+4*t,4)}, {c}")
        stamp("B gemm1 done")
        I(f"v_mov_b32 {v(vEPS)}, {s(sEPS)}")
        I(f"v_cvt_pk_bf16_f32 {v(vSS)}, {v(vSS)}, 0")
        I(f"v_lshlrev_b32 {v(vNQ)}, 16, {v(vSS)}")
        for mt in range(2):
            pipeline_mimic(mt, lambda r: vNQ, vP4 + 8*mt)
        for i in range(16): I(f"v_mov_b32 {v(vPO+i)}, {v(vP4+i)}")
    I(f"s_lshl_b32 {s(sT1)}, {s(sTI)}, 14")
    I(f"s_add_u32 {s(sT1)}, {s(sT1)}, {QR}")
    I(f"v_add_u32 {v(vX)}, {s(sT1)}, {v(vL16)}")
    for t in range(4):
        I(f"ds_write_b128 {v(vX)}, {v(vPO+4*t,4)} offset:{t*1024}")
    I(f"s_waitcnt lgkmcnt(0)")
    I(f"s_lshl_b32 {s(sT1)}, {s(sTI)}, 2")
    I(f"s_add_u32 {s(sT1)}, {s(sT1)}, {FLG + 80}")
    lds_set(s(sT1))
    stamp("B phiq done")
    if not opt.bsetup: final_setup()
    phiq_frags("b")
    C("den = phi_q . z once z is there")
    vZF = 112; vDEN = 24; vRD = 28
    lds_wait(str(FLG + 52), 1, "z", tmp=vU)
    I(f"v_lshrrev_b32 {v(vDEN)}, 5, {v(vLANE)}")
    I(f"v_lshlrev_b32 {v(vDEN)}, 3, {v(vDEN)}")
    I(f"v_add_u32 {v(vDEN)}, {ZF}, {v(vDEN)}")
    for t in range(4):
        I(f"ds_read2_b64 {v(vZF+4*t,4)}, {v(vDEN)} offset0:{4*t} offset1:{4*t+2}")
    I(f"v_mov_b32 {v(vDEN+2)}, 0")
    I(f"v_mov_b32 {v(vDEN+3)}, 0")
    I(f"s_waitcnt lgkmcnt(0)")
    for i in range(16):
        I(f"v_dot2c_f32_bf16 {v(vDEN+2+(i&1))}, {v(vPO+i)}, {v(vZF+i)}")
    I(f"v_add_f32 {v(vDEN)}, {v(vDEN+2)}, {v(vDEN+3)}")
    I(f"v_mov_b32 {v(vDEN+1)}, {v(vDEN)}")
    I(f"v_permlane32_swap_b32 {v(vDEN)}, {v(vDEN+1)}")
    I(f"v_add_f32 {v(vDEN)}, {v(vDEN)}, {v(vDEN+1)}")
    I(f"v_cvt_pk_bf16_f32 {v(vDEN)}, {v(vDEN)}, {v(vDEN)}")
    I(f"v_lshlrev_b32 {v(vDEN)}, 16, {v(vDEN)}")
    I(f"v_add_f32 {v(vDEN)}, {s(sEPS)}, {v(vDEN)}")
    I(f"v_cvt_pk_bf16_f32 {v(vDEN)}, {v(vDEN)}, {v(vDEN)}")
    I(f"v_lshlrev_b32 {v(vDEN)}, 16, {v(vDEN)}")
    I(f"v_rcp_f32 {v(vRD)}, {v(vDEN)}")
    I(f"v_fma_f32 {v(vDEN+1)}, -{v(vDEN)}, {v(vRD)}, 1.0")
    I(f"v_fma_f32 {v(vRD)}, {v(vDEN+1)}, {v(vRD)}, {v(vRD)}")
    I(f"s_lshl_b32 {s(sT1)}, {s(sTI)}, 8")
    I(f"s_add_u32 {s(sT1)}, {s(sT1)}, {RD}")
    I(f"v_lshlrev_b32 {v(vDEN)}, 2, {v(vLANE)}")
    I(f"v_add_u32 {v(vDEN)}, {s(sT1)}, {v(vDEN)}")
    I(f"ds_write_b32 {v(vDEN)}, {v(vRD)}")
    I(f"s_waitcnt lgkmcnt(0)")
    I(f"s_lshl_b32 {s(sT1)}, {s(sTI)}, 2")
    I(f"s_add_u32 {s(sT1)}, {s(sT1)}, {FLG + 96}")
    lds_set(s(sT1))
    if opt.fast:
        I(f"v_mov_b32 {v(vDEN)}, {FLG + 48}")
        I(f"ds_read_b32 {v(vDEN+1)}, {v(vDEN)}")
        I(f"s_waitcnt lgkmcnt(0)")
        I(f"v_readfirstlane_b32 {s(sFAST)}, {v(vDEN+1)}")
        I(f"s_cmp_eq_u32 {s(sFAST)}, {s(sNONCE)}")
        I(f"s_cselect_b32 {s(sFAST)}, 1, 0")
    stamp("B den done")
    STI[0] = 13

def phiq_frags(tag):
    C("phi_q of the two q tiles")
    I(f"s_lshr_b32 {s(sT1)}, {s(sWAVE)}, 2")
    I(f"s_lshl_b32 {s(sT1)}, {s(sT1)}, 3")
    I(f"s_add_u32 {s(sSOFF)}, {s(sT1)}, {FLG + 80}")
    lds_wait(s(sSOFF), 2, "pq" + tag, tmp=vU)
    for qi in range(2):
        for t in range(4):
            I(f"ds_read_b128 {v(vPQ8+16*qi+4*t,4)}, {v(vPA2)} offset:{qi*16384 + t*1024}")

def G(tag):
    if opt.dry: I(f"s_cbranch_execz L_g_{tag}   ; nofence")
def GE(tag):
    if opt.dry: A.LN(f"L_g_{tag}")

def final():
    L("L_final")
    C("================= final: wave w = d tiles 2p,2p+1 x q tiles 2hq,2hq+1; no workgroup barrier =================")
    stamp("F phiq read")
    C("flags of the four reducing workgroups 4p..4p+3 (16 words)")
    I(f"s_and_b32 {s(sT3)}, {s(sWAVE)}, 3")
    I(f"s_lshl_b32 {s(sT2)}, {s(sT3)}, 6")
    I(f"s_add_u32 {s(sT2)}, {s(sT2)}, {O_FL + 512}")
    I(f"s_mov_b32 {s(sSPIN)}, 0")
    I(f"v_and_b32 {v(vU)}, 15, {v(vLANE)}")
    I(f"v_lshlrev_b32 {v(vU)}, 2, {v(vU)}")
    L("L_spin_h2")
    I(f"buffer_load_dword {v(vU+1)}, {v(vU)}, {s(rP,4)}, {s(sT2)} offen sc1")
    I(f"s_waitcnt vmcnt(0)")
    I(f"v_cmp_ne_u32 vcc, {s(sNONCE)}, {v(vU+1)}")
    I(f"s_cbranch_vccz L_spun_h2")
    I(f"s_cmp_lg_u32 {s(sFAST)}, 0")
    I(f"s_cbranch_scc1 L_nap_h2")
    I(f"s_sleep 12")
    L("L_nap_h2")
    if opt.fsleep: I(f"s_sleep {opt.fsleep}")
    I(f"s_add_u32 {s(sSPIN)}, {s(sSPIN)}, 1")
    I(f"s_cmp_lt_u32 {s(sSPIN)}, {opt.spin_limit}")
    I(f"s_cbranch_scc1 L_spin_h2")
    L("L_spun_h2")
    stamp("F hop2")
    A.LN("L_dry_entry")
    G("kv")
    I(f"s_lshl_b32 {s(sT1)}, {s(sT3)}, 13")
    I(f"s_add_u32 {s(sT1)}, {s(sT1)}, {O_F}")
    I(f"s_add_u32 {s(sT2)}, {s(sT1)}, 4096")
    for dl in range(2):
        for t in range(4):
            I(f"buffer_load_dwordx4 {v(vKA+16*dl+4*t,4)}, {v(vKG)}, {s(rP,4)}, {s(sT1 if dl == 0 else sT2)} offen offset:{t*1024} sc1")
    I(f"s_lshr_b32 {s(sT1)}, {s(sWAVE)}, 2")
    I(f"s_lshl_b32 {s(sT1)}, {s(sT1)}, 3")
    I(f"s_add_u32 {s(sSOFF)}, {s(sT1)}, {FLG + 96}")
    lds_wait(s(sSOFF), 2, "rd", tmp=vU)
    for qi in range(2):
        I(f"ds_read_b32 {v(vRDS+2*qi)}, {v(vRA)} offset:{256*qi}")
    GE("kv")
    so = [74, 75, 76, 77, 78, 79, 80, 81] if not opt.stamps else None
    def mm(qi, dl):
        acc = vAC3 + 16*(2*qi + dl)
        for t in range(4):
            c = "0" if t == 0 else v(acc, 16)
            I(f"v_mfma_f32_32x32x16_bf16 {v(acc,16)}, {v(vKA+16*dl+4*t,4)}, {v(vPQ8+16*qi+4*t,4)}, {c}")
    def epi(qi, dl):
        acc = vAC3 + 16*(2*qi + dl); op = vOP + 16*qi + 8*dl
        if opt.mimicnum:
            for k in range(8): I(f"v_cvt_pk_bf16_f32 {v(op+k)}, {v(acc+2*k)}, {v(acc+2*k+1)}")
            for k in range(8):
                I(f"v_lshlrev_b32 {v(acc+2*k)}, 16, {v(op+k)}")
                I(f"v_and_b32 {v(acc+2*k+1)}, {s(sMASKH)}, {v(op+k)}")
        for k in range(8): I(f"v_pk_mul_f32 {v(acc+2*k,2)}, {v(acc+2*k,2)}, {v(vRDS+2*qi,2)} op_sel_hi:[1,0]")
        for k in range(8): I(f"v_cvt_pk_bf16_f32 {v(op+k)}, {v(acc+2*k)}, {v(acc+2*k+1)}")
        G(f"w{qi}{dl}")
        for u in range(2):
            x = 64*dl + 16*u
            reg = vSW if x == 0 else vU + (x // 16 - 1 if x < 64 else x // 16 - 3)
            I(f"ds_write_b128 {v(reg)}, {v(op+4*u,4)} offset:{4096*qi}")
        GE(f"w{qi}{dl}")
    def R(qi):
        G(f"r{qi}")
        for j in range(4):
            I(f"ds_read_b128 {v(vST+16*qi+4*j,4)}, {v(vSR)} offset:{4096*qi + 1024*j}")
    def S(qi):
        for j in range(4):
            row = 32*qi + 8*j
            I(f"s_mov_b32 {s(sSOFF)}, {row*512}")
            I(f"s_waitcnt lgkmcnt({3-j})")
            I(f"buffer_store_dwordx4 {v(vST+16*qi+4*j,4)}, {v(vOA)}, {s(rO,4)}, {s(sSOFF)} offen{opt.ost}")
        GE(f"r{qi}")
    I(f"v_xor_b32 {v(vU)}, 16, {v(vSW)}")
    I(f"v_xor_b32 {v(vU+1)}, 64, {v(vSW)}")
    I(f"v_xor_b32 {v(vU+2)}, 80, {v(vSW)}")
    G("wt0")
    I(f"s_waitcnt vmcnt(4) lgkmcnt(0)")
    GE("wt0")
    stamp("F kv there")
    mm(0, 0)
    G("wt1")
    I(f"s_waitcnt vmcnt(0)")
    GE("wt1")
    mm(0, 1)
    epi(0, 0)
    epi(0, 1)
    mm(1, 0)
    mm(1, 1)
    I(f"s_waitcnt lgkmcnt(0)")
    R(0)
    S(0)
    epi(1, 0)
    epi(1, 1)
    I(f"s_waitcnt lgkmcnt(0)")
    R(1)
    S(1)
    if opt.dry: I(f"s_cbranch_execz L_dry_ret   ; nofence")
    STI[0] = 18
    stamp("stores issued")
    if opt.stamps: I("s_waitcnt vmcnt(0)")
    stamp("stores done")
    stamps_flush("f")

def build():
    set_regions(opt.kqv)
    common_start()
    I(f"s_cmp_ge_u32 {s(sWAVE)}, 4")
    I(f"s_cbranch_scc1 L_team_b")
    team_a()
    team_b()
    final()
    L("L_end")
    I("s_endpgm")
    body = A.render()
    hdr = f"""; Fused FAVOR+ (RFA) linear attention for B=1 H=16 S=2048 D=256 M=64, bf16.
;                       publish the bf16 partial, reduce one 64x16 slice of kv over the head's 16 partials, publish it
; write-through stores + drained flag words always work; when a head's 16 workgroups report (presence words) that they
; @launch grid=(256,1,1) block=(512,1,1) lds={LDS_BYTES}
.amdgcn_target "amdgcn-amd-amdhsa--gfx950"
.text
.globl {NAME}
.p2align 8
.type {NAME},@function
{NAME}:
"""
    ftr = f"""
.section .rodata,"a"
.p2align 6
.amdhsa_kernel {NAME}
  .amdhsa_next_free_vgpr 256
  .amdhsa_next_free_sgpr 102
  .amdhsa_accum_offset 256
  .amdhsa_group_segment_fixed_size 0
  .amdhsa_kernarg_size 56
  .amdhsa_user_sgpr_count 2
  .amdhsa_user_sgpr_kernarg_segment_ptr 1
  .amdhsa_system_sgpr_workgroup_id_x 1
  .amdhsa_float_denorm_mode_32 3
.end_amdhsa_kernel
"""
    return hdr + body + ftr

if __name__ == "__main__":
    out = sys.argv[1]
    for a in sys.argv[2:]:
        if a == "stamps": opt.stamps = True
        elif a == "light": opt.stamps = True; opt.light = True
        elif a == "nont": opt.nt = False
        elif a == "nofast": opt.fast = False
        elif a == "forceslow": opt.forceslow = True
        elif a == "nopretouch": opt.pretouch = False
        elif a == "mimicq": opt.mimicq = True; opt.bsetup = False
        elif a == "nomred": opt.mred = False
        elif a.startswith("cpfew="): opt.cpfew = int(a.split("=")[1])
        elif a.startswith("fsleep="): opt.fsleep = int(a.split("=")[1])
        elif a.startswith("wsoff="): opt.wsoff = int(a.split("=")[1]) << 20
        elif a == "dry": opt.dry = True
        elif a.startswith("shift="): opt.shift = int(a.split("=")[1])
        elif a.startswith("codepf2="): opt.codepf2 = int(a.split("=")[1])
        elif a.startswith("codelen="): opt.codelen = int(a.split("=")[1])
        elif a.startswith("forder="): opt.forder = int(a.split("=")[1])
        elif a == "nobsetup": opt.bsetup = False
        elif a == "early": opt.early = True
        elif a == "kko": opt.kko = True; opt.bomega = False
        elif a.startswith("holdall="): opt.holdall = a.split("=")[1]
        elif a == "kok": opt.kok = True
        elif a == "nokokbar": opt.kokbar = False
        elif a == "cyc": opt.cyc = True
        elif a == "holdst": opt.holdst = True
        elif a == "nobomega": opt.bomega = False
        elif a == "nokfast": opt.kfast = False
        elif a.startswith("kshadow="): opt.kshadow = int(a.split("=")[1])
        elif a.startswith("holdq="): opt.holdq = int(a.split("=")[1])
        elif a == "kqv": opt.kqv = True
        elif a.startswith("stagger="): opt.stagger = True; opt.pacept = a.split("=")[1]
        elif a == "prepart": opt.prepart = True; opt.partplain = True
        elif a.startswith("prepol="): opt.prepol = (" " + a.split("=")[1].replace("+", " ")).rstrip()
        elif a.startswith("partpol="): opt.partpol = " " + a.split("=")[1].replace("+", " ")
        elif a == "codepf": opt.codepf = True
        elif a == "partplain": opt.partplain = True
        elif a == "nopreread": opt.preread = False
        elif a == "mimicnum": opt.mimicnum = True
        elif a.startswith("dbgwg="): opt.dbgwg = int(a.split("=")[1])
        elif a.startswith("dbgwave="): opt.dbgwave = int(a.split("=")[1])
        elif a.startswith("ost="): opt.ost = " " + a.split("=")[1].replace("+", " ")
        else: raise SystemExit("unknown option " + a)
    txt = build()
    open(out, "w").write(txt)
    if opt.stamps: json.dump(STN, open(out + ".stamps.json", "w"))
    print("wrote", out, "nops inserted:", A.nops, "lines", txt.count("\n"))
```
